```python
import torch

def _softmax(x, axis=-1):
    return torch.softmax(x, dim=axis)
def _gelu(x):
    return torch.nn.functional.gelu(x, approximate="tanh")
def _silu(x):
    return torch.nn.functional.silu(x)
def _sigmoid(x):
    return torch.sigmoid(x)
def _layernorm(x, axis=-1, eps=1e-5):
    m = x.mean(dim=axis, keepdim=True)
    v = x.var(dim=axis, keepdim=True, unbiased=False)
    return (x - m) / torch.sqrt(v + eps)
def _scatter_add(tgt, idx, src, axis=0):
    return tgt.clone().index_add_(axis, idx, src)
def _segment_sum(src, seg, n):
    out = torch.zeros((n,) + src.shape[1:], dtype=src.dtype)
    return out.index_add_(0, seg, src)
def _pad(x, pw):
    flat = tuple(v for pair in reversed(pw) for v in pair)
    return torch.nn.functional.pad(x, flat)

kernel_name = 'recurrent_scan__gqa_block_cached__swiglu_ffn__decode'

def setup_inputs():

    _w = (lambda a: (lambda t: t.to(torch.bfloat16) if t.is_floating_point() else t)(torch.as_tensor(a)))
    def _A_setup():
        B, Sq, D = 1, 1, 576
        Hq, Hkv, Sk, Dh = 32, 16, 65536, 128
        assert Hq % Hkv == 0, (Hq, Hkv)
        return {
            "x": _w((lambda *s: torch.randn(*s, dtype=torch.bfloat16) * 0.05)(B, Sq, D)),
            "k_cache": _w((lambda *s: torch.randn(*s, dtype=torch.bfloat16) * 1.6)(B, Hkv, Sk, Dh)),
            "v_cache": _w((lambda *s: torch.randn(*s, dtype=torch.bfloat16) * 0.2)(B, Hkv, Sk, Dh)),
            "wq": _w((lambda *s: torch.randn(*s, dtype=torch.bfloat16) * 1.6)(D, Hq * Dh) * (D ** -0.5)),
            "wo": _w((lambda *s: torch.randn(*s, dtype=torch.bfloat16) * 0.2)(Hq * Dh, D) * ((Hq * Dh) ** -0.5)),
        }
    _A_in = _A_setup()

    def _B_setup():
        B, S, D, F = 1, 1, 576, 4608
        return {
            "x": _w((lambda *s: torch.randn(*s, dtype=torch.bfloat16) * 0.05)(B, S, D)),
            "w_gate": _w((lambda *s: torch.randn(*s, dtype=torch.bfloat16) * 0.1)(D, F)),
            "w_up": _w((lambda *s: torch.randn(*s, dtype=torch.bfloat16) * 0.1)(D, F)),
            "w_down": _w((lambda *s: torch.randn(*s, dtype=torch.bfloat16) * 0.1)(F, D)),
        }
    _B_in = _B_setup()

    return {
        "A_x": _A_in["x"],
        "A_k_cache": _A_in["k_cache"],
        "A_v_cache": _A_in["v_cache"],
        "A_wq": _A_in["wq"],
        "A_wo": _A_in["wo"],
        "B_x": _B_in["x"],
        "B_w_gate": _B_in["w_gate"],
        "B_w_up": _B_in["w_up"],
        "B_w_down": _B_in["w_down"],
    }

def reference(A_x, A_k_cache, A_v_cache, A_wq, A_wo, B_x, B_w_gate, B_w_up, B_w_down):
    def _A_ref(x, k_cache, v_cache, wq, wo):
        B, Sq, D = x.shape
        Hq, Dh = 32, 128
        Hkv = k_cache.shape[1]
        rep = Hq // Hkv
        q = (lambda x, *d: x.permute(*d))((x @ wq).reshape(B, Sq, Hq, Dh), 0, 2, 1, 3)
        k = (lambda x, n, axis: torch.repeat_interleave(x, n, dim=axis))(k_cache, rep, axis=1)
        v = (lambda x, n, axis: torch.repeat_interleave(x, n, dim=axis))(v_cache, rep, axis=1)
        scores = torch.einsum("bhqd,bhkd->bhqk", q, k) * (Dh ** -0.5)
        p = _softmax(scores, axis=-1)
        o = torch.einsum("bhqk,bhkd->bhqd", p, v)
        return (lambda x, *d: x.permute(*d))(o, 0, 2, 1, 3).reshape(B, Sq, Hq * Dh) @ wo

    def _B_ref(x, w_gate, w_up, w_down):
        g = _silu(x @ w_gate)
        u = x @ w_up
        return (g * u) @ w_down

    x = A_x
    xn = _layernorm(x, axis=-1)
    s = _A_ref(xn, A_k_cache, A_v_cache, A_wq, A_wo)
    g = _silu(_B_ref(xn, B_w_gate, B_w_up, B_w_down))
    return x + s * g
```

```python
import sys, struct

KNAME = "recurrent_scan__gqa_block_cached__swiglu_ffn__decode_kernel"

def f32bits(x):
    return struct.unpack("<I", struct.pack("<f", x))[0]

class Asm:
    def __init__(self):
        self.L = []
        self.vm = []
        self.lg = []
    def __call__(self, s):
        self.L.append("    " + s)
    def label(self, s):
        self.L.append(s + ":")
    def c(self, s):
        self.L.append("    ; " + s)
    def vmem(self, tag, s):
        self(s); self.vm.append(tag)
    def lds(self, tag, s):
        self(s); self.lg.append(tag)
    def wait_vm(self, tag):
        idx = [i for i, t in enumerate(self.vm) if t == tag]
        if not idx: return
        i = idx[-1]
        n = len(self.vm) - 1 - i
        self(f"s_waitcnt vmcnt({min(n,63)})")
        self.vm = self.vm[i+1:]
    def wait_vm_all(self):
        self("s_waitcnt vmcnt(0)"); self.vm = []
    def wait_lg(self, tag):
        idx = [i for i, t in enumerate(self.lg) if t == tag]
        if not idx: return
        i = idx[-1]
        n = len(self.lg) - 1 - i
        self(f"s_waitcnt lgkmcnt({min(n,15)})")
        self.lg = self.lg[i+1:]
    def wait_lg_all(self):
        self("s_waitcnt lgkmcnt(0)"); self.lg = []
    def nop(self, n):
        while n > 0:
            k = min(n, 16)
            self(f"s_nop {k-1}")
            n -= k

XN = 0
QP = 2560
QB = QP + 16384
FFP = QB + 512
COMB = FFP + 8192
CSTR = 1056
INO = COMB + 8 * CSTR
INH = INO + 2048
FIN = INH + 2048
FIN2 = FIN + 16384
LDS_BYTES = FIN2 + 8 * 36 * 8
LDS_BYTES = (LDS_BYTES + 1023) // 1024 * 1024
PSTR = 1152
WS_PART = 0
WS_HB = 256 * PSTR
WS_LV2 = WS_HB + 4608 * 4
WS_BYTES = WS_LV2 + 16 * 16 * 288

vTid, vL, vKoff, vVoff, vM, vLs, vMt = 0, 1, 2, 3, 4, 5, 6
vt = [7, 8, 9, 10, 11, 12, 13, 14, 15]
vQ = 16
SLOT = [32, 64, 96, 128]
vO = 160
vD = 192
vP = 200
vT = 204
vX = 220
vA = 246
vWQ = 96

sX, sK, sV, sWQ, sWO, sBX, sWG, sWU, sWD, sOUT, sDBG, sWS = [4 + 2 * i for i in range(12)]
rK, rV, rX, rWQ, rWG, rWU, rWO, rWD, rWS, rOUT, rDBG, rHB = [28 + 4 * i for i in range(12)]
sHP, sJ, sW, sWGI = 76, 77, 78, 79
sSelLo, sSelHi, sScale, sLog2e = 80, 81, 82, 83
sA0, sA1, sTmp, sTmp2, sOff, sCnt = 84, 85, 86, 87, 88, 89
sEx = 90
sTmp3 = 92

def srd(r): return f"s[{r}:{r+3}]"
def vr(b, n): return f"v[{b}:{b+n-1}]"

def bf16_round(a, dst, src):
    a(f"v_cvt_pk_bf16_f32 v{dst}, v{src}, v{src}")
    a(f"v_lshlrev_b32 v{dst}, 16, v{dst}")

def wave_allreduce(a, op, x, t):
    o = f"v_{op}_f32"
    for ctrl in ("quad_perm:[1,0,3,2]", "quad_perm:[2,3,0,1]", "row_half_mirror", "row_mirror"):
        a.nop(2)
        a(f"{o}_dpp v{x}, v{x}, v{x} {ctrl} row_mask:0xf bank_mask:0xf")
    cross_rows(a, op, x, t)

def cross_rows(a, op, x, t):
    o = f"v_{op}_f32"
    for sw in ("v_permlane32_swap_b32", "v_permlane16_swap_b32"):
        a(f"v_mov_b32 v{t}, v{x}")
        a.nop(2)
        a(f"{sw} v{x}, v{t}")
        a.nop(1)
        a(f"{o} v{x}, v{x}, v{t}")

def gen(opts):
    a = Asm()
    NG = 16
    a.L.append(f"; @launch grid=(256,1,1) block=(512,1,1) lds={LDS_BYTES}")
    a.L.append('.amdgcn_target "amdgcn-amd-amdhsa--gfx950"')
    a.L.append(".text")
    a.L.append(f".globl {KNAME}")
    a.L.append(".p2align 8")
    a.L.append(f".type {KNAME},@function")
    a.label(KNAME)
    a("s_cmp_ge_u32 s2, 256")
    a("s_cbranch_scc1 L_end")
    a("s_load_dwordx16 s[4:19], s[0:1], 0")
    a("s_load_dwordx8 s[20:27], s[0:1], 64")
    a(f"v_and_b32 v{vL}, 63, v0")
    a(f"v_lshrrev_b32 v{vt[0]}, 6, v0")
    a(f"s_and_b32 s{sHP}, s2, 7")
    a(f"s_lshl_b32 s{sHP}, s{sHP}, 1")
    a(f"v_readfirstlane_b32 s{sW}, v{vt[0]}")
    a(f"s_lshr_b32 s{sTmp}, s2, 3")
    a(f"s_and_b32 s{sTmp}, s{sTmp}, 1")
    a(f"s_add_u32 s{sHP}, s{sHP}, s{sTmp}")
    a(f"s_lshr_b32 s{sJ}, s2, 4")
    a(f"s_lshl_b32 s{sWGI}, s{sHP}, 4")
    a(f"s_add_u32 s{sWGI}, s{sWGI}, s{sJ}")
    a(f"s_mov_b32 s{sSelLo}, 0x05040100")
    a(f"s_mov_b32 s{sSelHi}, 0x07060302")
    a(f"s_mov_b32 s{sScale}, 0x{f32bits(128 ** -0.5):08x}")
    a(f"s_mov_b32 s{sLog2e}, 0x{f32bits(1.4426950408889634):08x}")
    a(f"v_and_b32 v{vt[0]}, 3, v{vL}")
    a(f"v_lshlrev_b32 v{vt[0]}, 10, v{vt[0]}")
    a(f"v_bfe_u32 v{vt[1]}, v{vL}, 2, 2")
    a(f"v_lshlrev_b32 v{vt[1]}, 8, v{vt[1]}")
    a(f"v_lshrrev_b32 v{vt[2]}, 4, v{vL}")
    a(f"v_lshlrev_b32 v{vt[2]}, 4, v{vt[2]}")
    a(f"v_add3_u32 v{vKoff}, v{vt[0]}, v{vt[1]}, v{vt[2]}")
    a(f"s_lshl_b32 s{sTmp}, s{sW}, 12")
    a(f"v_add_u32 v{vKoff}, s{sTmp}, v{vKoff}")
    a(f"v_lshlrev_b32 v{vVoff}, 4, v{vL}")
    a(f"v_add_u32 v{vVoff}, s{sTmp}, v{vVoff}")
    a(f"v_lshlrev_b32 v{vt[3]}, 2, v{vL}")
    a(f"v_lshrrev_b32 v{vt[0]}, 5, v{vL}")
    a(f"v_mul_u32_u24 v{vt[0]}, 36, v{vt[0]}")
    a(f"s_mul_i32 s{sTmp}, s{sW}, 72")
    a(f"v_add_u32 v{vt[0]}, s{sTmp}, v{vt[0]}")
    a(f"v_lshlrev_b32 v{vt[5]}, 2, v{vt[0]}")
    a(f"v_lshlrev_b32 v{vt[4]}, 13, v{vt[0]}")
    a(f"v_and_b32 v{vt[1]}, 31, v{vL}")
    a(f"v_lshlrev_b32 v{vt[1]}, 4, v{vt[1]}")
    a(f"v_add_u32 v{vt[4]}, v{vt[4]}, v{vt[1]}")
    a("s_waitcnt lgkmcnt(0)")
    def mk(r, p, off_s=None, size=None, size_s=None):
        if off_s is None:
            a(f"s_mov_b32 s{r}, s{p}")
            a(f"s_and_b32 s{r+1}, s{p+1}, 0xffff")
        else:
            a(f"s_add_u32 s{r}, s{p}, s{off_s}")
            a(f"s_addc_u32 s{r+1}, s{p+1}, 0")
            a(f"s_and_b32 s{r+1}, s{r+1}, 0xffff")
        if size_s is not None:
            a(f"s_mov_b32 s{r+2}, s{size_s}")
        else:
            a(f"s_mov_b32 s{r+2}, {size}")
        a(f"s_mov_b32 s{r+3}, 0x20000")
    mk(rX, sX, size=1152)
    a(f"s_lshl_b32 s{sTmp}, s{sHP}, 9")
    a(f"s_sub_u32 s{sTmp2}, {576*8192}, s{sTmp}")
    mk(rWQ, sWQ, sTmp, size_s=sTmp2)
    for j in range(5):
        a.vmem("x", f"buffer_load_dword v{vA+j}, v{vt[3]}, {srd(rX)}, 0 offen offset:{j*256}")
    for i in range(36):
        a(f"s_mov_b32 s{sOff}, {i*8192}")
        a.vmem(f"wq{i}", f"buffer_load_dwordx4 {vr(vWQ+4*i,4)}, v{vt[4]}, {srd(rWQ)}, s{sOff} offen")
    a(f"s_lshl_b32 s{sTmp}, s{sWGI}, 20")
    mk(rK, sK, sTmp, size=1 << 20)
    mk(rV, sV, sTmp, size=1 << 20)

    def issue_K(gj):
        slot = SLOT[0] if gj % 2 == 0 else SLOT[2]
        for t in range(2):
            issue_Ktile(gj, t)
    def issue_Ktile(gj, t):
        slot = SLOT[0] if gj % 2 == 0 else SLOT[2]
        a(f"s_mov_b32 s{sOff}, {(2*gj+t)*32768}")
        for i in range(4):
            a.vmem(f"K{gj}_{t}", f"buffer_load_dwordx4 {vr(slot+16*t+4*i,4)}, v{vKoff}, {srd(rK)}, s{sOff} offen offset:{i*64} nt")
    def issue_V(gj):
        slot = SLOT[1] if gj % 2 == 0 else SLOT[3]
        for t in range(2):
            a(f"s_mov_b32 s{sOff}, {(2*gj+t)*32768}")
            for r in range(4):
                a.vmem(f"V{gj}", f"buffer_load_dwordx4 {vr(slot+16*t+4*r,4)}, v{vVoff}, {srd(rV)}, s{sOff} offen offset:{r*1024} nt")
    issue_K(0)
    issue_V(0)
    mk(rWG, sWG, size=576 * 9216)
    mk(rWU, sWU, size=576 * 9216)
    a(f"s_mul_i32 s{sTmp}, s{sHP}, {256*1152}")
    mk(rWO, sWO, sTmp, size=256 * 1152)
    a(f"s_mul_i32 s{sTmp}, s{sHP}, {288*1152}")
    mk(rWD, sWD, sTmp, size=288 * 1152)
    mk(rWS, sWS, size=WS_BYTES)
    mk(rOUT, sOUT, size=1152)
    mk(rDBG, sDBG, size=256)
    a(f"s_mul_i32 s{sTmp}, s{sHP}, 1152")
    a(f"s_add_u32 s{sTmp}, s{sTmp}, {WS_HB}")
    mk(rHB, sWS, sTmp, size=1152)

    a.c("layernorm")
    a.wait_vm("x")
    xf = [vQ + i for i in range(10)]
    for j in range(5):
        a(f"v_lshlrev_b32 v{xf[2*j]}, 16, v{vA+j}")
        a(f"v_and_b32 v{xf[2*j+1]}, 0xffff0000, v{vA+j}")
    s_ = vt[0]
    a(f"v_add_f32 v{s_}, v{xf[0]}, v{xf[1]}")
    for i in range(2, 10):
        a(f"v_add_f32 v{s_}, v{s_}, v{xf[i]}")
    wave_allreduce(a, "add", s_, vt[1])
    a(f"v_mul_f32 v{s_}, 0x{f32bits(1.0/576):08x}, v{s_}")
    a(f"v_cmp_gt_u32 vcc, 32, v{vL}")
    q_ = vt[2]
    a(f"v_mov_b32 v{q_}, 0")
    for i in range(10):
        a(f"v_sub_f32 v{vt[1]}, v{xf[i]}, v{s_}")
        if i >= 8:
            a(f"v_cndmask_b32 v{vt[1]}, 0, v{vt[1]}, vcc")
        a(f"v_fmac_f32 v{q_}, v{vt[1]}, v{vt[1]}")
    wave_allreduce(a, "add", q_, vt[1])
    a(f"v_mul_f32 v{q_}, 0x{f32bits(1.0/576):08x}, v{q_}")
    bf16_round(a, s_, s_)
    bf16_round(a, q_, q_)
    a(f"v_add_f32 v{q_}, 0x{f32bits(1e-5):08x}, v{q_}")
    bf16_round(a, q_, q_)
    a(f"v_sqrt_f32 v{q_}, v{q_}")
    a.nop(1)
    bf16_round(a, q_, q_)
    rc = vt[1]
    a(f"v_rcp_f32 v{rc}, v{q_}")
    a.nop(1)
    for i in range(10):
        d = xf[i]
        a(f"v_sub_f32 v{d}, v{d}, v{s_}")
        bf16_round(a, d, d)
        a(f"v_mul_f32 v{vt[6]}, v{d}, v{rc}")
        a(f"v_fma_f32 v{vt[7]}, -v{vt[6]}, v{q_}, v{d}")
        a(f"v_fma_f32 v{d}, v{vt[7]}, v{rc}, v{vt[6]}")
        bf16_round(a, d, d)
        if i >= 8:
            a(f"v_cndmask_b32 v{d}, 0, v{d}, vcc")
    a(f"v_lshlrev_b32 v{vt[0]}, 3, v{vL}")
    for j in range(5):
        a.lds("xnw", f"ds_write_b64 v{vt[0]}, {vr(xf[2*j],2)} offset:{XN + j*512}")
    a.c("q projection")
    acc = [vA + i for i in range(8)]
    for e in range(8):
        a(f"v_mov_b32 v{acc[e]}, 0")
    for b in range(3):
        for k in range(3):
            a.lds("xnr", f"ds_read_b128 {vr(vQ+4*k,4)}, v{vt[5]} offset:{XN + (b*12+4*k)*4}")
        a.wait_lg("xnr")
        for ii in range(12):
            i = b * 12 + ii
            a.wait_vm(f"wq{i}")
            for d in range(4):
                r = vWQ + 4 * i + d
                a(f"v_lshlrev_b32 v{vt[0]}, 16, v{r}")
                a(f"v_and_b32 v{vt[1]}, 0xffff0000, v{r}")
                a(f"v_fmac_f32 v{acc[2*d]}, v{vt[0]}, v{vQ+ii}")
                a(f"v_fmac_f32 v{acc[2*d+1]}, v{vt[1]}, v{vQ+ii}")
            if i == 7: issue_K(1)
            if i == 15: issue_V(1)
    a.c("ffn loads")
    vRR, vJJ = vt[6], vt[7]
    a(f"v_mul_u32_u24 v{vRR}, 57, v{vL}")
    a(f"v_lshrrev_b32 v{vRR}, 9, v{vRR}")
    a(f"v_mul_u32_u24 v{vJJ}, 9, v{vRR}")
    a(f"v_sub_u32 v{vJJ}, v{vL}, v{vJJ}")
    vRow = vt[8]
    a(f"s_mul_i32 s{sTmp}, s{sW}, 7")
    a(f"v_add_u32 v{vRow}, s{sTmp}, v{vRR}")
    a(f"s_mov_b32 s{sTmp}, 9216")
    a(f"v_mul_lo_u32 v{vt[0]}, v{vRow}, s{sTmp}")
    a(f"s_mul_i32 s{sTmp}, s{sWGI}, 36")
    a(f"v_lshl_add_u32 v{vt[0]}, v{vJJ}, 2, v{vt[0]}")
    a(f"v_add_u32 v{vt[0]}, s{sTmp}, v{vt[0]}")
    a(f"v_cmp_gt_u32 vcc, 63, v{vL}")
    a(f"v_mov_b32 v{vt[1]}, 0x7f000000")
    a.nop(1)
    a(f"v_cndmask_b32 v{vt[0]}, v{vt[1]}, v{vt[0]}, vcc")
    for i in range(11):
        a(f"s_mov_b32 s{sOff}, {i*8*7*9216}")
        a.vmem("ffn", f"buffer_load_dword v{vX+2*i}, v{vt[0]}, {srd(rWG)}, s{sOff} offen")
        a.vmem("ffn", f"buffer_load_dword v{vX+2*i+1}, v{vt[0]}, {srd(rWU)}, s{sOff} offen")
    a(f"v_lshrrev_b32 v{vt[0]}, 5, v0")
    a(f"v_lshlrev_b32 v{vt[0]}, 10, v{vt[0]}")
    a(f"v_and_b32 v{vt[1]}, 31, v{vL}")
    a(f"v_lshl_add_u32 v{vt[0]}, v{vt[1]}, 5, v{vt[0]}")
    a.lds("qpw", f"ds_write_b128 v{vt[0]}, {vr(acc[0],4)} offset:{QP}")
    a.lds("qpw", f"ds_write_b128 v{vt[0]}, {vr(acc[4],4)} offset:{QP+16}")
    a.wait_lg_all()
    a("s_barrier")
    a(f"s_cmp_ge_u32 s{sW}, 4")
    a("s_cbranch_scc1 L_qskip")
    a(f"v_lshlrev_b32 v{vt[0]}, 2, v0")
    for p in range(16):
        a.lds("qpr", f"ds_read_b32 v{vQ+p}, v{vt[0]} offset:{QP + p*1024}")
    a.wait_lg_all()
    for p in range(1, 16):
        a(f"v_add_f32 v{vQ}, v{vQ}, v{vQ+p}")
    a(f"v_cvt_pk_bf16_f32 v{vQ}, v{vQ}, v{vQ}")
    a(f"v_lshlrev_b32 v{vt[0]}, 1, v0")
    a.lds("qbw", f"ds_write_b16 v{vt[0]}, v{vQ} offset:{QB}")
    a.wait_lg_all()
    a.label("L_qskip")
    a("s_barrier")
    a(f"v_and_b32 v{vt[0]}, 1, v{vL}")
    a(f"v_lshlrev_b32 v{vt[0]}, 8, v{vt[0]}")
    a(f"v_lshrrev_b32 v{vt[1]}, 4, v{vL}")
    a(f"v_lshl_add_u32 v{vt[0]}, v{vt[1]}, 4, v{vt[0]}")
    for i in range(4):
        a.lds("qr", f"ds_read_b128 {vr(vQ+4*i,4)}, v{vt[0]} offset:{QB + i*64}")
    a(f"v_mov_b32 v{vM}, 0xff800000")
    a(f"v_mov_b32 v{vMt}, 0xff800000")
    a(f"v_mov_b32 v{vLs}, 0")
    for i in range(32):
        a(f"v_mov_b32 v{vO+i}, 0")
    a.wait_lg_all()

    a(f"v_mov_b32 v{vA+8}, v{vRow}")
    a(f"v_mov_b32 v{vA+9}, v{vJJ}")
    vRow, vJJ = vA + 8, vA + 9

    def ffn_fma():
        a.c("ffn fma")
        ac = [vA + i for i in range(4)]
        for e in range(4):
            a(f"v_mov_b32 v{ac[e]}, 0")
        a(f"v_lshlrev_b32 v{vt[0]}, 2, v{vRow}")
        xr = [vT + i for i in range(11)]
        for i in range(11):
            a.lds("fx", f"ds_read_b32 v{xr[i]}, v{vt[0]} offset:{XN + i*56*4}")
        a.wait_lg_all()
        for i in range(11):
            for mt in range(2):
                r = vX + 2 * i + mt
                a(f"v_lshlrev_b32 v{vt[0]}, 16, v{r}")
                a(f"v_and_b32 v{vt[1]}, 0xffff0000, v{r}")
                a(f"v_fmac_f32 v{ac[2*mt]}, v{vt[0]}, v{xr[i]}")
                a(f"v_fmac_f32 v{ac[2*mt+1]}, v{vt[1]}, v{xr[i]}")
        a(f"v_lshlrev_b32 v{vt[0]}, 4, v0")
        a.lds("fw", f"ds_write_b128 v{vt[0]}, {vr(ac[0],4)} offset:{FFP}")
        a(f"s_mov_b32 s{sTmp}, 1152")
        a(f"v_mul_lo_u32 v{vt[0]}, v{vRow}, s{sTmp}")
        a(f"s_mul_i32 s{sTmp}, s{sJ}, 72")
        a(f"v_lshl_add_u32 v{vt[0]}, v{vJJ}, 3, v{vt[0]}")
        a(f"v_add_u32 v{vt[0]}, s{sTmp}, v{vt[0]}")
        a(f"v_cmp_gt_u32 vcc, 63, v{vL}")
        a(f"v_mov_b32 v{vt[1]}, 0x7f000000")
        a.nop(1)
        a(f"v_cndmask_b32 v{vt[0]}, v{vt[1]}, v{vt[0]}, vcc")
        for i in range(5):
            a(f"s_mov_b32 s{sOff}, {i*56*1152}")
            a.vmem("w2", f"buffer_load_dwordx2 {vr(vX+2*i,2)}, v{vt[0]}, {srd(rWO)}, s{sOff} offen")
        for i in range(6):
            a(f"s_mov_b32 s{sOff}, {i*56*1152}")
            a.vmem("w2", f"buffer_load_dwordx2 {vr(vX+10+2*i,2)}, v{vt[0]}, {srd(rWD)}, s{sOff} offen")
        a.wait_lg_all()

    def ffn_reduce():
        a.c("ffn reduce (wave 0)")
        a("s_barrier")
        a(f"s_cmp_lg_u32 s{sW}, 0")
        a("s_cbranch_scc1 L_fskip")
        a(f"v_lshrrev_b32 v{vt[0]}, 1, v{vL}")
        a(f"v_lshlrev_b32 v{vt[0]}, 4, v{vt[0]}")
        a(f"v_and_b32 v{vt[1]}, 1, v{vL}")
        a(f"v_lshl_add_u32 v{vt[0]}, v{vt[1]}, 2, v{vt[0]}")
        g_, u_ = vA, vA + 1
        a(f"v_mov_b32 v{g_}, 0")
        a(f"v_mov_b32 v{u_}, 0")
        for w in range(8):
            for rr in range(7):
                off = FFP + (w * 64 + rr * 9) * 16
                a.lds("fr", f"ds_read_b32 v{vT+2*rr}, v{vt[0]} offset:{off}")
                a.lds("fr", f"ds_read_b32 v{vT+2*rr+1}, v{vt[0]} offset:{off+8}")
            a.wait_lg_all()
            for rr in range(7):
                a(f"v_add_f32 v{g_}, v{g_}, v{vT+2*rr}")
                a(f"v_add_f32 v{u_}, v{u_}, v{vT+2*rr+1}")
        bf16_round(a, g_, g_)
        bf16_round(a, u_, u_)
        silu(g_)
        a(f"v_mul_f32 v{g_}, v{g_}, v{u_}")
        bf16_round(a, g_, g_)
        a(f"s_mul_i32 s{sTmp}, s{sWGI}, 72")
        a(f"s_add_u32 s{sTmp}, s{sTmp}, {WS_HB}")
        a(f"v_lshlrev_b32 v{vt[0]}, 2, v{vL}")
        a(f"v_add_u32 v{vt[0]}, s{sTmp}, v{vt[0]}")
        a(f"s_mov_b64 exec, 0x3ffff")
        a(f"buffer_store_dword v{g_}, v{vt[0]}, {srd(rWS)}, 0 offen sc1")
        a(f"s_mov_b64 exec, -1")
        a.label("L_fskip")

    def silu(x):
        a(f"v_mul_f32 v{vt[2]}, s{sLog2e}, v{x}")
        a(f"v_exp_f32 v{vt[2]}, -v{vt[2]}")
        a.nop(1)
        a(f"v_add_f32 v{vt[2]}, 1.0, v{vt[2]}")
        a(f"v_rcp_f32 v{vt[3]}, v{vt[2]}")
        a.nop(1)
        a(f"v_mul_f32 v{vt[4]}, v{x}, v{vt[3]}")
        a(f"v_fma_f32 v{vt[5]}, -v{vt[4]}, v{vt[2]}, v{x}")
        a(f"v_fma_f32 v{x}, v{vt[5]}, v{vt[3]}, v{vt[4]}")
        a(f"v_cmp_eq_f32 vcc, 0x7f800000, v{vt[2]}")
        a.nop(2)
        a(f"v_cndmask_b32 v{x}, v{x}, v{vt[4]}, vcc")
        bf16_round(a, x, x)

    d = [vD + i for i in range(8)]
    for gj in range(NG):
        a.c(f"==== group {gj} ====")
        ks = SLOT[0] if gj % 2 == 0 else SLOT[2]
        vs = SLOT[1] if gj % 2 == 0 else SLOT[3]
        for t in range(2):
            a.wait_vm(f"K{gj}_{t}")
            for i in range(4):
                cin = "0" if i == 0 else vr(vD + 4 * t, 4)
                a(f"v_mfma_f32_16x16x32_bf16 {vr(vD+4*t,4)}, {vr(ks+16*t+4*i,4)}, {vr(vQ+4*i,4)}, {cin}")
            if gj + 2 < NG:
                issue_Ktile(gj + 2, t)
        if gj + 2 >= NG:
            a.nop(8)
        else:
            a.nop(3)
        if gj == 2:
            ffn_fma()
        tt = vt
        for k in range(4):
            a(f"v_cvt_pk_bf16_f32 v{tt[k]}, v{d[2*k]}, v{d[2*k+1]}")
        for k in range(4):
            a(f"v_lshlrev_b32 v{d[2*k]}, 16, v{tt[k]}")
            a(f"v_and_b32 v{d[2*k+1]}, 0xffff0000, v{tt[k]}")
        for k in range(8):
            a(f"v_mul_f32 v{d[k]}, s{sScale}, v{d[k]}")
        for k in range(4):
            a(f"v_cvt_pk_bf16_f32 v{tt[k]}, v{d[2*k]}, v{d[2*k+1]}")
        for k in range(4):
            a(f"v_lshlrev_b32 v{d[2*k]}, 16, v{tt[k]}")
            a(f"v_and_b32 v{d[2*k+1]}, 0xffff0000, v{tt[k]}")
        mx = tt[4]
        a(f"v_max3_f32 v{mx}, v{d[0]}, v{d[1]}, v{d[2]}")
        a(f"v_max3_f32 v{mx}, v{mx}, v{d[3]}, v{d[4]}")
        a(f"v_max3_f32 v{mx}, v{mx}, v{d[5]}, v{d[6]}")
        a(f"v_max3_f32 v{mx}, v{mx}, v{d[7]}, v{vM}")
        cross_rows(a, "max", mx, tt[5])
        a(f"v_mul_f32 v{tt[5]}, s{sLog2e}, v{mx}")
        al = tt[6]
        a(f"v_sub_f32 v{al}, v{vMt}, v{tt[5]}")
        a(f"v_exp_f32 v{al}, v{al}")
        a(f"v_mov_b32 v{vM}, v{mx}")
        a(f"v_mov_b32 v{vMt}, v{tt[5]}")
        for k in range(8):
            a(f"v_fma_f32 v{d[k]}, v{d[k]}, s{sLog2e}, -v{vMt}")
        for k in range(8):
            a(f"v_exp_f32 v{d[k]}, v{d[k]}")
        a(f"v_readlane_b32 s{sA0}, v{al}, 0")
        a(f"v_readlane_b32 s{sA1}, v{al}, 1")
        a(f"v_mul_f32 v{vLs}, v{vLs}, v{al}")
        for k in range(4):
            a(f"v_cvt_pk_bf16_f32 v{vP+k}, v{d[2*k]}, v{d[2*k+1]}")
        for k in range(8):
            a(f"v_add_f32 v{vLs}, v{vLs}, v{d[k]}")
        for i in range(8):
            a(f"v_mul_f32 v{vO+4*i}, s{sA0}, v{vO+4*i}")
            a(f"v_mul_f32 v{vO+4*i+1}, s{sA1}, v{vO+4*i+1}")
        a.wait_vm(f"V{gj}")
        def perms(i):
            dd, b = i >> 1, i & 1
            sel = sSelHi if b else sSelLo
            for p in range(4):
                lo = vs + 4 * (2 * p) + dd
                hi = vs + 4 * (2 * p + 1) + dd
                a(f"v_perm_b32 v{vT + 4*(i%4) + p}, v{hi}, v{lo}, s{sel}")
        perms(0)
        for i in range(8):
            if i + 1 < 8:
                perms(i + 1)
            else:
                a.nop(2)
            a(f"v_mfma_f32_16x16x32_bf16 {vr(vO+4*i,4)}, {vr(vP,4)}, {vr(vT+4*(i%4),4)}, {vr(vO+4*i,4)}")
        if gj + 2 < NG:
            issue_V(gj + 2)
        if gj == 4:
            ffn_reduce()

    a.c("wg combine")
    cross_rows(a, "add", vLs, vt[0])
    a.nop(8)
    a(f"s_mul_i32 s{sTmp}, s{sW}, {CSTR}")
    a(f"v_lshlrev_b32 v{vt[0]}, 5, v{vL}")
    a(f"v_add_u32 v{vt[0]}, s{sTmp}, v{vt[0]}")
    a(f"v_add_u32 v{vt[0]}, {COMB}, v{vt[0]}")
    a(f"v_lshlrev_b32 v{vt[1]}, 2, v{vL}")
    a(f"v_add_u32 v{vt[1]}, s{sTmp}, v{vt[1]}")
    a("s_mov_b64 exec, 0xffff")
    for h in range(2):
        for i in range(0, 8, 2):
            a.lds("cw", f"ds_write2_b32 v{vt[0]}, v{vO+4*i+h}, v{vO+4*(i+1)+h} offset0:{h*128+i} offset1:{h*128+i+1}")
    a("s_mov_b64 exec, 3")
    a.lds("cw", f"ds_write_b32 v{vt[1]}, v{vMt} offset:{COMB+1024}")
    a.lds("cw", f"ds_write_b32 v{vt[1]}, v{vLs} offset:{COMB+1032}")
    a("s_mov_b64 exec, -1")
    a.wait_lg_all()
    a("s_barrier")
    a(f"s_cmp_ge_u32 s{sW}, 4")
    a("s_cbranch_scc1 L_cskip")
    a(f"v_lshlrev_b32 v{vt[0]}, 2, v0")
    a(f"v_lshrrev_b32 v{vt[1]}, 7, v0")
    a(f"v_lshlrev_b32 v{vt[1]}, 2, v{vt[1]}")
    mreg = [SLOT[0] + i for i in range(8)]
    lreg = [SLOT[0] + 8 + i for i in range(8)]
    oreg = [SLOT[0] + 16 + i for i in range(8)]
    for w in range(8):
        a.lds("cr", f"ds_read_b32 v{mreg[w]}, v{vt[1]} offset:{COMB + w*CSTR + 1024}")
    for w in range(8):
        a.lds("cr", f"ds_read_b32 v{lreg[w]}, v{vt[1]} offset:{COMB + w*CSTR + 1032}")
        a.lds("cr", f"ds_read_b32 v{oreg[w]}, v{vt[0]} offset:{COMB + w*CSTR}")
    a.wait_lg_all()
    def combine(n, mreg, lreg, oreg, M, Lr, Or):
        a(f"v_max3_f32 v{M}, v{mreg[0]}, v{mreg[1]}, v{mreg[2]}")
        k = 3
        while k < n:
            if k + 1 < n:
                a(f"v_max3_f32 v{M}, v{M}, v{mreg[k]}, v{mreg[k+1]}"); k += 2
            else:
                a(f"v_max_f32 v{M}, v{M}, v{mreg[k]}"); k += 1
        for w in range(n):
            a(f"v_sub_f32 v{mreg[w]}, v{mreg[w]}, v{M}")
        for w in range(n):
            a(f"v_exp_f32 v{mreg[w]}, v{mreg[w]}")
        a.nop(1)
        a(f"v_mul_f32 v{Lr}, v{mreg[0]}, v{lreg[0]}")
        a(f"v_mul_f32 v{Or}, v{mreg[0]}, v{oreg[0]}")
        for w in range(1, n):
            a(f"v_fmac_f32 v{Lr}, v{mreg[w]}, v{lreg[w]}")
            a(f"v_fmac_f32 v{Or}, v{mreg[w]}, v{oreg[w]}")
    M, Lr, Or = vA + 4, vA + 5, vA + 6
    combine(8, mreg, lreg, oreg, M, Lr, Or)
    a(f"s_mul_i32 s{sOff}, s{sWGI}, {PSTR}")
    a(f"buffer_store_dword v{Or}, v{vt[0]}, {srd(rWS)}, s{sOff} offen sc1")
    a(f"v_lshlrev_b32 v{vt[1]}, 1, v{vt[1]}")
    a(f"v_and_b32 v{vt[2]}, 127, v0")
    a(f"v_cmp_eq_u32 vcc, 0, v{vt[2]}")
    a(f"s_and_saveexec_b64 s[{sEx}:{sEx+1}], vcc")
    a("s_cbranch_execz L_mlskip")
    a(f"buffer_store_dwordx2 {vr(M,2)}, v{vt[1]}, {srd(rWS)}, s{sOff} offen offset:1024 sc1")
    a.label("L_mlskip")
    a(f"s_mov_b64 exec, -1")
    a.label("L_cskip")
    a.wait_vm_all()
    a("s_barrier")
    a.c("level-1 sync")
    a(f"s_cmp_lg_u32 s{sW}, 0")
    a("s_cbranch_scc1 L_pdone")
    a(f"s_lshl_b32 s{sTmp}, s{sHP}, 2")
    a(f"v_mov_b32 v{vt[0]}, s{sTmp}")
    a(f"v_mov_b32 v{vt[1]}, 1")
    a("s_mov_b64 exec, 1")
    a(f"buffer_atomic_add v{vt[1]}, v{vt[0]}, {srd(rDBG)}, 0 offen")
    a(f"s_mov_b32 s{sCnt}, 0x40000")
    a.label("L_poll")
    a(f"buffer_load_dword v{vt[2]}, v{vt[0]}, {srd(rDBG)}, 0 offen sc1")
    a("s_waitcnt vmcnt(0)")
    a(f"v_readfirstlane_b32 s{sTmp}, v{vt[2]}")
    a(f"s_cmp_ge_u32 s{sTmp}, 16")
    a("s_cbranch_scc1 L_pexit")
    a(f"s_sub_u32 s{sCnt}, s{sCnt}, 1")
    a(f"s_cmp_eq_u32 s{sCnt}, 0")
    a("s_cbranch_scc1 L_pexit")
    a("s_sleep 1")
    a("s_branch L_poll")
    a.label("L_pexit")
    a("s_mov_b64 exec, -1")
    a.label("L_pdone")
    a("s_barrier")
    a.c("final stage: gather")
    a(f"s_cmp_ge_u32 s{sW}, 4")
    a("s_cbranch_scc1 L_hpath")
    a(f"v_lshlrev_b32 v{vt[0]}, 2, v0")
    a(f"v_lshrrev_b32 v{vt[1]}, 7, v0")
    a(f"v_lshlrev_b32 v{vt[1]}, 3, v{vt[1]}")
    a(f"s_mul_i32 s{sOff}, s{sHP}, {16*PSTR}")
    ml = SLOT[0]
    og = SLOT[1]
    for jp in range(16):
        a(f"buffer_load_dwordx2 {vr(ml+2*jp,2)}, v{vt[1]}, {srd(rWS)}, s{sOff} offen offset:1024 sc1")
        a(f"buffer_load_dword v{og+jp}, v{vt[0]}, {srd(rWS)}, s{sOff} offen sc1")
        if jp < 15:
            a(f"s_add_u32 s{sOff}, s{sOff}, {PSTR}")
    a("s_waitcnt vmcnt(0)")
    combine(16, [ml + 2 * k for k in range(16)], [ml + 2 * k + 1 for k in range(16)], [og + k for k in range(16)], M, Lr, Or)
    a(f"v_rcp_f32 v{vt[3]}, v{Lr}")
    a.nop(1)
    a(f"v_mul_f32 v{vt[4]}, v{Or}, v{vt[3]}")
    a(f"v_fma_f32 v{vt[5]}, -v{vt[4]}, v{Lr}, v{Or}")
    a(f"v_fma_f32 v{Or}, v{vt[5]}, v{vt[3]}, v{vt[4]}")
    bf16_round(a, Or, Or)
    a(f"ds_write_b32 v{vt[0]}, v{Or} offset:{INO}")
    a("s_branch L_gdone")
    a.label("L_hpath")
    a(f"v_and_b32 v{vt[0]}, 255, v0")
    a(f"v_lshlrev_b32 v{vt[0]}, 2, v{vt[0]}")
    a(f"buffer_load_dword v{vt[1]}, v{vt[0]}, {srd(rHB)}, 0 offen sc1")
    a(f"buffer_load_dword v{vt[2]}, v{vt[0]}, {srd(rHB)}, 0 offen offset:1024 sc1")
    a(f"v_mov_b32 v{vt[3]}, 0")
    a(f"ds_write_b32 v{vt[0]}, v{vt[3]} offset:{INO+1024}")
    a("s_waitcnt vmcnt(0)")
    a(f"ds_write_b32 v{vt[0]}, v{vt[1]} offset:{INH}")
    a(f"ds_write_b32 v{vt[0]}, v{vt[2]} offset:{INH+1024}")
    a.label("L_gdone")
    a("s_waitcnt lgkmcnt(0)")
    a("s_barrier")
    a.c("final matmul")
    a(f"v_lshlrev_b32 v{vt[0]}, 2, v{vRow}")
    inr = [SLOT[0] + i for i in range(11)]
    for i in range(5):
        a(f"ds_read_b32 v{inr[i]}, v{vt[0]} offset:{INO + i*56*4}")
    for i in range(6):
        a(f"ds_read_b32 v{inr[5+i]}, v{vt[0]} offset:{INH + i*56*4}")
    fa = [SLOT[1] + i for i in range(8)]
    for e in range(8):
        a(f"v_mov_b32 v{fa[e]}, 0")
    a("s_waitcnt lgkmcnt(0)")
    for i in range(11):
        which = 0 if i < 5 else 1
        for dd in range(2):
            r = vX + 2 * i + dd
            a(f"v_lshlrev_b32 v{vt[1]}, 16, v{r}")
            a(f"v_and_b32 v{vt[2]}, 0xffff0000, v{r}")
            a(f"v_fmac_f32 v{fa[2*(2*dd)+which]}, v{vt[1]}, v{inr[i]}")
            a(f"v_fmac_f32 v{fa[2*(2*dd+1)+which]}, v{vt[2]}, v{inr[i]}")
    a(f"v_lshlrev_b32 v{vt[0]}, 5, v0")
    a(f"ds_write_b128 v{vt[0]}, {vr(fa[0],4)} offset:{FIN}")
    a(f"ds_write_b128 v{vt[0]}, {vr(fa[4],4)} offset:{FIN+16}")
    a(f"v_lshrrev_b32 v{vt[0]}, 2, v{vL}")
    a(f"v_lshlrev_b32 v{vt[0]}, 5, v{vt[0]}")
    a(f"v_and_b32 v{vt[1]}, 3, v{vL}")
    a(f"v_lshl_add_u32 v{vt[0]}, v{vt[1]}, 3, v{vt[0]}")
    a(f"s_lshl_b32 s{sTmp}, s{sW}, 11")
    a(f"v_add_u32 v{vt[0]}, s{sTmp}, v{vt[0]}")
    a("s_waitcnt lgkmcnt(0)")
    rb = SLOT[2]
    for rr in range(7):
        a(f"ds_read_b64 {vr(rb+2*rr,2)}, v{vt[0]} offset:{FIN + rr*9*32}")
    a("s_waitcnt lgkmcnt(0)")
    for rr in range(1, 7):
        a(f"v_add_f32 v{rb}, v{rb}, v{rb+2*rr}")
        a(f"v_add_f32 v{rb+1}, v{rb+1}, v{rb+2*rr+1}")
    a(f"s_mul_i32 s{sTmp}, s{sW}, 288")
    a(f"v_lshlrev_b32 v{vt[1]}, 3, v{vL}")
    a(f"v_add_u32 v{vt[2]}, s{sTmp}, v{vt[1]}")
    a("s_mov_b32 exec_hi, 0xf")
    a(f"ds_write_b64 v{vt[2]}, {vr(rb,2)} offset:{FIN2}")
    a("s_mov_b64 exec, -1")
    a("s_waitcnt lgkmcnt(0)")
    a("s_barrier")
    a(f"s_cmp_lg_u32 s{sW}, 0")
    a("s_cbranch_scc1 L_end")
    a("s_mov_b32 exec_hi, 0xf")
    for w in range(8):
        a(f"ds_read_b64 {vr(rb+2*w,2)}, v{vt[1]} offset:{FIN2 + w*288}")
    a("s_waitcnt lgkmcnt(0)")
    for w in range(1, 8):
        a(f"v_add_f32 v{rb}, v{rb}, v{rb+2*w}")
        a(f"v_add_f32 v{rb+1}, v{rb+1}, v{rb+2*w+1}")
    a(f"s_lshl_b32 s{sTmp}, s{sJ}, 4")
    a(f"s_add_u32 s{sTmp}, s{sTmp}, s{sHP}")
    a(f"s_mul_i32 s{sOff}, s{sTmp}, 288")
    a(f"s_add_u32 s{sOff}, s{sOff}, {WS_LV2}")
    a(f"buffer_store_dwordx2 {vr(rb,2)}, v{vt[1]}, {srd(rWS)}, s{sOff} offen sc1")
    a(f"s_mul_i32 s{sTmp}, s{sJ}, 72")
    a(f"v_lshlrev_b32 v{vt[6]}, 1, v{vL}")
    a(f"v_add_u32 v{vt[6]}, s{sTmp}, v{vt[6]}")
    a(f"buffer_load_ushort v{vt[7]}, v{vt[6]}, {srd(rX)}, 0 offen")
    a("s_waitcnt vmcnt(0)")
    a(f"s_lshl_b32 s{sTmp}, s{sJ}, 2")
    a(f"s_add_u32 s{sTmp}, s{sTmp}, 64")
    a(f"v_mov_b32 v{vt[0]}, s{sTmp}")
    a(f"v_mov_b32 v{vt[2]}, 1")
    a("s_mov_b64 exec, 1")
    a(f"buffer_atomic_add v{vt[2]}, v{vt[0]}, {srd(rDBG)}, 0 offen sc0")
    a("s_waitcnt vmcnt(0)")
    a(f"v_readfirstlane_b32 s{sTmp}, v{vt[2]}")
    a("s_mov_b32 exec_lo, -1")
    a("s_mov_b32 exec_hi, 0xf")
    a(f"s_cmp_lg_u32 s{sTmp}, 15")
    a("s_cbranch_scc1 L_end")
    a(f"s_mul_i32 s{sOff}, s{sJ}, {16*288}")
    a(f"s_add_u32 s{sOff}, s{sOff}, {WS_LV2}")
    for k in range(16):
        if k == 8:
            a(f"s_add_u32 s{sOff}, s{sOff}, {8*288}")
        a(f"buffer_load_dwordx2 {vr(rb+2*k,2)}, v{vt[1]}, {srd(rWS)}, s{sOff} offen offset:{(k%8)*288} sc1")
    a("s_waitcnt vmcnt(0)")
    for k in range(1, 16):
        a(f"v_add_f32 v{rb}, v{rb}, v{rb+2*k}")
        a(f"v_add_f32 v{rb+1}, v{rb+1}, v{rb+2*k+1}")
    bf16_round(a, rb, rb)
    bf16_round(a, rb + 1, rb + 1)
    silu(rb + 1)
    a(f"v_mul_f32 v{rb}, v{rb}, v{rb+1}")
    bf16_round(a, rb, rb)
    a(f"v_lshlrev_b32 v{vt[7]}, 16, v{vt[7]}")
    a(f"v_add_f32 v{rb}, v{rb}, v{vt[7]}")
    a(f"v_cvt_pk_bf16_f32 v{rb}, v{rb}, v{rb}")
    a(f"buffer_store_short v{rb}, v{vt[6]}, {srd(rOUT)}, 0 offen")
    a.label("L_end")
    a("s_endpgm")
    a.L.append('.section .rodata,"a"')
    a.L.append(".p2align 6")
    a.L.append(f".amdhsa_kernel {KNAME}")
    a.L.append("  .amdhsa_next_free_vgpr 256")
    a.L.append("  .amdhsa_next_free_sgpr 96")
    a.L.append("  .amdhsa_accum_offset 256")
    a.L.append("  .amdhsa_group_segment_fixed_size 0")
    a.L.append("  .amdhsa_kernarg_size 96")
    a.L.append("  .amdhsa_user_sgpr_count 2")
    a.L.append("  .amdhsa_user_sgpr_kernarg_segment_ptr 1")
    a.L.append("  .amdhsa_system_sgpr_workgroup_id_x 1")
    a.L.append("  .amdhsa_float_denorm_mode_32 3")
    a.L.append(".end_amdhsa_kernel")
    return "\n".join(a.L) + "\n"

if __name__ == "__main__":
    out = sys.argv[1] if len(sys.argv) > 1 else "recurrent_scan__gqa_block_cached__swiglu_ffn__decode.s"
    open(out, "w").write(gen({}))
    print("wrote", out)
```

```python
import sys
def gen(name, nwg=256, waves=4, stages=4, per=8, pattern="contig", pol="", vgpr=None, interleave=False, vpattern="contig", xcdmap=False, mode=None, vshift=0):
    total_waves = nwg * waves
    bytes_per_wave = (256 << 20) // total_waves
    stage_bytes = per * 1024
    assert stages % 2 == 0
    iters = bytes_per_wave // (stage_bytes * stages // 2)
    L = []
    A = L.append
    A(f"; @launch grid=({nwg},1,1) block=({waves*64},1,1) lds=0")
    A(f"; bytes={iters*stages*stage_bytes*total_waves}")
    A('.amdgcn_target "amdgcn-amd-amdhsa--gfx950"')
    A(".text")
    A(".globl recurrent_scan__gqa_block_cached__swiglu_ffn__decode_kernel")
    A(".p2align 8")
    A(".type recurrent_scan__gqa_block_cached__swiglu_ffn__decode_kernel,@function")
    A("recurrent_scan__gqa_block_cached__swiglu_ffn__decode_kernel:")
    A(f"s_cmp_ge_u32 s2, {nwg}")
    A("s_cbranch_scc1 L_done")
    A("s_load_dwordx4 s[4:7], s[0:1], 8")
    A("s_load_dwordx2 s[24:25], s[0:1], 88")
    A("s_memrealtime s[26:27]")
    A("s_mov_b32 s30, s2")
    if xcdmap == 1:
        A("s_and_b32 s17, s2, 7"); A(f"s_mul_i32 s17, s17, {nwg//8}"); A("s_lshr_b32 s2, s2, 3"); A("s_add_u32 s2, s2, s17")
    if xcdmap == 2:
        A("s_and_b32 s17, s2, 7"); A("s_lshl_b32 s17, s17, 1"); A("s_lshr_b32 s18, s2, 3"); A("s_and_b32 s18, s18, 1"); A("s_add_u32 s17, s17, s18")
        A("s_lshl_b32 s17, s17, 4"); A("s_lshr_b32 s2, s2, 4"); A("s_add_u32 s2, s2, s17")
    A("v_lshrrev_b32 v1, 6, v0")
    A("v_and_b32 v2, 63, v0")
    A("s_nop 0")
    A("v_readfirstlane_b32 s3, v1")
    A("s_waitcnt lgkmcnt(0)")
    A("s_mov_b32 s8, s4"); A("s_and_b32 s9, s5, 0xffff"); A("s_mov_b32 s10, 0x10000000"); A("s_mov_b32 s11, 0x20000")
    A("s_mov_b32 s12, s6"); A("s_and_b32 s13, s7, 0xffff"); A("s_mov_b32 s14, 0x10000000"); A("s_mov_b32 s15, 0x20000")
    A(f"s_mul_i32 s16, s2, {waves}")
    A("s_add_u32 s16, s16, s3")
    if mode is None:
        mode = "wg" if interleave else "wave"
    if mode == "wg":
        A(f"s_mul_i32 s16, s2, {bytes_per_wave*waves}")
        A(f"s_mul_i32 s17, s3, {stage_bytes}")
        A("s_add_u32 s16, s16, s17")
        step = stage_bytes * waves
    elif mode == "wg2":
        A(f"s_mul_i32 s16, s2, {bytes_per_wave*waves}")
        A(f"s_mul_i32 s17, s3, 4096")
        A("s_add_u32 s16, s16, s17")
        step = stage_bytes * waves
    elif mode == "wave":
        A(f"s_mul_i32 s16, s16, {bytes_per_wave}")
        step = stage_bytes
    elif mode in ("head", "headx"):
        wph = nwg // 16
        if mode == "head":
            A(f"s_lshr_b32 s18, s2, {wph.bit_length()-1}")
            A(f"s_and_b32 s19, s2, {wph-1}")
        else:
            A("s_and_b32 s18, s2, 7"); A("s_lshl_b32 s18, s18, 1"); A("s_lshr_b32 s19, s2, 3"); A("s_and_b32 s17, s19, 1"); A("s_add_u32 s18, s18, s17")
            A("s_lshr_b32 s19, s2, 4")
        A(f"s_mul_i32 s19, s19, {waves}"); A("s_add_u32 s19, s19, s3")
        A(f"s_mul_i32 s19, s19, {stage_bytes}")
        A("s_lshl_b32 s16, s18, 24"); A("s_add_u32 s16, s16, s19")
        step = stage_bytes * waves * wph
    elif mode == "global":
        A(f"s_mul_i32 s16, s16, {stage_bytes}")
        step = stage_bytes * waves * nwg
    if vpattern == "contig":
        A("v_lshlrev_b32 v4, 4, v2")
    elif vpattern == "seg64":
        A("v_and_b32 v4, 15, v2"); A("v_lshlrev_b32 v4, 8, v4"); A("v_lshrrev_b32 v5, 4, v2"); A("v_lshlrev_b32 v5, 4, v5"); A("v_add_u32 v4, v4, v5")
    elif vpattern == "seg256":
        A("v_and_b32 v4, 15, v2"); A("v_lshlrev_b32 v4, 4, v4"); A("v_lshrrev_b32 v5, 4, v2"); A("v_lshlrev_b32 v5, 10, v5"); A("v_add_u32 v4, v4, v5")
    if pattern == "contig":
        A("v_lshlrev_b32 v3, 4, v2")
    elif pattern == "seg64":
        A("v_and_b32 v3, 15, v2"); A("v_lshlrev_b32 v3, 8, v3"); A("v_lshrrev_b32 v5, 4, v2"); A("v_lshlrev_b32 v5, 4, v5"); A("v_add_u32 v3, v3, v5")
    elif pattern == "seg64p":
        A("v_and_b32 v3, 3, v2"); A("v_lshlrev_b32 v3, 10, v3"); A("v_bfe_u32 v5, v2, 2, 2"); A("v_lshlrev_b32 v5, 8, v5"); A("v_add_u32 v3, v3, v5")
        A("v_lshrrev_b32 v5, 4, v2"); A("v_lshlrev_b32 v5, 4, v5"); A("v_add_u32 v3, v3, v5")
    elif pattern == "perm":
        A("v_and_b32 v3, 15, v2"); A("v_lshlrev_b32 v3, 6, v3"); A("v_lshrrev_b32 v5, 4, v2"); A("v_lshlrev_b32 v5, 4, v5"); A("v_add_u32 v3, v3, v5")
    A("s_mov_b32 s20, s16")
    A("s_mov_b32 s21, s16")
    base = 8
    def issue(st):
        isK = (st % 2 == 0)
        srd = "s[8:11]" if isK else "s[12:15]"
        so = "s20" if isK else "s21"
        vo = "v3" if isK else "v4"
        for j in range(per):
            r = base + (st * per + j) * 4
            pp = pattern if isK else vpattern
            if pp in ("seg64", "seg64p"):
                off = (j % 4) * 64
            elif pp == "seg256":
                off = (j % 4) * 256
            else:
                off = (j % 4) * 1024
            A(f"buffer_load_dwordx4 v[{r}:{r+3}], {vo}, {srd}, {so} offen offset:{off} {pol}")
            if j % 4 == 3:
                inc = 4096 if j != per - 1 else (4096 + step - stage_bytes)
                if mode == "wg2": inc = 4096 * waves
                A(f"s_add_u32 {so}, {so}, {inc}")
    for st in range(stages):
        issue(st)
    A(f"s_mov_b32 s22, {iters-1}")
    A("L_loop:")
    for st in range(stages):
        A(f"s_waitcnt vmcnt({(stages-1)*per})")
        r = base + st * per * 4
        A(f"v_xor_b32 v6, v6, v{r}")
        issue(st)
    A("s_sub_u32 s22, s22, 1")
    A("s_cmp_lg_u32 s22, 0")
    A("s_cbranch_scc1 L_loop")
    A("s_waitcnt vmcnt(0)")
    A("s_memrealtime s[28:29]")
    A("s_waitcnt lgkmcnt(0)")
    A("s_mov_b32 s8, s24"); A("s_and_b32 s9, s25, 0xffff"); A("s_mov_b32 s10, 0x1000000"); A("s_mov_b32 s11, 0x20000")
    A(f"s_mul_i32 s30, s30, {waves}"); A("s_add_u32 s30, s30, s3"); A("s_lshl_b32 s30, s30, 3")
    A("v_mov_b32 v6, s26"); A("v_mov_b32 v7, s28"); A("v_mov_b32 v5, 0")
    A("s_mov_b64 exec, 1")
    A("buffer_store_dwordx2 v[6:7], v5, s[8:11], s30 offen")
    A("L_done:")
    A("s_endpgm")
    nv = base + stages * per * 4
    if vgpr: nv = max(nv, vgpr)
    nv4 = (nv + 3) // 4 * 4
    A('.section .rodata,"a"'); A(".p2align 6")
    A(".amdhsa_kernel recurrent_scan__gqa_block_cached__swiglu_ffn__decode_kernel")
    A(f"  .amdhsa_next_free_vgpr {nv4}"); A("  .amdhsa_next_free_sgpr 32"); A(f"  .amdhsa_accum_offset {min(nv4,256)}")
    A("  .amdhsa_group_segment_fixed_size 0"); A("  .amdhsa_kernarg_size 96"); A("  .amdhsa_user_sgpr_count 2")
    A("  .amdhsa_user_sgpr_kernarg_segment_ptr 1"); A("  .amdhsa_system_sgpr_workgroup_id_x 1")
    A(".end_amdhsa_kernel")
    open(name, "w").write("\n".join(L) + "\n")

if __name__ == "__main__":
    names = []
    def g(n, **kw):
        gen(n, **kw); names.append(n)
    g(f"z_base.s", waves=4, stages=8, per=4, pattern="seg64", vpattern="contig", pol="nt", mode="wg")
    g(f"z_perm.s", waves=4, stages=8, per=4, pattern="seg64p", vpattern="contig", pol="nt", mode="wg")
    g(f"z_kkvv.s", waves=4, stages=4, per=8, pattern="seg64", vpattern="contig", pol="nt", mode="wg2")
    g(f"z_kkvv_perm.s", waves=4, stages=4, per=8, pattern="seg64p", vpattern="contig", pol="nt", mode="wg2")
    g(f"z_base_v256.s", waves=4, stages=8, per=4, pattern="seg64", vpattern="contig", pol="nt", mode="wg", vgpr=256)
    g(f"z_seg256.s", waves=4, stages=8, per=4, pattern="seg64", vpattern="seg256", pol="nt", mode="wg")
    print(" ".join(names))
```

```python
import sys, struct

KNAME = "recurrent_scan__gqa_block_cached__swiglu_ffn__decode_kernel"

def f32bits(x):
    return struct.unpack("<I", struct.pack("<f", x))[0]

class Asm:
    def __init__(self):
        self.L = []
        self.uid = 0
    def __call__(self, s):
        self.L.append("    " + s)
    def label(self, s):
        self.L.append(s + ":")
    def c(self, s):
        self.L.append("    ; " + s)
    def nop(self, n):
        while n > 0:
            k = min(n, 16)
            self(f"s_nop {k-1}")
            n -= k
    def newlabel(self, p):
        self.uid += 1
        return f"L_{p}{self.uid}"

FL = 0
F_NON, F_QCNT, F_FCNT, F_H, F_YCNT, F_SCNT, F_O, F_ZCNT, F_Y2CNT, F_S2CNT = [FL + 4 * i for i in range(10)]
XN = 64
QP = XN + 2560
QB = QP + 256
FFP = QB + 512
COMB = FFP + 9216
CSTR = 1056
INO = COMB + 4 * CSTR
INH = INO + 512
FIN = INH + 512
FIN2 = FIN + 8192
G2 = FIN2 + 8192
LDS_BYTES = G2 + 4096
LDS_BYTES = (LDS_BYTES + 1023) // 1024 * 1024
PSTR = 2176
WS_PART = 0
WS_FP = 256 * PSTR
WS_HB = WS_FP + 256 * 4608
WS_S2 = WS_HB + 4608 * 8
WS_Y2 = WS_S2 + 4 * 64 * 1152
WS_Q = WS_Y2 + 4 * 64 * 1152
WS_CNT = WS_Q + 16 * 1024
WS_BYTES = WS_CNT + 16 * 128
WS_STAMP = 4 << 20

sX, sK, sV, sWQ, sWO, sBX, sWG, sWU, sWD, sOUT, sDBG, sWS = [4 + 2 * i for i in range(12)]
rK, rV, rX, rWQ, rWG, rWU, rWO, rWD, rWS, rOUT, rDBG = [28 + 4 * i for i in range(11)]
sHP, sJ, sW, sWGI = 72, 73, 74, 75
sSelLo, sSelHi, sScale, sLog2e = 76, 77, 78, 79
sA0, sA1, sTmp, sTmp2, sOff, sCnt = 80, 81, 82, 83, 84, 85
sEx = 86
sNon = 88
sB = [89, 90, 91]
sStat, sLeft = 92, 93
sT64 = 94
sRQ, sCQ = 100, 101
OOB = 0x40000000

def srd(r): return f"s[{r}:{r+3}]"
def vr(b, n): return f"v[{b}:{b+n-1}]"

def bf16_round(a, dst, src):
    a(f"v_cvt_pk_bf16_f32 v{dst}, v{src}, v{src}")
    a(f"v_lshlrev_b32 v{dst}, 16, v{dst}")

def cross_rows(a, op, x, t):
    o = f"v_{op}_f32"
    for sw in ("v_permlane32_swap_b32", "v_permlane16_swap_b32"):
        a(f"v_mov_b32 v{t}, v{x}")
        a.nop(2)
        a(f"{sw} v{x}, v{t}")
        a.nop(1)
        a(f"{o} v{x}, v{x}, v{t}")

def wave_allreduce(a, op, x, t):
    o = f"v_{op}_f32"
    for ctrl in ("quad_perm:[1,0,3,2]", "quad_perm:[2,3,0,1]", "row_half_mirror", "row_mirror"):
        a.nop(2)
        a(f"{o}_dpp v{x}, v{x}, v{x} {ctrl} row_mask:0xf bank_mask:0xf")
    cross_rows(a, op, x, t)

def gen(opts):
    a = Asm()
    STAMP = opts.get("stamp", False)
    NS = opts.get("ns", 26)
    NPOOL = (32 - NS) * 64
    MAXPOLL = 0x40000
    WP = "" if opts.get("wdef") else " nt"
    stn = [0]
    names = []
    vL, vST, vNon, vZ = 1, 255, 254, 253
    vt = [2, 3, 4, 5, 6, 7, 8, 9, 10, 11]
    def stamp(name):
        if not STAMP: return
        a(f"s_memrealtime s[{sT64}:{sT64+1}]")
        a("s_waitcnt lgkmcnt(0)")
        a(f"v_writelane_b32 v{vST}, s{sT64}, {stn[0]}")
        names.append(name)
        stn[0] += 1
    def stamp_flush():
        if not STAMP: return
        a("s_mov_b64 exec, -1")
        a(f"s_lshl_b32 s{sTmp}, s2, 3")
        a(f"s_add_u32 s{sTmp}, s{sTmp}, s{sW}")
        a(f"s_lshl_b32 s{sTmp}, s{sTmp}, 8")
        a(f"v_lshlrev_b32 v{vt[8]}, 2, v{vL}")
        a(f"buffer_store_dword v{vST}, v{vt[8]}, s[96:99], s{sTmp} offen")
    opts["names"] = names

    def spin_lds(addr, target, tmpv, ge=True, sleep=1):
        l0, l1 = a.newlabel("sp"), a.newlabel("spx")
        a(f"s_mov_b32 s{sCnt}, 0x2000000")
        a.label(l0)
        a(f"ds_read_b32 v{tmpv}, v{vZ} offset:{addr}")
        a("s_waitcnt lgkmcnt(0)")
        a(f"v_readfirstlane_b32 s{sTmp}, v{tmpv}")
        a(f"s_cmp_ge_u32 s{sTmp}, {target}")
        a(f"s_cbranch_scc1 {l1}")
        a(f"s_sub_u32 s{sCnt}, s{sCnt}, 1")
        a(f"s_cmp_eq_u32 s{sCnt}, 0")
        a(f"s_cbranch_scc1 {l1}")
        a(f"s_sleep {sleep}")
        a(f"s_branch {l0}")
        a.label(l1)
    def lds_arrive(addr, tmpv, ret=False):
        a("s_waitcnt lgkmcnt(0)")
        a(f"v_mov_b32 v{tmpv}, 1")
        a("s_mov_b64 exec, 1")
        if ret:
            a(f"ds_add_rtn_u32 v{tmpv}, v{vZ}, v{tmpv} offset:{addr}")
            a("s_waitcnt lgkmcnt(0)")
            a(f"v_readfirstlane_b32 s{sTmp}, v{tmpv}")
        else:
            a(f"ds_add_u32 v{vZ}, v{tmpv} offset:{addr}")
        a("s_mov_b64 exec, -1")
    def retry_begin():
        l0, l1 = a.newlabel("rt"), a.newlabel("rtx")
        a(f"s_mov_b32 s{sCnt}, {MAXPOLL}")
        a.label(l0)
        return l0, l1
    def retry_end(ls, tagregs, t0, t1, sleep=2):
        l0, l1 = ls
        a("s_waitcnt vmcnt(0)")
        a(f"v_xor_b32 v{t0}, v{vNon}, v{tagregs[0]}")
        for r in tagregs[1:]:
            a(f"v_xor_b32 v{t1}, v{vNon}, v{r}")
            a(f"v_or_b32 v{t0}, v{t0}, v{t1}")
        a(f"v_cmp_ne_u32 vcc, 0, v{t0}")
        a(f"s_cbranch_vccz {l1}")
        a(f"s_sub_u32 s{sCnt}, s{sCnt}, 1")
        a(f"s_cmp_eq_u32 s{sCnt}, 0")
        a(f"s_cbranch_scc1 {l1}")
        a(f"s_sleep {sleep}")
        a(f"s_branch {l0}")
        a.label(l1)
    def silu(x):
        a(f"v_mul_f32 v{vt[2]}, s{sLog2e}, v{x}")
        a(f"v_exp_f32 v{vt[2]}, -v{vt[2]}")
        a.nop(1)
        a(f"v_add_f32 v{vt[2]}, 1.0, v{vt[2]}")
        a(f"v_rcp_f32 v{vt[3]}, v{vt[2]}")
        a.nop(1)
        a(f"v_mul_f32 v{vt[4]}, v{x}, v{vt[3]}")
        a(f"v_fma_f32 v{vt[5]}, -v{vt[4]}, v{vt[2]}, v{x}")
        a(f"v_fma_f32 v{x}, v{vt[5]}, v{vt[3]}, v{vt[4]}")
        a(f"v_cmp_eq_f32 vcc, 0x7f800000, v{vt[2]}")
        a.nop(2)
        a(f"v_cndmask_b32 v{x}, v{x}, v{vt[4]}, vcc")
        bf16_round(a, x, x)
    def combine(n, mreg, lreg, oreg, M, Lr, Or):
        a(f"v_max3_f32 v{M}, v{mreg[0]}, v{mreg[1]}, v{mreg[2]}")
        k = 3
        while k < n:
            if k + 1 < n:
                a(f"v_max3_f32 v{M}, v{M}, v{mreg[k]}, v{mreg[k+1]}"); k += 2
            else:
                a(f"v_max_f32 v{M}, v{M}, v{mreg[k]}"); k += 1
        for w in range(n):
            a(f"v_sub_f32 v{mreg[w]}, v{mreg[w]}, v{M}")
        for w in range(n):
            a(f"v_exp_f32 v{mreg[w]}, v{mreg[w]}")
        a.nop(1)
        a(f"v_mul_f32 v{Lr}, v{mreg[0]}, v{lreg[0]}")
        a(f"v_mul_f32 v{Or}, v{mreg[0]}, v{oreg[0]}")
        for w in range(1, n):
            a(f"v_fmac_f32 v{Lr}, v{mreg[w]}, v{lreg[w]}")
            a(f"v_fmac_f32 v{Or}, v{mreg[w]}, v{oreg[w]}")
    def mk(r, p, off_s=None, size=None):
        if off_s is None:
            a(f"s_mov_b32 s{r}, s{p}")
            a(f"s_and_b32 s{r+1}, s{p+1}, 0xffff")
        else:
            a(f"s_add_u32 s{r}, s{p}, s{off_s}")
            a(f"s_addc_u32 s{r+1}, s{p+1}, 0")
            a(f"s_and_b32 s{r+1}, s{r+1}, 0xffff")
        a(f"s_mov_b32 s{r+2}, {size}")
        a(f"s_mov_b32 s{r+3}, 0x20000")

    a.L.append(f"; @launch grid=(256,1,1) block=(512,1,1) lds={LDS_BYTES}")
    a.L.append('.amdgcn_target "amdgcn-amd-amdhsa--gfx950"')
    a.L.append(".text")
    a.L.append(f".globl {KNAME}")
    a.L.append(".p2align 8")
    a.L.append(f".type {KNAME},@function")
    a.label(KNAME)
    a("s_cmp_ge_u32 s2, 256")
    a("s_cbranch_scc1 L_exit")
    a("s_load_dwordx16 s[4:19], s[0:1], 0")
    a("s_load_dwordx8 s[20:27], s[0:1], 64")
    a(f"s_memrealtime s[{sT64}:{sT64+1}]")
    a(f"v_and_b32 v{vL}, 63, v0")
    a(f"v_lshrrev_b32 v{vt[0]}, 6, v0")
    a(f"s_lshr_b32 s{sHP}, s2, 4")
    a(f"s_and_b32 s{sJ}, s2, 15")
    a(f"v_readfirstlane_b32 s{sW}, v{vt[0]}")
    a(f"s_mov_b32 s{sWGI}, s2")
    a(f"s_lshr_b32 s{sRQ}, s{sJ}, 2")
    a(f"s_and_b32 s{sCQ}, s{sJ}, 3")
    a(f"s_mov_b32 s{sLog2e}, 0x{f32bits(1.4426950408889634):08x}")
    a(f"v_mov_b32 v{vZ}, 0")
    a(f"v_mov_b32 v{vST}, 0")
    a("s_waitcnt lgkmcnt(0)")
    a(f"s_or_b32 s{sNon}, s{sT64}, 1")
    mk(rWS, sWS, size=WS_BYTES)
    if STAMP:
        a(f"s_add_u32 s96, s{sWS}, {WS_STAMP}")
        a(f"s_addc_u32 s97, s{sWS+1}, 0")
        a(f"s_and_b32 s97, s97, 0xffff")
        a(f"s_mov_b32 s98, {2048*256}")
        a(f"s_mov_b32 s99, 0x20000")
    stamp("start")
    a(f"s_cmp_ge_u32 s{sW}, 4")
    a("s_cbranch_scc1 L_helper")

    vKoff, vVoff, vM, vLs, vMt = 12, 13, 14, 15, 16
    vC = [17, 18]
    vCo = 19
    vQ = 20
    vO = 36
    vD = 68
    vP = 76
    vT = 80
    KS = [88, 120]
    VS = [152, 184, 216]
    a.c("stream wave setup")
    a(f"s_cmp_lg_u32 s{sW}, 0")
    a("s_cbranch_scc1 L_nz")
    a(f"v_lshlrev_b32 v{vt[0]}, 2, v{vL}")
    a("s_mov_b64 exec, 0xffff")
    a(f"ds_write_b32 v{vt[0]}, v{vZ} offset:{FL}")
    a("s_mov_b64 exec, -1")
    a("s_waitcnt lgkmcnt(0)")
    a.label("L_nz")
    a(f"s_mov_b32 s{sSelLo}, 0x05040100")
    a(f"s_mov_b32 s{sSelHi}, 0x07060302")
    a(f"s_mov_b32 s{sScale}, 0x{f32bits(128 ** -0.5):08x}")
    a(f"v_and_b32 v{vt[0]}, 3, v{vL}")
    a(f"v_lshlrev_b32 v{vt[0]}, 10, v{vt[0]}")
    a(f"v_bfe_u32 v{vt[1]}, v{vL}, 2, 2")
    a(f"v_lshlrev_b32 v{vt[1]}, 8, v{vt[1]}")
    a(f"v_lshrrev_b32 v{vt[2]}, 4, v{vL}")
    a(f"v_lshlrev_b32 v{vt[2]}, 4, v{vt[2]}")
    a(f"v_add3_u32 v{vKoff}, v{vt[0]}, v{vt[1]}, v{vt[2]}")
    a(f"v_lshlrev_b32 v{vVoff}, 4, v{vL}")
    a(f"s_lshl_b32 s{sTmp}, s{sHP}, 24")
    mk(rK, sK, sTmp, size=1 << 24)
    mk(rV, sV, sTmp, size=1 << 24)
    a(f"s_lshl_b32 s{sStat}, s{sJ}, 20")
    a(f"s_lshl_b32 s{sTmp}, s{sW}, 12")
    a(f"s_add_u32 s{sStat}, s{sStat}, s{sTmp}")
    a(f"v_mov_b32 v{vCo}, {OOB}")
    a(f"v_mov_b32 v{vC[0]}, 0")
    a(f"v_mov_b32 v{vC[1]}, 0")
    a("s_barrier")
    def Kload(slot, t, i, sb):
        return f"buffer_load_dwordx4 {vr(slot+16*t+4*i,4)}, v{vKoff}, {srd(rK)}, s{sb} offen offset:{i*64} nt"
    def Vload(slot, t, r, sb):
        return f"buffer_load_dwordx4 {vr(slot+16*t+4*r,4)}, v{vVoff}, {srd(rV)}, s{sb} offen offset:{r*1024} nt"
    NOCL = opts.get("noclaim", 0)
    def claim(cv):
        if NOCL:
            a(f"v_mov_b32 v{cv}, -1"); a.nop(3)
            return
        a(f"v_mov_b32 v{cv}, 1")
        a("s_mov_b64 exec, 1")
        a(f"buffer_atomic_add v{cv}, v{vCo}, {srd(rWS)}, 0 offen sc0")
        a("s_mov_b64 exec, -1")
    for g in range(2):
        claim(vC[g])
        a(f"s_mov_b32 s{sB[g]}, s{sStat}")
        a(f"s_add_u32 s{sOff}, s{sStat}, 16384")
        for t in range(2):
            for i in range(4):
                a(Kload(KS[g], t, i, sB[g] if t == 0 else sOff))
        for t in range(2):
            for r in range(4):
                a(Vload(VS[g], t, r, sB[g] if t == 0 else sOff))
        a(f"s_add_u32 s{sStat}, s{sStat}, 32768")
    a(f"s_mov_b32 s{sLeft}, {NS-2}")
    if not opts.get("noq"): spin_lds(F_NON, 1, vNon)
    a(f"v_and_b32 v{vt[0]}, 1, v{vL}")
    a(f"v_lshlrev_b32 v{vt[0]}, 8, v{vt[0]}")
    a(f"v_lshrrev_b32 v{vt[1]}, 4, v{vL}")
    a(f"v_lshl_add_u32 v{vt[0]}, v{vt[1]}, 4, v{vt[0]}")
    for i in range(4):
        a(f"ds_read_b128 {vr(vQ+4*i,4)}, v{vt[0]} offset:{QB + i*64}")
    a(f"v_mov_b32 v{vM}, 0xff800000")
    a(f"v_mov_b32 v{vMt}, 0xff800000")
    a(f"v_mov_b32 v{vLs}, 0")
    for i in range(32):
        a(f"v_mov_b32 v{vO+i}, 0")
    a(f"s_lshl_b32 s{sTmp2}, s{sHP}, 7")
    a(f"s_add_u32 s{sTmp2}, s{sTmp2}, {WS_CNT}")
    a("s_waitcnt lgkmcnt(0)")
    stamp("q_ready")
    d = [vD + i for i in range(8)]
    a.label("L_loop")
    for u in range(6):
        a.c(f"==== unrolled group {u} ====")
        ks = KS[u % 2]
        vs = VS[u % 3]
        vsn = VS[(u + 2) % 3]
        b0, b2 = sB[u % 3], sB[(u + 2) % 3]
        cv = vC[u % 2]
        a(f"s_cmp_ge_u32 s{b0}, {OOB}")
        a("s_cbranch_scc1 L_sdone")
        a(f"s_waitcnt vmcnt({28 if NOCL else 29})")
        for i in range(4):
            cin = "0" if i == 0 else vr(vD, 4)
            a(f"v_mfma_f32_16x16x32_bf16 {vr(vD,4)}, {vr(ks+4*i,4)}, {vr(vQ+4*i,4)}, {cin}")
        a(f"v_readfirstlane_b32 s{sTmp}, v{cv}")
        a(f"s_and_b32 s{sA0}, s{sTmp}, 15")
        a(f"s_lshl_b32 s{sA0}, s{sA0}, 20")
        a(f"s_lshr_b32 s{sA1}, s{sTmp}, 4")
        a(f"s_and_b32 s{sOff}, s{sA1}, 3")
        a(f"s_lshr_b32 s{sA1}, s{sA1}, 2")
        a(f"s_lshl_b32 s{sA1}, s{sA1}, 3")
        a(f"s_add_u32 s{sA1}, s{sA1}, s{sOff}")
        a(f"s_add_u32 s{sA1}, s{sA1}, {NS*8}")
        a(f"s_lshl_b32 s{sA1}, s{sA1}, 12")
        a(f"s_add_u32 s{sA0}, s{sA0}, s{sA1}")
        a(f"s_cmp_lt_u32 s{sTmp}, {NPOOL}")
        a(f"s_cselect_b32 s{sA0}, s{sA0}, {OOB}")
        a(f"s_cmp_gt_i32 s{sLeft}, 0")
        a(f"s_cselect_b32 s{b2}, s{sStat}, s{sA0}")
        a(f"s_add_u32 s{sStat}, s{sStat}, 32768")
        a(f"s_sub_u32 s{sLeft}, s{sLeft}, 1")
        a(f"s_add_u32 s{sOff}, s{b2}, 16384")
        a(f"s_cmp_lt_i32 s{sLeft}, 2")
        a(f"s_cselect_b32 s{sTmp}, s{sTmp2}, {OOB}")
        a(f"v_mov_b32 v{vCo}, s{sTmp}")
        a(f"s_waitcnt vmcnt({24 if NOCL else 25})")
        for i in range(4):
            cin = "0" if i == 0 else vr(vD + 4, 4)
            a(f"v_mfma_f32_16x16x32_bf16 {vr(vD+4,4)}, {vr(ks+16+4*i,4)}, {vr(vQ+4*i,4)}, {cin}")
        claim(cv)
        S = []
        tt = vt
        for k in range(4):
            S.append(f"v_cvt_pk_bf16_f32 v{tt[k]}, v{d[2*k]}, v{d[2*k+1]}")
        for k in range(4):
            S.append(f"v_lshlrev_b32 v{d[2*k]}, 16, v{tt[k]}")
            S.append(f"v_and_b32 v{d[2*k+1]}, 0xffff0000, v{tt[k]}")
        for k in range(8):
            S.append(f"v_mul_f32 v{d[k]}, s{sScale}, v{d[k]}")
        for k in range(4):
            S.append(f"v_cvt_pk_bf16_f32 v{tt[k]}, v{d[2*k]}, v{d[2*k+1]}")
        for k in range(4):
            S.append(f"v_lshlrev_b32 v{d[2*k]}, 16, v{tt[k]}")
            S.append(f"v_and_b32 v{d[2*k+1]}, 0xffff0000, v{tt[k]}")
        mx = tt[4]
        S.append(f"v_max3_f32 v{mx}, v{d[0]}, v{d[1]}, v{d[2]}")
        S.append(f"v_max3_f32 v{mx}, v{mx}, v{d[3]}, v{d[4]}")
        S.append(f"v_max3_f32 v{mx}, v{mx}, v{d[5]}, v{d[6]}")
        S.append(f"v_max3_f32 v{mx}, v{mx}, v{d[7]}, v{vM}")
        for sw in ("v_permlane32_swap_b32", "v_permlane16_swap_b32"):
            S.append(f"v_mov_b32 v{tt[5]}, v{mx}")
            S.append("s_nop 1")
            S.append(f"{sw} v{mx}, v{tt[5]}")
            S.append("s_nop 0")
            S.append(f"v_max_f32 v{mx}, v{mx}, v{tt[5]}")
        S.append(f"v_mul_f32 v{tt[5]}, s{sLog2e}, v{mx}")
        al = tt[6]
        S.append(f"v_sub_f32 v{al}, v{vMt}, v{tt[5]}")
        S.append(f"v_exp_f32 v{al}, v{al}")
        S.append(f"v_mov_b32 v{vM}, v{mx}")
        S.append(f"v_mov_b32 v{vMt}, v{tt[5]}")
        for k in range(8):
            S.append(f"v_fma_f32 v{d[k]}, v{d[k]}, s{sLog2e}, -v{vMt}")
        for k in range(8):
            S.append(f"v_exp_f32 v{d[k]}, v{d[k]}")
        S.append(f"v_readlane_b32 s{sA0}, v{al}, 0")
        S.append(f"v_readlane_b32 s{sA1}, v{al}, 1")
        S.append(f"v_mul_f32 v{vLs}, v{vLs}, v{al}")
        for k in range(4):
            S.append(f"v_cvt_pk_bf16_f32 v{vP+k}, v{d[2*k]}, v{d[2*k+1]}")
        for k in range(8):
            S.append(f"v_add_f32 v{vLs}, v{vLs}, v{d[k]}")
        for i in range(8):
            S.append(f"v_mul_f32 v{vO+4*i}, s{sA0}, v{vO+4*i}")
            S.append(f"v_mul_f32 v{vO+4*i+1}, s{sA1}, v{vO+4*i+1}")
        KL = [Kload(ks, t, i, b2 if t == 0 else sOff) for t in range(2) for i in range(4)]
        a(KL[0]); a(KL[1])
        a.nop(3)
        if opts.get("nosm"): S = S[:8]
        step = max(1, len(S) // 7)
        if opts.get("burst"): step = 1
        kq = 2
        for n, ins in enumerate(S):
            a(ins)
            if (n + 1) % step == 0 and kq < 8:
                a(KL[kq]); kq += 1
        while kq < 8:
            a(KL[kq]); kq += 1
        a(f"s_waitcnt vmcnt({24 if NOCL else 26})")
        VL = [Vload(vsn, t, r, b2 if t == 0 else sOff) for t in range(2) for r in range(4)]
        def perms(i):
            dd, b = i >> 1, i & 1
            sel = sSelHi if b else sSelLo
            for p in range(4):
                lo = vs + 4 * (2 * p) + dd
                hi = vs + 4 * (2 * p + 1) + dd
                a(f"v_perm_b32 v{vT + 4*(i%2) + p}, v{hi}, v{lo}, s{sel}")
        perms(0)
        for i in range(8):
            if i + 1 < 8:
                perms(i + 1)
            else:
                a.nop(2)
            a(f"v_mfma_f32_16x16x32_bf16 {vr(vO+4*i,4)}, {vr(vP,4)}, {vr(vT+4*(i%2),4)}, {vr(vO+4*i,4)}")
            a(VL[i])
    a("s_branch L_loop")
    a.label("L_sdone")
    stamp("s_done")
    a.c("stream wave: write partial to LDS")
    cross_rows(a, "add", vLs, vt[0])
    a.nop(8)
    a(f"s_mul_i32 s{sTmp}, s{sW}, {CSTR}")
    a(f"v_lshlrev_b32 v{vt[0]}, 5, v{vL}")
    a(f"v_add_u32 v{vt[0]}, s{sTmp}, v{vt[0]}")
    a(f"v_add_u32 v{vt[0]}, {COMB}, v{vt[0]}")
    a(f"v_lshlrev_b32 v{vt[1]}, 2, v{vL}")
    a(f"v_add_u32 v{vt[1]}, s{sTmp}, v{vt[1]}")
    a("s_mov_b64 exec, 0xffff")
    for h in range(2):
        for i in range(0, 8, 2):
            a(f"ds_write2_b32 v{vt[0]}, v{vO+4*i+h}, v{vO+4*(i+1)+h} offset0:{h*128+i} offset1:{h*128+i+1}")
    a("s_mov_b64 exec, 3")
    a(f"ds_write_b32 v{vt[1]}, v{vMt} offset:{COMB+1024}")
    a(f"ds_write_b32 v{vt[1]}, v{vLs} offset:{COMB+1032}")
    a("s_mov_b64 exec, -1")
    lds_arrive(F_SCNT, vt[2])
    a("s_branch L_end")

    a.label("L_helper")
    a.c("helper setup")
    a("s_setprio 3")
    sHW = sB[0]
    a(f"s_sub_u32 s{sHW}, s{sW}, 4")
    mk(rX, sX, size=1152)
    mk(rWQ, sWQ, size=576 * 8192)
    mk(rDBG, sDBG, size=256)
    hX = 16
    hW = 28
    hF = 48
    hA = 60
    hR = 76
    a(f"v_lshlrev_b32 v{vt[3]}, 2, v{vL}")
    for j in range(5):
        a(f"buffer_load_dword v{hX+j}, v{vt[3]}, {srd(rX)}, 0 offen offset:{j*256}")
    a(f"v_lshrrev_b32 v{vt[0]}, 1, v{vL}")
    a(f"s_mul_i32 s{sTmp}, s{sHW}, 144")
    a(f"v_add_u32 v{vt[1]}, s{sTmp}, v{vt[0]}")
    a(f"v_lshlrev_b32 v{vt[5]}, 2, v{vt[1]}")
    a(f"v_lshlrev_b32 v{vt[4]}, 13, v{vt[1]}")
    a(f"v_and_b32 v{vt[1]}, 1, v{vL}")
    a(f"v_lshl_add_u32 v{vt[4]}, v{vt[1]}, 4, v{vt[4]}")
    a(f"s_lshl_b32 s{sTmp}, s{sWGI}, 5")
    a(f"v_add_u32 v{vt[4]}, s{sTmp}, v{vt[4]}")
    a(f"v_cmp_gt_u32 vcc, 16, v{vt[0]}")
    a(f"v_mov_b32 v{vt[1]}, 0x7f000000")
    a.nop(1)
    a(f"v_cndmask_b32 v{vt[6]}, v{vt[1]}, v{vt[4]}, vcc")
    for i in range(5):
        a(f"s_mov_b32 s{sOff}, {i*32*8192}")
        a(f"buffer_load_dwordx4 {vr(hW+4*i,4)}, v{vt[4] if i < 4 else vt[6]}, {srd(rWQ)}, s{sOff} offen{WP}")
    a(f"s_cmp_lg_u32 s{sW}, 7")
    a("s_cbranch_scc1 L_nononce")
    a(f"v_mov_b32 v{hR}, s{sNon}")
    a(f"v_mov_b32 v{hR+1}, 0")
    a("s_mov_b64 exec, 1")
    a(f"buffer_atomic_cmpswap {vr(hR,2)}, v{vZ}, {srd(rDBG)}, 0 offen sc0")
    a(f"s_cmp_lg_u32 s{sJ}, 0")
    a("s_cbranch_scc1 L_noci")
    a(f"s_lshl_b32 s{sTmp}, s{sHP}, 7")
    a(f"s_add_u32 s{sTmp}, s{sTmp}, {WS_CNT}")
    a(f"buffer_store_dword v{vZ}, v{vZ}, {srd(rWS)}, s{sTmp} offen sc1")
    a.label("L_noci")
    a("s_mov_b64 exec, -1")
    a.label("L_nononce")
    a("s_barrier")
    if opts.get("nohelp"): a("s_branch L_end")
    mk(rWG, sWG, size=576 * 9216)
    mk(rWU, sWU, size=576 * 9216)
    mk(rWO, sWO, size=4096 * 1152)
    mk(rWD, sWD, size=4608 * 1152)
    mk(rOUT, sOUT, size=1152)
    a.c("layernorm")
    a("s_waitcnt vmcnt(5)")
    stamp("x_arrived")
    xf = [hF + i for i in range(10)]
    for j in range(5):
        a(f"v_lshlrev_b32 v{xf[2*j]}, 16, v{hX+j}")
        a(f"v_and_b32 v{xf[2*j+1]}, 0xffff0000, v{hX+j}")
    s_ = vt[0]
    a(f"v_add_f32 v{s_}, v{xf[0]}, v{xf[1]}")
    for i in range(2, 10):
        a(f"v_add_f32 v{s_}, v{s_}, v{xf[i]}")
    wave_allreduce(a, "add", s_, vt[1])
    a(f"v_mul_f32 v{s_}, 0x{f32bits(1.0/576):08x}, v{s_}")
    a(f"v_cmp_gt_u32 vcc, 32, v{vL}")
    q_ = vt[2]
    a(f"v_mov_b32 v{q_}, 0")
    for i in range(10):
        a(f"v_sub_f32 v{vt[1]}, v{xf[i]}, v{s_}")
        if i >= 8:
            a(f"v_cndmask_b32 v{vt[1]}, 0, v{vt[1]}, vcc")
        a(f"v_fmac_f32 v{q_}, v{vt[1]}, v{vt[1]}")
    wave_allreduce(a, "add", q_, vt[1])
    a(f"v_mul_f32 v{q_}, 0x{f32bits(1.0/576):08x}, v{q_}")
    bf16_round(a, s_, s_)
    bf16_round(a, q_, q_)
    a(f"v_add_f32 v{q_}, 0x{f32bits(1e-5):08x}, v{q_}")
    bf16_round(a, q_, q_)
    a(f"v_sqrt_f32 v{q_}, v{q_}")
    a.nop(1)
    bf16_round(a, q_, q_)
    rc = vt[1]
    a(f"v_rcp_f32 v{rc}, v{q_}")
    a.nop(1)
    for i in range(10):
        dd = xf[i]
        a(f"v_sub_f32 v{dd}, v{dd}, v{s_}")
        bf16_round(a, dd, dd)
        a(f"v_mul_f32 v{vt[6]}, v{dd}, v{rc}")
        a(f"v_fma_f32 v{vt[7]}, -v{vt[6]}, v{q_}, v{dd}")
        a(f"v_fma_f32 v{dd}, v{vt[7]}, v{rc}, v{vt[6]}")
        bf16_round(a, dd, dd)
        if i >= 8:
            a(f"v_cndmask_b32 v{dd}, 0, v{dd}, vcc")
    a(f"v_lshlrev_b32 v{vt[0]}, 3, v{vL}")
    for j in range(5):
        a(f"ds_write_b64 v{vt[0]}, {vr(xf[2*j],2)} offset:{XN + j*512}")
    a.c("q slice")
    for i in range(5):
        a(f"ds_read_b32 v{hX+i}, v{vt[5]} offset:{XN + i*128}")
    acc = [hA + i for i in range(8)]
    a(f"s_cmp_eq_u32 s{sW}, 7")
    a("s_cbranch_scc1 L_w7b")
    a("s_waitcnt vmcnt(0)")
    a.label("L_w7b")
    a("s_waitcnt vmcnt(1) lgkmcnt(0)") if False else None
    a(f"s_cmp_eq_u32 s{sJ}, 0")
    a("s_cbranch_scc1 L_w7c")
    a("s_waitcnt vmcnt(1)")
    a.label("L_w7c")
    a("s_waitcnt vmcnt(2) lgkmcnt(0)")
    for i in range(5):
        for dd in range(4):
            r = hW + 4 * i + dd
            a(f"v_lshlrev_b32 v{vt[0]}, 16, v{r}")
            a(f"v_and_b32 v{vt[1]}, 0xffff0000, v{r}")
            if i == 0:
                a(f"v_mul_f32 v{acc[2*dd]}, v{vt[0]}, v{hX+i}")
                a(f"v_mul_f32 v{acc[2*dd+1]}, v{vt[1]}, v{hX+i}")
            else:
                a(f"v_fmac_f32 v{acc[2*dd]}, v{vt[0]}, v{hX+i}")
                a(f"v_fmac_f32 v{acc[2*dd+1]}, v{vt[1]}, v{hX+i}")
    a.nop(2)
    for ctrl in ("quad_perm:[2,3,0,1]", "row_ror:4", "row_ror:8"):
        for e in range(8):
            a(f"v_add_f32_dpp v{acc[e]}, v{acc[e]}, v{acc[e]} {ctrl} row_mask:0xf bank_mask:0xf")
    tq = [hW + i for i in range(8)]
    for sw in ("v_permlane32_swap_b32", "v_permlane16_swap_b32"):
        for e in range(8):
            a(f"v_mov_b32 v{tq[e]}, v{acc[e]}")
        for e in range(8):
            a(f"{sw} v{acc[e]}, v{tq[e]}")
        for e in range(8):
            a(f"v_add_f32 v{acc[e]}, v{acc[e]}, v{tq[e]}")
    a(f"s_lshl_b32 s{sTmp}, s{sHW}, 6")
    a(f"v_lshlrev_b32 v{vt[0]}, 5, v{vL}")
    a(f"v_add_u32 v{vt[0]}, s{sTmp}, v{vt[0]}")
    a("s_mov_b64 exec, 3")
    a(f"ds_write_b128 v{vt[0]}, {vr(acc[0],4)} offset:{QP}")
    a(f"ds_write_b128 v{vt[0]}, {vr(acc[4],4)} offset:{QP+16}")
    a("s_mov_b64 exec, -1")
    lds_arrive(F_QCNT, vt[2])
    stamp("qpart_done")
    a(f"s_cmp_lg_u32 s{sW}, 7")
    a("s_cbranch_scc1 L_xskip")
    a.c("q exchange (wave 7)")
    spin_lds(F_QCNT, 4, vt[2], sleep=0)
    a(f"v_lshlrev_b32 v{vt[0]}, 2, v{vL}")
    for w in range(4):
        a(f"ds_read_b32 v{hW+w}, v{vt[0]} offset:{QP + w*64}")
    a("s_waitcnt vmcnt(0)")
    a(f"v_readfirstlane_b32 s{sTmp}, v{hR}")
    a(f"s_cmp_eq_u32 s{sTmp}, 0")
    a(f"s_cselect_b32 s{sNon}, s{sNon}, s{sTmp}")
    a("s_waitcnt lgkmcnt(0)")
    for w in range(1, 4):
        a(f"v_add_f32 v{hW}, v{hW}, v{hW+w}")
    a.nop(2)
    a(f"v_mov_b32_dpp v{hW+1}, v{hW} quad_perm:[1,0,3,2] row_mask:0xf bank_mask:0xf")
    a(f"v_cvt_pk_bf16_f32 v{hW}, v{hW}, v{hW+1}")
    a(f"v_mov_b32 v{hW+1}, s{sNon}")
    a(f"v_mov_b32 v{vNon}, s{sNon}")
    a(f"s_lshl_b32 s{sOff}, s{sWGI}, 6")
    a(f"s_add_u32 s{sOff}, s{sOff}, {WS_Q}")
    a("s_mov_b64 exec, 0x5555")
    a(f"buffer_store_dwordx2 {vr(hW,2)}, v{vt[0]}, {srd(rWS)}, s{sOff} offen sc1")
    a("s_mov_b64 exec, -1")
    stamp("x_pub")
    a(f"v_lshlrev_b32 v{vt[0]}, 4, v{vL}")
    a(f"s_lshl_b32 s{sOff}, s{sHP}, 10")
    a(f"s_add_u32 s{sOff}, s{sOff}, {WS_Q}")
    if opts.get("pdelay", 8): a(f"s_sleep {opts.get('pdelay', 8)}")
    ls = retry_begin()
    a(f"buffer_load_dwordx4 {vr(hW+4,4)}, v{vt[0]}, {srd(rWS)}, s{sOff} offen sc1")
    retry_end(ls, [hW + 5, hW + 7], vt[1], vt[2], sleep=2)
    stamp("x_ok")
    a(f"v_mov_b32 v{hW+5}, v{hW+6}")
    a(f"v_lshlrev_b32 v{vt[0]}, 3, v{vL}")
    a(f"ds_write_b64 v{vt[0]}, {vr(hW+4,2)} offset:{QB}")
    a("s_waitcnt lgkmcnt(0)")
    a(f"ds_write_b32 v{vZ}, v{vNon} offset:{F_NON}")
    a.label("L_xskip")
    a.c("ffn phase 1: rows 36j+9hw..+9, cols hp*288..+288 (36 lanes x 16B)")
    a(f"s_mul_i32 s{sTmp}, s{sJ}, 36")
    a(f"s_mul_i32 s{sTmp2}, s{sHW}, 9")
    a(f"s_add_u32 s{sTmp}, s{sTmp}, s{sTmp2}")
    a(f"s_lshl_b32 s{sA0}, s{sTmp}, 2")
    a(f"s_mul_i32 s{sOff}, s{sTmp}, 9216")
    a(f"s_mul_i32 s{sTmp2}, s{sHP}, 576")
    a(f"s_add_u32 s{sOff}, s{sOff}, s{sTmp2}")
    a(f"v_lshlrev_b32 v{vt[0]}, 4, v{vL}")
    a("s_mov_b32 exec_hi, 0xf")
    for r in range(9):
        a(f"buffer_load_dwordx4 {vr(hR+8*r,4)}, v{vt[0]}, {srd(rWG)}, s{sOff} offen{WP}")
        a(f"buffer_load_dwordx4 {vr(hR+8*r+4,4)}, v{vt[0]}, {srd(rWU)}, s{sOff} offen{WP}")
        a(f"s_add_u32 s{sOff}, s{sOff}, 9216")
    a("s_mov_b64 exec, -1")
    hW2 = 148
    vR3, vC18, vW2o = 12, 13, 14
    a(f"v_mul_u32_u24 v{vR3}, 57, v{vL}")
    a(f"v_lshrrev_b32 v{vR3}, 10, v{vR3}")
    a(f"v_mul_u32_u24 v{vC18}, 18, v{vR3}")
    a(f"v_sub_u32 v{vC18}, v{vL}, v{vC18}")
    a(f"s_mul_i32 s{sTmp}, s{sHW}, 3")
    a(f"v_add_u32 v{vR3}, s{sTmp}, v{vR3}")
    a(f"s_mov_b32 s{sTmp}, 1152")
    a(f"v_mul_lo_u32 v{vW2o}, v{vR3}, s{sTmp}")
    a(f"v_lshl_add_u32 v{vW2o}, v{vC18}, 4, v{vW2o}")
    a(f"s_mul_i32 s{sTmp}, s{sCQ}, 288")
    a(f"v_add_u32 v{vW2o}, s{sTmp}, v{vW2o}")
    a(f"s_lshl_b32 s{sTmp}, s{sHP}, 2")
    a(f"s_add_u32 s{sTmp}, s{sTmp}, s{sRQ}")
    a(f"s_mul_i32 s{sOff}, s{sTmp}, {64*1152}")
    a(f"s_mul_i32 s{sA1}, s{sTmp}, {72*1152}")
    for i in range(6):
        a(f"v_add_u32 v{vt[1]}, {12*i}, v{vR3}")
        a(f"v_cmp_gt_u32 vcc, 64, v{vt[1]}")
        a(f"s_mov_b32 s{sEx}, -1")
        a(f"s_mov_b32 s{sEx+1}, 0x3fffff")
        a(f"s_and_b64 vcc, vcc, s[{sEx}:{sEx+1}]")
        for e in range(4):
            a(f"v_mov_b32 v{hW2+4*i+e}, 0")
        a("s_mov_b64 exec, vcc")
        lk = a.newlabel("w2s")
        a(f"s_cbranch_execz {lk}")
        a(f"buffer_load_dwordx4 {vr(hW2+4*i,4)}, v{vW2o}, {srd(rWO)}, s{sOff} offen{WP}")
        a.label(lk)
        a("s_mov_b64 exec, -1")
        a(f"s_add_u32 s{sOff}, s{sOff}, {12*1152}")
    for i in range(6):
        for e in range(4):
            a(f"v_mov_b32 v{hW2+24+4*i+e}, 0")
    a("s_mov_b32 exec_hi, 0x3fffff")
    for i in range(6):
        a(f"buffer_load_dwordx4 {vr(hW2+24+4*i,4)}, v{vW2o}, {srd(rWD)}, s{sA1} offen{WP}")
        a(f"s_add_u32 s{sA1}, s{sA1}, {12*1152}")
    a("s_mov_b64 exec, -1")
    a(f"v_mov_b32 v{vt[1]}, s{sA0}")
    for r in range(9):
        a(f"ds_read_b32 v{hX+r}, v{vt[1]} offset:{XN + r*4}")
    xr = [hX + r for r in range(9)]
    fac = [hA + i for i in range(16)]
    a("s_waitcnt vmcnt(6) lgkmcnt(0)")
    a("s_waitcnt vmcnt(0)") if opts.get("safe_ffn", 1) else None
    for r in range(9):
        for mt in range(2):
            for dd in range(4):
                rg = hR + 8 * r + 4 * mt + dd
                a(f"v_lshlrev_b32 v{vt[2]}, 16, v{rg}")
                a(f"v_and_b32 v{vt[3]}, 0xffff0000, v{rg}")
                if r == 0:
                    a(f"v_mul_f32 v{fac[8*mt+2*dd]}, v{vt[2]}, v{xr[r]}")
                    a(f"v_mul_f32 v{fac[8*mt+2*dd+1]}, v{vt[3]}, v{xr[r]}")
                else:
                    a(f"v_fmac_f32 v{fac[8*mt+2*dd]}, v{vt[2]}, v{xr[r]}")
                    a(f"v_fmac_f32 v{fac[8*mt+2*dd+1]}, v{vt[3]}, v{xr[r]}")
    a(f"s_mul_i32 s{sTmp}, s{sHW}, 2304")
    a(f"v_lshlrev_b32 v{vt[0]}, 5, v{vL}")
    a(f"v_add_u32 v{vt[0]}, s{sTmp}, v{vt[0]}")
    a("s_mov_b32 exec_hi, 0xf")
    for mt in range(2):
        a(f"ds_write_b128 v{vt[0]}, {vr(fac[8*mt],4)} offset:{FFP + mt*1152}")
        a(f"ds_write_b128 v{vt[0]}, {vr(fac[8*mt+4],4)} offset:{FFP + mt*1152 + 16}")
    a("s_mov_b64 exec, -1")
    lds_arrive(F_FCNT, vt[2], ret=True)
    a(f"s_mov_b32 s{sA0}, s{sTmp}")
    stamp("ffn1_done")
    spin_lds(F_NON, 1, vNon)
    a(f"s_mov_b32 s{sNon}, s{sTmp}")
    a(f"s_cmp_lg_u32 s{sA0}, 3")
    a("s_cbranch_scc1 L_fpskip")
    a.c("last arriver: sum 4 partials and publish 576 granules")
    a(f"v_lshlrev_b32 v{vt[0]}, 2, v{vL}")
    for k in range(9):
        for w in range(4):
            a(f"ds_read_b32 v{hR+4*k+w}, v{vt[0]} offset:{FFP + w*2304 + k*256}")
    a(f"s_mul_i32 s{sOff}, s{sWGI}, 4608")
    a(f"s_add_u32 s{sOff}, s{sOff}, {WS_FP}")
    a(f"v_lshlrev_b32 v{vt[0]}, 3, v{vL}")
    a("s_waitcnt lgkmcnt(0)")
    for k in range(9):
        a(f"v_add_f32 v{hR+4*k}, v{hR+4*k}, v{hR+4*k+1}")
        a(f"v_add_f32 v{hR+4*k+2}, v{hR+4*k+2}, v{hR+4*k+3}")
        a(f"v_add_f32 v{hR+4*k}, v{hR+4*k}, v{hR+4*k+2}")
        a(f"v_mov_b32 v{hR+4*k+1}, v{vNon}")
        if k == 8:
            a(f"s_add_u32 s{sOff}, s{sOff}, 4096")
        a(f"buffer_store_dwordx2 {vr(hR+4*k,2)}, v{vt[0]}, {srd(rWS)}, s{sOff} offen offset:{(k%8)*512} sc1")
    a.label("L_fpskip")
    a(f"s_setprio {opts.get('hprio', 1)}")
    a(f"s_cmp_lg_u32 s{sW}, 4")
    a("s_cbranch_scc1 L_rsskip")
    a.c("ffn reduce-scatter")
    a(f"v_cmp_le_u32 vcc, 18, v{vL}")
    a(f"v_mov_b32 v{vt[1]}, {2304-144}")
    a.nop(1)
    a(f"v_cndmask_b32 v{vt[1]}, 0, v{vt[1]}, vcc")
    a(f"v_lshl_add_u32 v{vt[0]}, v{vL}, 3, v{vt[1]}")
    a(f"s_mul_i32 s{sTmp}, s{sJ}, 144")
    a(f"v_add_u32 v{vt[0]}, s{sTmp}, v{vt[0]}")
    a("s_mov_b32 exec_hi, 0xf")
    a(f"s_sleep {opts.get('rsdelay', 64)}")
    ls = retry_begin()
    a(f"s_mul_i32 s{sOff}, s{sHP}, {16*4608}")
    a(f"s_add_u32 s{sOff}, s{sOff}, {WS_FP}")
    for p in range(16):
        a(f"buffer_load_dwordx2 {vr(hR+2*p,2)}, v{vt[0]}, {srd(rWS)}, s{sOff} offen sc1")
        a(f"s_add_u32 s{sOff}, s{sOff}, 4608")
    retry_end(ls, [hR + 2 * p + 1 for p in range(16)], vt[1], vt[2], sleep=32)
    for p in range(1, 16):
        a(f"v_add_f32 v{hR}, v{hR}, v{hR+2*p}")
    a("s_mov_b64 exec, -1")
    bf16_round(a, hR, hR)
    a(f"v_add_u32 v{vt[0]}, 18, v{vL}")
    a(f"v_lshlrev_b32 v{vt[0]}, 2, v{vt[0]}")
    a(f"v_and_b32 v{vt[0]}, 0xff, v{vt[0]}")
    a(f"ds_bpermute_b32 v{hR+1}, v{vt[0]}, v{hR}")
    silu(hR)
    a("s_waitcnt lgkmcnt(0)")
    a(f"v_mul_f32 v{hR}, v{hR}, v{hR+1}")
    bf16_round(a, hR, hR)
    a(f"v_mov_b32 v{hR+1}, v{vNon}")
    a(f"s_mul_i32 s{sOff}, s{sWGI}, 144")
    a(f"s_add_u32 s{sOff}, s{sOff}, {WS_HB}")
    a(f"v_lshlrev_b32 v{vt[0]}, 3, v{vL}")
    a("s_mov_b64 exec, 0x3ffff")
    a(f"buffer_store_dwordx2 {vr(hR,2)}, v{vt[0]}, {srd(rWS)}, s{sOff} offen sc1")
    a("s_mov_b64 exec, -1")
    stamp("h_pub")
    a.c("all-gather h[hp*288 + rq*72 ..+72] -> LDS INH (wave 4)")
    a(f"s_lshl_b32 s{sTmp}, s{sHP}, 2")
    a(f"s_add_u32 s{sTmp}, s{sTmp}, s{sRQ}")
    a(f"s_mul_i32 s{sOff}, s{sTmp}, 576")
    a(f"s_add_u32 s{sOff}, s{sOff}, {WS_HB}")
    a(f"v_lshlrev_b32 v{vt[0]}, 4, v{vL}")
    a("s_mov_b32 exec_hi, 0xf")
    a(f"s_sleep 32")
    ls = retry_begin()
    a(f"buffer_load_dwordx4 {vr(hR,4)}, v{vt[0]}, {srd(rWS)}, s{sOff} offen sc1")
    retry_end(ls, [hR + 1, hR + 3], vt[1], vt[2], sleep=32)
    a(f"v_mov_b32 v{hR+1}, v{hR+2}")
    a(f"v_lshlrev_b32 v{vt[0]}, 3, v{vL}")
    a(f"ds_write_b64 v{vt[0]}, {vr(hR,2)} offset:{INH}")
    a("s_mov_b64 exec, -1")
    lds_arrive(F_H, vt[2])
    a.label("L_rsskip")

    def slice_matmul(inaddr, wbase, fin, cnt_flag, wsbase, tagname):
        a(f"v_lshlrev_b32 v{vt[0]}, 2, v{vR3}")
        for i in range(6):
            a(f"ds_read_b32 v{hX+i}, v{vt[0]} offset:{inaddr + i*48}")
        a("s_waitcnt lgkmcnt(0)")
        fa = [hA + e for e in range(8)]
        for i in range(6):
            for dd in range(4):
                rg = wbase + 4 * i + dd
                a(f"v_lshlrev_b32 v{vt[2]}, 16, v{rg}")
                a(f"v_and_b32 v{vt[3]}, 0xffff0000, v{rg}")
                if i == 0:
                    a(f"v_mul_f32 v{fa[2*dd]}, v{vt[2]}, v{hX+i}")
                    a(f"v_mul_f32 v{fa[2*dd+1]}, v{vt[3]}, v{hX+i}")
                else:
                    a(f"v_fmac_f32 v{fa[2*dd]}, v{vt[2]}, v{hX+i}")
                    a(f"v_fmac_f32 v{fa[2*dd+1]}, v{vt[3]}, v{hX+i}")
        a(f"s_lshl_b32 s{sTmp}, s{sHW}, 11")
        a(f"v_lshlrev_b32 v{vt[0]}, 5, v{vL}")
        a(f"v_add_u32 v{vt[0]}, s{sTmp}, v{vt[0]}")
        a(f"ds_write_b128 v{vt[0]}, {vr(fa[0],4)} offset:{fin}")
        a(f"ds_write_b128 v{vt[0]}, {vr(fa[4],4)} offset:{fin+16}")
        lds_arrive(cnt_flag, vt[2], ret=True)
        lk = a.newlabel("sm")
        a(f"s_cmp_lg_u32 s{sTmp}, 3")
        a(f"s_cbranch_scc1 {lk}")
        a(f"v_lshlrev_b32 v{vt[0]}, 2, v{vL}")
        for k in range(3):
            for w in range(4):
                for r3 in range(3):
                    a(f"ds_read_b32 v{hR+12*k+3*w+r3}, v{vt[0]} offset:{fin + w*2048 + r3*576 + k*256}")
        a(f"s_lshl_b32 s{sTmp}, s{sHP}, 2")
        a(f"s_add_u32 s{sTmp}, s{sTmp}, s{sRQ}")
        a(f"s_lshl_b32 s{sOff}, s{sCQ}, 6")
        a(f"s_add_u32 s{sOff}, s{sOff}, s{sTmp}")
        a(f"s_mul_i32 s{sOff}, s{sOff}, 1152")
        a(f"s_add_u32 s{sOff}, s{sOff}, {wsbase}")
        a(f"v_lshlrev_b32 v{vt[0]}, 3, v{vL}")
        a("s_waitcnt lgkmcnt(0)")
        for k in range(3):
            for q in range(1, 12):
                a(f"v_add_f32 v{hR+12*k}, v{hR+12*k}, v{hR+12*k+q}")
            a(f"v_mov_b32 v{hR+12*k+1}, v{vNon}")
            if k == 2:
                a("s_mov_b64 exec, 0xffff")
            a(f"buffer_store_dwordx2 {vr(hR+12*k,2)}, v{vt[0]}, {srd(rWS)}, s{sOff} offen offset:{k*512} sc1")
        a("s_mov_b64 exec, -1")
        stamp(tagname)
        a.label(lk)

    def fin_gather(wsbase, dst, cntflag, sleep):
        a(f"s_mul_i32 s{sTmp}, s{sHW}, 3")
        a(f"v_subrev_u32 v{vt[4]}, s{sTmp}, v{vR3}")
        a(f"s_mov_b32 s{sTmp}, 1152")
        a(f"v_mul_lo_u32 v{vt[0]}, v{vt[4]}, s{sTmp}")
        a(f"v_lshl_add_u32 v{vt[0]}, v{vC18}, 4, v{vt[0]}")
        a(f"s_lshr_b32 s{sTmp}, s{sJ}, 2")
        a(f"s_lshl_b32 s{sTmp}, s{sTmp}, 6")
        a(f"s_lshl_b32 s{sTmp2}, s{sHW}, 4")
        a(f"s_add_u32 s{sTmp}, s{sTmp}, s{sTmp2}")
        a(f"s_mul_i32 s{sA0}, s{sTmp}, 1152")
        a(f"s_and_b32 s{sTmp}, s{sJ}, 3")
        a(f"s_mul_i32 s{sTmp}, s{sTmp}, 288")
        a(f"s_add_u32 s{sA0}, s{sA0}, s{sTmp}")
        a(f"s_add_u32 s{sA0}, s{sA0}, {wsbase}")
        a(f"v_mov_b32 v{hR+20}, 0")
        a(f"v_mov_b32 v{hR+21}, v{vNon}")
        a(f"v_mov_b32 v{hR+22}, 0")
        a(f"v_mov_b32 v{hR+23}, v{vNon}")
        a("s_mov_b32 exec_hi, 0x3fffff")
        ls = retry_begin()
        a(f"s_mov_b32 s{sOff}, s{sA0}")
        for i in range(6):
            if i == 5:
                a("s_mov_b64 exec, 0x3ffff")
            a(f"buffer_load_dwordx4 {vr(hR+4*i,4)}, v{vt[0]}, {srd(rWS)}, s{sOff} offen sc1")
            a(f"s_add_u32 s{sOff}, s{sOff}, {3*1152}")
        a("s_mov_b32 exec_lo, -1")
        a("s_mov_b32 exec_hi, 0x3fffff")
        retry_end(ls, [hR + 4 * i + e for i in range(6) for e in (1, 3)], vt[1], vt[2], sleep=sleep)
        for i in range(1, 6):
            a(f"v_add_f32 v{hR}, v{hR}, v{hR+4*i}")
            a(f"v_add_f32 v{hR+2}, v{hR+2}, v{hR+4*i+2}")
        a(f"v_mov_b32 v{hR+1}, v{hR+2}")
        a(f"s_lshl_b32 s{sTmp}, s{sHW}, 9")
        a(f"v_lshlrev_b32 v{vt[0]}, 3, v{vL}")
        a(f"v_add_u32 v{vt[0]}, s{sTmp}, v{vt[0]}")
        a(f"ds_write_b64 v{vt[0]}, {vr(hR,2)} offset:{dst}")
        a("s_mov_b64 exec, -1")
        lds_arrive(cntflag, vt[2], ret=True)

    a.c("y-part matmul")
    spin_lds(F_H, 1, vt[2], sleep=8)
    slice_matmul(INH, hW2 + 24, FIN2, F_YCNT, WS_Y2, "y_pub")
    a(f"v_lshlrev_b32 v{vt[0]}, 2, v{vL}")
    a(f"ds_write_b32 v{vt[0]}, v{vZ} offset:{INO+256}")
    a(f"s_cmp_lg_u32 s{sHP}, s{sJ}")
    a("s_cbranch_scc1 L_noyg")
    a(f"s_sleep 64")
    fin_gather(WS_Y2, G2 + 2048, F_Y2CNT, 64)
    a.label("L_noyg")
    stamp("h_idle")
    a.c("wg combine")
    spin_lds(F_SCNT, 4, vt[2], sleep=opts.get("hsleep", 2))
    a("s_setprio 3")
    stamp("s_all")
    a(f"v_and_b32 v{vt[5]}, 255, v0")
    a(f"v_lshlrev_b32 v{vt[0]}, 2, v{vt[5]}")
    a(f"v_lshrrev_b32 v{vt[1]}, 7, v{vt[5]}")
    a(f"v_lshlrev_b32 v{vt[1]}, 2, v{vt[1]}")
    mreg = [hR + i for i in range(4)]
    lreg = [hR + 4 + i for i in range(4)]
    oreg = [hR + 8 + i for i in range(4)]
    for w in range(4):
        a(f"ds_read_b32 v{mreg[w]}, v{vt[1]} offset:{COMB + w*CSTR + 1024}")
        a(f"ds_read_b32 v{lreg[w]}, v{vt[1]} offset:{COMB + w*CSTR + 1032}")
        a(f"ds_read_b32 v{oreg[w]}, v{vt[0]} offset:{COMB + w*CSTR}")
    a("s_waitcnt lgkmcnt(0)")
    M, Lr, Or = hA + 8, hA + 10, hA + 12
    combine(4, mreg, lreg, oreg, M, Lr, Or)
    a(f"v_mov_b32 v{M+1}, v{vNon}")
    a(f"v_mov_b32 v{Lr+1}, v{vNon}")
    a(f"v_mov_b32 v{Or+1}, v{vNon}")
    a(f"s_mul_i32 s{sOff}, s{sWGI}, {PSTR}")
    a(f"v_lshlrev_b32 v{vt[0]}, 3, v{vt[5]}")
    a(f"buffer_store_dwordx2 {vr(Or,2)}, v{vt[0]}, {srd(rWS)}, s{sOff} offen sc1")
    a(f"v_lshlrev_b32 v{vt[1]}, 2, v{vt[1]}")
    a(f"s_and_b32 s{sTmp}, s{sHW}, 1")
    a(f"s_cmp_lg_u32 s{sTmp}, 0")
    a("s_cbranch_scc1 L_mlskip")
    a("s_mov_b64 exec, 1")
    a(f"buffer_store_dwordx4 {vr(M,4)}, v{vt[1]}, {srd(rWS)}, s{sOff} offen offset:2048 sc1")
    a("s_mov_b64 exec, -1")
    a.label("L_mlskip")
    stamp("published")
    a(f"s_cmp_lg_u32 s{sW}, 4")
    a("s_cbranch_scc1 L_l1skip")
    a.c("level-1 poll")
    a(f"v_and_b32 v{vt[0]}, 15, v{vL}")
    a(f"v_mul_u32_u24 v{vt[0]}, {PSTR}, v{vt[0]}")
    a(f"s_lshr_b32 s{sTmp}, s{sRQ}, 1")
    a(f"s_lshl_b32 s{sTmp}, s{sTmp}, 4")
    a(f"s_mul_i32 s{sA0}, s{sHP}, {16*PSTR}")
    a(f"s_add_u32 s{sA1}, s{sA0}, s{sTmp}")
    a("s_mov_b64 exec, 0xffff")
    ls = retry_begin()
    a(f"buffer_load_dwordx4 {vr(hR,4)}, v{vt[0]}, {srd(rWS)}, s{sA1} offen offset:2048 sc1")
    retry_end(ls, [hR + 1, hR + 3], vt[1], vt[2], sleep=opts.get("sleep1", 8))
    a("s_mov_b64 exec, -1")
    stamp("polled")
    a(f"s_lshl_b32 s{sTmp}, s{sRQ}, 9")
    a(f"s_add_u32 s{sA0}, s{sA0}, s{sTmp}")
    a(f"v_lshlrev_b32 v{vt[0]}, 3, v{vL}")
    hG = hR + 8
    ls = retry_begin()
    a(f"s_mov_b32 s{sOff}, s{sA0}")
    for p in range(16):
        a(f"buffer_load_dwordx2 {vr(hG+2*p,2)}, v{vt[0]}, {srd(rWS)}, s{sOff} offen sc1")
        a(f"s_add_u32 s{sOff}, s{sOff}, {PSTR}")
    retry_end(ls, [hG + 2 * p + 1 for p in range(16)], vt[1], vt[2], sleep=2)
    mm, ll = hR + 4, hR + 5
    a(f"v_mov_b32 v{mm}, v{hR}")
    for ctrl in ("quad_perm:[1,0,3,2]", "quad_perm:[2,3,0,1]", "row_half_mirror", "row_mirror"):
        a.nop(2)
        a(f"v_max_f32_dpp v{mm}, v{mm}, v{mm} {ctrl} row_mask:0xf bank_mask:0xf")
    a(f"v_sub_f32 v{hR}, v{hR}, v{mm}")
    a(f"v_exp_f32 v{hR}, v{hR}")
    a.nop(1)
    a(f"v_mul_f32 v{ll}, v{hR}, v{hR+2}")
    for ctrl in ("quad_perm:[1,0,3,2]", "quad_perm:[2,3,0,1]", "row_half_mirror", "row_mirror"):
        a.nop(2)
        a(f"v_add_f32_dpp v{ll}, v{ll}, v{ll} {ctrl} row_mask:0xf bank_mask:0xf")
    a.nop(1)
    a(f"v_readlane_b32 s{sA1}, v{ll}, 0")
    for p in range(16):
        a(f"v_readlane_b32 s{sTmp}, v{hR}, {p}")
        a.nop(2)
        if p == 0:
            a(f"v_mul_f32 v{Or}, s{sTmp}, v{hG}")
        else:
            a(f"v_fmac_f32 v{Or}, s{sTmp}, v{hG+2*p}")
    a(f"v_mov_b32 v{Lr}, s{sA1}")
    a(f"v_rcp_f32 v{vt[3]}, v{Lr}")
    a.nop(1)
    a(f"v_mul_f32 v{vt[4]}, v{Or}, v{vt[3]}")
    a(f"v_fma_f32 v{vt[5]}, -v{vt[4]}, v{Lr}, v{Or}")
    a(f"v_fma_f32 v{Or}, v{vt[5]}, v{vt[3]}, v{vt[4]}")
    bf16_round(a, Or, Or)
    a(f"v_lshlrev_b32 v{vt[0]}, 2, v{vL}")
    a(f"ds_write_b32 v{vt[0]}, v{Or} offset:{INO}")
    lds_arrive(F_O, vt[2])
    stamp("gathered")
    a.label("L_l1skip")
    spin_lds(F_O, 1, vt[2], sleep=0)
    slice_matmul(INO, hW2, FIN, F_ZCNT, WS_S2, "s_pub")
    a(f"s_cmp_lg_u32 s{sHP}, s{sJ}")
    a("s_cbranch_scc1 L_end")
    fin_gather(WS_S2, G2, F_S2CNT, 2)
    a(f"s_cmp_lg_u32 s{sTmp}, 3")
    a("s_cbranch_scc1 L_end")
    a.c("final: last arriver sums 4 waves x 3 pp for 36 cols")
    a(f"s_mul_i32 s{sTmp}, s{sJ}, 72")
    a(f"v_lshlrev_b32 v{vt[6]}, 1, v{vL}")
    a(f"v_add_u32 v{vt[6]}, s{sTmp}, v{vt[6]}")
    a("s_mov_b32 exec_hi, 0xf")
    a(f"buffer_load_ushort v{vt[7]}, v{vt[6]}, {srd(rX)}, 0 offen")
    a(f"v_lshlrev_b32 v{vt[0]}, 2, v{vL}")
    for part in range(2):
        for w in range(4):
            for pp in range(3):
                a(f"ds_read_b32 v{hR+12*part+3*w+pp}, v{vt[0]} offset:{G2 + part*2048 + w*512 + pp*144}")
    a("s_waitcnt lgkmcnt(0)")
    for part in range(2):
        for q in range(1, 12):
            a(f"v_add_f32 v{hR+12*part}, v{hR+12*part}, v{hR+12*part+q}")
    sS, sY = hR, hR + 12
    bf16_round(a, sS, sS)
    bf16_round(a, sY, sY)
    silu(sY)
    a(f"v_mul_f32 v{sS}, v{sS}, v{sY}")
    bf16_round(a, sS, sS)
    a("s_waitcnt vmcnt(0)")
    a(f"v_lshlrev_b32 v{vt[7]}, 16, v{vt[7]}")
    a(f"v_add_f32 v{sS}, v{sS}, v{vt[7]}")
    a(f"v_cvt_pk_bf16_f32 v{sS}, v{sS}, v{sS}")
    a(f"buffer_store_short v{sS}, v{vt[6]}, {srd(rOUT)}, 0 offen")
    if STAMP:
        a("s_waitcnt vmcnt(0)")
    stamp("out")
    a.label("L_end")
    stamp_flush()
    a.label("L_exit")
    a("s_endpgm")
    a.L.append('.section .rodata,"a"')
    a.L.append(".p2align 6")
    a.L.append(f".amdhsa_kernel {KNAME}")
    a.L.append("  .amdhsa_next_free_vgpr 256")
    a.L.append("  .amdhsa_next_free_sgpr 102")
    a.L.append("  .amdhsa_accum_offset 256")
    a.L.append("  .amdhsa_group_segment_fixed_size 0")
    a.L.append("  .amdhsa_kernarg_size 96")
    a.L.append("  .amdhsa_user_sgpr_count 2")
    a.L.append("  .amdhsa_user_sgpr_kernarg_segment_ptr 1")
    a.L.append("  .amdhsa_system_sgpr_workgroup_id_x 1")
    a.L.append("  .amdhsa_float_denorm_mode_32 3")
    a.L.append(".end_amdhsa_kernel")
    return "\n".join(a.L) + "\n"

if __name__ == "__main__":
    out = sys.argv[1] if len(sys.argv) > 1 else "recurrent_scan__gqa_block_cached__swiglu_ffn__decode.s"
    opts = {}
    for kv in sys.argv[2:]:
        k, v = kv.split("=")
        opts[k] = int(v) if v.lstrip("-").isdigit() else v
    txt = gen(opts)
    if opts.get("stamp"):
        txt = txt.replace("\n", "\n; stamps=" + ",".join(opts["names"]) + "\n", 1)
    open(out, "w").write(txt)
    print("wrote", out)
```

```python
import sys, struct

KNAME = "recurrent_scan__gqa_block_cached__swiglu_ffn__decode_kernel"

def f32bits(x):
    return struct.unpack("<I", struct.pack("<f", x))[0]

class Asm:
    def __init__(self):
        self.L = []
        self.uid = 0
    def __call__(self, s):
        self.L.append("    " + s)
    def label(self, s):
        self.L.append(s + ":")
    def c(self, s):
        self.L.append("    ; " + s)
    def nop(self, n):
        while n > 0:
            k = min(n, 16)
            self(f"s_nop {k-1}")
            n -= k
    def newlabel(self, p):
        self.uid += 1
        return f"L_{p}{self.uid}"

FL = 0
F_NON, F_QCNT, F_FCNT, F_H, F_YCNT, F_SCNT, F_O, F_ZCNT, F_Y2CNT, F_S2CNT = [FL + 4 * i for i in range(10)]
XN = 64
QP = XN + 2560
QB = QP + 256
FFP = QB + 512
COMB = FFP + 9216
CSTR = 1056
INO = COMB + 4 * CSTR
INH = INO + 512
FIN = INH + 512
FIN2 = FIN + 8192
G2 = FIN2 + 8192
LDS_BYTES = G2 + 4096
LDS_BYTES = (LDS_BYTES + 1023) // 1024 * 1024
PSTR = 2176
WS_PART = 0
WS_FP = 256 * PSTR
WS_HB = WS_FP + 256 * 4608
WS_S2 = WS_HB + 4608 * 8
WS_Y2 = WS_S2 + 4 * 64 * 1152
WS_Q = WS_Y2 + 4 * 64 * 1152
WS_CNT = WS_Q + 16 * 1024
WS_BYTES = WS_CNT + 16 * 128
WS_STAMP = 4 << 20

sX, sK, sV, sWQ, sWO, sBX, sWG, sWU, sWD, sOUT, sDBG, sWS = [4 + 2 * i for i in range(12)]
rK, rV, rX, rWQ, rWG, rWU, rWO, rWD, rWS, rOUT, rDBG = [28 + 4 * i for i in range(11)]
sHP, sJ, sW, sWGI = 72, 73, 74, 75
sSelLo, sSelHi, sScale, sLog2e = 76, 77, 78, 79
sA0, sA1, sTmp, sTmp2, sOff, sCnt = 80, 81, 82, 83, 84, 85
sEx = 86
sNon = 88
sB = [89, 90, 91]
sStat, sLeft = 92, 93
sT64 = 94
sRQ, sCQ = 100, 101
OOB = 0x40000000

def srd(r): return f"s[{r}:{r+3}]"
def vr(b, n): return f"v[{b}:{b+n-1}]"

def bf16_round(a, dst, src):
    a(f"v_cvt_pk_bf16_f32 v{dst}, v{src}, v{src}")
    a(f"v_lshlrev_b32 v{dst}, 16, v{dst}")

def cross_rows(a, op, x, t):
    o = f"v_{op}_f32"
    for sw in ("v_permlane32_swap_b32", "v_permlane16_swap_b32"):
        a(f"v_mov_b32 v{t}, v{x}")
        a.nop(2)
        a(f"{sw} v{x}, v{t}")
        a.nop(1)
        a(f"{o} v{x}, v{x}, v{t}")

def wave_allreduce(a, op, x, t):
    o = f"v_{op}_f32"
    for ctrl in ("quad_perm:[1,0,3,2]", "quad_perm:[2,3,0,1]", "row_half_mirror", "row_mirror"):
        a.nop(2)
        a(f"{o}_dpp v{x}, v{x}, v{x} {ctrl} row_mask:0xf bank_mask:0xf")
    cross_rows(a, op, x, t)

def gen(opts):
    a = Asm()
    STAMP = opts.get("stamp", False)
    NS = opts.get("ns", 26)
    NPOOL = (32 - NS) * 64
    MAXPOLL = 0x40000
    WP = "" if opts.get("wdef") else " nt"
    stn = [0]
    names = []
    vL, vST, vNon, vZ = 1, 255, 254, 253
    vt = [2, 3, 4, 5, 6, 7, 8, 9, 10, 11]
    def stamp(name):
        if not STAMP: return
        a(f"s_memrealtime s[{sT64}:{sT64+1}]")
        a("s_waitcnt lgkmcnt(0)")
        a(f"v_writelane_b32 v{vST}, s{sT64}, {stn[0]}")
        names.append(name)
        stn[0] += 1
    def stamp_flush():
        if not STAMP: return
        a("s_mov_b64 exec, -1")
        a(f"s_lshl_b32 s{sTmp}, s2, 3")
        a(f"s_add_u32 s{sTmp}, s{sTmp}, s{sW}")
        a(f"s_lshl_b32 s{sTmp}, s{sTmp}, 8")
        a(f"v_lshlrev_b32 v{vt[8]}, 2, v{vL}")
        a(f"buffer_store_dword v{vST}, v{vt[8]}, s[96:99], s{sTmp} offen")
    opts["names"] = names

    def spin_lds(addr, target, tmpv, ge=True, sleep=1):
        l0, l1 = a.newlabel("sp"), a.newlabel("spx")
        a(f"s_mov_b32 s{sCnt}, 0x2000000")
        a.label(l0)
        a(f"ds_read_b32 v{tmpv}, v{vZ} offset:{addr}")
        a("s_waitcnt lgkmcnt(0)")
        a(f"v_readfirstlane_b32 s{sTmp}, v{tmpv}")
        a(f"s_cmp_ge_u32 s{sTmp}, {target}")
        a(f"s_cbranch_scc1 {l1}")
        a(f"s_sub_u32 s{sCnt}, s{sCnt}, 1")
        a(f"s_cmp_eq_u32 s{sCnt}, 0")
        a(f"s_cbranch_scc1 {l1}")
        a(f"s_sleep {sleep}")
        a(f"s_branch {l0}")
        a.label(l1)
    def lds_arrive(addr, tmpv, ret=False):
        a("s_waitcnt lgkmcnt(0)")
        a(f"v_mov_b32 v{tmpv}, 1")
        a("s_mov_b64 exec, 1")
        if ret:
            a(f"ds_add_rtn_u32 v{tmpv}, v{vZ}, v{tmpv} offset:{addr}")
            a("s_waitcnt lgkmcnt(0)")
            a(f"v_readfirstlane_b32 s{sTmp}, v{tmpv}")
        else:
            a(f"ds_add_u32 v{vZ}, v{tmpv} offset:{addr}")
        a("s_mov_b64 exec, -1")
    def retry_begin():
        l0, l1 = a.newlabel("rt"), a.newlabel("rtx")
        a(f"s_mov_b32 s{sCnt}, {MAXPOLL}")
        a.label(l0)
        return l0, l1
    def retry_end(ls, tagregs, t0, t1, sleep=2):
        l0, l1 = ls
        a("s_waitcnt vmcnt(0)")
        a(f"v_xor_b32 v{t0}, v{vNon}, v{tagregs[0]}")
        for r in tagregs[1:]:
            a(f"v_xor_b32 v{t1}, v{vNon}, v{r}")
            a(f"v_or_b32 v{t0}, v{t0}, v{t1}")
        a(f"v_cmp_ne_u32 vcc, 0, v{t0}")
        a(f"s_cbranch_vccz {l1}")
        a(f"s_sub_u32 s{sCnt}, s{sCnt}, 1")
        a(f"s_cmp_eq_u32 s{sCnt}, 0")
        a(f"s_cbranch_scc1 {l1}")
        a(f"s_sleep {sleep}")
        a(f"s_branch {l0}")
        a.label(l1)
    def silu(x):
        a(f"v_mul_f32 v{vt[2]}, s{sLog2e}, v{x}")
        a(f"v_exp_f32 v{vt[2]}, -v{vt[2]}")
        a.nop(1)
        a(f"v_add_f32 v{vt[2]}, 1.0, v{vt[2]}")
        a(f"v_rcp_f32 v{vt[3]}, v{vt[2]}")
        a.nop(1)
        a(f"v_mul_f32 v{vt[4]}, v{x}, v{vt[3]}")
        a(f"v_fma_f32 v{vt[5]}, -v{vt[4]}, v{vt[2]}, v{x}")
        a(f"v_fma_f32 v{x}, v{vt[5]}, v{vt[3]}, v{vt[4]}")
        a(f"v_cmp_eq_f32 vcc, 0x7f800000, v{vt[2]}")
        a.nop(2)
        a(f"v_cndmask_b32 v{x}, v{x}, v{vt[4]}, vcc")
        bf16_round(a, x, x)
    def combine(n, mreg, lreg, oreg, M, Lr, Or):
        a(f"v_max3_f32 v{M}, v{mreg[0]}, v{mreg[1]}, v{mreg[2]}")
        k = 3
        while k < n:
            if k + 1 < n:
                a(f"v_max3_f32 v{M}, v{M}, v{mreg[k]}, v{mreg[k+1]}"); k += 2
            else:
                a(f"v_max_f32 v{M}, v{M}, v{mreg[k]}"); k += 1
        for w in range(n):
            a(f"v_sub_f32 v{mreg[w]}, v{mreg[w]}, v{M}")
        for w in range(n):
            a(f"v_exp_f32 v{mreg[w]}, v{mreg[w]}")
        a.nop(1)
        a(f"v_mul_f32 v{Lr}, v{mreg[0]}, v{lreg[0]}")
        a(f"v_mul_f32 v{Or}, v{mreg[0]}, v{oreg[0]}")
        for w in range(1, n):
            a(f"v_fmac_f32 v{Lr}, v{mreg[w]}, v{lreg[w]}")
            a(f"v_fmac_f32 v{Or}, v{mreg[w]}, v{oreg[w]}")
    def mk(r, p, off_s=None, size=None):
        if off_s is None:
            a(f"s_mov_b32 s{r}, s{p}")
            a(f"s_and_b32 s{r+1}, s{p+1}, 0xffff")
        else:
            a(f"s_add_u32 s{r}, s{p}, s{off_s}")
            a(f"s_addc_u32 s{r+1}, s{p+1}, 0")
            a(f"s_and_b32 s{r+1}, s{r+1}, 0xffff")
        a(f"s_mov_b32 s{r+2}, {size}")
        a(f"s_mov_b32 s{r+3}, 0x20000")

    a.L.append(f"; @launch grid=(256,1,1) block=(512,1,1) lds={LDS_BYTES}")
    a.L.append('.amdgcn_target "amdgcn-amd-amdhsa--gfx950"')
    a.L.append(".text")
    a.L.append(f".globl {KNAME}")
    a.L.append(".p2align 8")
    a.L.append(f".type {KNAME},@function")
    a.label(KNAME)
    a("s_cmp_ge_u32 s2, 256")
    a("s_cbranch_scc1 L_exit")
    a("s_load_dwordx16 s[4:19], s[0:1], 0")
    a("s_load_dwordx8 s[20:27], s[0:1], 64")
    a(f"s_memrealtime s[{sT64}:{sT64+1}]")
    a(f"v_and_b32 v{vL}, 63, v0")
    a(f"v_lshrrev_b32 v{vt[0]}, 6, v0")
    a(f"s_lshr_b32 s{sHP}, s2, 4")
    a(f"s_and_b32 s{sJ}, s2, 15")
    a(f"v_readfirstlane_b32 s{sW}, v{vt[0]}")
    a(f"s_mov_b32 s{sWGI}, s2")
    a(f"s_lshr_b32 s{sRQ}, s{sJ}, 2")
    a(f"s_and_b32 s{sCQ}, s{sJ}, 3")
    a(f"s_mov_b32 s{sLog2e}, 0x{f32bits(1.4426950408889634):08x}")
    a(f"v_mov_b32 v{vZ}, 0")
    a(f"v_mov_b32 v{vST}, 0")
    a("s_waitcnt lgkmcnt(0)")
    a(f"s_or_b32 s{sNon}, s{sT64}, 1")
    mk(rWS, sWS, size=WS_BYTES)
    if STAMP:
        a(f"s_add_u32 s96, s{sWS}, {WS_STAMP}")
        a(f"s_addc_u32 s97, s{sWS+1}, 0")
        a(f"s_and_b32 s97, s97, 0xffff")
        a(f"s_mov_b32 s98, {2048*256}")
        a(f"s_mov_b32 s99, 0x20000")
    stamp("start")
    a(f"s_cmp_ge_u32 s{sW}, 4")
    a("s_cbranch_scc1 L_helper")

    vKoff, vVoff, vM, vLs, vMt = 12, 13, 14, 15, 16
    vC = [17, 18]
    vCo = 19
    vQ = 20
    vO = 36
    vD = 68
    vP = 76
    vT = 80
    KS = [88, 120]
    VS = [152, 184, 216]
    a.c("stream wave setup")
    a(f"s_cmp_lg_u32 s{sW}, 0")
    a("s_cbranch_scc1 L_nz")
    a(f"v_lshlrev_b32 v{vt[0]}, 2, v{vL}")
    a("s_mov_b64 exec, 0xffff")
    a(f"ds_write_b32 v{vt[0]}, v{vZ} offset:{FL}")
    a("s_mov_b64 exec, -1")
    a("s_waitcnt lgkmcnt(0)")
    a.label("L_nz")
    a(f"s_mov_b32 s{sSelLo}, 0x05040100")
    a(f"s_mov_b32 s{sSelHi}, 0x07060302")
    a(f"s_mov_b32 s{sScale}, 0x{f32bits(128 ** -0.5):08x}")
    a(f"v_and_b32 v{vt[0]}, 3, v{vL}")
    a(f"v_lshlrev_b32 v{vt[0]}, 10, v{vt[0]}")
    a(f"v_bfe_u32 v{vt[1]}, v{vL}, 2, 2")
    a(f"v_lshlrev_b32 v{vt[1]}, 8, v{vt[1]}")
    a(f"v_lshrrev_b32 v{vt[2]}, 4, v{vL}")
    a(f"v_lshlrev_b32 v{vt[2]}, 4, v{vt[2]}")
    a(f"v_add3_u32 v{vKoff}, v{vt[0]}, v{vt[1]}, v{vt[2]}")
    a(f"v_lshlrev_b32 v{vVoff}, 4, v{vL}")
    a(f"s_lshl_b32 s{sTmp}, s{sHP}, 24")
    mk(rK, sK, sTmp, size=1 << 24)
    mk(rV, sV, sTmp, size=1 << 24)
    a(f"s_lshl_b32 s{sStat}, s{sJ}, 20")
    a(f"s_lshl_b32 s{sTmp}, s{sW}, 12")
    a(f"s_add_u32 s{sStat}, s{sStat}, s{sTmp}")
    a(f"v_mov_b32 v{vCo}, {OOB}")
    a(f"v_mov_b32 v{vC[0]}, 0")
    a(f"v_mov_b32 v{vC[1]}, 0")
    a("s_barrier")
    def stream_body(sfx, KP, VP):
        def Kload(slot, t, i, sb):
            return f"buffer_load_dwordx4 {vr(slot+16*t+4*i,4)}, v{vKoff}, {srd(rK)}, s{sb} offen offset:{i*64}{KP}"
        def Vload(slot, t, r, sb):
            return f"buffer_load_dwordx4 {vr(slot+16*t+4*r,4)}, v{vVoff}, {srd(rV)}, s{sb} offen offset:{r*1024}{VP}"
        NOCL = opts.get("noclaim", 0)
        def claim(cv):
            if NOCL:
                a(f"v_mov_b32 v{cv}, -1"); a.nop(3)
                return
            a(f"v_mov_b32 v{cv}, 1")
            a("s_mov_b64 exec, 1")
            a(f"buffer_atomic_add v{cv}, v{vCo}, {srd(rWS)}, 0 offen sc0")
            a("s_mov_b64 exec, -1")
        for g in range(2):
            claim(vC[g])
            a(f"s_mov_b32 s{sB[g]}, s{sStat}")
            a(f"s_add_u32 s{sOff}, s{sStat}, 16384")
            for t in range(2):
                for i in range(4):
                    a(Kload(KS[g], t, i, sB[g] if t == 0 else sOff))
            for t in range(2):
                for r in range(4):
                    a(Vload(VS[g], t, r, sB[g] if t == 0 else sOff))
            a(f"s_add_u32 s{sStat}, s{sStat}, 32768")
        a(f"s_mov_b32 s{sLeft}, {NS-2}")
        if not opts.get("noq"): spin_lds(F_NON, 1, vNon)
        a(f"v_and_b32 v{vt[0]}, 1, v{vL}")
        a(f"v_lshlrev_b32 v{vt[0]}, 8, v{vt[0]}")
        a(f"v_lshrrev_b32 v{vt[1]}, 4, v{vL}")
        a(f"v_lshl_add_u32 v{vt[0]}, v{vt[1]}, 4, v{vt[0]}")
        for i in range(4):
            a(f"ds_read_b128 {vr(vQ+4*i,4)}, v{vt[0]} offset:{QB + i*64}")
        a(f"v_mov_b32 v{vM}, 0xff800000")
        a(f"v_mov_b32 v{vMt}, 0xff800000")
        a(f"v_mov_b32 v{vLs}, 0")
        for i in range(32):
            a(f"v_mov_b32 v{vO+i}, 0")
        a(f"s_lshl_b32 s{sTmp2}, s{sHP}, 7")
        a(f"s_add_u32 s{sTmp2}, s{sTmp2}, {WS_CNT}")
        a("s_waitcnt lgkmcnt(0)")
        stamp("q_ready") if (sfx == "" or not STAMP) else (stn.__setitem__(0, stn[0]-1), names.pop(), stamp("q_ready"))
        d = [vD + i for i in range(8)]
        a.label(f"L_loop{sfx}")
        for u in range(6):
            a.c(f"==== unrolled group {u} ====")
            ks = KS[u % 2]
            vs = VS[u % 3]
            vsn = VS[(u + 2) % 3]
            b0, b2 = sB[u % 3], sB[(u + 2) % 3]
            cv = vC[u % 2]
            a(f"s_cmp_ge_u32 s{b0}, {OOB}")
            a("s_cbranch_scc1 L_sdone")
            a(f"s_waitcnt vmcnt({28 if NOCL else 29})")
            for i in range(4):
                cin = "0" if i == 0 else vr(vD, 4)
                a(f"v_mfma_f32_16x16x32_bf16 {vr(vD,4)}, {vr(ks+4*i,4)}, {vr(vQ+4*i,4)}, {cin}")
            a(f"v_readfirstlane_b32 s{sTmp}, v{cv}")
            a(f"s_and_b32 s{sA0}, s{sTmp}, 15")
            a(f"s_lshl_b32 s{sA0}, s{sA0}, 20")
            a(f"s_lshr_b32 s{sA1}, s{sTmp}, 4")
            a(f"s_and_b32 s{sOff}, s{sA1}, 3")
            a(f"s_lshr_b32 s{sA1}, s{sA1}, 2")
            a(f"s_lshl_b32 s{sA1}, s{sA1}, 3")
            a(f"s_add_u32 s{sA1}, s{sA1}, s{sOff}")
            a(f"s_add_u32 s{sA1}, s{sA1}, {NS*8}")
            a(f"s_lshl_b32 s{sA1}, s{sA1}, 12")
            a(f"s_add_u32 s{sA0}, s{sA0}, s{sA1}")
            a(f"s_cmp_lt_u32 s{sTmp}, {NPOOL}")
            a(f"s_cselect_b32 s{sA0}, s{sA0}, {OOB}")
            a(f"s_cmp_gt_i32 s{sLeft}, 0")
            a(f"s_cselect_b32 s{b2}, s{sStat}, s{sA0}")
            a(f"s_add_u32 s{sStat}, s{sStat}, 32768")
            a(f"s_sub_u32 s{sLeft}, s{sLeft}, 1")
            a(f"s_add_u32 s{sOff}, s{b2}, 16384")
            a(f"s_cmp_lt_i32 s{sLeft}, 2")
            a(f"s_cselect_b32 s{sTmp}, s{sTmp2}, {OOB}")
            a(f"v_mov_b32 v{vCo}, s{sTmp}")
            a(f"s_waitcnt vmcnt({24 if NOCL else 25})")
            for i in range(4):
                cin = "0" if i == 0 else vr(vD + 4, 4)
                a(f"v_mfma_f32_16x16x32_bf16 {vr(vD+4,4)}, {vr(ks+16+4*i,4)}, {vr(vQ+4*i,4)}, {cin}")
            claim(cv)
            S = []
            tt = vt
            for k in range(4):
                S.append(f"v_cvt_pk_bf16_f32 v{tt[k]}, v{d[2*k]}, v{d[2*k+1]}")
            for k in range(4):
                S.append(f"v_lshlrev_b32 v{d[2*k]}, 16, v{tt[k]}")
                S.append(f"v_and_b32 v{d[2*k+1]}, 0xffff0000, v{tt[k]}")
            for k in range(8):
                S.append(f"v_mul_f32 v{d[k]}, s{sScale}, v{d[k]}")
            for k in range(4):
                S.append(f"v_cvt_pk_bf16_f32 v{tt[k]}, v{d[2*k]}, v{d[2*k+1]}")
            for k in range(4):
                S.append(f"v_lshlrev_b32 v{d[2*k]}, 16, v{tt[k]}")
                S.append(f"v_and_b32 v{d[2*k+1]}, 0xffff0000, v{tt[k]}")
            mx = tt[4]
            S.append(f"v_max3_f32 v{mx}, v{d[0]}, v{d[1]}, v{d[2]}")
            S.append(f"v_max3_f32 v{mx}, v{mx}, v{d[3]}, v{d[4]}")
            S.append(f"v_max3_f32 v{mx}, v{mx}, v{d[5]}, v{d[6]}")
            S.append(f"v_max3_f32 v{mx}, v{mx}, v{d[7]}, v{vM}")
            for sw in ("v_permlane32_swap_b32", "v_permlane16_swap_b32"):
                S.append(f"v_mov_b32 v{tt[5]}, v{mx}")
                S.append("s_nop 1")
                S.append(f"{sw} v{mx}, v{tt[5]}")
                S.append("s_nop 0")
                S.append(f"v_max_f32 v{mx}, v{mx}, v{tt[5]}")
            S.append(f"v_mul_f32 v{tt[5]}, s{sLog2e}, v{mx}")
            al = tt[6]
            S.append(f"v_sub_f32 v{al}, v{vMt}, v{tt[5]}")
            S.append(f"v_exp_f32 v{al}, v{al}")
            S.append(f"v_mov_b32 v{vM}, v{mx}")
            S.append(f"v_mov_b32 v{vMt}, v{tt[5]}")
            for k in range(8):
                S.append(f"v_fma_f32 v{d[k]}, v{d[k]}, s{sLog2e}, -v{vMt}")
            for k in range(8):
                S.append(f"v_exp_f32 v{d[k]}, v{d[k]}")
            S.append(f"v_readlane_b32 s{sA0}, v{al}, 0")
            S.append(f"v_readlane_b32 s{sA1}, v{al}, 1")
            S.append(f"v_mul_f32 v{vLs}, v{vLs}, v{al}")
            for k in range(4):
                S.append(f"v_cvt_pk_bf16_f32 v{vP+k}, v{d[2*k]}, v{d[2*k+1]}")
            for k in range(8):
                S.append(f"v_add_f32 v{vLs}, v{vLs}, v{d[k]}")
            for i in range(8):
                S.append(f"v_mul_f32 v{vO+4*i}, s{sA0}, v{vO+4*i}")
                S.append(f"v_mul_f32 v{vO+4*i+1}, s{sA1}, v{vO+4*i+1}")
            KL = [Kload(ks, t, i, b2 if t == 0 else sOff) for t in range(2) for i in range(4)]
            a(KL[0]); a(KL[1])
            a.nop(3)
            if opts.get("nosm"): S = S[:8]
            step = max(1, len(S) // 7)
            if opts.get("burst"): step = 1
            kq = 2
            for n, ins in enumerate(S):
                a(ins)
                if (n + 1) % step == 0 and kq < 8:
                    a(KL[kq]); kq += 1
            while kq < 8:
                a(KL[kq]); kq += 1
            a(f"s_waitcnt vmcnt({24 if NOCL else 26})")
            VL = [Vload(vsn, t, r, b2 if t == 0 else sOff) for t in range(2) for r in range(4)]
            def perms(i):
                dd, b = i >> 1, i & 1
                sel = sSelHi if b else sSelLo
                for p in range(4):
                    lo = vs + 4 * (2 * p) + dd
                    hi = vs + 4 * (2 * p + 1) + dd
                    a(f"v_perm_b32 v{vT + 4*(i%2) + p}, v{hi}, v{lo}, s{sel}")
            perms(0)
            for i in range(8):
                if i + 1 < 8:
                    perms(i + 1)
                else:
                    a.nop(2)
                a(f"v_mfma_f32_16x16x32_bf16 {vr(vO+4*i,4)}, {vr(vP,4)}, {vr(vT+4*(i%2),4)}, {vr(vO+4*i,4)}")
                a(VL[i])
        a(f"s_branch L_loop{sfx}")

    VH0 = opts.get("vh0", 16)
    KH0 = opts.get("kh0", 16)
    if VH0 < 16:
        a(f"s_cmp_ge_u32 s{sHP}, {VH0}")
        a("s_cbranch_scc1 L_streamB")
    stream_body("", " nt", " nt")
    if VH0 < 16:
        a.label("L_streamB")
        if KH0 < 16:
            a(f"s_cmp_ge_u32 s{sHP}, {KH0}")
            a("s_cbranch_scc1 L_streamC")
        stream_body("B", " nt", "")
        if KH0 < 16:
            a.label("L_streamC")
            stream_body("C", "", "")
    a.label("L_sdone")
    stamp("s_done")
    a.c("stream wave: write partial to LDS")
    cross_rows(a, "add", vLs, vt[0])
    a.nop(8)
    a(f"s_mul_i32 s{sTmp}, s{sW}, {CSTR}")
    a(f"v_lshlrev_b32 v{vt[0]}, 5, v{vL}")
    a(f"v_add_u32 v{vt[0]}, s{sTmp}, v{vt[0]}")
    a(f"v_add_u32 v{vt[0]}, {COMB}, v{vt[0]}")
    a(f"v_lshlrev_b32 v{vt[1]}, 2, v{vL}")
    a(f"v_add_u32 v{vt[1]}, s{sTmp}, v{vt[1]}")
    a("s_mov_b64 exec, 0xffff")
    for h in range(2):
        for i in range(0, 8, 2):
            a(f"ds_write2_b32 v{vt[0]}, v{vO+4*i+h}, v{vO+4*(i+1)+h} offset0:{h*128+i} offset1:{h*128+i+1}")
    a("s_mov_b64 exec, 3")
    a(f"ds_write_b32 v{vt[1]}, v{vMt} offset:{COMB+1024}")
    a(f"ds_write_b32 v{vt[1]}, v{vLs} offset:{COMB+1032}")
    a("s_mov_b64 exec, -1")
    lds_arrive(F_SCNT, vt[2])
    a("s_branch L_end")

    a.label("L_helper")
    a.c("helper setup")
    a("s_setprio 3")
    sHW = sB[0]
    a(f"s_sub_u32 s{sHW}, s{sW}, 4")
    mk(rX, sX, size=1152)
    mk(rWQ, sWQ, size=576 * 8192)
    mk(rDBG, sDBG, size=256)
    hX = 16
    hW = 28
    hF = 48
    hA = 60
    hR = 76
    a(f"v_lshlrev_b32 v{vt[3]}, 2, v{vL}")
    for j in range(5):
        a(f"buffer_load_dword v{hX+j}, v{vt[3]}, {srd(rX)}, 0 offen offset:{j*256}")
    a(f"v_lshrrev_b32 v{vt[0]}, 1, v{vL}")
    a(f"s_mul_i32 s{sTmp}, s{sHW}, 144")
    a(f"v_add_u32 v{vt[1]}, s{sTmp}, v{vt[0]}")
    a(f"v_lshlrev_b32 v{vt[5]}, 2, v{vt[1]}")
    a(f"v_lshlrev_b32 v{vt[4]}, 13, v{vt[1]}")
    a(f"v_and_b32 v{vt[1]}, 1, v{vL}")
    a(f"v_lshl_add_u32 v{vt[4]}, v{vt[1]}, 4, v{vt[4]}")
    a(f"s_lshl_b32 s{sTmp}, s{sWGI}, 5")
    a(f"v_add_u32 v{vt[4]}, s{sTmp}, v{vt[4]}")
    a(f"v_cmp_gt_u32 vcc, 16, v{vt[0]}")
    a(f"v_mov_b32 v{vt[1]}, 0x7f000000")
    a.nop(1)
    a(f"v_cndmask_b32 v{vt[6]}, v{vt[1]}, v{vt[4]}, vcc")
    for i in range(5):
        a(f"s_mov_b32 s{sOff}, {i*32*8192}")
        a(f"buffer_load_dwordx4 {vr(hW+4*i,4)}, v{vt[4] if i < 4 else vt[6]}, {srd(rWQ)}, s{sOff} offen{WP}")
    a(f"s_cmp_lg_u32 s{sW}, 7")
    a("s_cbranch_scc1 L_nononce")
    a(f"v_mov_b32 v{hR}, s{sNon}")
    a(f"v_mov_b32 v{hR+1}, 0")
    a("s_mov_b64 exec, 1")
    a(f"buffer_atomic_cmpswap {vr(hR,2)}, v{vZ}, {srd(rDBG)}, 0 offen sc0")
    a(f"s_cmp_lg_u32 s{sJ}, 0")
    a("s_cbranch_scc1 L_noci")
    a(f"s_lshl_b32 s{sTmp}, s{sHP}, 7")
    a(f"s_add_u32 s{sTmp}, s{sTmp}, {WS_CNT}")
    a(f"buffer_store_dword v{vZ}, v{vZ}, {srd(rWS)}, s{sTmp} offen sc1")
    a.label("L_noci")
    a("s_mov_b64 exec, -1")
    a.label("L_nononce")
    a("s_barrier")
    if opts.get("nohelp"): a("s_branch L_end")
    mk(rWG, sWG, size=576 * 9216)
    mk(rWU, sWU, size=576 * 9216)
    mk(rWO, sWO, size=4096 * 1152)
    mk(rWD, sWD, size=4608 * 1152)
    mk(rOUT, sOUT, size=1152)
    a.c("layernorm")
    a("s_waitcnt vmcnt(5)")
    stamp("x_arrived")
    xf = [hF + i for i in range(10)]
    for j in range(5):
        a(f"v_lshlrev_b32 v{xf[2*j]}, 16, v{hX+j}")
        a(f"v_and_b32 v{xf[2*j+1]}, 0xffff0000, v{hX+j}")
    s_ = vt[0]
    a(f"v_add_f32 v{s_}, v{xf[0]}, v{xf[1]}")
    for i in range(2, 10):
        a(f"v_add_f32 v{s_}, v{s_}, v{xf[i]}")
    wave_allreduce(a, "add", s_, vt[1])
    a(f"v_mul_f32 v{s_}, 0x{f32bits(1.0/576):08x}, v{s_}")
    a(f"v_cmp_gt_u32 vcc, 32, v{vL}")
    q_ = vt[2]
    a(f"v_mov_b32 v{q_}, 0")
    for i in range(10):
        a(f"v_sub_f32 v{vt[1]}, v{xf[i]}, v{s_}")
        if i >= 8:
            a(f"v_cndmask_b32 v{vt[1]}, 0, v{vt[1]}, vcc")
        a(f"v_fmac_f32 v{q_}, v{vt[1]}, v{vt[1]}")
    wave_allreduce(a, "add", q_, vt[1])
    a(f"v_mul_f32 v{q_}, 0x{f32bits(1.0/576):08x}, v{q_}")
    bf16_round(a, s_, s_)
    bf16_round(a, q_, q_)
    a(f"v_add_f32 v{q_}, 0x{f32bits(1e-5):08x}, v{q_}")
    bf16_round(a, q_, q_)
    a(f"v_sqrt_f32 v{q_}, v{q_}")
    a.nop(1)
    bf16_round(a, q_, q_)
    rc = vt[1]
    a(f"v_rcp_f32 v{rc}, v{q_}")
    a.nop(1)
    for i in range(10):
        dd = xf[i]
        a(f"v_sub_f32 v{dd}, v{dd}, v{s_}")
        bf16_round(a, dd, dd)
        a(f"v_mul_f32 v{vt[6]}, v{dd}, v{rc}")
        a(f"v_fma_f32 v{vt[7]}, -v{vt[6]}, v{q_}, v{dd}")
        a(f"v_fma_f32 v{dd}, v{vt[7]}, v{rc}, v{vt[6]}")
        bf16_round(a, dd, dd)
        if i >= 8:
            a(f"v_cndmask_b32 v{dd}, 0, v{dd}, vcc")
    a(f"v_lshlrev_b32 v{vt[0]}, 3, v{vL}")
    for j in range(5):
        a(f"ds_write_b64 v{vt[0]}, {vr(xf[2*j],2)} offset:{XN + j*512}")
    a.c("q slice")
    for i in range(5):
        a(f"ds_read_b32 v{hX+i}, v{vt[5]} offset:{XN + i*128}")
    acc = [hA + i for i in range(8)]
    a(f"s_cmp_eq_u32 s{sW}, 7")
    a("s_cbranch_scc1 L_w7b")
    a("s_waitcnt vmcnt(0)")
    a.label("L_w7b")
    a("s_waitcnt vmcnt(1) lgkmcnt(0)") if False else None
    a(f"s_cmp_eq_u32 s{sJ}, 0")
    a("s_cbranch_scc1 L_w7c")
    a("s_waitcnt vmcnt(1)")
    a.label("L_w7c")
    a("s_waitcnt vmcnt(2) lgkmcnt(0)")
    for i in range(5):
        for dd in range(4):
            r = hW + 4 * i + dd
            a(f"v_lshlrev_b32 v{vt[0]}, 16, v{r}")
            a(f"v_and_b32 v{vt[1]}, 0xffff0000, v{r}")
            if i == 0:
                a(f"v_mul_f32 v{acc[2*dd]}, v{vt[0]}, v{hX+i}")
                a(f"v_mul_f32 v{acc[2*dd+1]}, v{vt[1]}, v{hX+i}")
            else:
                a(f"v_fmac_f32 v{acc[2*dd]}, v{vt[0]}, v{hX+i}")
                a(f"v_fmac_f32 v{acc[2*dd+1]}, v{vt[1]}, v{hX+i}")
    a.nop(2)
    for ctrl in ("quad_perm:[2,3,0,1]", "row_ror:4", "row_ror:8"):
        for e in range(8):
            a(f"v_add_f32_dpp v{acc[e]}, v{acc[e]}, v{acc[e]} {ctrl} row_mask:0xf bank_mask:0xf")
    tq = [hW + i for i in range(8)]
    for sw in ("v_permlane32_swap_b32", "v_permlane16_swap_b32"):
        for e in range(8):
            a(f"v_mov_b32 v{tq[e]}, v{acc[e]}")
        for e in range(8):
            a(f"{sw} v{acc[e]}, v{tq[e]}")
        for e in range(8):
            a(f"v_add_f32 v{acc[e]}, v{acc[e]}, v{tq[e]}")
    a(f"s_lshl_b32 s{sTmp}, s{sHW}, 6")
    a(f"v_lshlrev_b32 v{vt[0]}, 5, v{vL}")
    a(f"v_add_u32 v{vt[0]}, s{sTmp}, v{vt[0]}")
    a("s_mov_b64 exec, 3")
    a(f"ds_write_b128 v{vt[0]}, {vr(acc[0],4)} offset:{QP}")
    a(f"ds_write_b128 v{vt[0]}, {vr(acc[4],4)} offset:{QP+16}")
    a("s_mov_b64 exec, -1")
    lds_arrive(F_QCNT, vt[2])
    stamp("qpart_done")
    a(f"s_cmp_lg_u32 s{sW}, 7")
    a("s_cbranch_scc1 L_xskip")
    a.c("q exchange (wave 7)")
    spin_lds(F_QCNT, 4, vt[2], sleep=0)
    a(f"v_lshlrev_b32 v{vt[0]}, 2, v{vL}")
    for w in range(4):
        a(f"ds_read_b32 v{hW+w}, v{vt[0]} offset:{QP + w*64}")
    a("s_waitcnt vmcnt(0)")
    a(f"v_readfirstlane_b32 s{sTmp}, v{hR}")
    a(f"s_cmp_eq_u32 s{sTmp}, 0")
    a(f"s_cselect_b32 s{sNon}, s{sNon}, s{sTmp}")
    a("s_waitcnt lgkmcnt(0)")
    for w in range(1, 4):
        a(f"v_add_f32 v{hW}, v{hW}, v{hW+w}")
    a.nop(2)
    a(f"v_mov_b32_dpp v{hW+1}, v{hW} quad_perm:[1,0,3,2] row_mask:0xf bank_mask:0xf")
    a(f"v_cvt_pk_bf16_f32 v{hW}, v{hW}, v{hW+1}")
    a(f"v_mov_b32 v{hW+1}, s{sNon}")
    a(f"v_mov_b32 v{vNon}, s{sNon}")
    a(f"s_lshl_b32 s{sOff}, s{sWGI}, 6")
    a(f"s_add_u32 s{sOff}, s{sOff}, {WS_Q}")
    a("s_mov_b64 exec, 0x5555")
    a(f"buffer_store_dwordx2 {vr(hW,2)}, v{vt[0]}, {srd(rWS)}, s{sOff} offen sc1")
    a("s_mov_b64 exec, -1")
    stamp("x_pub")
    a(f"v_lshlrev_b32 v{vt[0]}, 4, v{vL}")
    a(f"s_lshl_b32 s{sOff}, s{sHP}, 10")
    a(f"s_add_u32 s{sOff}, s{sOff}, {WS_Q}")
    if opts.get("pdelay", 8): a(f"s_sleep {opts.get('pdelay', 8)}")
    ls = retry_begin()
    a(f"buffer_load_dwordx4 {vr(hW+4,4)}, v{vt[0]}, {srd(rWS)}, s{sOff} offen sc1")
    retry_end(ls, [hW + 5, hW + 7], vt[1], vt[2], sleep=2)
    stamp("x_ok")
    a(f"v_mov_b32 v{hW+5}, v{hW+6}")
    a(f"v_lshlrev_b32 v{vt[0]}, 3, v{vL}")
    a(f"ds_write_b64 v{vt[0]}, {vr(hW+4,2)} offset:{QB}")
    a("s_waitcnt lgkmcnt(0)")
    a(f"ds_write_b32 v{vZ}, v{vNon} offset:{F_NON}")
    a.label("L_xskip")
    a.c("ffn phase 1: rows 36j+9hw..+9, cols hp*288..+288 (36 lanes x 16B)")
    a(f"s_mul_i32 s{sTmp}, s{sJ}, 36")
    a(f"s_mul_i32 s{sTmp2}, s{sHW}, 9")
    a(f"s_add_u32 s{sTmp}, s{sTmp}, s{sTmp2}")
    a(f"s_lshl_b32 s{sA0}, s{sTmp}, 2")
    a(f"s_mul_i32 s{sOff}, s{sTmp}, 9216")
    a(f"s_mul_i32 s{sTmp2}, s{sHP}, 576")
    a(f"s_add_u32 s{sOff}, s{sOff}, s{sTmp2}")
    a(f"v_lshlrev_b32 v{vt[0]}, 4, v{vL}")
    a("s_mov_b32 exec_hi, 0xf")
    for r in range(9):
        a(f"buffer_load_dwordx4 {vr(hR+8*r,4)}, v{vt[0]}, {srd(rWG)}, s{sOff} offen{WP}")
        a(f"buffer_load_dwordx4 {vr(hR+8*r+4,4)}, v{vt[0]}, {srd(rWU)}, s{sOff} offen{WP}")
        a(f"s_add_u32 s{sOff}, s{sOff}, 9216")
    a("s_mov_b64 exec, -1")
    hW2 = 148
    vR3, vC18, vW2o = 12, 13, 14
    a(f"v_mul_u32_u24 v{vR3}, 57, v{vL}")
    a(f"v_lshrrev_b32 v{vR3}, 10, v{vR3}")
    a(f"v_mul_u32_u24 v{vC18}, 18, v{vR3}")
    a(f"v_sub_u32 v{vC18}, v{vL}, v{vC18}")
    a(f"s_mul_i32 s{sTmp}, s{sHW}, 3")
    a(f"v_add_u32 v{vR3}, s{sTmp}, v{vR3}")
    a(f"s_mov_b32 s{sTmp}, 1152")
    a(f"v_mul_lo_u32 v{vW2o}, v{vR3}, s{sTmp}")
    a(f"v_lshl_add_u32 v{vW2o}, v{vC18}, 4, v{vW2o}")
    a(f"s_mul_i32 s{sTmp}, s{sCQ}, 288")
    a(f"v_add_u32 v{vW2o}, s{sTmp}, v{vW2o}")
    a(f"s_lshl_b32 s{sTmp}, s{sHP}, 2")
    a(f"s_add_u32 s{sTmp}, s{sTmp}, s{sRQ}")
    a(f"s_mul_i32 s{sOff}, s{sTmp}, {64*1152}")
    a(f"s_mul_i32 s{sA1}, s{sTmp}, {72*1152}")
    for i in range(6):
        a(f"v_add_u32 v{vt[1]}, {12*i}, v{vR3}")
        a(f"v_cmp_gt_u32 vcc, 64, v{vt[1]}")
        a(f"s_mov_b32 s{sEx}, -1")
        a(f"s_mov_b32 s{sEx+1}, 0x3fffff")
        a(f"s_and_b64 vcc, vcc, s[{sEx}:{sEx+1}]")
        for e in range(4):
            a(f"v_mov_b32 v{hW2+4*i+e}, 0")
        a("s_mov_b64 exec, vcc")
        lk = a.newlabel("w2s")
        a(f"s_cbranch_execz {lk}")
        a(f"buffer_load_dwordx4 {vr(hW2+4*i,4)}, v{vW2o}, {srd(rWO)}, s{sOff} offen{WP}")
        a.label(lk)
        a("s_mov_b64 exec, -1")
        a(f"s_add_u32 s{sOff}, s{sOff}, {12*1152}")
    for i in range(6):
        for e in range(4):
            a(f"v_mov_b32 v{hW2+24+4*i+e}, 0")
    a("s_mov_b32 exec_hi, 0x3fffff")
    for i in range(6):
        a(f"buffer_load_dwordx4 {vr(hW2+24+4*i,4)}, v{vW2o}, {srd(rWD)}, s{sA1} offen{WP}")
        a(f"s_add_u32 s{sA1}, s{sA1}, {12*1152}")
    a("s_mov_b64 exec, -1")
    a(f"v_mov_b32 v{vt[1]}, s{sA0}")
    for r in range(9):
        a(f"ds_read_b32 v{hX+r}, v{vt[1]} offset:{XN + r*4}")
    xr = [hX + r for r in range(9)]
    fac = [hA + i for i in range(16)]
    a("s_waitcnt vmcnt(6) lgkmcnt(0)")
    a("s_waitcnt vmcnt(0)") if opts.get("safe_ffn", 1) else None
    for r in range(9):
        for mt in range(2):
            for dd in range(4):
                rg = hR + 8 * r + 4 * mt + dd
                a(f"v_lshlrev_b32 v{vt[2]}, 16, v{rg}")
                a(f"v_and_b32 v{vt[3]}, 0xffff0000, v{rg}")
                if r == 0:
                    a(f"v_mul_f32 v{fac[8*mt+2*dd]}, v{vt[2]}, v{xr[r]}")
                    a(f"v_mul_f32 v{fac[8*mt+2*dd+1]}, v{vt[3]}, v{xr[r]}")
                else:
                    a(f"v_fmac_f32 v{fac[8*mt+2*dd]}, v{vt[2]}, v{xr[r]}")
                    a(f"v_fmac_f32 v{fac[8*mt+2*dd+1]}, v{vt[3]}, v{xr[r]}")
    a(f"s_mul_i32 s{sTmp}, s{sHW}, 2304")
    a(f"v_lshlrev_b32 v{vt[0]}, 5, v{vL}")
    a(f"v_add_u32 v{vt[0]}, s{sTmp}, v{vt[0]}")
    a("s_mov_b32 exec_hi, 0xf")
    for mt in range(2):
        a(f"ds_write_b128 v{vt[0]}, {vr(fac[8*mt],4)} offset:{FFP + mt*1152}")
        a(f"ds_write_b128 v{vt[0]}, {vr(fac[8*mt+4],4)} offset:{FFP + mt*1152 + 16}")
    a("s_mov_b64 exec, -1")
    lds_arrive(F_FCNT, vt[2], ret=True)
    a(f"s_mov_b32 s{sA0}, s{sTmp}")
    stamp("ffn1_done")
    spin_lds(F_NON, 1, vNon)
    a(f"s_mov_b32 s{sNon}, s{sTmp}")
    a(f"s_cmp_lg_u32 s{sA0}, 3")
    a("s_cbranch_scc1 L_fpskip")
    a.c("last arriver: sum 4 partials and publish 576 granules")
    a(f"v_lshlrev_b32 v{vt[0]}, 2, v{vL}")
    for k in range(9):
        for w in range(4):
            a(f"ds_read_b32 v{hR+4*k+w}, v{vt[0]} offset:{FFP + w*2304 + k*256}")
    a(f"s_mul_i32 s{sOff}, s{sWGI}, 4608")
    a(f"s_add_u32 s{sOff}, s{sOff}, {WS_FP}")
    a(f"v_lshlrev_b32 v{vt[0]}, 3, v{vL}")
    a("s_waitcnt lgkmcnt(0)")
    for k in range(9):
        a(f"v_add_f32 v{hR+4*k}, v{hR+4*k}, v{hR+4*k+1}")
        a(f"v_add_f32 v{hR+4*k+2}, v{hR+4*k+2}, v{hR+4*k+3}")
        a(f"v_add_f32 v{hR+4*k}, v{hR+4*k}, v{hR+4*k+2}")
        a(f"v_mov_b32 v{hR+4*k+1}, v{vNon}")
        if k == 8:
            a(f"s_add_u32 s{sOff}, s{sOff}, 4096")
        a(f"buffer_store_dwordx2 {vr(hR+4*k,2)}, v{vt[0]}, {srd(rWS)}, s{sOff} offen offset:{(k%8)*512} sc1")
    a.label("L_fpskip")
    a(f"s_setprio {opts.get('hprio', 1)}")
    a(f"s_cmp_lg_u32 s{sW}, 4")
    a("s_cbranch_scc1 L_rsskip")
    a.c("ffn reduce-scatter")
    a(f"v_cmp_le_u32 vcc, 18, v{vL}")
    a(f"v_mov_b32 v{vt[1]}, {2304-144}")
    a.nop(1)
    a(f"v_cndmask_b32 v{vt[1]}, 0, v{vt[1]}, vcc")
    a(f"v_lshl_add_u32 v{vt[0]}, v{vL}, 3, v{vt[1]}")
    a(f"s_mul_i32 s{sTmp}, s{sJ}, 144")
    a(f"v_add_u32 v{vt[0]}, s{sTmp}, v{vt[0]}")
    a("s_mov_b32 exec_hi, 0xf")
    a(f"s_sleep {opts.get('rsdelay', 64)}")
    ls = retry_begin()
    a(f"s_mul_i32 s{sOff}, s{sHP}, {16*4608}")
    a(f"s_add_u32 s{sOff}, s{sOff}, {WS_FP}")
    for p in range(16):
        a(f"buffer_load_dwordx2 {vr(hR+2*p,2)}, v{vt[0]}, {srd(rWS)}, s{sOff} offen sc1")
        a(f"s_add_u32 s{sOff}, s{sOff}, 4608")
    retry_end(ls, [hR + 2 * p + 1 for p in range(16)], vt[1], vt[2], sleep=32)
    for p in range(1, 16):
        a(f"v_add_f32 v{hR}, v{hR}, v{hR+2*p}")
    a("s_mov_b64 exec, -1")
    bf16_round(a, hR, hR)
    a(f"v_add_u32 v{vt[0]}, 18, v{vL}")
    a(f"v_lshlrev_b32 v{vt[0]}, 2, v{vt[0]}")
    a(f"v_and_b32 v{vt[0]}, 0xff, v{vt[0]}")
    a(f"ds_bpermute_b32 v{hR+1}, v{vt[0]}, v{hR}")
    silu(hR)
    a("s_waitcnt lgkmcnt(0)")
    a(f"v_mul_f32 v{hR}, v{hR}, v{hR+1}")
    bf16_round(a, hR, hR)
    a(f"v_mov_b32 v{hR+1}, v{vNon}")
    a(f"s_mul_i32 s{sOff}, s{sWGI}, 144")
    a(f"s_add_u32 s{sOff}, s{sOff}, {WS_HB}")
    a(f"v_lshlrev_b32 v{vt[0]}, 3, v{vL}")
    a("s_mov_b64 exec, 0x3ffff")
    a(f"buffer_store_dwordx2 {vr(hR,2)}, v{vt[0]}, {srd(rWS)}, s{sOff} offen sc1")
    a("s_mov_b64 exec, -1")
    stamp("h_pub")
    a.c("all-gather h[hp*288 + rq*72 ..+72] -> LDS INH (wave 4)")
    a(f"s_lshl_b32 s{sTmp}, s{sHP}, 2")
    a(f"s_add_u32 s{sTmp}, s{sTmp}, s{sRQ}")
    a(f"s_mul_i32 s{sOff}, s{sTmp}, 576")
    a(f"s_add_u32 s{sOff}, s{sOff}, {WS_HB}")
    a(f"v_lshlrev_b32 v{vt[0]}, 4, v{vL}")
    a("s_mov_b32 exec_hi, 0xf")
    a(f"s_sleep 32")
    ls = retry_begin()
    a(f"buffer_load_dwordx4 {vr(hR,4)}, v{vt[0]}, {srd(rWS)}, s{sOff} offen sc1")
    retry_end(ls, [hR + 1, hR + 3], vt[1], vt[2], sleep=32)
    a(f"v_mov_b32 v{hR+1}, v{hR+2}")
    a(f"v_lshlrev_b32 v{vt[0]}, 3, v{vL}")
    a(f"ds_write_b64 v{vt[0]}, {vr(hR,2)} offset:{INH}")
    a("s_mov_b64 exec, -1")
    lds_arrive(F_H, vt[2])
    a.label("L_rsskip")

    def slice_matmul(inaddr, wbase, fin, cnt_flag, wsbase, tagname):
        a(f"v_lshlrev_b32 v{vt[0]}, 2, v{vR3}")
        for i in range(6):
            a(f"ds_read_b32 v{hX+i}, v{vt[0]} offset:{inaddr + i*48}")
        a("s_waitcnt lgkmcnt(0)")
        fa = [hA + e for e in range(8)]
        for i in range(6):
            for dd in range(4):
                rg = wbase + 4 * i + dd
                a(f"v_lshlrev_b32 v{vt[2]}, 16, v{rg}")
                a(f"v_and_b32 v{vt[3]}, 0xffff0000, v{rg}")
                if i == 0:
                    a(f"v_mul_f32 v{fa[2*dd]}, v{vt[2]}, v{hX+i}")
                    a(f"v_mul_f32 v{fa[2*dd+1]}, v{vt[3]}, v{hX+i}")
                else:
                    a(f"v_fmac_f32 v{fa[2*dd]}, v{vt[2]}, v{hX+i}")
                    a(f"v_fmac_f32 v{fa[2*dd+1]}, v{vt[3]}, v{hX+i}")
        a(f"s_lshl_b32 s{sTmp}, s{sHW}, 11")
        a(f"v_lshlrev_b32 v{vt[0]}, 5, v{vL}")
        a(f"v_add_u32 v{vt[0]}, s{sTmp}, v{vt[0]}")
        a(f"ds_write_b128 v{vt[0]}, {vr(fa[0],4)} offset:{fin}")
        a(f"ds_write_b128 v{vt[0]}, {vr(fa[4],4)} offset:{fin+16}")
        lds_arrive(cnt_flag, vt[2], ret=True)
        lk = a.newlabel("sm")
        a(f"s_cmp_lg_u32 s{sTmp}, 3")
        a(f"s_cbranch_scc1 {lk}")
        a(f"v_lshlrev_b32 v{vt[0]}, 2, v{vL}")
        for k in range(3):
            for w in range(4):
                for r3 in range(3):
                    a(f"ds_read_b32 v{hR+12*k+3*w+r3}, v{vt[0]} offset:{fin + w*2048 + r3*576 + k*256}")
        a(f"s_lshl_b32 s{sTmp}, s{sHP}, 2")
        a(f"s_add_u32 s{sTmp}, s{sTmp}, s{sRQ}")
        a(f"s_lshl_b32 s{sOff}, s{sCQ}, 6")
        a(f"s_add_u32 s{sOff}, s{sOff}, s{sTmp}")
        a(f"s_mul_i32 s{sOff}, s{sOff}, 1152")
        a(f"s_add_u32 s{sOff}, s{sOff}, {wsbase}")
        a(f"v_lshlrev_b32 v{vt[0]}, 3, v{vL}")
        a("s_waitcnt lgkmcnt(0)")
        for k in range(3):
            for q in range(1, 12):
                a(f"v_add_f32 v{hR+12*k}, v{hR+12*k}, v{hR+12*k+q}")
            a(f"v_mov_b32 v{hR+12*k+1}, v{vNon}")
            if k == 2:
                a("s_mov_b64 exec, 0xffff")
            a(f"buffer_store_dwordx2 {vr(hR+12*k,2)}, v{vt[0]}, {srd(rWS)}, s{sOff} offen offset:{k*512} sc1")
        a("s_mov_b64 exec, -1")
        stamp(tagname)
        a.label(lk)

    def fin_gather(wsbase, dst, cntflag, sleep):
        a(f"s_mul_i32 s{sTmp}, s{sHW}, 3")
        a(f"v_subrev_u32 v{vt[4]}, s{sTmp}, v{vR3}")
        a(f"s_mov_b32 s{sTmp}, 1152")
        a(f"v_mul_lo_u32 v{vt[0]}, v{vt[4]}, s{sTmp}")
        a(f"v_lshl_add_u32 v{vt[0]}, v{vC18}, 4, v{vt[0]}")
        a(f"s_lshr_b32 s{sTmp}, s{sJ}, 2")
        a(f"s_lshl_b32 s{sTmp}, s{sTmp}, 6")
        a(f"s_lshl_b32 s{sTmp2}, s{sHW}, 4")
        a(f"s_add_u32 s{sTmp}, s{sTmp}, s{sTmp2}")
        a(f"s_mul_i32 s{sA0}, s{sTmp}, 1152")
        a(f"s_and_b32 s{sTmp}, s{sJ}, 3")
        a(f"s_mul_i32 s{sTmp}, s{sTmp}, 288")
        a(f"s_add_u32 s{sA0}, s{sA0}, s{sTmp}")
        a(f"s_add_u32 s{sA0}, s{sA0}, {wsbase}")
        a(f"v_mov_b32 v{hR+20}, 0")
        a(f"v_mov_b32 v{hR+21}, v{vNon}")
        a(f"v_mov_b32 v{hR+22}, 0")
        a(f"v_mov_b32 v{hR+23}, v{vNon}")
        a("s_mov_b32 exec_hi, 0x3fffff")
        ls = retry_begin()
        a(f"s_mov_b32 s{sOff}, s{sA0}")
        for i in range(6):
            if i == 5:
                a("s_mov_b64 exec, 0x3ffff")
            a(f"buffer_load_dwordx4 {vr(hR+4*i,4)}, v{vt[0]}, {srd(rWS)}, s{sOff} offen sc1")
            a(f"s_add_u32 s{sOff}, s{sOff}, {3*1152}")
        a("s_mov_b32 exec_lo, -1")
        a("s_mov_b32 exec_hi, 0x3fffff")
        retry_end(ls, [hR + 4 * i + e for i in range(6) for e in (1, 3)], vt[1], vt[2], sleep=sleep)
        for i in range(1, 6):
            a(f"v_add_f32 v{hR}, v{hR}, v{hR+4*i}")
            a(f"v_add_f32 v{hR+2}, v{hR+2}, v{hR+4*i+2}")
        a(f"v_mov_b32 v{hR+1}, v{hR+2}")
        a(f"s_lshl_b32 s{sTmp}, s{sHW}, 9")
        a(f"v_lshlrev_b32 v{vt[0]}, 3, v{vL}")
        a(f"v_add_u32 v{vt[0]}, s{sTmp}, v{vt[0]}")
        a(f"ds_write_b64 v{vt[0]}, {vr(hR,2)} offset:{dst}")
        a("s_mov_b64 exec, -1")
        lds_arrive(cntflag, vt[2], ret=True)

    a.c("y-part matmul")
    spin_lds(F_H, 1, vt[2], sleep=8)
    slice_matmul(INH, hW2 + 24, FIN2, F_YCNT, WS_Y2, "y_pub")
    a(f"v_lshlrev_b32 v{vt[0]}, 2, v{vL}")
    a(f"ds_write_b32 v{vt[0]}, v{vZ} offset:{INO+256}")
    a(f"s_cmp_lg_u32 s{sHP}, s{sJ}")
    a("s_cbranch_scc1 L_noyg")
    a(f"s_sleep 64")
    fin_gather(WS_Y2, G2 + 2048, F_Y2CNT, 64)
    a.label("L_noyg")
    stamp("h_idle")
    a.c("wg combine")
    spin_lds(F_SCNT, 4, vt[2], sleep=opts.get("hsleep", 2))
    a("s_setprio 3")
    stamp("s_all")
    a(f"v_and_b32 v{vt[5]}, 255, v0")
    a(f"v_lshlrev_b32 v{vt[0]}, 2, v{vt[5]}")
    a(f"v_lshrrev_b32 v{vt[1]}, 7, v{vt[5]}")
    a(f"v_lshlrev_b32 v{vt[1]}, 2, v{vt[1]}")
    mreg = [hR + i for i in range(4)]
    lreg = [hR + 4 + i for i in range(4)]
    oreg = [hR + 8 + i for i in range(4)]
    for w in range(4):
        a(f"ds_read_b32 v{mreg[w]}, v{vt[1]} offset:{COMB + w*CSTR + 1024}")
        a(f"ds_read_b32 v{lreg[w]}, v{vt[1]} offset:{COMB + w*CSTR + 1032}")
        a(f"ds_read_b32 v{oreg[w]}, v{vt[0]} offset:{COMB + w*CSTR}")
    a("s_waitcnt lgkmcnt(0)")
    M, Lr, Or = hA + 8, hA + 10, hA + 12
    combine(4, mreg, lreg, oreg, M, Lr, Or)
    a(f"v_mov_b32 v{M+1}, v{vNon}")
    a(f"v_mov_b32 v{Lr+1}, v{vNon}")
    a(f"v_mov_b32 v{Or+1}, v{vNon}")
    a(f"s_mul_i32 s{sOff}, s{sWGI}, {PSTR}")
    a(f"v_lshlrev_b32 v{vt[0]}, 3, v{vt[5]}")
    a(f"buffer_store_dwordx2 {vr(Or,2)}, v{vt[0]}, {srd(rWS)}, s{sOff} offen sc1")
    a(f"v_lshlrev_b32 v{vt[1]}, 2, v{vt[1]}")
    a(f"s_and_b32 s{sTmp}, s{sHW}, 1")
    a(f"s_cmp_lg_u32 s{sTmp}, 0")
    a("s_cbranch_scc1 L_mlskip")
    a("s_mov_b64 exec, 1")
    a(f"buffer_store_dwordx4 {vr(M,4)}, v{vt[1]}, {srd(rWS)}, s{sOff} offen offset:2048 sc1")
    a("s_mov_b64 exec, -1")
    a.label("L_mlskip")
    stamp("published")
    a(f"s_cmp_lg_u32 s{sW}, 4")
    a("s_cbranch_scc1 L_l1skip")
    a.c("level-1 poll")
    a(f"v_and_b32 v{vt[0]}, 15, v{vL}")
    a(f"v_mul_u32_u24 v{vt[0]}, {PSTR}, v{vt[0]}")
    a(f"s_lshr_b32 s{sTmp}, s{sRQ}, 1")
    a(f"s_lshl_b32 s{sTmp}, s{sTmp}, 4")
    a(f"s_mul_i32 s{sA0}, s{sHP}, {16*PSTR}")
    a(f"s_add_u32 s{sA1}, s{sA0}, s{sTmp}")
    a("s_mov_b64 exec, 0xffff")
    ls = retry_begin()
    a(f"buffer_load_dwordx4 {vr(hR,4)}, v{vt[0]}, {srd(rWS)}, s{sA1} offen offset:2048 sc1")
    retry_end(ls, [hR + 1, hR + 3], vt[1], vt[2], sleep=opts.get("sleep1", 8))
    a("s_mov_b64 exec, -1")
    stamp("polled")
    a(f"s_lshl_b32 s{sTmp}, s{sRQ}, 9")
    a(f"s_add_u32 s{sA0}, s{sA0}, s{sTmp}")
    a(f"v_lshlrev_b32 v{vt[0]}, 3, v{vL}")
    hG = hR + 8
    ls = retry_begin()
    a(f"s_mov_b32 s{sOff}, s{sA0}")
    for p in range(16):
        a(f"buffer_load_dwordx2 {vr(hG+2*p,2)}, v{vt[0]}, {srd(rWS)}, s{sOff} offen sc1")
        a(f"s_add_u32 s{sOff}, s{sOff}, {PSTR}")
    retry_end(ls, [hG + 2 * p + 1 for p in range(16)], vt[1], vt[2], sleep=2)
    mm, ll = hR + 4, hR + 5
    a(f"v_mov_b32 v{mm}, v{hR}")
    for ctrl in ("quad_perm:[1,0,3,2]", "quad_perm:[2,3,0,1]", "row_half_mirror", "row_mirror"):
        a.nop(2)
        a(f"v_max_f32_dpp v{mm}, v{mm}, v{mm} {ctrl} row_mask:0xf bank_mask:0xf")
    a(f"v_sub_f32 v{hR}, v{hR}, v{mm}")
    a(f"v_exp_f32 v{hR}, v{hR}")
    a.nop(1)
    a(f"v_mul_f32 v{ll}, v{hR}, v{hR+2}")
    for ctrl in ("quad_perm:[1,0,3,2]", "quad_perm:[2,3,0,1]", "row_half_mirror", "row_mirror"):
        a.nop(2)
        a(f"v_add_f32_dpp v{ll}, v{ll}, v{ll} {ctrl} row_mask:0xf bank_mask:0xf")
    a.nop(1)
    a(f"v_readlane_b32 s{sA1}, v{ll}, 0")
    for p in range(16):
        a(f"v_readlane_b32 s{sTmp}, v{hR}, {p}")
        a.nop(2)
        if p == 0:
            a(f"v_mul_f32 v{Or}, s{sTmp}, v{hG}")
        else:
            a(f"v_fmac_f32 v{Or}, s{sTmp}, v{hG+2*p}")
    a(f"v_mov_b32 v{Lr}, s{sA1}")
    a(f"v_rcp_f32 v{vt[3]}, v{Lr}")
    a.nop(1)
    a(f"v_mul_f32 v{vt[4]}, v{Or}, v{vt[3]}")
    a(f"v_fma_f32 v{vt[5]}, -v{vt[4]}, v{Lr}, v{Or}")
    a(f"v_fma_f32 v{Or}, v{vt[5]}, v{vt[3]}, v{vt[4]}")
    bf16_round(a, Or, Or)
    a(f"v_lshlrev_b32 v{vt[0]}, 2, v{vL}")
    a(f"ds_write_b32 v{vt[0]}, v{Or} offset:{INO}")
    lds_arrive(F_O, vt[2])
    stamp("gathered")
    a.label("L_l1skip")
    spin_lds(F_O, 1, vt[2], sleep=0)
    slice_matmul(INO, hW2, FIN, F_ZCNT, WS_S2, "s_pub")
    a(f"s_cmp_lg_u32 s{sHP}, s{sJ}")
    a("s_cbranch_scc1 L_end")
    fin_gather(WS_S2, G2, F_S2CNT, 2)
    a(f"s_cmp_lg_u32 s{sTmp}, 3")
    a("s_cbranch_scc1 L_end")
    a.c("final: last arriver sums 4 waves x 3 pp for 36 cols")
    a(f"s_mul_i32 s{sTmp}, s{sJ}, 72")
    a(f"v_lshlrev_b32 v{vt[6]}, 1, v{vL}")
    a(f"v_add_u32 v{vt[6]}, s{sTmp}, v{vt[6]}")
    a("s_mov_b32 exec_hi, 0xf")
    a(f"buffer_load_ushort v{vt[7]}, v{vt[6]}, {srd(rX)}, 0 offen")
    a(f"v_lshlrev_b32 v{vt[0]}, 2, v{vL}")
    for part in range(2):
        for w in range(4):
            for pp in range(3):
                a(f"ds_read_b32 v{hR+12*part+3*w+pp}, v{vt[0]} offset:{G2 + part*2048 + w*512 + pp*144}")
    a("s_waitcnt lgkmcnt(0)")
    for part in range(2):
        for q in range(1, 12):
            a(f"v_add_f32 v{hR+12*part}, v{hR+12*part}, v{hR+12*part+q}")
    sS, sY = hR, hR + 12
    bf16_round(a, sS, sS)
    bf16_round(a, sY, sY)
    silu(sY)
    a(f"v_mul_f32 v{sS}, v{sS}, v{sY}")
    bf16_round(a, sS, sS)
    a("s_waitcnt vmcnt(0)")
    a(f"v_lshlrev_b32 v{vt[7]}, 16, v{vt[7]}")
    a(f"v_add_f32 v{sS}, v{sS}, v{vt[7]}")
    a(f"v_cvt_pk_bf16_f32 v{sS}, v{sS}, v{sS}")
    a(f"buffer_store_short v{sS}, v{vt[6]}, {srd(rOUT)}, 0 offen")
    if STAMP:
        a("s_waitcnt vmcnt(0)")
    stamp("out")
    a.label("L_end")
    stamp_flush()
    a.label("L_exit")
    a("s_endpgm")
    a.L.append('.section .rodata,"a"')
    a.L.append(".p2align 6")
    a.L.append(f".amdhsa_kernel {KNAME}")
    a.L.append("  .amdhsa_next_free_vgpr 256")
    a.L.append("  .amdhsa_next_free_sgpr 102")
    a.L.append("  .amdhsa_accum_offset 256")
    a.L.append("  .amdhsa_group_segment_fixed_size 0")
    a.L.append("  .amdhsa_kernarg_size 96")
    a.L.append("  .amdhsa_user_sgpr_count 2")
    a.L.append("  .amdhsa_user_sgpr_kernarg_segment_ptr 1")
    a.L.append("  .amdhsa_system_sgpr_workgroup_id_x 1")
    a.L.append("  .amdhsa_float_denorm_mode_32 3")
    a.L.append(".end_amdhsa_kernel")
    return "\n".join(a.L) + "\n"

if __name__ == "__main__":
    out = sys.argv[1] if len(sys.argv) > 1 else "recurrent_scan__gqa_block_cached__swiglu_ffn__decode.s"
    opts = {}
    for kv in sys.argv[2:]:
        k, v = kv.split("=")
        opts[k] = int(v) if v.lstrip("-").isdigit() else v
    txt = gen(opts)
    if opts.get("stamp"):
        txt = txt.replace("\n", "\n; stamps=" + ",".join(opts["names"]) + "\n", 1)
    open(out, "w").write(txt)
    print("wrote", out)
```

```python
import sys, struct

KNAME = "recurrent_scan__gqa_block_cached__swiglu_ffn__decode_kernel"

def f32bits(x):
    return struct.unpack("<I", struct.pack("<f", x))[0]

class Asm:
    def __init__(self):
        self.L = []
        self.uid = 0
    def __call__(self, s):
        self.L.append("    " + s)
    def label(self, s):
        self.L.append(s + ":")
    def c(self, s):
        self.L.append("    ; " + s)
    def nop(self, n):
        while n > 0:
            k = min(n, 16)
            self(f"s_nop {k-1}")
            n -= k
    def newlabel(self, p):
        self.uid += 1
        return f"L_{p}{self.uid}"

FL = 0
F_NON, F_QCNT, F_FCNT, F_H, F_YCNT, F_SCNT, F_O, F_ZCNT, F_Y2CNT, F_S2CNT, F_PROG = [FL + 4 * i for i in range(11)]
XN = 64
QP = XN + 2560
QB = QP + 1024
FFP = QB + 512
COMB = FFP + 9216
CSTR = 1056
INO = COMB + 4 * CSTR
INH = INO + 512
FIN = INH + 512
FIN2 = FIN + 8192
G2 = FIN2 + 8192
LDS_BYTES = G2 + 4096
LDS_BYTES = (LDS_BYTES + 1023) // 1024 * 1024
PSTR = 2176
WS_PART = 0
WS_FP = 256 * PSTR
WS_HB = WS_FP + 256 * 4608
WS_S2 = WS_HB + 4608 * 8
WS_Y2 = WS_S2 + 4 * 64 * 1152
WS_Q = WS_Y2 + 4 * 64 * 1152
WS_CNT = WS_Q + 16 * 8192
WS_BYTES = WS_CNT + 16 * 128
WS_STAMP = 4 << 20

sX, sK, sV, sWQ, sWO, sBX, sWG, sWU, sWD, sOUT, sDBG, sWS = [4 + 2 * i for i in range(12)]
rK, rV, rX, rWQ, rWG, rWU, rWO, rWD, rWS, rOUT, rDBG = [28 + 4 * i for i in range(11)]
sHP, sJ, sW, sWGI = 72, 73, 74, 75
sSelLo, sSelHi, sScale, sLog2e = 76, 77, 78, 79
sA0, sA1, sTmp, sTmp2, sOff, sCnt = 80, 81, 82, 83, 84, 85
sEx = 86
sNon = 88
sB = [89, 90, 91]
sStat, sLeft = 92, 93
sT64 = 94
sRQ, sCQ = 100, 101
OOB = 0x40000000

def srd(r): return f"s[{r}:{r+3}]"
def vr(b, n): return f"v[{b}:{b+n-1}]"

def bf16_round(a, dst, src):
    a(f"v_cvt_pk_bf16_f32 v{dst}, v{src}, v{src}")
    a(f"v_lshlrev_b32 v{dst}, 16, v{dst}")

def cross_rows(a, op, x, t):
    o = f"v_{op}_f32"
    for sw in ("v_permlane32_swap_b32", "v_permlane16_swap_b32"):
        a(f"v_mov_b32 v{t}, v{x}")
        a.nop(2)
        a(f"{sw} v{x}, v{t}")
        a.nop(1)
        a(f"{o} v{x}, v{x}, v{t}")

def wave_allreduce(a, op, x, t):
    o = f"v_{op}_f32"
    for ctrl in ("quad_perm:[1,0,3,2]", "quad_perm:[2,3,0,1]", "row_half_mirror", "row_mirror"):
        a.nop(2)
        a(f"{o}_dpp v{x}, v{x}, v{x} {ctrl} row_mask:0xf bank_mask:0xf")
    cross_rows(a, op, x, t)

def gen(opts):
    a = Asm()
    STAMP = opts.get("stamp", False)
    NS = opts.get("ns", 26)
    NPOOL = (32 - NS) * 64
    MAXPOLL = 0x40000
    WP = "" if opts.get("wdef") else " nt"
    stn = [0]
    names = []
    vL, vST, vNon, vZ = 1, 255, 254, 253
    vt = [2, 3, 4, 5, 6, 7, 8, 9, 10, 11]
    def stamp(name):
        if not STAMP: return
        a(f"s_memrealtime s[{sT64}:{sT64+1}]")
        a("s_waitcnt lgkmcnt(0)")
        a(f"v_writelane_b32 v{vST}, s{sT64}, {stn[0]}")
        names.append(name)
        stn[0] += 1
    def stamp_flush():
        if not STAMP: return
        a("s_mov_b64 exec, -1")
        a(f"s_lshl_b32 s{sTmp}, s2, 3")
        a(f"s_add_u32 s{sTmp}, s{sTmp}, s{sW}")
        a(f"s_lshl_b32 s{sTmp}, s{sTmp}, 8")
        a(f"v_lshlrev_b32 v{vt[8]}, 2, v{vL}")
        a(f"buffer_store_dword v{vST}, v{vt[8]}, s[96:99], s{sTmp} offen")
    opts["names"] = names

    def spin_lds(addr, target, tmpv, ge=True, sleep=1):
        l0, l1 = a.newlabel("sp"), a.newlabel("spx")
        a(f"s_mov_b32 s{sCnt}, 0x2000000")
        a.label(l0)
        a(f"ds_read_b32 v{tmpv}, v{vZ} offset:{addr}")
        a("s_waitcnt lgkmcnt(0)")
        a(f"v_readfirstlane_b32 s{sTmp}, v{tmpv}")
        a(f"s_cmp_ge_u32 s{sTmp}, {target}")
        a(f"s_cbranch_scc1 {l1}")
        a(f"s_sub_u32 s{sCnt}, s{sCnt}, 1")
        a(f"s_cmp_eq_u32 s{sCnt}, 0")
        a(f"s_cbranch_scc1 {l1}")
        a(f"s_sleep {sleep}")
        a(f"s_branch {l0}")
        a.label(l1)
    def lds_arrive(addr, tmpv, ret=False):
        a("s_waitcnt lgkmcnt(0)")
        a(f"v_mov_b32 v{tmpv}, 1")
        a("s_mov_b64 exec, 1")
        if ret:
            a(f"ds_add_rtn_u32 v{tmpv}, v{vZ}, v{tmpv} offset:{addr}")
            a("s_waitcnt lgkmcnt(0)")
            a(f"v_readfirstlane_b32 s{sTmp}, v{tmpv}")
        else:
            a(f"ds_add_u32 v{vZ}, v{tmpv} offset:{addr}")
        a("s_mov_b64 exec, -1")
    def retry_begin():
        l0, l1 = a.newlabel("rt"), a.newlabel("rtx")
        a(f"s_mov_b32 s{sCnt}, {MAXPOLL}")
        a.label(l0)
        return l0, l1
    def retry_end(ls, tagregs, t0, t1, sleep=2):
        l0, l1 = ls
        a("s_waitcnt vmcnt(0)")
        a(f"v_xor_b32 v{t0}, v{vNon}, v{tagregs[0]}")
        for r in tagregs[1:]:
            a(f"v_xor_b32 v{t1}, v{vNon}, v{r}")
            a(f"v_or_b32 v{t0}, v{t0}, v{t1}")
        a(f"v_cmp_ne_u32 vcc, 0, v{t0}")
        a(f"s_cbranch_vccz {l1}")
        a(f"s_sub_u32 s{sCnt}, s{sCnt}, 1")
        a(f"s_cmp_eq_u32 s{sCnt}, 0")
        a(f"s_cbranch_scc1 {l1}")
        a(f"s_sleep {sleep}")
        a(f"s_branch {l0}")
        a.label(l1)
    def silu(x):
        a(f"v_mul_f32 v{vt[2]}, s{sLog2e}, v{x}")
        a(f"v_exp_f32 v{vt[2]}, -v{vt[2]}")
        a.nop(1)
        a(f"v_add_f32 v{vt[2]}, 1.0, v{vt[2]}")
        a(f"v_rcp_f32 v{vt[3]}, v{vt[2]}")
        a.nop(1)
        a(f"v_mul_f32 v{vt[4]}, v{x}, v{vt[3]}")
        a(f"v_fma_f32 v{vt[5]}, -v{vt[4]}, v{vt[2]}, v{x}")
        a(f"v_fma_f32 v{x}, v{vt[5]}, v{vt[3]}, v{vt[4]}")
        a(f"v_cmp_eq_f32 vcc, 0x7f800000, v{vt[2]}")
        a.nop(2)
        a(f"v_cndmask_b32 v{x}, v{x}, v{vt[4]}, vcc")
        bf16_round(a, x, x)
    def combine(n, mreg, lreg, oreg, M, Lr, Or):
        a(f"v_max3_f32 v{M}, v{mreg[0]}, v{mreg[1]}, v{mreg[2]}")
        k = 3
        while k < n:
            if k + 1 < n:
                a(f"v_max3_f32 v{M}, v{M}, v{mreg[k]}, v{mreg[k+1]}"); k += 2
            else:
                a(f"v_max_f32 v{M}, v{M}, v{mreg[k]}"); k += 1
        for w in range(n):
            a(f"v_sub_f32 v{mreg[w]}, v{mreg[w]}, v{M}")
        for w in range(n):
            a(f"v_exp_f32 v{mreg[w]}, v{mreg[w]}")
        a.nop(1)
        a(f"v_mul_f32 v{Lr}, v{mreg[0]}, v{lreg[0]}")
        a(f"v_mul_f32 v{Or}, v{mreg[0]}, v{oreg[0]}")
        for w in range(1, n):
            a(f"v_fmac_f32 v{Lr}, v{mreg[w]}, v{lreg[w]}")
            a(f"v_fmac_f32 v{Or}, v{mreg[w]}, v{oreg[w]}")
    def mk(r, p, off_s=None, size=None):
        if off_s is None:
            a(f"s_mov_b32 s{r}, s{p}")
            a(f"s_and_b32 s{r+1}, s{p+1}, 0xffff")
        else:
            a(f"s_add_u32 s{r}, s{p}, s{off_s}")
            a(f"s_addc_u32 s{r+1}, s{p+1}, 0")
            a(f"s_and_b32 s{r+1}, s{r+1}, 0xffff")
        a(f"s_mov_b32 s{r+2}, {size}")
        a(f"s_mov_b32 s{r+3}, 0x20000")

    a.L.append(f"; @launch grid=(256,1,1) block=(512,1,1) lds={LDS_BYTES}")
    a.L.append('.amdgcn_target "amdgcn-amd-amdhsa--gfx950"')
    a.L.append(".text")
    a.L.append(f".globl {KNAME}")
    a.L.append(".p2align 8")
    a.L.append(f".type {KNAME},@function")
    a.label(KNAME)
    a("s_cmp_ge_u32 s2, 256")
    a("s_cbranch_scc1 L_exit")
    a("s_load_dwordx16 s[4:19], s[0:1], 0")
    a("s_load_dwordx8 s[20:27], s[0:1], 64")
    a(f"s_memrealtime s[{sT64}:{sT64+1}]")
    a(f"v_and_b32 v{vL}, 63, v0")
    a(f"v_lshrrev_b32 v{vt[0]}, 6, v0")
    a(f"s_lshr_b32 s{sHP}, s2, 4")
    a(f"s_and_b32 s{sJ}, s2, 15")
    a(f"v_readfirstlane_b32 s{sW}, v{vt[0]}")
    a(f"s_mov_b32 s{sWGI}, s2")
    a(f"s_lshr_b32 s{sRQ}, s{sJ}, 2")
    a(f"s_and_b32 s{sCQ}, s{sJ}, 3")
    a(f"s_mov_b32 s{sLog2e}, 0x{f32bits(1.4426950408889634):08x}")
    a(f"v_mov_b32 v{vZ}, 0")
    a(f"v_mov_b32 v{vST}, 0")
    a("s_waitcnt lgkmcnt(0)")
    a(f"s_or_b32 s{sNon}, s{sT64}, 1")
    mk(rWS, sWS, size=WS_BYTES)
    if STAMP:
        a(f"s_add_u32 s96, s{sWS}, {WS_STAMP}")
        a(f"s_addc_u32 s97, s{sWS+1}, 0")
        a(f"s_and_b32 s97, s97, 0xffff")
        a(f"s_mov_b32 s98, {2048*256}")
        a(f"s_mov_b32 s99, 0x20000")
    stamp("start")
    a(f"s_cmp_ge_u32 s{sW}, 4")
    a("s_cbranch_scc1 L_helper")

    vKoff, vVoff, vM, vLs, vMt = 12, 13, 14, 15, 16
    vC = [17, 18]
    vCo = 19
    vQ = 20
    vO = 36
    vD = 68
    vP = 76
    vT = 80
    KS = [88, 120]
    VS = [152, 184, 216]
    a.c("stream wave setup")
    a(f"s_cmp_lg_u32 s{sW}, 0")
    a("s_cbranch_scc1 L_nz")
    a(f"v_lshlrev_b32 v{vt[0]}, 2, v{vL}")
    a("s_mov_b64 exec, 0xffff")
    a(f"ds_write_b32 v{vt[0]}, v{vZ} offset:{FL}")
    a("s_mov_b64 exec, -1")
    a("s_waitcnt lgkmcnt(0)")
    a.label("L_nz")
    a(f"s_mov_b32 s{sSelLo}, 0x05040100")
    a(f"s_mov_b32 s{sSelHi}, 0x07060302")
    a(f"s_mov_b32 s{sScale}, 0x{f32bits(128 ** -0.5):08x}")
    a(f"v_and_b32 v{vt[0]}, 3, v{vL}")
    a(f"v_lshlrev_b32 v{vt[0]}, 10, v{vt[0]}")
    a(f"v_bfe_u32 v{vt[1]}, v{vL}, 2, 2")
    a(f"v_lshlrev_b32 v{vt[1]}, 8, v{vt[1]}")
    a(f"v_lshrrev_b32 v{vt[2]}, 4, v{vL}")
    a(f"v_lshlrev_b32 v{vt[2]}, 4, v{vt[2]}")
    a(f"v_add3_u32 v{vKoff}, v{vt[0]}, v{vt[1]}, v{vt[2]}")
    a(f"v_lshlrev_b32 v{vVoff}, 4, v{vL}")
    a(f"s_lshl_b32 s{sTmp}, s{sHP}, 24")
    mk(rK, sK, sTmp, size=1 << 24)
    mk(rV, sV, sTmp, size=1 << 24)
    a(f"s_lshl_b32 s{sStat}, s{sJ}, 20")
    a(f"s_lshl_b32 s{sTmp}, s{sW}, 12")
    a(f"s_add_u32 s{sStat}, s{sStat}, s{sTmp}")
    sCl = [36, 37]
    sCA = 38
    a(f"s_lshl_b32 s{sTmp}, s{sHP}, 7")
    a(f"s_add_u32 s{sTmp}, s{sTmp}, {WS_CNT}")
    a(f"s_add_u32 s{sCA}, s{sWS}, s{sTmp}")
    a(f"s_addc_u32 s{sCA+1}, s{sWS+1}, 0")
    a(f"s_mov_b32 s{sCl[0]}, 0")
    a(f"s_mov_b32 s{sCl[1]}, 0")
    a("s_barrier")
    def stream_body(sfx, KP, VP):
        def Kload(slot, t, i, sb):
            return f"buffer_load_dwordx4 {vr(slot+16*t+4*i,4)}, v{vKoff}, {srd(rK)}, s{sb} offen offset:{i*64}{KP}"
        def Vload(slot, t, r, sb):
            return f"buffer_load_dwordx4 {vr(slot+16*t+4*r,4)}, v{vVoff}, {srd(rV)}, s{sb} offen offset:{r*1024}{VP}"
        NOCL = 1
        for g in range(2):
            a(f"s_mov_b32 s{sB[g]}, s{sStat}")
            a(f"s_add_u32 s{sOff}, s{sStat}, 16384")
            for t in range(2):
                for i in range(4):
                    a(Kload(KS[g], t, i, sB[g] if t == 0 else sOff))
            for t in range(2):
                for r in range(4):
                    a(Vload(VS[g], t, r, sB[g] if t == 0 else sOff))
            a(f"s_add_u32 s{sStat}, s{sStat}, 32768")
        a(f"s_mov_b32 s{sLeft}, {NS-2}")
        if not opts.get("noq"): spin_lds(F_NON, 1, vNon)
        a(f"v_and_b32 v{vt[0]}, 1, v{vL}")
        a(f"v_lshlrev_b32 v{vt[0]}, 8, v{vt[0]}")
        a(f"v_lshrrev_b32 v{vt[1]}, 4, v{vL}")
        a(f"v_lshl_add_u32 v{vt[0]}, v{vt[1]}, 4, v{vt[0]}")
        for i in range(4):
            a(f"ds_read_b128 {vr(vQ+4*i,4)}, v{vt[0]} offset:{QB + i*64}")
        a(f"v_mov_b32 v{vM}, 0xff800000")
        a(f"v_mov_b32 v{vMt}, 0xff800000")
        a(f"v_mov_b32 v{vLs}, 0")
        for i in range(32):
            a(f"v_mov_b32 v{vO+i}, 0")
        a("s_waitcnt lgkmcnt(0)")
        stamp("q_ready") if (sfx == "" or not STAMP) else (stn.__setitem__(0, stn[0]-1), names.pop(), stamp("q_ready"))
        d = [vD + i for i in range(8)]
        a.label(f"L_loop{sfx}")
        for u in range(6):
            a.c(f"==== unrolled group {u} ====")
            ks = KS[u % 2]
            vs = VS[u % 3]
            vsn = VS[(u + 2) % 3]
            b0, b2 = sB[u % 3], sB[(u + 2) % 3]
            cs = sCl[u % 2]
            a(f"s_cmp_ge_u32 s{b0}, {OOB}")
            a("s_cbranch_scc1 L_sdone")
            a(f"s_waitcnt vmcnt({28 if NOCL else 29})")
            for i in range(4):
                cin = "0" if i == 0 else vr(vD, 4)
                a(f"v_mfma_f32_16x16x32_bf16 {vr(vD,4)}, {vr(ks+4*i,4)}, {vr(vQ+4*i,4)}, {cin}")
            a("s_waitcnt lgkmcnt(0)")
            a(f"s_mov_b32 s{sTmp}, s{cs}")
            NT = max(4 * (32 - NS), 1)
            assert NT & (NT - 1) == 0
            if opts.get("porder", 1) == 1:
                a(f"s_lshr_b32 s{sA0}, s{sTmp}, {NT.bit_length()-1}")
                a(f"s_lshl_b32 s{sA0}, s{sA0}, 20")
                a(f"s_and_b32 s{sA1}, s{sTmp}, {NT-1}")
            else:
                a(f"s_and_b32 s{sA0}, s{sTmp}, 15")
                a(f"s_lshl_b32 s{sA0}, s{sA0}, 20")
                a(f"s_lshr_b32 s{sA1}, s{sTmp}, 4")
            a(f"s_and_b32 s{sOff}, s{sA1}, 3")
            a(f"s_lshr_b32 s{sA1}, s{sA1}, 2")
            a(f"s_lshl_b32 s{sA1}, s{sA1}, 3")
            a(f"s_add_u32 s{sA1}, s{sA1}, s{sOff}")
            a(f"s_add_u32 s{sA1}, s{sA1}, {NS*8}")
            a(f"s_lshl_b32 s{sA1}, s{sA1}, 12")
            a(f"s_add_u32 s{sA0}, s{sA0}, s{sA1}")
            a(f"s_cmp_lt_u32 s{sTmp}, {NPOOL}")
            a(f"s_cselect_b32 s{sA0}, s{sA0}, {OOB}")
            a(f"s_cmp_gt_i32 s{sLeft}, 0")
            a(f"s_cselect_b32 s{b2}, s{sStat}, s{sA0}")
            a(f"s_add_u32 s{sStat}, s{sStat}, 32768")
            a(f"s_sub_u32 s{sLeft}, s{sLeft}, 1")
            a(f"s_add_u32 s{sOff}, s{b2}, 16384")
            lk = a.newlabel("ncl")
            a(f"s_cmp_lt_i32 s{sLeft}, 2")
            a(f"s_cbranch_scc0 {lk}")
            a(f"s_mov_b32 s{cs}, 1")
            a(f"s_atomic_add s{cs}, s[{sCA}:{sCA+1}], 0x0 glc")
            a.label(lk)
            a(f"s_waitcnt vmcnt({24 if NOCL else 25})")
            for i in range(4):
                cin = "0" if i == 0 else vr(vD + 4, 4)
                a(f"v_mfma_f32_16x16x32_bf16 {vr(vD+4,4)}, {vr(ks+16+4*i,4)}, {vr(vQ+4*i,4)}, {cin}")
            a.nop(4)
            S = []
            tt = vt
            for k in range(4):
                S.append(f"v_cvt_pk_bf16_f32 v{tt[k]}, v{d[2*k]}, v{d[2*k+1]}")
            for k in range(4):
                S.append(f"v_lshlrev_b32 v{d[2*k]}, 16, v{tt[k]}")
                S.append(f"v_and_b32 v{d[2*k+1]}, 0xffff0000, v{tt[k]}")
            for k in range(8):
                S.append(f"v_mul_f32 v{d[k]}, s{sScale}, v{d[k]}")
            for k in range(4):
                S.append(f"v_cvt_pk_bf16_f32 v{tt[k]}, v{d[2*k]}, v{d[2*k+1]}")
            for k in range(4):
                S.append(f"v_lshlrev_b32 v{d[2*k]}, 16, v{tt[k]}")
                S.append(f"v_and_b32 v{d[2*k+1]}, 0xffff0000, v{tt[k]}")
            mx = tt[4]
            S.append(f"v_max3_f32 v{mx}, v{d[0]}, v{d[1]}, v{d[2]}")
            S.append(f"v_max3_f32 v{mx}, v{mx}, v{d[3]}, v{d[4]}")
            S.append(f"v_max3_f32 v{mx}, v{mx}, v{d[5]}, v{d[6]}")
            S.append(f"v_max3_f32 v{mx}, v{mx}, v{d[7]}, v{vM}")
            for sw in ("v_permlane32_swap_b32", "v_permlane16_swap_b32"):
                S.append(f"v_mov_b32 v{tt[5]}, v{mx}")
                S.append("s_nop 1")
                S.append(f"{sw} v{mx}, v{tt[5]}")
                S.append("s_nop 0")
                S.append(f"v_max_f32 v{mx}, v{mx}, v{tt[5]}")
            S.append(f"v_mul_f32 v{tt[5]}, s{sLog2e}, v{mx}")
            al = tt[6]
            S.append(f"v_sub_f32 v{al}, v{vMt}, v{tt[5]}")
            S.append(f"v_exp_f32 v{al}, v{al}")
            S.append(f"v_mov_b32 v{vM}, v{mx}")
            S.append(f"v_mov_b32 v{vMt}, v{tt[5]}")
            for k in range(8):
                S.append(f"v_fma_f32 v{d[k]}, v{d[k]}, s{sLog2e}, -v{vMt}")
            for k in range(8):
                S.append(f"v_exp_f32 v{d[k]}, v{d[k]}")
            S.append(f"v_readlane_b32 s{sA0}, v{al}, 0")
            S.append(f"v_readlane_b32 s{sA1}, v{al}, 1")
            S.append(f"v_mul_f32 v{vLs}, v{vLs}, v{al}")
            for k in range(4):
                S.append(f"v_cvt_pk_bf16_f32 v{vP+k}, v{d[2*k]}, v{d[2*k+1]}")
            for k in range(8):
                S.append(f"v_add_f32 v{vLs}, v{vLs}, v{d[k]}")
            for i in range(8):
                S.append(f"v_mul_f32 v{vO+4*i}, s{sA0}, v{vO+4*i}")
                S.append(f"v_mul_f32 v{vO+4*i+1}, s{sA1}, v{vO+4*i+1}")
            KL = [Kload(ks, t, i, b2 if t == 0 else sOff) for t in range(2) for i in range(4)]
            a(KL[0]); a(KL[1])
            a.nop(3)
            if opts.get("nosm"): S = S[:8]
            step = max(1, len(S) // 7)
            if opts.get("burst"): step = 1
            kq = 2
            for n, ins in enumerate(S):
                a(ins)
                if (n + 1) % step == 0 and kq < 8:
                    a(KL[kq]); kq += 1
            while kq < 8:
                a(KL[kq]); kq += 1
            a(f"s_waitcnt vmcnt({24 if NOCL else 26})")
            VL = [Vload(vsn, t, r, b2 if t == 0 else sOff) for t in range(2) for r in range(4)]
            def perms(i):
                dd, b = i >> 1, i & 1
                sel = sSelHi if b else sSelLo
                for p in range(4):
                    lo = vs + 4 * (2 * p) + dd
                    hi = vs + 4 * (2 * p + 1) + dd
                    a(f"v_perm_b32 v{vT + 4*(i%2) + p}, v{hi}, v{lo}, s{sel}")
            if not opts.get("nopv"): perms(0)
            for i in range(8):
                if opts.get("nopv"):
                    a(VL[i]); continue
                if i + 1 < 8:
                    perms(i + 1)
                else:
                    a.nop(2)
                a(f"v_mfma_f32_16x16x32_bf16 {vr(vO+4*i,4)}, {vr(vP,4)}, {vr(vT+4*(i%2),4)}, {vr(vO+4*i,4)}")
                a(VL[i])
        a(f"v_mov_b32 v{vt[9]}, 1")
        a("s_mov_b64 exec, 1")
        a(f"ds_add_u32 v{vZ}, v{vt[9]} offset:{F_PROG}")
        a("s_mov_b64 exec, -1")
        a(f"s_branch L_loop{sfx}")

    VH0 = opts.get("vh0", 16)
    KH0 = opts.get("kh0", 16)
    if VH0 < 16:
        a(f"s_cmp_ge_u32 s{sHP}, {VH0}")
        a("s_cbranch_scc1 L_streamB")
    stream_body("", " nt", " nt")
    if VH0 < 16:
        a.label("L_streamB")
        if KH0 < 16:
            a(f"s_cmp_ge_u32 s{sHP}, {KH0}")
            a("s_cbranch_scc1 L_streamC")
        stream_body("B", " nt", "")
        if KH0 < 16:
            a.label("L_streamC")
            stream_body("C", "", "")
    a.label("L_sdone")
    stamp("s_done")
    a.c("stream wave: write partial to LDS")
    cross_rows(a, "add", vLs, vt[0])
    a.nop(8)
    a(f"s_mul_i32 s{sTmp}, s{sW}, {CSTR}")
    a(f"v_lshlrev_b32 v{vt[0]}, 5, v{vL}")
    a(f"v_add_u32 v{vt[0]}, s{sTmp}, v{vt[0]}")
    a(f"v_add_u32 v{vt[0]}, {COMB}, v{vt[0]}")
    a(f"v_lshlrev_b32 v{vt[1]}, 2, v{vL}")
    a(f"v_add_u32 v{vt[1]}, s{sTmp}, v{vt[1]}")
    a("s_mov_b64 exec, 0xffff")
    for h in range(2):
        for i in range(0, 8, 2):
            a(f"ds_write2_b32 v{vt[0]}, v{vO+4*i+h}, v{vO+4*(i+1)+h} offset0:{h*128+i} offset1:{h*128+i+1}")
    a("s_mov_b64 exec, 3")
    a(f"ds_write_b32 v{vt[1]}, v{vMt} offset:{COMB+1024}")
    a(f"ds_write_b32 v{vt[1]}, v{vLs} offset:{COMB+1032}")
    a("s_mov_b64 exec, -1")
    lds_arrive(F_SCNT, vt[2])
    a("s_branch L_end")

    a.label("L_helper")
    a.c("helper setup")
    a("s_setprio 3")
    sHW = sB[0]
    a(f"s_sub_u32 s{sHW}, s{sW}, 4")
    mk(rX, sX, size=1152)
    mk(rWQ, sWQ, size=576 * 8192)
    mk(rDBG, sDBG, size=256)
    hX = 16
    hW = 28
    hF = 48
    hA = 60
    hR = 76
    if opts.get("h0"):
        a("s_barrier"); a("s_branch L_end")
    a(f"s_cmp_eq_u32 s{sW}, 7")
    a("s_cbranch_scc1 L_w7start")
    a(f"v_lshlrev_b32 v{vt[3]}, 2, v{vL}")
    for j in range(5):
        a(f"buffer_load_dword v{hX+j}, v{vt[3]}, {srd(rX)}, 0 offen offset:{j*256}")
    a(f"v_lshrrev_b32 v{vt[0]}, 3, v{vL}")
    a(f"s_mul_i32 s{sTmp}, s{sRQ}, 144")
    a(f"s_mul_i32 s{sTmp2}, s{sHW}, 48")
    a(f"s_add_u32 s{sTmp}, s{sTmp}, s{sTmp2}")
    a(f"v_add_u32 v{vt[1]}, s{sTmp}, v{vt[0]}")
    a(f"v_lshlrev_b32 v{vt[5]}, 2, v{vt[1]}")
    a(f"v_lshlrev_b32 v{vt[4]}, 13, v{vt[1]}")
    a(f"v_and_b32 v{vt[1]}, 7, v{vL}")
    a(f"v_lshl_add_u32 v{vt[4]}, v{vt[1]}, 4, v{vt[4]}")
    a(f"s_lshl_b32 s{sTmp}, s{sHP}, 9")
    a(f"s_lshl_b32 s{sTmp2}, s{sCQ}, 7")
    a(f"s_add_u32 s{sTmp}, s{sTmp}, s{sTmp2}")
    a(f"v_add_u32 v{vt[4]}, s{sTmp}, v{vt[4]}")
    for i in range(6):
        a(f"s_mov_b32 s{sOff}, {i*8*8192}")
        a(f"buffer_load_dwordx4 {vr(hR+4*i,4)}, v{vt[4]}, {srd(rWQ)}, s{sOff} offen{WP}")
    a("s_branch L_nononce")
    a.label("L_w7start")
    a(f"s_mov_b32 s{sB[1]}, s{sNon}")
    a(f"s_mov_b32 s{sB[2]}, 0")
    a(f"s_atomic_cmpswap s[{sB[1]}:{sB[2]}], s[{sDBG}:{sDBG+1}], 0x0 glc")
    a(f"s_cmp_lg_u32 s{sJ}, 0")
    a("s_cbranch_scc1 L_nononce")
    a("s_mov_b64 exec, 1")
    a(f"s_lshl_b32 s{sTmp}, s{sHP}, 7")
    a(f"s_add_u32 s{sTmp}, s{sTmp}, {WS_CNT}")
    a(f"buffer_store_dword v{vZ}, v{vZ}, {srd(rWS)}, s{sTmp} offen sc1")
    a("s_mov_b64 exec, -1")
    a.label("L_nononce")
    a("s_barrier")
    if opts.get("nohelp"): a("s_branch L_end")
    mk(rWG, sWG, size=576 * 9216)
    mk(rWU, sWU, size=576 * 9216)
    mk(rWO, sWO, size=4096 * 1152)
    mk(rWD, sWD, size=4608 * 1152)
    mk(rOUT, sOUT, size=1152)
    a(f"s_cmp_eq_u32 s{sW}, 7")
    a("s_cbranch_scc1 L_w7x")
    a.c("layernorm")
    a("s_waitcnt vmcnt(6)")
    stamp("x_arrived")
    xf = [hF + i for i in range(10)]
    for j in range(5):
        a(f"v_lshlrev_b32 v{xf[2*j]}, 16, v{hX+j}")
        a(f"v_and_b32 v{xf[2*j+1]}, 0xffff0000, v{hX+j}")
    s_ = vt[0]
    a(f"v_add_f32 v{s_}, v{xf[0]}, v{xf[1]}")
    for i in range(2, 10):
        a(f"v_add_f32 v{s_}, v{s_}, v{xf[i]}")
    wave_allreduce(a, "add", s_, vt[1])
    a(f"v_mul_f32 v{s_}, 0x{f32bits(1.0/576):08x}, v{s_}")
    a(f"v_cmp_gt_u32 vcc, 32, v{vL}")
    q_ = vt[2]
    a(f"v_mov_b32 v{q_}, 0")
    for i in range(10):
        a(f"v_sub_f32 v{vt[1]}, v{xf[i]}, v{s_}")
        if i >= 8:
            a(f"v_cndmask_b32 v{vt[1]}, 0, v{vt[1]}, vcc")
        a(f"v_fmac_f32 v{q_}, v{vt[1]}, v{vt[1]}")
    wave_allreduce(a, "add", q_, vt[1])
    a(f"v_mul_f32 v{q_}, 0x{f32bits(1.0/576):08x}, v{q_}")
    bf16_round(a, s_, s_)
    bf16_round(a, q_, q_)
    a(f"v_add_f32 v{q_}, 0x{f32bits(1e-5):08x}, v{q_}")
    bf16_round(a, q_, q_)
    a(f"v_sqrt_f32 v{q_}, v{q_}")
    a.nop(1)
    bf16_round(a, q_, q_)
    rc = vt[1]
    a(f"v_rcp_f32 v{rc}, v{q_}")
    a.nop(1)
    for i in range(10):
        dd = xf[i]
        a(f"v_sub_f32 v{dd}, v{dd}, v{s_}")
        bf16_round(a, dd, dd)
        a(f"v_mul_f32 v{vt[6]}, v{dd}, v{rc}")
        a(f"v_fma_f32 v{vt[7]}, -v{vt[6]}, v{q_}, v{dd}")
        a(f"v_fma_f32 v{dd}, v{vt[7]}, v{rc}, v{vt[6]}")
        bf16_round(a, dd, dd)
        if i >= 8:
            a(f"v_cndmask_b32 v{dd}, 0, v{dd}, vcc")
    a(f"v_lshlrev_b32 v{vt[0]}, 3, v{vL}")
    for j in range(5):
        a(f"ds_write_b64 v{vt[0]}, {vr(xf[2*j],2)} offset:{XN + j*512}")
    a.c("q slice")
    for i in range(6):
        a(f"ds_read_b32 v{hX+i}, v{vt[5]} offset:{XN + i*32}")
    acc = [hA + i for i in range(8)]
    a("s_waitcnt vmcnt(0) lgkmcnt(0)")
    for i in range(6):
        for dd in range(4):
            r = hR + 4 * i + dd
            a(f"v_lshlrev_b32 v{vt[0]}, 16, v{r}")
            a(f"v_and_b32 v{vt[1]}, 0xffff0000, v{r}")
            if i == 0:
                a(f"v_mul_f32 v{acc[2*dd]}, v{vt[0]}, v{hX+i}")
                a(f"v_mul_f32 v{acc[2*dd+1]}, v{vt[1]}, v{hX+i}")
            else:
                a(f"v_fmac_f32 v{acc[2*dd]}, v{vt[0]}, v{hX+i}")
                a(f"v_fmac_f32 v{acc[2*dd+1]}, v{vt[1]}, v{hX+i}")
    a.nop(2)
    for ctrl in ("row_ror:8",):
        for e in range(8):
            a(f"v_add_f32_dpp v{acc[e]}, v{acc[e]}, v{acc[e]} {ctrl} row_mask:0xf bank_mask:0xf")
    tq = [hW + i for i in range(8)]
    for sw in ("v_permlane32_swap_b32", "v_permlane16_swap_b32"):
        for e in range(8):
            a(f"v_mov_b32 v{tq[e]}, v{acc[e]}")
        for e in range(8):
            a(f"{sw} v{acc[e]}, v{tq[e]}")
        for e in range(8):
            a(f"v_add_f32 v{acc[e]}, v{acc[e]}, v{tq[e]}")
    a(f"s_lshl_b32 s{sTmp}, s{sHW}, 8")
    a(f"v_lshlrev_b32 v{vt[0]}, 5, v{vL}")
    a(f"v_add_u32 v{vt[0]}, s{sTmp}, v{vt[0]}")
    a("s_mov_b64 exec, 0xff")
    a(f"ds_write_b128 v{vt[0]}, {vr(acc[0],4)} offset:{QP}")
    a(f"ds_write_b128 v{vt[0]}, {vr(acc[4],4)} offset:{QP+16}")
    a("s_mov_b64 exec, -1")
    lds_arrive(F_QCNT, vt[2])
    stamp("qpart_done")
    a("s_branch L_xskip")
    a.label("L_w7x")
    a.c("q exchange (wave 7)")
    spin_lds(F_QCNT, 3, vt[2], sleep=0)
    a(f"v_lshlrev_b32 v{vt[0]}, 2, v{vL}")
    for w in range(3):
        a(f"ds_read_b32 v{hW+w}, v{vt[0]} offset:{QP + w*256}")
    a("s_waitcnt vmcnt(0) lgkmcnt(0)")
    a(f"s_cmp_eq_u32 s{sB[1]}, 0")
    a(f"s_cselect_b32 s{sNon}, s{sNon}, s{sB[1]}")
    for w in range(1, 3):
        a(f"v_add_f32 v{hW}, v{hW}, v{hW+w}")
    a(f"v_mov_b32 v{hW+1}, s{sNon}")
    a(f"v_mov_b32 v{vNon}, s{sNon}")
    a(f"s_lshl_b32 s{sOff}, s{sHP}, 13")
    a(f"s_add_u32 s{sOff}, s{sOff}, {WS_Q}")
    a(f"s_lshl_b32 s{sTmp}, s{sRQ}, 11")
    a(f"s_lshl_b32 s{sTmp2}, s{sCQ}, 9")
    a(f"s_add_u32 s{sTmp}, s{sTmp}, s{sTmp2}")
    a(f"s_add_u32 s{sTmp}, s{sTmp}, s{sOff}")
    a(f"v_lshlrev_b32 v{vt[0]}, 3, v{vL}")
    a(f"buffer_store_dwordx2 {vr(hW,2)}, v{vt[0]}, {srd(rWS)}, s{sTmp} offen sc1")
    stamp("x_pub")
    a(f"v_lshlrev_b32 v{vt[0]}, 4, v{vL}")
    a(f"s_add_u32 s{sTmp2}, s{sOff}, 4096")
    if opts.get("pdelay", 8): a(f"s_sleep {opts.get('pdelay', 8)}")
    ls = retry_begin()
    for k in range(8):
        a(f"buffer_load_dwordx4 {vr(hR+4*k,4)}, v{vt[0]}, {srd(rWS)}, s{sOff if k < 4 else sTmp2} offen offset:{(k%4)*1024} sc1")
    retry_end(ls, [hR + 4 * k + e for k in range(8) for e in (1, 3)], vt[1], vt[2], sleep=2)
    stamp("x_ok")
    for half in range(2):
        for e in (0, 2):
            for r4 in range(1, 4):
                a(f"v_add_f32 v{hR+4*half+e}, v{hR+4*half+e}, v{hR+4*(2*r4+half)+e}")
        a(f"v_cvt_pk_bf16_f32 v{hR+4*half}, v{hR+4*half}, v{hR+4*half+2}")
    a(f"v_lshlrev_b32 v{vt[0]}, 2, v{vL}")
    a(f"ds_write_b32 v{vt[0]}, v{hR} offset:{QB}")
    a(f"ds_write_b32 v{vt[0]}, v{hR+4} offset:{QB+256}")
    a("s_waitcnt lgkmcnt(0)")
    a(f"ds_write_b32 v{vZ}, v{vNon} offset:{F_NON}")
    a.label("L_xskip")
    if opts.get("hstop") == 1: a("s_branch L_end")
    a.c("ffn phase 1: rows 36j+9hw..+9, cols hp*288..+288 (36 lanes x 16B)")
    a(f"s_mul_i32 s{sTmp}, s{sJ}, 36")
    a(f"s_mul_i32 s{sTmp2}, s{sHW}, 9")
    a(f"s_add_u32 s{sTmp}, s{sTmp}, s{sTmp2}")
    a(f"s_lshl_b32 s{sA0}, s{sTmp}, 2")
    a(f"s_mul_i32 s{sOff}, s{sTmp}, 9216")
    a(f"s_mul_i32 s{sTmp2}, s{sHP}, 576")
    a(f"s_add_u32 s{sOff}, s{sOff}, s{sTmp2}")
    a(f"v_lshlrev_b32 v{vt[0]}, 4, v{vL}")
    a("s_mov_b32 exec_hi, 0xf")
    for r in range(9):
        a(f"buffer_load_dwordx4 {vr(hR+8*r,4)}, v{vt[0]}, {srd(rWG)}, s{sOff} offen{WP}")
        a(f"buffer_load_dwordx4 {vr(hR+8*r+4,4)}, v{vt[0]}, {srd(rWU)}, s{sOff} offen{WP}")
        a(f"s_add_u32 s{sOff}, s{sOff}, 9216")
    a("s_mov_b64 exec, -1")
    if opts.get("hstop") == 2:
        a("s_waitcnt vmcnt(0)"); a("s_branch L_end")
    hW2 = 148
    vR3, vC18, vW2o = 12, 13, 14
    a(f"v_mul_u32_u24 v{vR3}, 57, v{vL}")
    a(f"v_lshrrev_b32 v{vR3}, 10, v{vR3}")
    a(f"v_mul_u32_u24 v{vC18}, 18, v{vR3}")
    a(f"v_sub_u32 v{vC18}, v{vL}, v{vC18}")
    a(f"s_mul_i32 s{sTmp}, s{sHW}, 3")
    a(f"v_add_u32 v{vR3}, s{sTmp}, v{vR3}")
    a(f"s_mov_b32 s{sTmp}, 1152")
    a(f"v_mul_lo_u32 v{vW2o}, v{vR3}, s{sTmp}")
    a(f"v_lshl_add_u32 v{vW2o}, v{vC18}, 4, v{vW2o}")
    a(f"s_mul_i32 s{sTmp}, s{sCQ}, 288")
    a(f"v_add_u32 v{vW2o}, s{sTmp}, v{vW2o}")
    a(f"s_lshl_b32 s{sTmp}, s{sHP}, 2")
    a(f"s_add_u32 s{sTmp}, s{sTmp}, s{sRQ}")
    a(f"s_mul_i32 s{sOff}, s{sTmp}, {64*1152}")
    a(f"s_mul_i32 s{sA1}, s{sTmp}, {72*1152}")
    for i in range(6):
        a(f"v_add_u32 v{vt[1]}, {12*i}, v{vR3}")
        a(f"v_cmp_gt_u32 vcc, 64, v{vt[1]}")
        a(f"s_mov_b32 s{sEx}, -1")
        a(f"s_mov_b32 s{sEx+1}, 0x3fffff")
        a(f"s_and_b64 vcc, vcc, s[{sEx}:{sEx+1}]")
        for e in range(4):
            a(f"v_mov_b32 v{hW2+4*i+e}, 0")
        a("s_mov_b64 exec, vcc")
        lk = a.newlabel("w2s")
        a(f"s_cbranch_execz {lk}")
        a(f"buffer_load_dwordx4 {vr(hW2+4*i,4)}, v{vW2o}, {srd(rWO)}, s{sOff} offen{WP}")
        a.label(lk)
        a("s_mov_b64 exec, -1")
        a(f"s_add_u32 s{sOff}, s{sOff}, {12*1152}")
    for i in range(6):
        for e in range(4):
            a(f"v_mov_b32 v{hW2+24+4*i+e}, 0")
    a("s_mov_b32 exec_hi, 0x3fffff")
    for i in range(6):
        a(f"buffer_load_dwordx4 {vr(hW2+24+4*i,4)}, v{vW2o}, {srd(rWD)}, s{sA1} offen{WP}")
        a(f"s_add_u32 s{sA1}, s{sA1}, {12*1152}")
    a("s_mov_b64 exec, -1")
    a(f"v_mov_b32 v{vt[1]}, s{sA0}")
    for r in range(9):
        a(f"ds_read_b32 v{hX+r}, v{vt[1]} offset:{XN + r*4}")
    xr = [hX + r for r in range(9)]
    fac = [hA + i for i in range(16)]
    a("s_waitcnt vmcnt(6) lgkmcnt(0)")
    a("s_waitcnt vmcnt(0)") if opts.get("safe_ffn", 1) else None
    for r in range(9):
        for mt in range(2):
            for dd in range(4):
                rg = hR + 8 * r + 4 * mt + dd
                a(f"v_lshlrev_b32 v{vt[2]}, 16, v{rg}")
                a(f"v_and_b32 v{vt[3]}, 0xffff0000, v{rg}")
                if r == 0:
                    a(f"v_mul_f32 v{fac[8*mt+2*dd]}, v{vt[2]}, v{xr[r]}")
                    a(f"v_mul_f32 v{fac[8*mt+2*dd+1]}, v{vt[3]}, v{xr[r]}")
                else:
                    a(f"v_fmac_f32 v{fac[8*mt+2*dd]}, v{vt[2]}, v{xr[r]}")
                    a(f"v_fmac_f32 v{fac[8*mt+2*dd+1]}, v{vt[3]}, v{xr[r]}")
    a(f"s_mul_i32 s{sTmp}, s{sHW}, 2304")
    a(f"v_lshlrev_b32 v{vt[0]}, 5, v{vL}")
    a(f"v_add_u32 v{vt[0]}, s{sTmp}, v{vt[0]}")
    a("s_mov_b32 exec_hi, 0xf")
    for mt in range(2):
        a(f"ds_write_b128 v{vt[0]}, {vr(fac[8*mt],4)} offset:{FFP + mt*1152}")
        a(f"ds_write_b128 v{vt[0]}, {vr(fac[8*mt+4],4)} offset:{FFP + mt*1152 + 16}")
    a("s_mov_b64 exec, -1")
    lds_arrive(F_FCNT, vt[2], ret=True)
    a(f"s_mov_b32 s{sA0}, s{sTmp}")
    stamp("ffn1_done")
    if opts.get("hstop") == 3: a("s_branch L_end")
    spin_lds(F_NON, 1, vNon)
    a(f"s_mov_b32 s{sNon}, s{sTmp}")
    a(f"s_cmp_lg_u32 s{sA0}, 3")
    a("s_cbranch_scc1 L_fpskip")
    a.c("last arriver: sum 4 partials and publish 576 granules")
    a(f"v_lshlrev_b32 v{vt[0]}, 2, v{vL}")
    for k in range(9):
        for w in range(4):
            a(f"ds_read_b32 v{hR+4*k+w}, v{vt[0]} offset:{FFP + w*2304 + k*256}")
    a(f"s_mul_i32 s{sOff}, s{sWGI}, 4608")
    a(f"s_add_u32 s{sOff}, s{sOff}, {WS_FP}")
    a(f"v_lshlrev_b32 v{vt[0]}, 3, v{vL}")
    a("s_waitcnt lgkmcnt(0)")
    for k in range(9):
        a(f"v_add_f32 v{hR+4*k}, v{hR+4*k}, v{hR+4*k+1}")
        a(f"v_add_f32 v{hR+4*k+2}, v{hR+4*k+2}, v{hR+4*k+3}")
        a(f"v_add_f32 v{hR+4*k}, v{hR+4*k}, v{hR+4*k+2}")
        a(f"v_mov_b32 v{hR+4*k+1}, v{vNon}")
        if k == 8:
            a(f"s_add_u32 s{sOff}, s{sOff}, 4096")
        a(f"buffer_store_dwordx2 {vr(hR+4*k,2)}, v{vt[0]}, {srd(rWS)}, s{sOff} offen offset:{(k%8)*512} sc1")
    a.label("L_fpskip")
    a(f"s_setprio {opts.get('hprio', 1)}")
    a(f"s_cmp_lg_u32 s{sW}, 4")
    a("s_cbranch_scc1 L_rsskip")
    a.c("ffn reduce-scatter")
    a(f"v_cmp_le_u32 vcc, 18, v{vL}")
    a(f"v_mov_b32 v{vt[1]}, {2304-144}")
    a.nop(1)
    a(f"v_cndmask_b32 v{vt[1]}, 0, v{vt[1]}, vcc")
    a(f"v_lshl_add_u32 v{vt[0]}, v{vL}, 3, v{vt[1]}")
    a(f"s_mul_i32 s{sTmp}, s{sJ}, 144")
    a(f"v_add_u32 v{vt[0]}, s{sTmp}, v{vt[0]}")
    spin_lds(F_PROG, opts.get("g1", 4), vt[2], sleep=32)
    a("s_mov_b32 exec_hi, 0xf")
    ls = retry_begin()
    a(f"s_mul_i32 s{sOff}, s{sHP}, {16*4608}")
    a(f"s_add_u32 s{sOff}, s{sOff}, {WS_FP}")
    for p in range(16):
        a(f"buffer_load_dwordx2 {vr(hR+2*p,2)}, v{vt[0]}, {srd(rWS)}, s{sOff} offen sc1")
        a(f"s_add_u32 s{sOff}, s{sOff}, 4608")
    retry_end(ls, [hR + 2 * p + 1 for p in range(16)], vt[1], vt[2], sleep=32)
    for p in range(1, 16):
        a(f"v_add_f32 v{hR}, v{hR}, v{hR+2*p}")
    a("s_mov_b64 exec, -1")
    bf16_round(a, hR, hR)
    a(f"v_add_u32 v{vt[0]}, 18, v{vL}")
    a(f"v_lshlrev_b32 v{vt[0]}, 2, v{vt[0]}")
    a(f"v_and_b32 v{vt[0]}, 0xff, v{vt[0]}")
    a(f"ds_bpermute_b32 v{hR+1}, v{vt[0]}, v{hR}")
    silu(hR)
    a("s_waitcnt lgkmcnt(0)")
    a(f"v_mul_f32 v{hR}, v{hR}, v{hR+1}")
    bf16_round(a, hR, hR)
    a(f"v_mov_b32 v{hR+1}, v{vNon}")
    a(f"s_mul_i32 s{sOff}, s{sWGI}, 144")
    a(f"s_add_u32 s{sOff}, s{sOff}, {WS_HB}")
    a(f"v_lshlrev_b32 v{vt[0]}, 3, v{vL}")
    a("s_mov_b64 exec, 0x3ffff")
    a(f"buffer_store_dwordx2 {vr(hR,2)}, v{vt[0]}, {srd(rWS)}, s{sOff} offen sc1")
    a("s_mov_b64 exec, -1")
    stamp("h_pub")
    a.c("all-gather h[hp*288 + rq*72 ..+72] -> LDS INH (wave 4)")
    a(f"s_lshl_b32 s{sTmp}, s{sHP}, 2")
    a(f"s_add_u32 s{sTmp}, s{sTmp}, s{sRQ}")
    a(f"s_mul_i32 s{sOff}, s{sTmp}, 576")
    a(f"s_add_u32 s{sOff}, s{sOff}, {WS_HB}")
    a(f"v_lshlrev_b32 v{vt[0]}, 4, v{vL}")
    spin_lds(F_PROG, opts.get("g2", 7), vt[2], sleep=32)
    a("s_mov_b32 exec_hi, 0xf")
    ls = retry_begin()
    a(f"buffer_load_dwordx4 {vr(hR,4)}, v{vt[0]}, {srd(rWS)}, s{sOff} offen sc1")
    retry_end(ls, [hR + 1, hR + 3], vt[1], vt[2], sleep=32)
    a(f"v_mov_b32 v{hR+1}, v{hR+2}")
    a(f"v_lshlrev_b32 v{vt[0]}, 3, v{vL}")
    a(f"ds_write_b64 v{vt[0]}, {vr(hR,2)} offset:{INH}")
    a("s_mov_b64 exec, -1")
    lds_arrive(F_H, vt[2])
    a.label("L_rsskip")

    def slice_matmul(inaddr, wbase, fin, cnt_flag, wsbase, tagname):
        a(f"v_lshlrev_b32 v{vt[0]}, 2, v{vR3}")
        for i in range(6):
            a(f"ds_read_b32 v{hX+i}, v{vt[0]} offset:{inaddr + i*48}")
        a("s_waitcnt lgkmcnt(0)")
        fa = [hA + e for e in range(8)]
        for i in range(6):
            for dd in range(4):
                rg = wbase + 4 * i + dd
                a(f"v_lshlrev_b32 v{vt[2]}, 16, v{rg}")
                a(f"v_and_b32 v{vt[3]}, 0xffff0000, v{rg}")
                if i == 0:
                    a(f"v_mul_f32 v{fa[2*dd]}, v{vt[2]}, v{hX+i}")
                    a(f"v_mul_f32 v{fa[2*dd+1]}, v{vt[3]}, v{hX+i}")
                else:
                    a(f"v_fmac_f32 v{fa[2*dd]}, v{vt[2]}, v{hX+i}")
                    a(f"v_fmac_f32 v{fa[2*dd+1]}, v{vt[3]}, v{hX+i}")
        a(f"s_lshl_b32 s{sTmp}, s{sHW}, 11")
        a(f"v_lshlrev_b32 v{vt[0]}, 5, v{vL}")
        a(f"v_add_u32 v{vt[0]}, s{sTmp}, v{vt[0]}")
        a(f"ds_write_b128 v{vt[0]}, {vr(fa[0],4)} offset:{fin}")
        a(f"ds_write_b128 v{vt[0]}, {vr(fa[4],4)} offset:{fin+16}")
        lds_arrive(cnt_flag, vt[2], ret=True)
        lk = a.newlabel("sm")
        a(f"s_cmp_lg_u32 s{sTmp}, 3")
        a(f"s_cbranch_scc1 {lk}")
        a(f"v_lshlrev_b32 v{vt[0]}, 2, v{vL}")
        for k in range(3):
            for w in range(4):
                for r3 in range(3):
                    a(f"ds_read_b32 v{hR+12*k+3*w+r3}, v{vt[0]} offset:{fin + w*2048 + r3*576 + k*256}")
        a(f"s_lshl_b32 s{sTmp}, s{sHP}, 2")
        a(f"s_add_u32 s{sTmp}, s{sTmp}, s{sRQ}")
        a(f"s_lshl_b32 s{sOff}, s{sCQ}, 6")
        a(f"s_add_u32 s{sOff}, s{sOff}, s{sTmp}")
        a(f"s_mul_i32 s{sOff}, s{sOff}, 1152")
        a(f"s_add_u32 s{sOff}, s{sOff}, {wsbase}")
        a(f"v_lshlrev_b32 v{vt[0]}, 3, v{vL}")
        a("s_waitcnt lgkmcnt(0)")
        for k in range(3):
            for q in range(1, 12):
                a(f"v_add_f32 v{hR+12*k}, v{hR+12*k}, v{hR+12*k+q}")
            a(f"v_mov_b32 v{hR+12*k+1}, v{vNon}")
            if k == 2:
                a("s_mov_b64 exec, 0xffff")
            a(f"buffer_store_dwordx2 {vr(hR+12*k,2)}, v{vt[0]}, {srd(rWS)}, s{sOff} offen offset:{k*512} sc1")
        a("s_mov_b64 exec, -1")
        stamp(tagname)
        a.label(lk)

    def fin_gather(wsbase, dst, cntflag, sleep):
        a(f"s_mul_i32 s{sTmp}, s{sHW}, 3")
        a(f"v_subrev_u32 v{vt[4]}, s{sTmp}, v{vR3}")
        a(f"s_mov_b32 s{sTmp}, 1152")
        a(f"v_mul_lo_u32 v{vt[0]}, v{vt[4]}, s{sTmp}")
        a(f"v_lshl_add_u32 v{vt[0]}, v{vC18}, 4, v{vt[0]}")
        a(f"s_lshr_b32 s{sTmp}, s{sJ}, 2")
        a(f"s_lshl_b32 s{sTmp}, s{sTmp}, 6")
        a(f"s_lshl_b32 s{sTmp2}, s{sHW}, 4")
        a(f"s_add_u32 s{sTmp}, s{sTmp}, s{sTmp2}")
        a(f"s_mul_i32 s{sA0}, s{sTmp}, 1152")
        a(f"s_and_b32 s{sTmp}, s{sJ}, 3")
        a(f"s_mul_i32 s{sTmp}, s{sTmp}, 288")
        a(f"s_add_u32 s{sA0}, s{sA0}, s{sTmp}")
        a(f"s_add_u32 s{sA0}, s{sA0}, {wsbase}")
        a(f"v_mov_b32 v{hR+20}, 0")
        a(f"v_mov_b32 v{hR+21}, v{vNon}")
        a(f"v_mov_b32 v{hR+22}, 0")
        a(f"v_mov_b32 v{hR+23}, v{vNon}")
        a("s_mov_b32 exec_hi, 0x3fffff")
        ls = retry_begin()
        a(f"s_mov_b32 s{sOff}, s{sA0}")
        for i in range(6):
            if i == 5:
                a("s_mov_b64 exec, 0x3ffff")
            a(f"buffer_load_dwordx4 {vr(hR+4*i,4)}, v{vt[0]}, {srd(rWS)}, s{sOff} offen sc1")
            a(f"s_add_u32 s{sOff}, s{sOff}, {3*1152}")
        a("s_mov_b32 exec_lo, -1")
        a("s_mov_b32 exec_hi, 0x3fffff")
        retry_end(ls, [hR + 4 * i + e for i in range(6) for e in (1, 3)], vt[1], vt[2], sleep=sleep)
        for i in range(1, 6):
            a(f"v_add_f32 v{hR}, v{hR}, v{hR+4*i}")
            a(f"v_add_f32 v{hR+2}, v{hR+2}, v{hR+4*i+2}")
        a(f"v_mov_b32 v{hR+1}, v{hR+2}")
        a(f"s_lshl_b32 s{sTmp}, s{sHW}, 9")
        a(f"v_lshlrev_b32 v{vt[0]}, 3, v{vL}")
        a(f"v_add_u32 v{vt[0]}, s{sTmp}, v{vt[0]}")
        a(f"ds_write_b64 v{vt[0]}, {vr(hR,2)} offset:{dst}")
        a("s_mov_b64 exec, -1")
        lds_arrive(cntflag, vt[2], ret=True)

    a.c("y-part matmul")
    spin_lds(F_H, 1, vt[2], sleep=32)
    slice_matmul(INH, hW2 + 24, FIN2, F_YCNT, WS_Y2, "y_pub")
    a(f"v_lshlrev_b32 v{vt[0]}, 2, v{vL}")
    a(f"ds_write_b32 v{vt[0]}, v{vZ} offset:{INO+256}")
    a(f"s_cmp_lg_u32 s{sHP}, s{sJ}")
    a("s_cbranch_scc1 L_noyg")
    spin_lds(F_PROG, opts.get("g3", 11), vt[2], sleep=32)
    fin_gather(WS_Y2, G2 + 2048, F_Y2CNT, 64)
    a.label("L_noyg")
    stamp("h_idle")
    if opts.get("hstop") == 4: a("s_branch L_end")
    a.c("wg combine")
    spin_lds(F_SCNT, 4, vt[2], sleep=opts.get("hsleep", 2))
    a("s_setprio 3")
    stamp("s_all")
    a(f"v_and_b32 v{vt[5]}, 255, v0")
    a(f"v_lshlrev_b32 v{vt[0]}, 2, v{vt[5]}")
    a(f"v_lshrrev_b32 v{vt[1]}, 7, v{vt[5]}")
    a(f"v_lshlrev_b32 v{vt[1]}, 2, v{vt[1]}")
    mreg = [hR + i for i in range(4)]
    lreg = [hR + 4 + i for i in range(4)]
    oreg = [hR + 8 + i for i in range(4)]
    for w in range(4):
        a(f"ds_read_b32 v{mreg[w]}, v{vt[1]} offset:{COMB + w*CSTR + 1024}")
        a(f"ds_read_b32 v{lreg[w]}, v{vt[1]} offset:{COMB + w*CSTR + 1032}")
        a(f"ds_read_b32 v{oreg[w]}, v{vt[0]} offset:{COMB + w*CSTR}")
    a("s_waitcnt lgkmcnt(0)")
    M, Lr, Or = hA + 8, hA + 10, hA + 12
    combine(4, mreg, lreg, oreg, M, Lr, Or)
    a(f"v_mov_b32 v{M+1}, v{vNon}")
    a(f"v_mov_b32 v{Lr+1}, v{vNon}")
    a(f"v_mov_b32 v{Or+1}, v{vNon}")
    a(f"s_mul_i32 s{sOff}, s{sWGI}, {PSTR}")
    a(f"v_lshlrev_b32 v{vt[0]}, 3, v{vt[5]}")
    a(f"buffer_store_dwordx2 {vr(Or,2)}, v{vt[0]}, {srd(rWS)}, s{sOff} offen sc1")
    a(f"v_lshlrev_b32 v{vt[1]}, 2, v{vt[1]}")
    a(f"s_and_b32 s{sTmp}, s{sHW}, 1")
    a(f"s_cmp_lg_u32 s{sTmp}, 0")
    a("s_cbranch_scc1 L_mlskip")
    a("s_mov_b64 exec, 1")
    a(f"buffer_store_dwordx4 {vr(M,4)}, v{vt[1]}, {srd(rWS)}, s{sOff} offen offset:2048 sc1")
    a("s_mov_b64 exec, -1")
    a.label("L_mlskip")
    stamp("published")
    a(f"s_cmp_lg_u32 s{sW}, 4")
    a("s_cbranch_scc1 L_l1skip")
    a.c("level-1 poll")
    a(f"v_and_b32 v{vt[0]}, 15, v{vL}")
    a(f"v_mul_u32_u24 v{vt[0]}, {PSTR}, v{vt[0]}")
    a(f"s_lshr_b32 s{sTmp}, s{sRQ}, 1")
    a(f"s_lshl_b32 s{sTmp}, s{sTmp}, 4")
    a(f"s_mul_i32 s{sA0}, s{sHP}, {16*PSTR}")
    a(f"s_add_u32 s{sA1}, s{sA0}, s{sTmp}")
    a("s_mov_b64 exec, 0xffff")
    ls = retry_begin()
    a(f"buffer_load_dwordx4 {vr(hR,4)}, v{vt[0]}, {srd(rWS)}, s{sA1} offen offset:2048 sc1")
    retry_end(ls, [hR + 1, hR + 3], vt[1], vt[2], sleep=opts.get("sleep1", 8))
    a("s_mov_b64 exec, -1")
    stamp("polled")
    a(f"s_lshl_b32 s{sTmp}, s{sRQ}, 9")
    a(f"s_add_u32 s{sA0}, s{sA0}, s{sTmp}")
    a(f"v_lshlrev_b32 v{vt[0]}, 3, v{vL}")
    hG = hR + 8
    ls = retry_begin()
    a(f"s_mov_b32 s{sOff}, s{sA0}")
    for p in range(16):
        a(f"buffer_load_dwordx2 {vr(hG+2*p,2)}, v{vt[0]}, {srd(rWS)}, s{sOff} offen sc1")
        a(f"s_add_u32 s{sOff}, s{sOff}, {PSTR}")
    retry_end(ls, [hG + 2 * p + 1 for p in range(16)], vt[1], vt[2], sleep=2)
    mm, ll = hR + 4, hR + 5
    a(f"v_mov_b32 v{mm}, v{hR}")
    for ctrl in ("quad_perm:[1,0,3,2]", "quad_perm:[2,3,0,1]", "row_half_mirror", "row_mirror"):
        a.nop(2)
        a(f"v_max_f32_dpp v{mm}, v{mm}, v{mm} {ctrl} row_mask:0xf bank_mask:0xf")
    a(f"v_sub_f32 v{hR}, v{hR}, v{mm}")
    a(f"v_exp_f32 v{hR}, v{hR}")
    a.nop(1)
    a(f"v_mul_f32 v{ll}, v{hR}, v{hR+2}")
    for ctrl in ("quad_perm:[1,0,3,2]", "quad_perm:[2,3,0,1]", "row_half_mirror", "row_mirror"):
        a.nop(2)
        a(f"v_add_f32_dpp v{ll}, v{ll}, v{ll} {ctrl} row_mask:0xf bank_mask:0xf")
    a.nop(1)
    a(f"v_readlane_b32 s{sA1}, v{ll}, 0")
    for p in range(16):
        a(f"v_readlane_b32 s{sTmp}, v{hR}, {p}")
        a.nop(2)
        if p == 0:
            a(f"v_mul_f32 v{Or}, s{sTmp}, v{hG}")
        else:
            a(f"v_fmac_f32 v{Or}, s{sTmp}, v{hG+2*p}")
    a(f"v_mov_b32 v{Lr}, s{sA1}")
    a(f"v_rcp_f32 v{vt[3]}, v{Lr}")
    a.nop(1)
    a(f"v_mul_f32 v{vt[4]}, v{Or}, v{vt[3]}")
    a(f"v_fma_f32 v{vt[5]}, -v{vt[4]}, v{Lr}, v{Or}")
    a(f"v_fma_f32 v{Or}, v{vt[5]}, v{vt[3]}, v{vt[4]}")
    bf16_round(a, Or, Or)
    a(f"v_lshlrev_b32 v{vt[0]}, 2, v{vL}")
    a(f"ds_write_b32 v{vt[0]}, v{Or} offset:{INO}")
    lds_arrive(F_O, vt[2])
    stamp("gathered")
    a.label("L_l1skip")
    spin_lds(F_O, 1, vt[2], sleep=0)
    slice_matmul(INO, hW2, FIN, F_ZCNT, WS_S2, "s_pub")
    a(f"s_cmp_lg_u32 s{sHP}, s{sJ}")
    a("s_cbranch_scc1 L_end")
    fin_gather(WS_S2, G2, F_S2CNT, 2)
    a(f"s_cmp_lg_u32 s{sTmp}, 3")
    a("s_cbranch_scc1 L_end")
    a.c("final: last arriver sums 4 waves x 3 pp for 36 cols")
    a(f"s_mul_i32 s{sTmp}, s{sJ}, 72")
    a(f"v_lshlrev_b32 v{vt[6]}, 1, v{vL}")
    a(f"v_add_u32 v{vt[6]}, s{sTmp}, v{vt[6]}")
    a("s_mov_b32 exec_hi, 0xf")
    a(f"buffer_load_ushort v{vt[7]}, v{vt[6]}, {srd(rX)}, 0 offen")
    a(f"v_lshlrev_b32 v{vt[0]}, 2, v{vL}")
    for part in range(2):
        for w in range(4):
            for pp in range(3):
                a(f"ds_read_b32 v{hR+12*part+3*w+pp}, v{vt[0]} offset:{G2 + part*2048 + w*512 + pp*144}")
    a("s_waitcnt lgkmcnt(0)")
    for part in range(2):
        for q in range(1, 12):
            a(f"v_add_f32 v{hR+12*part}, v{hR+12*part}, v{hR+12*part+q}")
    sS, sY = hR, hR + 12
    bf16_round(a, sS, sS)
    bf16_round(a, sY, sY)
    silu(sY)
    a(f"v_mul_f32 v{sS}, v{sS}, v{sY}")
    bf16_round(a, sS, sS)
    a("s_waitcnt vmcnt(0)")
    a(f"v_lshlrev_b32 v{vt[7]}, 16, v{vt[7]}")
    a(f"v_add_f32 v{sS}, v{sS}, v{vt[7]}")
    a(f"v_cvt_pk_bf16_f32 v{sS}, v{sS}, v{sS}")
    a(f"buffer_store_short v{sS}, v{vt[6]}, {srd(rOUT)}, 0 offen")
    if STAMP:
        a("s_waitcnt vmcnt(0)")
    stamp("out")
    a.label("L_end")
    stamp_flush()
    a.label("L_exit")
    a("s_endpgm")
    a.L.append('.section .rodata,"a"')
    a.L.append(".p2align 6")
    a.L.append(f".amdhsa_kernel {KNAME}")
    a.L.append("  .amdhsa_next_free_vgpr 256")
    a.L.append("  .amdhsa_next_free_sgpr 102")
    a.L.append("  .amdhsa_accum_offset 256")
    a.L.append("  .amdhsa_group_segment_fixed_size 0")
    a.L.append("  .amdhsa_kernarg_size 96")
    a.L.append("  .amdhsa_user_sgpr_count 2")
    a.L.append("  .amdhsa_user_sgpr_kernarg_segment_ptr 1")
    a.L.append("  .amdhsa_system_sgpr_workgroup_id_x 1")
    a.L.append("  .amdhsa_float_denorm_mode_32 3")
    a.L.append(".end_amdhsa_kernel")
    return "\n".join(a.L) + "\n"

if __name__ == "__main__":
    out = sys.argv[1] if len(sys.argv) > 1 else "recurrent_scan__gqa_block_cached__swiglu_ffn__decode.s"
    opts = {}
    for kv in sys.argv[2:]:
        k, v = kv.split("=")
        opts[k] = int(v) if v.lstrip("-").isdigit() else v
    txt = gen(opts)
    if opts.get("stamp"):
        txt = txt.replace("\n", "\n; stamps=" + ",".join(opts["names"]) + "\n", 1)
    open(out, "w").write(txt)
    print("wrote", out)
```

```python
import sys, struct

KNAME = "recurrent_scan__gqa_block_cached__swiglu_ffn__decode_kernel"

def f32bits(x):
    return struct.unpack("<I", struct.pack("<f", x))[0]

class Asm:
    def __init__(self):
        self.L = []
        self.uid = 0
    def __call__(self, s):
        self.L.append("    " + s)
    def label(self, s):
        self.L.append(s + ":")
    def c(self, s):
        self.L.append("    ; " + s)
    def nop(self, n):
        while n > 0:
            k = min(n, 16)
            self(f"s_nop {k-1}")
            n -= k
    def newlabel(self, p):
        self.uid += 1
        return f"L_{p}{self.uid}"

FL = 0
F_NON, F_QCNT, F_FCNT, F_H, F_YCNT, F_SCNT, F_O, F_ZCNT, F_Y2CNT, F_S2CNT, F_PROG = [FL + 4 * i for i in range(11)]
XN = 64
QP = XN + 2560
QB = QP + 1024
FFP = QB + 512
COMB = FFP + 9216
CSTR = 1056
INO = COMB + 4 * CSTR
INH = INO + 512
FIN = INH + 512
FIN2 = FIN + 8192
G2 = FIN2 + 8192
LDS_BYTES = G2 + 4096
LDS_BYTES = (LDS_BYTES + 1023) // 1024 * 1024
PSTR = 2176
WS_PART = 0
WS_FP = 256 * PSTR
WS_HB = WS_FP + 256 * 4608
WS_S2 = WS_HB + 4608 * 8
WS_Y2 = WS_S2 + 4 * 64 * 1152
WS_Q = WS_Y2 + 4 * 64 * 1152
WS_CNT = WS_Q + 16 * 8192
WS_BYTES = WS_CNT + 16 * 128
WS_STAMP = 4 << 20

sX, sK, sV, sWQ, sWO, sBX, sWG, sWU, sWD, sOUT, sDBG, sWS = [4 + 2 * i for i in range(12)]
rK, rV, rX, rWQ, rWG, rWU, rWO, rWD, rWS, rOUT, rDBG = [28 + 4 * i for i in range(11)]
sHP, sJ, sW, sWGI = 72, 73, 74, 75
sSelLo, sSelHi, sScale, sLog2e = 76, 77, 78, 79
sA0, sA1, sTmp, sTmp2, sOff, sCnt = 80, 81, 82, 83, 84, 85
sEx = 86
sNon = 88
sB = [89, 90, 91]
sStat, sLeft = 92, 93
sT64 = 94
sRQ, sCQ = 100, 101
OOB = 0x40000000

def srd(r): return f"s[{r}:{r+3}]"
def vr(b, n): return f"v[{b}:{b+n-1}]"

def bf16_round(a, dst, src):
    a(f"v_cvt_pk_bf16_f32 v{dst}, v{src}, v{src}")
    a(f"v_lshlrev_b32 v{dst}, 16, v{dst}")

def cross_rows(a, op, x, t):
    o = f"v_{op}_f32"
    for sw in ("v_permlane32_swap_b32", "v_permlane16_swap_b32"):
        a(f"v_mov_b32 v{t}, v{x}")
        a.nop(2)
        a(f"{sw} v{x}, v{t}")
        a.nop(1)
        a(f"{o} v{x}, v{x}, v{t}")

def wave_allreduce(a, op, x, t):
    o = f"v_{op}_f32"
    for ctrl in ("quad_perm:[1,0,3,2]", "quad_perm:[2,3,0,1]", "row_half_mirror", "row_mirror"):
        a.nop(2)
        a(f"{o}_dpp v{x}, v{x}, v{x} {ctrl} row_mask:0xf bank_mask:0xf")
    cross_rows(a, op, x, t)

def gen(opts):
    a = Asm()
    STAMP = opts.get("stamp", False)
    NS = opts.get("ns", 26)
    NPOOL = (32 - NS) * 64
    MAXPOLL = 0x40000
    WP = "" if opts.get("wdef") else " nt"
    stn = [0]
    names = []
    vL, vST, vNon, vZ = 1, 255, 254, 253
    vt = [2, 3, 4, 5, 6, 7, 8, 9, 10, 11]
    def stamp(name):
        if not STAMP: return
        a(f"s_memrealtime s[{sT64}:{sT64+1}]")
        a("s_waitcnt lgkmcnt(0)")
        a(f"v_writelane_b32 v{vST}, s{sT64}, {stn[0]}")
        names.append(name)
        stn[0] += 1
    def stamp_flush():
        if not STAMP: return
        a("s_mov_b64 exec, -1")
        a(f"s_lshl_b32 s{sTmp}, s2, 3")
        a(f"s_add_u32 s{sTmp}, s{sTmp}, s{sW}")
        a(f"s_lshl_b32 s{sTmp}, s{sTmp}, 8")
        a(f"v_lshlrev_b32 v{vt[8]}, 2, v{vL}")
        a(f"buffer_store_dword v{vST}, v{vt[8]}, s[96:99], s{sTmp} offen")
    opts["names"] = names

    def spin_lds(addr, target, tmpv, ge=True, sleep=1):
        l0, l1 = a.newlabel("sp"), a.newlabel("spx")
        a(f"s_mov_b32 s{sCnt}, 0x2000000")
        a.label(l0)
        a(f"ds_read_b32 v{tmpv}, v{vZ} offset:{addr}")
        a("s_waitcnt lgkmcnt(0)")
        a(f"v_readfirstlane_b32 s{sTmp}, v{tmpv}")
        a(f"s_cmp_ge_u32 s{sTmp}, {target}")
        a(f"s_cbranch_scc1 {l1}")
        a(f"s_sub_u32 s{sCnt}, s{sCnt}, 1")
        a(f"s_cmp_eq_u32 s{sCnt}, 0")
        a(f"s_cbranch_scc1 {l1}")
        a(f"s_sleep {sleep}")
        a(f"s_branch {l0}")
        a.label(l1)
    def lds_arrive(addr, tmpv, ret=False):
        a("s_waitcnt lgkmcnt(0)")
        a(f"v_mov_b32 v{tmpv}, 1")
        a("s_mov_b64 exec, 1")
        if ret:
            a(f"ds_add_rtn_u32 v{tmpv}, v{vZ}, v{tmpv} offset:{addr}")
            a("s_waitcnt lgkmcnt(0)")
            a(f"v_readfirstlane_b32 s{sTmp}, v{tmpv}")
        else:
            a(f"ds_add_u32 v{vZ}, v{tmpv} offset:{addr}")
        a("s_mov_b64 exec, -1")
    def retry_begin():
        l0, l1 = a.newlabel("rt"), a.newlabel("rtx")
        a(f"s_mov_b32 s{sCnt}, {MAXPOLL}")
        a.label(l0)
        return l0, l1
    def retry_end(ls, tagregs, t0, t1, sleep=2):
        l0, l1 = ls
        a("s_waitcnt vmcnt(0)")
        a(f"v_xor_b32 v{t0}, v{vNon}, v{tagregs[0]}")
        for r in tagregs[1:]:
            a(f"v_xor_b32 v{t1}, v{vNon}, v{r}")
            a(f"v_or_b32 v{t0}, v{t0}, v{t1}")
        a(f"v_cmp_ne_u32 vcc, 0, v{t0}")
        a(f"s_cbranch_vccz {l1}")
        a(f"s_sub_u32 s{sCnt}, s{sCnt}, 1")
        a(f"s_cmp_eq_u32 s{sCnt}, 0")
        a(f"s_cbranch_scc1 {l1}")
        a(f"s_sleep {sleep}")
        a(f"s_branch {l0}")
        a.label(l1)
    def silu(x):
        a(f"v_mul_f32 v{vt[2]}, s{sLog2e}, v{x}")
        a(f"v_exp_f32 v{vt[2]}, -v{vt[2]}")
        a.nop(1)
        a(f"v_add_f32 v{vt[2]}, 1.0, v{vt[2]}")
        a(f"v_rcp_f32 v{vt[3]}, v{vt[2]}")
        a.nop(1)
        a(f"v_mul_f32 v{vt[4]}, v{x}, v{vt[3]}")
        a(f"v_fma_f32 v{vt[5]}, -v{vt[4]}, v{vt[2]}, v{x}")
        a(f"v_fma_f32 v{x}, v{vt[5]}, v{vt[3]}, v{vt[4]}")
        a(f"v_cmp_eq_f32 vcc, 0x7f800000, v{vt[2]}")
        a.nop(2)
        a(f"v_cndmask_b32 v{x}, v{x}, v{vt[4]}, vcc")
        bf16_round(a, x, x)
    def combine(n, mreg, lreg, oreg, M, Lr, Or):
        a(f"v_max3_f32 v{M}, v{mreg[0]}, v{mreg[1]}, v{mreg[2]}")
        k = 3
        while k < n:
            if k + 1 < n:
                a(f"v_max3_f32 v{M}, v{M}, v{mreg[k]}, v{mreg[k+1]}"); k += 2
            else:
                a(f"v_max_f32 v{M}, v{M}, v{mreg[k]}"); k += 1
        for w in range(n):
            a(f"v_sub_f32 v{mreg[w]}, v{mreg[w]}, v{M}")
        for w in range(n):
            a(f"v_exp_f32 v{mreg[w]}, v{mreg[w]}")
        a.nop(1)
        a(f"v_mul_f32 v{Lr}, v{mreg[0]}, v{lreg[0]}")
        a(f"v_mul_f32 v{Or}, v{mreg[0]}, v{oreg[0]}")
        for w in range(1, n):
            a(f"v_fmac_f32 v{Lr}, v{mreg[w]}, v{lreg[w]}")
            a(f"v_fmac_f32 v{Or}, v{mreg[w]}, v{oreg[w]}")
    def mk(r, p, off_s=None, size=None):
        if off_s is None:
            a(f"s_mov_b32 s{r}, s{p}")
            a(f"s_and_b32 s{r+1}, s{p+1}, 0xffff")
        else:
            a(f"s_add_u32 s{r}, s{p}, s{off_s}")
            a(f"s_addc_u32 s{r+1}, s{p+1}, 0")
            a(f"s_and_b32 s{r+1}, s{r+1}, 0xffff")
        a(f"s_mov_b32 s{r+2}, {size}")
        a(f"s_mov_b32 s{r+3}, 0x20000")

    a.L.append(f"; @launch grid=(256,1,1) block=(512,1,1) lds={LDS_BYTES}")
    a.L.append('.amdgcn_target "amdgcn-amd-amdhsa--gfx950"')
    a.L.append(".text")
    a.L.append(f".globl {KNAME}")
    a.L.append(".p2align 8")
    a.L.append(f".type {KNAME},@function")
    a.label(KNAME)
    a("s_cmp_ge_u32 s2, 256")
    a("s_cbranch_scc1 L_exit")
    a("s_load_dwordx16 s[4:19], s[0:1], 0")
    a("s_load_dwordx8 s[20:27], s[0:1], 64")
    a(f"s_memrealtime s[{sT64}:{sT64+1}]")
    a(f"v_and_b32 v{vL}, 63, v0")
    a(f"v_lshrrev_b32 v{vt[0]}, 6, v0")
    a(f"s_lshr_b32 s{sHP}, s2, 4")
    a(f"s_and_b32 s{sJ}, s2, 15")
    a(f"v_readfirstlane_b32 s{sW}, v{vt[0]}")
    a(f"s_mov_b32 s{sWGI}, s2")
    a(f"s_lshr_b32 s{sRQ}, s{sJ}, 2")
    a(f"s_and_b32 s{sCQ}, s{sJ}, 3")
    a(f"s_mov_b32 s{sLog2e}, 0x{f32bits(1.4426950408889634):08x}")
    a(f"v_mov_b32 v{vZ}, 0")
    a(f"v_mov_b32 v{vST}, 0")
    a("s_waitcnt lgkmcnt(0)")
    a(f"s_or_b32 s{sNon}, s{sT64}, 1")
    mk(rWS, sWS, size=WS_BYTES)
    if STAMP:
        a(f"s_add_u32 s96, s{sWS}, {WS_STAMP}")
        a(f"s_addc_u32 s97, s{sWS+1}, 0")
        a(f"s_and_b32 s97, s97, 0xffff")
        a(f"s_mov_b32 s98, {2048*256}")
        a(f"s_mov_b32 s99, 0x20000")
    stamp("start")
    a(f"s_cmp_ge_u32 s{sW}, 4")
    a("s_cbranch_scc1 L_helper")

    vKoff, vVoff, vM, vLs, vMt = 12, 13, 14, 15, 16
    vC = [17, 18]
    vCo = 19
    vQ = 20
    vO = 36
    vD = 68
    vP = 76
    vT = 80
    KS = [88, 120]
    VS = [152, 184, 216]
    a.c("stream wave setup")
    a(f"s_cmp_lg_u32 s{sW}, 0")
    a("s_cbranch_scc1 L_nz")
    a(f"v_lshlrev_b32 v{vt[0]}, 2, v{vL}")
    a("s_mov_b64 exec, 0xffff")
    a(f"ds_write_b32 v{vt[0]}, v{vZ} offset:{FL}")
    a("s_mov_b64 exec, -1")
    a("s_waitcnt lgkmcnt(0)")
    a.label("L_nz")
    a(f"s_mov_b32 s{sSelLo}, 0x05040100")
    a(f"s_mov_b32 s{sSelHi}, 0x07060302")
    a(f"s_mov_b32 s{sScale}, 0x{f32bits(128 ** -0.5):08x}")
    a(f"v_and_b32 v{vt[0]}, 3, v{vL}")
    a(f"v_lshlrev_b32 v{vt[0]}, 10, v{vt[0]}")
    a(f"v_bfe_u32 v{vt[1]}, v{vL}, 2, 2")
    a(f"v_lshlrev_b32 v{vt[1]}, 8, v{vt[1]}")
    a(f"v_lshrrev_b32 v{vt[2]}, 4, v{vL}")
    a(f"v_lshlrev_b32 v{vt[2]}, 4, v{vt[2]}")
    a(f"v_add3_u32 v{vKoff}, v{vt[0]}, v{vt[1]}, v{vt[2]}")
    a(f"v_lshlrev_b32 v{vVoff}, 4, v{vL}")
    a(f"s_lshl_b32 s{sTmp}, s{sHP}, 24")
    mk(rK, sK, sTmp, size=1 << 24)
    mk(rV, sV, sTmp, size=1 << 24)
    a(f"s_lshl_b32 s{sStat}, s{sJ}, 20")
    a(f"s_lshl_b32 s{sTmp}, s{sW}, 12")
    a(f"s_add_u32 s{sStat}, s{sStat}, s{sTmp}")
    sCl = [36, 37]
    sCA = 38
    a(f"s_lshl_b32 s{sTmp}, s{sHP}, 7")
    a(f"s_add_u32 s{sTmp}, s{sTmp}, {WS_CNT}")
    a(f"s_add_u32 s{sCA}, s{sWS}, s{sTmp}")
    a(f"s_addc_u32 s{sCA+1}, s{sWS+1}, 0")
    a(f"s_mov_b32 s{sCl[0]}, 0")
    a(f"s_mov_b32 s{sCl[1]}, 0")
    a("s_barrier")
    def stream_body(sfx, KP, VP):
        def Kload(slot, t, i, sb):
            return f"buffer_load_dwordx4 {vr(slot+16*t+4*i,4)}, v{vKoff}, {srd(rK)}, s{sb} offen offset:{i*64}{KP}"
        def Vload(slot, t, r, sb):
            return f"buffer_load_dwordx4 {vr(slot+16*t+4*r,4)}, v{vVoff}, {srd(rV)}, s{sb} offen offset:{r*1024}{VP}"
        NOCL = 1
        for g in range(2):
            a(f"s_mov_b32 s{sB[g]}, s{sStat}")
            a(f"s_add_u32 s{sOff}, s{sStat}, 16384")
            for t in range(2):
                for i in range(4):
                    a(Kload(KS[g], t, i, sB[g] if t == 0 else sOff))
            for t in range(2):
                for r in range(4):
                    a(Vload(VS[g], t, r, sB[g] if t == 0 else sOff))
            a(f"s_add_u32 s{sStat}, s{sStat}, 32768")
        a(f"s_mov_b32 s{sLeft}, {NS-2}")
        if not opts.get("noq"): spin_lds(F_NON, 1, vNon)
        a(f"v_and_b32 v{vt[0]}, 1, v{vL}")
        a(f"v_lshlrev_b32 v{vt[0]}, 8, v{vt[0]}")
        a(f"v_lshrrev_b32 v{vt[1]}, 4, v{vL}")
        a(f"v_lshl_add_u32 v{vt[0]}, v{vt[1]}, 4, v{vt[0]}")
        for i in range(4):
            a(f"ds_read_b128 {vr(vQ+4*i,4)}, v{vt[0]} offset:{QB + i*64}")
        a(f"v_mov_b32 v{vM}, 0xff800000")
        a(f"v_mov_b32 v{vMt}, 0xff800000")
        a(f"v_mov_b32 v{vLs}, 0")
        for i in range(32):
            a(f"v_mov_b32 v{vO+i}, 0")
        a("s_waitcnt lgkmcnt(0)")
        stamp("q_ready") if (sfx == "" or not STAMP) else (stn.__setitem__(0, stn[0]-1), names.pop(), stamp("q_ready"))
        d = [vD + i for i in range(8)]
        a.label(f"L_loop{sfx}")
        for u in range(6):
            a.c(f"==== unrolled group {u} ====")
            ks = KS[u % 2]
            vs = VS[u % 3]
            vsn = VS[(u + 2) % 3]
            b0, b2 = sB[u % 3], sB[(u + 2) % 3]
            cs = sCl[u % 2]
            a(f"s_cmp_ge_u32 s{b0}, {OOB}")
            a("s_cbranch_scc1 L_sdone")
            a(f"s_waitcnt vmcnt({28 if NOCL else 29})")
            for i in range(4):
                cin = "0" if i == 0 else vr(vD, 4)
                a(f"v_mfma_f32_16x16x32_bf16 {vr(vD,4)}, {vr(ks+4*i,4)}, {vr(vQ+4*i,4)}, {cin}")
            a("s_waitcnt lgkmcnt(0)")
            a(f"s_mov_b32 s{sTmp}, s{cs}")
            NT = max(4 * (32 - NS), 1)
            assert NT & (NT - 1) == 0
            if opts.get("porder", 1) == 1:
                a(f"s_lshr_b32 s{sA0}, s{sTmp}, {NT.bit_length()-1}")
                a(f"s_lshl_b32 s{sA0}, s{sA0}, 20")
                a(f"s_and_b32 s{sA1}, s{sTmp}, {NT-1}")
            else:
                a(f"s_and_b32 s{sA0}, s{sTmp}, 15")
                a(f"s_lshl_b32 s{sA0}, s{sA0}, 20")
                a(f"s_lshr_b32 s{sA1}, s{sTmp}, 4")
            a(f"s_and_b32 s{sOff}, s{sA1}, 3")
            a(f"s_lshr_b32 s{sA1}, s{sA1}, 2")
            a(f"s_lshl_b32 s{sA1}, s{sA1}, 3")
            a(f"s_add_u32 s{sA1}, s{sA1}, s{sOff}")
            a(f"s_add_u32 s{sA1}, s{sA1}, {NS*8}")
            a(f"s_lshl_b32 s{sA1}, s{sA1}, 12")
            a(f"s_add_u32 s{sA0}, s{sA0}, s{sA1}")
            a(f"s_cmp_lt_u32 s{sTmp}, {NPOOL}")
            a(f"s_cselect_b32 s{sA0}, s{sA0}, {OOB}")
            a(f"s_cmp_gt_i32 s{sLeft}, 0")
            a(f"s_cselect_b32 s{b2}, s{sStat}, s{sA0}")
            a(f"s_add_u32 s{sStat}, s{sStat}, 32768")
            a(f"s_sub_u32 s{sLeft}, s{sLeft}, 1")
            a(f"s_add_u32 s{sOff}, s{b2}, 16384")
            lk = a.newlabel("ncl")
            a(f"s_cmp_lt_i32 s{sLeft}, 2")
            a(f"s_cbranch_scc0 {lk}")
            a(f"s_mov_b32 s{cs}, 1")
            a(f"s_atomic_add s{cs}, s[{sCA}:{sCA+1}], 0x0 glc")
            a.label(lk)
            a(f"s_waitcnt vmcnt({24 if NOCL else 25})")
            for i in range(4):
                cin = "0" if i == 0 else vr(vD + 4, 4)
                a(f"v_mfma_f32_16x16x32_bf16 {vr(vD+4,4)}, {vr(ks+16+4*i,4)}, {vr(vQ+4*i,4)}, {cin}")
            a.nop(4)
            S = []
            tt = vt
            for k in range(4):
                S.append(f"v_cvt_pk_bf16_f32 v{tt[k]}, v{d[2*k]}, v{d[2*k+1]}")
            for k in range(4):
                S.append(f"v_lshlrev_b32 v{d[2*k]}, 16, v{tt[k]}")
                S.append(f"v_and_b32 v{d[2*k+1]}, 0xffff0000, v{tt[k]}")
            for k in range(8):
                S.append(f"v_mul_f32 v{d[k]}, s{sScale}, v{d[k]}")
            for k in range(4):
                S.append(f"v_cvt_pk_bf16_f32 v{tt[k]}, v{d[2*k]}, v{d[2*k+1]}")
            for k in range(4):
                S.append(f"v_lshlrev_b32 v{d[2*k]}, 16, v{tt[k]}")
                S.append(f"v_and_b32 v{d[2*k+1]}, 0xffff0000, v{tt[k]}")
            mx = tt[4]
            S.append(f"v_max3_f32 v{mx}, v{d[0]}, v{d[1]}, v{d[2]}")
            S.append(f"v_max3_f32 v{mx}, v{mx}, v{d[3]}, v{d[4]}")
            S.append(f"v_max3_f32 v{mx}, v{mx}, v{d[5]}, v{d[6]}")
            S.append(f"v_max3_f32 v{mx}, v{mx}, v{d[7]}, v{vM}")
            for sw in ("v_permlane32_swap_b32", "v_permlane16_swap_b32"):
                S.append(f"v_mov_b32 v{tt[5]}, v{mx}")
                S.append("s_nop 1")
                S.append(f"{sw} v{mx}, v{tt[5]}")
                S.append("s_nop 0")
                S.append(f"v_max_f32 v{mx}, v{mx}, v{tt[5]}")
            S.append(f"v_mul_f32 v{tt[5]}, s{sLog2e}, v{mx}")
            al = tt[6]
            S.append(f"v_sub_f32 v{al}, v{vMt}, v{tt[5]}")
            S.append(f"v_exp_f32 v{al}, v{al}")
            S.append(f"v_mov_b32 v{vM}, v{mx}")
            S.append(f"v_mov_b32 v{vMt}, v{tt[5]}")
            for k in range(8):
                S.append(f"v_fma_f32 v{d[k]}, v{d[k]}, s{sLog2e}, -v{vMt}")
            for k in range(8):
                S.append(f"v_exp_f32 v{d[k]}, v{d[k]}")
            S.append(f"v_readlane_b32 s{sA0}, v{al}, 0")
            S.append(f"v_readlane_b32 s{sA1}, v{al}, 1")
            S.append(f"v_mul_f32 v{vLs}, v{vLs}, v{al}")
            for k in range(4):
                S.append(f"v_cvt_pk_bf16_f32 v{vP+k}, v{d[2*k]}, v{d[2*k+1]}")
            for k in range(8):
                S.append(f"v_add_f32 v{vLs}, v{vLs}, v{d[k]}")
            for i in range(8):
                S.append(f"v_mul_f32 v{vO+4*i}, s{sA0}, v{vO+4*i}")
                S.append(f"v_mul_f32 v{vO+4*i+1}, s{sA1}, v{vO+4*i+1}")
            KL = [Kload(ks, t, i, b2 if t == 0 else sOff) for t in range(2) for i in range(4)]
            a(KL[0]); a(KL[1])
            a.nop(3)
            if opts.get("nosm"): S = S[:8]
            step = max(1, len(S) // 7)
            if opts.get("burst"): step = 1
            kq = 2
            for n, ins in enumerate(S):
                a(ins)
                if (n + 1) % step == 0 and kq < 8:
                    a(KL[kq]); kq += 1
            while kq < 8:
                a(KL[kq]); kq += 1
            a(f"s_waitcnt vmcnt({24 if NOCL else 26})")
            VL = [Vload(vsn, t, r, b2 if t == 0 else sOff) for t in range(2) for r in range(4)]
            def perms(i):
                dd, b = i >> 1, i & 1
                sel = sSelHi if b else sSelLo
                for p in range(4):
                    lo = vs + 4 * (2 * p) + dd
                    hi = vs + 4 * (2 * p + 1) + dd
                    a(f"v_perm_b32 v{vT + 4*(i%2) + p}, v{hi}, v{lo}, s{sel}")
            if not opts.get("nopv"): perms(0)
            for i in range(8):
                if opts.get("nopv"):
                    a(VL[i]); continue
                if i + 1 < 8:
                    perms(i + 1)
                else:
                    a.nop(2)
                a(f"v_mfma_f32_16x16x32_bf16 {vr(vO+4*i,4)}, {vr(vP,4)}, {vr(vT+4*(i%2),4)}, {vr(vO+4*i,4)}")
                a(VL[i])
        a(f"v_mov_b32 v{vt[9]}, 1")
        a("s_mov_b64 exec, 1")
        a(f"ds_add_u32 v{vZ}, v{vt[9]} offset:{F_PROG}")
        a("s_mov_b64 exec, -1")
        a(f"s_branch L_loop{sfx}")

    VH0 = opts.get("vh0", 16)
    KH0 = opts.get("kh0", 16)
    if VH0 < 16:
        a(f"s_cmp_ge_u32 s{sHP}, {VH0}")
        a("s_cbranch_scc1 L_streamB")
    stream_body("", " nt", " nt")
    if VH0 < 16:
        a.label("L_streamB")
        if KH0 < 16:
            a(f"s_cmp_ge_u32 s{sHP}, {KH0}")
            a("s_cbranch_scc1 L_streamC")
        stream_body("B", " nt", "")
        if KH0 < 16:
            a.label("L_streamC")
            stream_body("C", "", "")
    a.label("L_sdone")
    stamp("s_done")
    a.c("stream wave: write partial to LDS")
    cross_rows(a, "add", vLs, vt[0])
    a.nop(8)
    a(f"s_mul_i32 s{sTmp}, s{sW}, {CSTR}")
    a(f"v_lshlrev_b32 v{vt[0]}, 5, v{vL}")
    a(f"v_add_u32 v{vt[0]}, s{sTmp}, v{vt[0]}")
    a(f"v_add_u32 v{vt[0]}, {COMB}, v{vt[0]}")
    a(f"v_lshlrev_b32 v{vt[1]}, 2, v{vL}")
    a(f"v_add_u32 v{vt[1]}, s{sTmp}, v{vt[1]}")
    a("s_mov_b64 exec, 0xffff")
    for h in range(2):
        for i in range(0, 8, 2):
            a(f"ds_write2_b32 v{vt[0]}, v{vO+4*i+h}, v{vO+4*(i+1)+h} offset0:{h*128+i} offset1:{h*128+i+1}")
    a("s_mov_b64 exec, 3")
    a(f"ds_write_b32 v{vt[1]}, v{vMt} offset:{COMB+1024}")
    a(f"ds_write_b32 v{vt[1]}, v{vLs} offset:{COMB+1032}")
    a("s_mov_b64 exec, -1")
    lds_arrive(F_SCNT, vt[2])
    a("s_branch L_end")

    a.label("L_helper")
    a.c("helper setup")
    a("s_setprio 3")
    sHW = sB[0]
    a(f"s_sub_u32 s{sHW}, s{sW}, 4")
    mk(rX, sX, size=1152)
    mk(rWQ, sWQ, size=576 * 8192)
    mk(rDBG, sDBG, size=256)
    hX = 16
    hW = 28
    hF = 48
    hA = 60
    hR = 76
    if opts.get("h0"):
        a("s_barrier"); a("s_branch L_end")
    a(f"s_cmp_eq_u32 s{sW}, 7")
    a("s_cbranch_scc1 L_w7start")
    a(f"v_lshlrev_b32 v{vt[3]}, 2, v{vL}")
    for j in range(5):
        a(f"buffer_load_dword v{hX+j}, v{vt[3]}, {srd(rX)}, 0 offen offset:{j*256}")
    a(f"v_lshrrev_b32 v{vt[0]}, 3, v{vL}")
    a(f"s_mul_i32 s{sTmp}, s{sRQ}, 144")
    a(f"s_mul_i32 s{sTmp2}, s{sHW}, 48")
    a(f"s_add_u32 s{sTmp}, s{sTmp}, s{sTmp2}")
    a(f"v_add_u32 v{vt[1]}, s{sTmp}, v{vt[0]}")
    a(f"v_lshlrev_b32 v{vt[5]}, 2, v{vt[1]}")
    a(f"v_lshlrev_b32 v{vt[4]}, 13, v{vt[1]}")
    a(f"v_and_b32 v{vt[1]}, 7, v{vL}")
    a(f"v_lshl_add_u32 v{vt[4]}, v{vt[1]}, 4, v{vt[4]}")
    a(f"s_lshl_b32 s{sTmp}, s{sHP}, 9")
    a(f"s_lshl_b32 s{sTmp2}, s{sCQ}, 7")
    a(f"s_add_u32 s{sTmp}, s{sTmp}, s{sTmp2}")
    a(f"v_add_u32 v{vt[4]}, s{sTmp}, v{vt[4]}")
    for i in range(6):
        a(f"s_mov_b32 s{sOff}, {i*8*8192}")
        a(f"buffer_load_dwordx4 {vr(hR+4*i,4)}, v{vt[4]}, {srd(rWQ)}, s{sOff} offen{WP}")
    a("s_branch L_nononce")
    a.label("L_w7start")
    a(f"s_mov_b32 s{sB[1]}, s{sNon}")
    a(f"s_mov_b32 s{sB[2]}, 0")
    a(f"s_atomic_cmpswap s[{sB[1]}:{sB[2]}], s[{sDBG}:{sDBG+1}], 0x0 glc")
    a(f"s_cmp_lg_u32 s{sJ}, 0")
    a("s_cbranch_scc1 L_nononce")
    a("s_mov_b64 exec, 1")
    a(f"s_lshl_b32 s{sTmp}, s{sHP}, 7")
    a(f"s_add_u32 s{sTmp}, s{sTmp}, {WS_CNT}")
    a(f"buffer_store_dword v{vZ}, v{vZ}, {srd(rWS)}, s{sTmp} offen sc1")
    a("s_mov_b64 exec, -1")
    a.label("L_nononce")
    a("s_barrier")
    if opts.get("nohelp"): a("s_branch L_end")
    mk(rWG, sWG, size=576 * 9216)
    mk(rWU, sWU, size=576 * 9216)
    mk(rWO, sWO, size=4096 * 1152)
    mk(rWD, sWD, size=4608 * 1152)
    mk(rOUT, sOUT, size=1152)
    a(f"s_cmp_eq_u32 s{sW}, 7")
    a("s_cbranch_scc1 L_w7x")
    a.c("layernorm")
    a("s_waitcnt vmcnt(6)")
    stamp("x_arrived")
    xf = [hF + i for i in range(10)]
    for j in range(5):
        a(f"v_lshlrev_b32 v{xf[2*j]}, 16, v{hX+j}")
        a(f"v_and_b32 v{xf[2*j+1]}, 0xffff0000, v{hX+j}")
    s_ = vt[0]
    a(f"v_add_f32 v{s_}, v{xf[0]}, v{xf[1]}")
    for i in range(2, 10):
        a(f"v_add_f32 v{s_}, v{s_}, v{xf[i]}")
    wave_allreduce(a, "add", s_, vt[1])
    a(f"v_mul_f32 v{s_}, 0x{f32bits(1.0/576):08x}, v{s_}")
    a(f"v_cmp_gt_u32 vcc, 32, v{vL}")
    q_ = vt[2]
    a(f"v_mov_b32 v{q_}, 0")
    for i in range(10):
        a(f"v_sub_f32 v{vt[1]}, v{xf[i]}, v{s_}")
        if i >= 8:
            a(f"v_cndmask_b32 v{vt[1]}, 0, v{vt[1]}, vcc")
        a(f"v_fmac_f32 v{q_}, v{vt[1]}, v{vt[1]}")
    wave_allreduce(a, "add", q_, vt[1])
    a(f"v_mul_f32 v{q_}, 0x{f32bits(1.0/576):08x}, v{q_}")
    bf16_round(a, s_, s_)
    bf16_round(a, q_, q_)
    a(f"v_add_f32 v{q_}, 0x{f32bits(1e-5):08x}, v{q_}")
    bf16_round(a, q_, q_)
    a(f"v_sqrt_f32 v{q_}, v{q_}")
    a.nop(1)
    bf16_round(a, q_, q_)
    rc = vt[1]
    a(f"v_rcp_f32 v{rc}, v{q_}")
    a.nop(1)
    for i in range(10):
        dd = xf[i]
        a(f"v_sub_f32 v{dd}, v{dd}, v{s_}")
        bf16_round(a, dd, dd)
        a(f"v_mul_f32 v{vt[6]}, v{dd}, v{rc}")
        a(f"v_fma_f32 v{vt[7]}, -v{vt[6]}, v{q_}, v{dd}")
        a(f"v_fma_f32 v{dd}, v{vt[7]}, v{rc}, v{vt[6]}")
        bf16_round(a, dd, dd)
        if i >= 8:
            a(f"v_cndmask_b32 v{dd}, 0, v{dd}, vcc")
    a(f"v_lshlrev_b32 v{vt[0]}, 3, v{vL}")
    for j in range(5):
        a(f"ds_write_b64 v{vt[0]}, {vr(xf[2*j],2)} offset:{XN + j*512}")
    a.c("q slice")
    for i in range(6):
        a(f"ds_read_b32 v{hX+i}, v{vt[5]} offset:{XN + i*32}")
    acc = [hA + i for i in range(8)]
    a("s_waitcnt vmcnt(0) lgkmcnt(0)")
    for i in range(6):
        for dd in range(4):
            r = hR + 4 * i + dd
            a(f"v_lshlrev_b32 v{vt[0]}, 16, v{r}")
            a(f"v_and_b32 v{vt[1]}, 0xffff0000, v{r}")
            if i == 0:
                a(f"v_mul_f32 v{acc[2*dd]}, v{vt[0]}, v{hX+i}")
                a(f"v_mul_f32 v{acc[2*dd+1]}, v{vt[1]}, v{hX+i}")
            else:
                a(f"v_fmac_f32 v{acc[2*dd]}, v{vt[0]}, v{hX+i}")
                a(f"v_fmac_f32 v{acc[2*dd+1]}, v{vt[1]}, v{hX+i}")
    a.nop(2)
    for ctrl in ("row_ror:8",):
        for e in range(8):
            a(f"v_add_f32_dpp v{acc[e]}, v{acc[e]}, v{acc[e]} {ctrl} row_mask:0xf bank_mask:0xf")
    tq = [hW + i for i in range(8)]
    for sw in ("v_permlane32_swap_b32", "v_permlane16_swap_b32"):
        for e in range(8):
            a(f"v_mov_b32 v{tq[e]}, v{acc[e]}")
        for e in range(8):
            a(f"{sw} v{acc[e]}, v{tq[e]}")
        for e in range(8):
            a(f"v_add_f32 v{acc[e]}, v{acc[e]}, v{tq[e]}")
    a(f"s_lshl_b32 s{sTmp}, s{sHW}, 8")
    a(f"v_lshlrev_b32 v{vt[0]}, 5, v{vL}")
    a(f"v_add_u32 v{vt[0]}, s{sTmp}, v{vt[0]}")
    a("s_mov_b64 exec, 0xff")
    a(f"ds_write_b128 v{vt[0]}, {vr(acc[0],4)} offset:{QP}")
    a(f"ds_write_b128 v{vt[0]}, {vr(acc[4],4)} offset:{QP+16}")
    a("s_mov_b64 exec, -1")
    lds_arrive(F_QCNT, vt[2])
    stamp("qpart_done")
    a("s_branch L_xskip")
    a.label("L_w7x")
    a.c("q exchange (wave 7)")
    spin_lds(F_QCNT, 3, vt[2], sleep=0)
    a(f"v_lshlrev_b32 v{vt[0]}, 2, v{vL}")
    for w in range(3):
        a(f"ds_read_b32 v{hW+w}, v{vt[0]} offset:{QP + w*256}")
    a("s_waitcnt vmcnt(0) lgkmcnt(0)")
    a(f"s_cmp_eq_u32 s{sB[1]}, 0")
    a(f"s_cselect_b32 s{sNon}, s{sNon}, s{sB[1]}")
    for w in range(1, 3):
        a(f"v_add_f32 v{hW}, v{hW}, v{hW+w}")
    a(f"v_mov_b32 v{hW+1}, s{sNon}")
    a(f"v_mov_b32 v{vNon}, s{sNon}")
    a(f"s_lshl_b32 s{sOff}, s{sHP}, 13")
    a(f"s_add_u32 s{sOff}, s{sOff}, {WS_Q}")
    a(f"s_lshl_b32 s{sTmp}, s{sRQ}, 11")
    a(f"s_lshl_b32 s{sTmp2}, s{sCQ}, 9")
    a(f"s_add_u32 s{sTmp}, s{sTmp}, s{sTmp2}")
    a(f"s_add_u32 s{sTmp}, s{sTmp}, s{sOff}")
    a(f"v_lshlrev_b32 v{vt[0]}, 3, v{vL}")
    a(f"buffer_store_dwordx2 {vr(hW,2)}, v{vt[0]}, {srd(rWS)}, s{sTmp} offen sc1")
    stamp("x_pub")
    a(f"v_lshlrev_b32 v{vt[0]}, 4, v{vL}")
    a(f"s_add_u32 s{sTmp2}, s{sOff}, 4096")
    if opts.get("pdelay", 8): a(f"s_sleep {opts.get('pdelay', 8)}")
    ls = retry_begin()
    for k in range(8):
        a(f"buffer_load_dwordx4 {vr(hR+4*k,4)}, v{vt[0]}, {srd(rWS)}, s{sOff if k < 4 else sTmp2} offen offset:{(k%4)*1024} sc1")
    retry_end(ls, [hR + 4 * k + e for k in range(8) for e in (1, 3)], vt[1], vt[2], sleep=2)
    stamp("x_ok")
    for half in range(2):
        for e in (0, 2):
            for r4 in range(1, 4):
                a(f"v_add_f32 v{hR+4*half+e}, v{hR+4*half+e}, v{hR+4*(2*r4+half)+e}")
        a(f"v_cvt_pk_bf16_f32 v{hR+4*half}, v{hR+4*half}, v{hR+4*half+2}")
    a(f"v_lshlrev_b32 v{vt[0]}, 2, v{vL}")
    a(f"ds_write_b32 v{vt[0]}, v{hR} offset:{QB}")
    a(f"ds_write_b32 v{vt[0]}, v{hR+4} offset:{QB+256}")
    a("s_waitcnt lgkmcnt(0)")
    a(f"ds_write_b32 v{vZ}, v{vNon} offset:{F_NON}")
    a.label("L_xskip")
    if opts.get("hstop") == 1: a("s_branch L_end")
    a.c("ffn phase 1: rows 36j+9hw..+9, cols hp*288..+288 (36 lanes x 16B)")
    a(f"s_mul_i32 s{sTmp}, s{sJ}, 36")
    a(f"s_mul_i32 s{sTmp2}, s{sHW}, 9")
    a(f"s_add_u32 s{sTmp}, s{sTmp}, s{sTmp2}")
    a(f"s_lshl_b32 s{sA0}, s{sTmp}, 2")
    a(f"s_mul_i32 s{sOff}, s{sTmp}, 9216")
    a(f"s_mul_i32 s{sTmp2}, s{sHP}, 576")
    a(f"s_add_u32 s{sOff}, s{sOff}, s{sTmp2}")
    a(f"v_lshlrev_b32 v{vt[0]}, 4, v{vL}")
    a("s_mov_b32 exec_hi, 0xf")
    for r in range(9):
        a(f"buffer_load_dwordx4 {vr(hR+8*r,4)}, v{vt[0]}, {srd(rWG)}, s{sOff} offen{WP}")
        a(f"buffer_load_dwordx4 {vr(hR+8*r+4,4)}, v{vt[0]}, {srd(rWU)}, s{sOff} offen{WP}")
        a(f"s_add_u32 s{sOff}, s{sOff}, 9216")
    a("s_mov_b64 exec, -1")
    if opts.get("hstop") == 2:
        a("s_waitcnt vmcnt(0)"); a("s_branch L_end")
    hW2 = 148
    vR3, vC18, vW2o = 12, 13, 14
    a(f"v_mul_u32_u24 v{vR3}, 57, v{vL}")
    a(f"v_lshrrev_b32 v{vR3}, 10, v{vR3}")
    a(f"v_mul_u32_u24 v{vC18}, 18, v{vR3}")
    a(f"v_sub_u32 v{vC18}, v{vL}, v{vC18}")
    a(f"s_mul_i32 s{sTmp}, s{sHW}, 3")
    a(f"v_add_u32 v{vR3}, s{sTmp}, v{vR3}")
    a(f"s_mov_b32 s{sTmp}, 1152")
    a(f"v_mul_lo_u32 v{vW2o}, v{vR3}, s{sTmp}")
    a(f"v_lshl_add_u32 v{vW2o}, v{vC18}, 4, v{vW2o}")
    a(f"s_mul_i32 s{sTmp}, s{sCQ}, 288")
    a(f"v_add_u32 v{vW2o}, s{sTmp}, v{vW2o}")
    a(f"s_lshl_b32 s{sTmp}, s{sHP}, 2")
    a(f"s_add_u32 s{sTmp}, s{sTmp}, s{sRQ}")
    a(f"s_mul_i32 s{sOff}, s{sTmp}, {64*1152}")
    a(f"s_mul_i32 s{sA1}, s{sTmp}, {72*1152}")
    for i in range(6):
        a(f"v_add_u32 v{vt[1]}, {12*i}, v{vR3}")
        a(f"v_cmp_gt_u32 vcc, 64, v{vt[1]}")
        a(f"s_mov_b32 s{sEx}, -1")
        a(f"s_mov_b32 s{sEx+1}, 0x3fffff")
        a(f"s_and_b64 vcc, vcc, s[{sEx}:{sEx+1}]")
        for e in range(4):
            a(f"v_mov_b32 v{hW2+4*i+e}, 0")
        a("s_mov_b64 exec, vcc")
        lk = a.newlabel("w2s")
        a(f"s_cbranch_execz {lk}")
        a(f"buffer_load_dwordx4 {vr(hW2+4*i,4)}, v{vW2o}, {srd(rWO)}, s{sOff} offen{WP}")
        a.label(lk)
        a("s_mov_b64 exec, -1")
        a(f"s_add_u32 s{sOff}, s{sOff}, {12*1152}")
    for i in range(6):
        for e in range(4):
            a(f"v_mov_b32 v{hW2+24+4*i+e}, 0")
    a("s_mov_b32 exec_hi, 0x3fffff")
    for i in range(6):
        a(f"buffer_load_dwordx4 {vr(hW2+24+4*i,4)}, v{vW2o}, {srd(rWD)}, s{sA1} offen{WP}")
        a(f"s_add_u32 s{sA1}, s{sA1}, {12*1152}")
    a("s_mov_b64 exec, -1")
    a(f"v_mov_b32 v{vt[1]}, s{sA0}")
    for r in range(9):
        a(f"ds_read_b32 v{hX+r}, v{vt[1]} offset:{XN + r*4}")
    xr = [hX + r for r in range(9)]
    fac = [hA + i for i in range(16)]
    a("s_waitcnt vmcnt(6) lgkmcnt(0)")
    a("s_waitcnt vmcnt(0)") if opts.get("safe_ffn", 1) else None
    for r in range(9):
        for mt in range(2):
            for dd in range(4):
                rg = hR + 8 * r + 4 * mt + dd
                a(f"v_lshlrev_b32 v{vt[2]}, 16, v{rg}")
                a(f"v_and_b32 v{vt[3]}, 0xffff0000, v{rg}")
                if r == 0:
                    a(f"v_mul_f32 v{fac[8*mt+2*dd]}, v{vt[2]}, v{xr[r]}")
                    a(f"v_mul_f32 v{fac[8*mt+2*dd+1]}, v{vt[3]}, v{xr[r]}")
                else:
                    a(f"v_fmac_f32 v{fac[8*mt+2*dd]}, v{vt[2]}, v{xr[r]}")
                    a(f"v_fmac_f32 v{fac[8*mt+2*dd+1]}, v{vt[3]}, v{xr[r]}")
    a(f"s_mul_i32 s{sTmp}, s{sHW}, 2304")
    a(f"v_lshlrev_b32 v{vt[0]}, 5, v{vL}")
    a(f"v_add_u32 v{vt[0]}, s{sTmp}, v{vt[0]}")
    a("s_mov_b32 exec_hi, 0xf")
    for mt in range(2):
        a(f"ds_write_b128 v{vt[0]}, {vr(fac[8*mt],4)} offset:{FFP + mt*1152}")
        a(f"ds_write_b128 v{vt[0]}, {vr(fac[8*mt+4],4)} offset:{FFP + mt*1152 + 16}")
    a("s_mov_b64 exec, -1")
    lds_arrive(F_FCNT, vt[2], ret=True)
    a(f"s_mov_b32 s{sA0}, s{sTmp}")
    stamp("ffn1_done")
    if opts.get("hstop") == 3: a("s_branch L_end")
    spin_lds(F_NON, 1, vNon)
    a(f"s_mov_b32 s{sNon}, s{sTmp}")
    a(f"s_cmp_lg_u32 s{sA0}, 3")
    a("s_cbranch_scc1 L_fpskip")
    a.c("last arriver: sum 4 partials and publish 576 granules")
    a(f"v_lshlrev_b32 v{vt[0]}, 2, v{vL}")
    for k in range(9):
        for w in range(4):
            a(f"ds_read_b32 v{hR+4*k+w}, v{vt[0]} offset:{FFP + w*2304 + k*256}")
    a(f"s_mul_i32 s{sOff}, s{sWGI}, 4608")
    a(f"s_add_u32 s{sOff}, s{sOff}, {WS_FP}")
    a(f"v_lshlrev_b32 v{vt[0]}, 3, v{vL}")
    a("s_waitcnt lgkmcnt(0)")
    for k in range(9):
        a(f"v_add_f32 v{hR+4*k}, v{hR+4*k}, v{hR+4*k+1}")
        a(f"v_add_f32 v{hR+4*k+2}, v{hR+4*k+2}, v{hR+4*k+3}")
        a(f"v_add_f32 v{hR+4*k}, v{hR+4*k}, v{hR+4*k+2}")
        a(f"v_mov_b32 v{hR+4*k+1}, v{vNon}")
        if k == 8:
            a(f"s_add_u32 s{sOff}, s{sOff}, 4096")
        a(f"buffer_store_dwordx2 {vr(hR+4*k,2)}, v{vt[0]}, {srd(rWS)}, s{sOff} offen offset:{(k%8)*512} sc1")
    a.label("L_fpskip")
    a(f"s_setprio {opts.get('hprio', 1)}")
    a(f"s_cmp_lg_u32 s{sW}, 4")
    a("s_cbranch_scc1 L_rsskip")
    a.c("ffn reduce-scatter")
    a(f"v_cmp_le_u32 vcc, 18, v{vL}")
    a(f"v_mov_b32 v{vt[1]}, {2304-144}")
    a.nop(1)
    a(f"v_cndmask_b32 v{vt[1]}, 0, v{vt[1]}, vcc")
    a(f"v_lshl_add_u32 v{vt[0]}, v{vL}, 3, v{vt[1]}")
    a(f"s_mul_i32 s{sTmp}, s{sJ}, 144")
    a(f"v_add_u32 v{vt[0]}, s{sTmp}, v{vt[0]}")
    spin_lds(F_PROG, opts.get("g1", 4), vt[2], sleep=32)
    a("s_mov_b32 exec_hi, 0xf")
    ls = retry_begin()
    a(f"s_mul_i32 s{sOff}, s{sHP}, {16*4608}")
    a(f"s_add_u32 s{sOff}, s{sOff}, {WS_FP}")
    for p in range(16):
        a(f"buffer_load_dwordx2 {vr(hR+2*p,2)}, v{vt[0]}, {srd(rWS)}, s{sOff} offen sc1")
        a(f"s_add_u32 s{sOff}, s{sOff}, 4608")
    retry_end(ls, [hR + 2 * p + 1 for p in range(16)], vt[1], vt[2], sleep=32)
    for p in range(1, 16):
        a(f"v_add_f32 v{hR}, v{hR}, v{hR+2*p}")
    a("s_mov_b64 exec, -1")
    bf16_round(a, hR, hR)
    a(f"v_add_u32 v{vt[0]}, 18, v{vL}")
    a(f"v_lshlrev_b32 v{vt[0]}, 2, v{vt[0]}")
    a(f"v_and_b32 v{vt[0]}, 0xff, v{vt[0]}")
    a(f"ds_bpermute_b32 v{hR+1}, v{vt[0]}, v{hR}")
    silu(hR)
    a("s_waitcnt lgkmcnt(0)")
    a(f"v_mul_f32 v{hR}, v{hR}, v{hR+1}")
    bf16_round(a, hR, hR)
    a(f"v_mov_b32 v{hR+1}, v{vNon}")
    a(f"s_mul_i32 s{sOff}, s{sWGI}, 144")
    a(f"s_add_u32 s{sOff}, s{sOff}, {WS_HB}")
    a(f"v_lshlrev_b32 v{vt[0]}, 3, v{vL}")
    a("s_mov_b64 exec, 0x3ffff")
    a(f"buffer_store_dwordx2 {vr(hR,2)}, v{vt[0]}, {srd(rWS)}, s{sOff} offen sc1")
    a("s_mov_b64 exec, -1")
    stamp("h_pub")
    a.c("all-gather h[hp*288 + rq*72 ..+72] -> LDS INH (wave 4)")
    a(f"s_lshl_b32 s{sTmp}, s{sHP}, 2")
    a(f"s_add_u32 s{sTmp}, s{sTmp}, s{sRQ}")
    a(f"s_mul_i32 s{sOff}, s{sTmp}, 576")
    a(f"s_add_u32 s{sOff}, s{sOff}, {WS_HB}")
    a(f"v_lshlrev_b32 v{vt[0]}, 4, v{vL}")
    spin_lds(F_PROG, opts.get("g2", 7), vt[2], sleep=32)
    a("s_mov_b32 exec_hi, 0xf")
    ls = retry_begin()
    a(f"buffer_load_dwordx4 {vr(hR,4)}, v{vt[0]}, {srd(rWS)}, s{sOff} offen sc1")
    retry_end(ls, [hR + 1, hR + 3], vt[1], vt[2], sleep=32)
    a(f"v_mov_b32 v{hR+1}, v{hR+2}")
    a(f"v_lshlrev_b32 v{vt[0]}, 3, v{vL}")
    a(f"ds_write_b64 v{vt[0]}, {vr(hR,2)} offset:{INH}")
    a("s_mov_b64 exec, -1")
    lds_arrive(F_H, vt[2])
    a.label("L_rsskip")

    def slice_matmul(inaddr, wbase, fin, cnt_flag, wsbase, tagname):
        a(f"v_lshlrev_b32 v{vt[0]}, 2, v{vR3}")
        for i in range(6):
            a(f"ds_read_b32 v{hX+i}, v{vt[0]} offset:{inaddr + i*48}")
        a("s_waitcnt lgkmcnt(0)")
        fa = [hA + e for e in range(8)]
        for i in range(6):
            for dd in range(4):
                rg = wbase + 4 * i + dd
                a(f"v_lshlrev_b32 v{vt[2]}, 16, v{rg}")
                a(f"v_and_b32 v{vt[3]}, 0xffff0000, v{rg}")
                if i == 0:
                    a(f"v_mul_f32 v{fa[2*dd]}, v{vt[2]}, v{hX+i}")
                    a(f"v_mul_f32 v{fa[2*dd+1]}, v{vt[3]}, v{hX+i}")
                else:
                    a(f"v_fmac_f32 v{fa[2*dd]}, v{vt[2]}, v{hX+i}")
                    a(f"v_fmac_f32 v{fa[2*dd+1]}, v{vt[3]}, v{hX+i}")
        a(f"s_lshl_b32 s{sTmp}, s{sHW}, 11")
        a(f"v_lshlrev_b32 v{vt[0]}, 5, v{vL}")
        a(f"v_add_u32 v{vt[0]}, s{sTmp}, v{vt[0]}")
        a(f"ds_write_b128 v{vt[0]}, {vr(fa[0],4)} offset:{fin}")
        a(f"ds_write_b128 v{vt[0]}, {vr(fa[4],4)} offset:{fin+16}")
        lds_arrive(cnt_flag, vt[2], ret=True)
        lk = a.newlabel("sm")
        a(f"s_cmp_lg_u32 s{sTmp}, 3")
        a(f"s_cbranch_scc1 {lk}")
        a(f"v_lshlrev_b32 v{vt[0]}, 2, v{vL}")
        for k in range(3):
            for w in range(4):
                for r3 in range(3):
                    a(f"ds_read_b32 v{hR+12*k+3*w+r3}, v{vt[0]} offset:{fin + w*2048 + r3*576 + k*256}")
        a(f"s_lshl_b32 s{sTmp}, s{sHP}, 2")
        a(f"s_add_u32 s{sTmp}, s{sTmp}, s{sRQ}")
        a(f"s_lshl_b32 s{sOff}, s{sCQ}, 6")
        a(f"s_add_u32 s{sOff}, s{sOff}, s{sTmp}")
        a(f"s_mul_i32 s{sOff}, s{sOff}, 1152")
        a(f"s_add_u32 s{sOff}, s{sOff}, {wsbase}")
        a(f"v_lshlrev_b32 v{vt[0]}, 3, v{vL}")
        a("s_waitcnt lgkmcnt(0)")
        for k in range(3):
            for q in range(1, 12):
                a(f"v_add_f32 v{hR+12*k}, v{hR+12*k}, v{hR+12*k+q}")
            a(f"v_mov_b32 v{hR+12*k+1}, v{vNon}")
            if k == 2:
                a("s_mov_b64 exec, 0xffff")
            a(f"buffer_store_dwordx2 {vr(hR+12*k,2)}, v{vt[0]}, {srd(rWS)}, s{sOff} offen offset:{k*512} sc1")
        a("s_mov_b64 exec, -1")
        stamp(tagname)
        a.label(lk)

    def fin_gather(wsbase, dst, cntflag, sleep):
        a(f"s_mul_i32 s{sTmp}, s{sHW}, 3")
        a(f"v_subrev_u32 v{vt[4]}, s{sTmp}, v{vR3}")
        a(f"s_mov_b32 s{sTmp}, 1152")
        a(f"v_mul_lo_u32 v{vt[0]}, v{vt[4]}, s{sTmp}")
        a(f"v_lshl_add_u32 v{vt[0]}, v{vC18}, 4, v{vt[0]}")
        a(f"s_lshr_b32 s{sTmp}, s{sJ}, 2")
        a(f"s_lshl_b32 s{sTmp}, s{sTmp}, 6")
        a(f"s_lshl_b32 s{sTmp2}, s{sHW}, 4")
        a(f"s_add_u32 s{sTmp}, s{sTmp}, s{sTmp2}")
        a(f"s_mul_i32 s{sA0}, s{sTmp}, 1152")
        a(f"s_and_b32 s{sTmp}, s{sJ}, 3")
        a(f"s_mul_i32 s{sTmp}, s{sTmp}, 288")
        a(f"s_add_u32 s{sA0}, s{sA0}, s{sTmp}")
        a(f"s_add_u32 s{sA0}, s{sA0}, {wsbase}")
        a(f"v_mov_b32 v{hR+20}, 0")
        a(f"v_mov_b32 v{hR+21}, v{vNon}")
        a(f"v_mov_b32 v{hR+22}, 0")
        a(f"v_mov_b32 v{hR+23}, v{vNon}")
        a("s_mov_b32 exec_hi, 0x3fffff")
        ls = retry_begin()
        a(f"s_mov_b32 s{sOff}, s{sA0}")
        for i in range(6):
            if i == 5:
                a("s_mov_b64 exec, 0x3ffff")
            a(f"buffer_load_dwordx4 {vr(hR+4*i,4)}, v{vt[0]}, {srd(rWS)}, s{sOff} offen sc1")
            a(f"s_add_u32 s{sOff}, s{sOff}, {3*1152}")
        a("s_mov_b32 exec_lo, -1")
        a("s_mov_b32 exec_hi, 0x3fffff")
        retry_end(ls, [hR + 4 * i + e for i in range(6) for e in (1, 3)], vt[1], vt[2], sleep=sleep)
        for i in range(1, 6):
            a(f"v_add_f32 v{hR}, v{hR}, v{hR+4*i}")
            a(f"v_add_f32 v{hR+2}, v{hR+2}, v{hR+4*i+2}")
        a(f"v_mov_b32 v{hR+1}, v{hR+2}")
        a(f"s_lshl_b32 s{sTmp}, s{sHW}, 9")
        a(f"v_lshlrev_b32 v{vt[0]}, 3, v{vL}")
        a(f"v_add_u32 v{vt[0]}, s{sTmp}, v{vt[0]}")
        a(f"ds_write_b64 v{vt[0]}, {vr(hR,2)} offset:{dst}")
        a("s_mov_b64 exec, -1")
        lds_arrive(cntflag, vt[2], ret=True)

    a.c("y-part matmul")
    spin_lds(F_H, 1, vt[2], sleep=32)
    slice_matmul(INH, hW2 + 24, FIN2, F_YCNT, WS_Y2, "y_pub")
    a(f"v_lshlrev_b32 v{vt[0]}, 2, v{vL}")
    a(f"ds_write_b32 v{vt[0]}, v{vZ} offset:{INO+256}")
    a(f"s_cmp_lg_u32 s{sHP}, s{sJ}")
    a("s_cbranch_scc1 L_noyg")
    spin_lds(F_PROG, opts.get("g3", 11), vt[2], sleep=32)
    fin_gather(WS_Y2, G2 + 2048, F_Y2CNT, 64)
    a.label("L_noyg")
    stamp("h_idle")
    if opts.get("hstop") == 4: a("s_branch L_end")
    a.c("wg combine")
    spin_lds(F_SCNT, 4, vt[2], sleep=opts.get("hsleep", 2))
    a("s_setprio 3")
    if opts.get("dbgstamp"):
        a(f"s_cmp_lg_u32 s{sW}, 5")
        a("s_cbranch_scc1 L_dbs1")
        a(f"s_cmp_ge_u32 s2, 9")
        a("s_cbranch_scc1 L_dbs1")
        a(f"s_memrealtime s[{sT64}:{sT64+1}]")
        a("s_waitcnt lgkmcnt(0)")
        a(f"s_sub_u32 s{sTmp}, s{sT64}, s{sNon}")
        a(f"v_mov_b32 v{vt[0]}, s{sTmp}")
        a(f"s_lshl_b32 s{sTmp}, s2, 2")
        a(f"s_add_u32 s{sTmp}, s{sTmp}, 28")
        a("s_mov_b64 exec, 1")
        a(f"buffer_store_dword v{vt[0]}, v{vZ}, {srd(rDBG)}, s{sTmp} offen")
        a("s_mov_b64 exec, -1")
        a.label("L_dbs1")
    stamp("s_all")
    a(f"v_and_b32 v{vt[5]}, 255, v0")
    a(f"v_lshlrev_b32 v{vt[0]}, 2, v{vt[5]}")
    a(f"v_lshrrev_b32 v{vt[1]}, 7, v{vt[5]}")
    a(f"v_lshlrev_b32 v{vt[1]}, 2, v{vt[1]}")
    mreg = [hR + i for i in range(4)]
    lreg = [hR + 4 + i for i in range(4)]
    oreg = [hR + 8 + i for i in range(4)]
    for w in range(4):
        a(f"ds_read_b32 v{mreg[w]}, v{vt[1]} offset:{COMB + w*CSTR + 1024}")
        a(f"ds_read_b32 v{lreg[w]}, v{vt[1]} offset:{COMB + w*CSTR + 1032}")
        a(f"ds_read_b32 v{oreg[w]}, v{vt[0]} offset:{COMB + w*CSTR}")
    a("s_waitcnt lgkmcnt(0)")
    M, Lr, Or = hA + 8, hA + 10, hA + 12
    combine(4, mreg, lreg, oreg, M, Lr, Or)
    a(f"v_mov_b32 v{M+1}, v{vNon}")
    a(f"v_mov_b32 v{Lr+1}, v{vNon}")
    a(f"v_mov_b32 v{Or+1}, v{vNon}")
    a(f"s_mul_i32 s{sOff}, s{sWGI}, {PSTR}")
    a(f"v_lshlrev_b32 v{vt[0]}, 3, v{vt[5]}")
    a(f"buffer_store_dwordx2 {vr(Or,2)}, v{vt[0]}, {srd(rWS)}, s{sOff} offen sc1")
    a(f"v_lshlrev_b32 v{vt[1]}, 2, v{vt[1]}")
    a(f"s_and_b32 s{sTmp}, s{sHW}, 1")
    a(f"s_cmp_lg_u32 s{sTmp}, 0")
    a("s_cbranch_scc1 L_mlskip")
    a("s_mov_b64 exec, 1")
    a(f"buffer_store_dwordx4 {vr(M,4)}, v{vt[1]}, {srd(rWS)}, s{sOff} offen offset:2048 sc1")
    a("s_mov_b64 exec, -1")
    a.label("L_mlskip")
    stamp("published")
    a(f"s_cmp_lg_u32 s{sW}, 4")
    a("s_cbranch_scc1 L_l1skip")
    a.c("level-1 poll")
    a(f"v_and_b32 v{vt[0]}, 15, v{vL}")
    a(f"v_mul_u32_u24 v{vt[0]}, {PSTR}, v{vt[0]}")
    a(f"s_lshr_b32 s{sTmp}, s{sRQ}, 1")
    a(f"s_lshl_b32 s{sTmp}, s{sTmp}, 4")
    a(f"s_mul_i32 s{sA0}, s{sHP}, {16*PSTR}")
    a(f"s_add_u32 s{sA1}, s{sA0}, s{sTmp}")
    a("s_mov_b64 exec, 0xffff")
    ls = retry_begin()
    a(f"buffer_load_dwordx4 {vr(hR,4)}, v{vt[0]}, {srd(rWS)}, s{sA1} offen offset:2048 sc1")
    retry_end(ls, [hR + 1, hR + 3], vt[1], vt[2], sleep=opts.get("sleep1", 8))
    a("s_mov_b64 exec, -1")
    stamp("polled")
    a(f"s_lshl_b32 s{sTmp}, s{sRQ}, 9")
    a(f"s_add_u32 s{sA0}, s{sA0}, s{sTmp}")
    a(f"v_lshlrev_b32 v{vt[0]}, 3, v{vL}")
    hG = hR + 8
    ls = retry_begin()
    a(f"s_mov_b32 s{sOff}, s{sA0}")
    for p in range(16):
        a(f"buffer_load_dwordx2 {vr(hG+2*p,2)}, v{vt[0]}, {srd(rWS)}, s{sOff} offen sc1")
        a(f"s_add_u32 s{sOff}, s{sOff}, {PSTR}")
    retry_end(ls, [hG + 2 * p + 1 for p in range(16)], vt[1], vt[2], sleep=2)
    mm, ll = hR + 4, hR + 5
    a(f"v_mov_b32 v{mm}, v{hR}")
    for ctrl in ("quad_perm:[1,0,3,2]", "quad_perm:[2,3,0,1]", "row_half_mirror", "row_mirror"):
        a.nop(2)
        a(f"v_max_f32_dpp v{mm}, v{mm}, v{mm} {ctrl} row_mask:0xf bank_mask:0xf")
    a(f"v_sub_f32 v{hR}, v{hR}, v{mm}")
    a(f"v_exp_f32 v{hR}, v{hR}")
    a.nop(1)
    a(f"v_mul_f32 v{ll}, v{hR}, v{hR+2}")
    for ctrl in ("quad_perm:[1,0,3,2]", "quad_perm:[2,3,0,1]", "row_half_mirror", "row_mirror"):
        a.nop(2)
        a(f"v_add_f32_dpp v{ll}, v{ll}, v{ll} {ctrl} row_mask:0xf bank_mask:0xf")
    a.nop(1)
    a(f"v_readlane_b32 s{sA1}, v{ll}, 0")
    for p in range(16):
        a(f"v_readlane_b32 s{sTmp}, v{hR}, {p}")
        a.nop(2)
        if p == 0:
            a(f"v_mul_f32 v{Or}, s{sTmp}, v{hG}")
        else:
            a(f"v_fmac_f32 v{Or}, s{sTmp}, v{hG+2*p}")
    a(f"v_mov_b32 v{Lr}, s{sA1}")
    a(f"v_rcp_f32 v{vt[3]}, v{Lr}")
    a.nop(1)
    a(f"v_mul_f32 v{vt[4]}, v{Or}, v{vt[3]}")
    a(f"v_fma_f32 v{vt[5]}, -v{vt[4]}, v{Lr}, v{Or}")
    a(f"v_fma_f32 v{Or}, v{vt[5]}, v{vt[3]}, v{vt[4]}")
    bf16_round(a, Or, Or)
    a(f"v_lshlrev_b32 v{vt[0]}, 2, v{vL}")
    a(f"ds_write_b32 v{vt[0]}, v{Or} offset:{INO}")
    lds_arrive(F_O, vt[2])
    stamp("gathered")
    a.label("L_l1skip")
    spin_lds(F_O, 1, vt[2], sleep=0)
    slice_matmul(INO, hW2, FIN, F_ZCNT, WS_S2, "s_pub")
    a(f"s_cmp_lg_u32 s{sHP}, s{sJ}")
    a("s_cbranch_scc1 L_end")
    fin_gather(WS_S2, G2, F_S2CNT, 2)
    a(f"s_cmp_lg_u32 s{sTmp}, 3")
    a("s_cbranch_scc1 L_end")
    a.c("final: last arriver sums 4 waves x 3 pp for 36 cols")
    a(f"s_mul_i32 s{sTmp}, s{sJ}, 72")
    a(f"v_lshlrev_b32 v{vt[6]}, 1, v{vL}")
    a(f"v_add_u32 v{vt[6]}, s{sTmp}, v{vt[6]}")
    a("s_mov_b32 exec_hi, 0xf")
    a(f"buffer_load_ushort v{vt[7]}, v{vt[6]}, {srd(rX)}, 0 offen")
    a(f"v_lshlrev_b32 v{vt[0]}, 2, v{vL}")
    for part in range(2):
        for w in range(4):
            for pp in range(3):
                a(f"ds_read_b32 v{hR+12*part+3*w+pp}, v{vt[0]} offset:{G2 + part*2048 + w*512 + pp*144}")
    a("s_waitcnt lgkmcnt(0)")
    for part in range(2):
        for q in range(1, 12):
            a(f"v_add_f32 v{hR+12*part}, v{hR+12*part}, v{hR+12*part+q}")
    sS, sY = hR, hR + 12
    bf16_round(a, sS, sS)
    bf16_round(a, sY, sY)
    silu(sY)
    a(f"v_mul_f32 v{sS}, v{sS}, v{sY}")
    bf16_round(a, sS, sS)
    a("s_waitcnt vmcnt(0)")
    a(f"v_lshlrev_b32 v{vt[7]}, 16, v{vt[7]}")
    a(f"v_add_f32 v{sS}, v{sS}, v{vt[7]}")
    a(f"v_cvt_pk_bf16_f32 v{sS}, v{sS}, v{sS}")
    a(f"buffer_store_short v{sS}, v{vt[6]}, {srd(rOUT)}, 0 offen")
    if opts.get("dbgstamp"):
        a(f"s_memrealtime s[{sT64}:{sT64+1}]")
        a("s_waitcnt lgkmcnt(0)")
        a(f"s_sub_u32 s{sTmp}, s{sT64}, s{sNon}")
        a(f"v_mov_b32 v{vt[0]}, s{sTmp}")
        a(f"s_lshl_b32 s{sTmp}, s{sJ}, 2")
        a(f"s_add_u32 s{sTmp}, s{sTmp}, 4")
        a(f"s_cmp_ge_u32 s{sJ}, 6")
        a("s_cbranch_scc1 L_end")
        a("s_mov_b64 exec, 1")
        a(f"buffer_store_dword v{vt[0]}, v{vZ}, {srd(rDBG)}, s{sTmp} offen")
    if STAMP:
        a("s_waitcnt vmcnt(0)")
    stamp("out")
    a.label("L_end")
    stamp_flush()
    a.label("L_exit")
    a("s_endpgm")
    a.L.append('.section .rodata,"a"')
    a.L.append(".p2align 6")
    a.L.append(f".amdhsa_kernel {KNAME}")
    a.L.append("  .amdhsa_next_free_vgpr 256")
    a.L.append("  .amdhsa_next_free_sgpr 102")
    a.L.append("  .amdhsa_accum_offset 256")
    a.L.append("  .amdhsa_group_segment_fixed_size 0")
    a.L.append("  .amdhsa_kernarg_size 96")
    a.L.append("  .amdhsa_user_sgpr_count 2")
    a.L.append("  .amdhsa_user_sgpr_kernarg_segment_ptr 1")
    a.L.append("  .amdhsa_system_sgpr_workgroup_id_x 1")
    a.L.append("  .amdhsa_float_denorm_mode_32 3")
    a.L.append(".end_amdhsa_kernel")
    return "\n".join(a.L) + "\n"

if __name__ == "__main__":
    out = sys.argv[1] if len(sys.argv) > 1 else "recurrent_scan__gqa_block_cached__swiglu_ffn__decode.s"
    opts = {}
    for kv in sys.argv[2:]:
        k, v = kv.split("=")
        opts[k] = int(v) if v.lstrip("-").isdigit() else v
    txt = gen(opts)
    if opts.get("stamp"):
        txt = txt.replace("\n", "\n; stamps=" + ",".join(opts["names"]) + "\n", 1)
    open(out, "w").write(txt)
    print("wrote", out)
```

```python
import sys, struct

KNAME = "recurrent_scan__gqa_block_cached__swiglu_ffn__decode_kernel"

def f32bits(x):
    return struct.unpack("<I", struct.pack("<f", x))[0]

class Asm:
    def __init__(self):
        self.L = []
        self.uid = 0
    def __call__(self, s):
        self.L.append("    " + s)
    def label(self, s):
        self.L.append(s + ":")
    def c(self, s):
        self.L.append("    ; " + s)
    def nop(self, n):
        while n > 0:
            k = min(n, 16)
            self(f"s_nop {k-1}")
            n -= k
    def newlabel(self, p):
        self.uid += 1
        return f"L_{p}{self.uid}"

FL = 0
F_NON, F_QCNT, F_FCNT, F_H, F_YCNT, F_SCNT, F_O, F_ZCNT, F_Y2CNT, F_S2CNT, F_PROG, F_TK = [FL + 4 * i for i in range(12)]
XN = 64
QP = XN + 2560
QB = QP + 1024
FFP = QB + 512
COMB = FFP + 9216
CSTR = 1056
INO = COMB + 8 * CSTR
INH = INO + 512
FIN = INH + 512
FIN2 = FIN + 8192
G2 = FIN2 + 8192
LDS_BYTES = G2 + 4096
LDS_BYTES = (LDS_BYTES + 1023) // 1024 * 1024
PSTR = 2176
WS_PART = 0
WS_FP = 256 * PSTR
WS_HB = WS_FP + 256 * 4608
WS_S2 = WS_HB + 4608 * 8
WS_Y2 = WS_S2 + 4 * 64 * 1152
WS_Q = WS_Y2 + 4 * 64 * 1152
WS_CNT = WS_Q + 16 * 8192
WS_BYTES = WS_CNT + 16 * 128
WS_STAMP = 4 << 20

sX, sK, sV, sWQ, sWO, sBX, sWG, sWU, sWD, sOUT, sDBG, sWS = [4 + 2 * i for i in range(12)]
rK, rV, rX, rWQ, rWG, rWU, rWO, rWD, rWS, rOUT, rDBG = [28 + 4 * i for i in range(11)]
sHP, sJ, sW, sWGI = 72, 73, 74, 75
sSelLo, sSelHi, sScale, sLog2e = 76, 77, 78, 79
sA0, sA1, sTmp, sTmp2, sOff, sCnt = 80, 81, 82, 83, 84, 85
sEx = 86
sNon = 88
sB = [89, 90, 91]
sStat, sLeft = 92, 93
sT64 = 94
sRQ, sCQ = 100, 101
OOB = 0x40000000

def srd(r): return f"s[{r}:{r+3}]"
def vr(b, n): return f"v[{b}:{b+n-1}]"

def bf16_round(a, dst, src):
    a(f"v_cvt_pk_bf16_f32 v{dst}, v{src}, v{src}")
    a(f"v_lshlrev_b32 v{dst}, 16, v{dst}")

def cross_rows(a, op, x, t):
    o = f"v_{op}_f32"
    for sw in ("v_permlane32_swap_b32", "v_permlane16_swap_b32"):
        a(f"v_mov_b32 v{t}, v{x}")
        a.nop(2)
        a(f"{sw} v{x}, v{t}")
        a.nop(1)
        a(f"{o} v{x}, v{x}, v{t}")

def wave_allreduce(a, op, x, t):
    o = f"v_{op}_f32"
    for ctrl in ("quad_perm:[1,0,3,2]", "quad_perm:[2,3,0,1]", "row_half_mirror", "row_mirror"):
        a.nop(2)
        a(f"{o}_dpp v{x}, v{x}, v{x} {ctrl} row_mask:0xf bank_mask:0xf")
    cross_rows(a, op, x, t)

def gen(opts):
    a = Asm()
    STAMP = opts.get("stamp", False)
    NS = opts.get("ns", 26)
    NPOOL = (32 - NS) * 64
    MAXPOLL = 0x40000
    WP = "" if opts.get("wdef") else " nt"
    stn = [0]
    names = []
    vL, vST, vNon, vZ = 1, 14, 13, 12
    vt = [2, 3, 4, 5, 6, 7, 8, 9, 10, 11]
    def stamp(name):
        if not STAMP: return
        a(f"s_memrealtime s[{sT64}:{sT64+1}]")
        a("s_waitcnt lgkmcnt(0)")
        a(f"v_writelane_b32 v{vST}, s{sT64}, {stn[0]}")
        names.append(name)
        stn[0] += 1
    def stamp_flush():
        if not STAMP: return
        a("s_mov_b64 exec, -1")
        a(f"s_mul_i32 s{sTmp}, s2, 12")
        a(f"s_add_u32 s{sTmp}, s{sTmp}, s{sW}")
        a(f"s_lshl_b32 s{sTmp}, s{sTmp}, 8")
        a(f"v_lshlrev_b32 v{vt[8]}, 2, v{vL}")
        a(f"buffer_store_dword v{vST}, v{vt[8]}, s[96:99], s{sTmp} offen")
    opts["names"] = names

    def spin_lds(addr, target, tmpv, ge=True, sleep=1):
        l0, l1 = a.newlabel("sp"), a.newlabel("spx")
        a(f"s_mov_b32 s{sCnt}, 0x2000000")
        a.label(l0)
        a(f"ds_read_b32 v{tmpv}, v{vZ} offset:{addr}")
        a("s_waitcnt lgkmcnt(0)")
        a(f"v_readfirstlane_b32 s{sTmp}, v{tmpv}")
        a(f"s_cmp_ge_u32 s{sTmp}, {target}")
        a(f"s_cbranch_scc1 {l1}")
        a(f"s_sub_u32 s{sCnt}, s{sCnt}, 1")
        a(f"s_cmp_eq_u32 s{sCnt}, 0")
        a(f"s_cbranch_scc1 {l1}")
        a(f"s_sleep {sleep}")
        a(f"s_branch {l0}")
        a.label(l1)
    def lds_arrive(addr, tmpv, ret=False):
        a("s_waitcnt lgkmcnt(0)")
        a(f"v_mov_b32 v{tmpv}, 1")
        a("s_mov_b64 exec, 1")
        if ret:
            a(f"ds_add_rtn_u32 v{tmpv}, v{vZ}, v{tmpv} offset:{addr}")
            a("s_waitcnt lgkmcnt(0)")
            a(f"v_readfirstlane_b32 s{sTmp}, v{tmpv}")
        else:
            a(f"ds_add_u32 v{vZ}, v{tmpv} offset:{addr}")
        a("s_mov_b64 exec, -1")
    def retry_begin():
        l0, l1 = a.newlabel("rt"), a.newlabel("rtx")
        a(f"s_mov_b32 s{sCnt}, {MAXPOLL}")
        a.label(l0)
        return l0, l1
    def retry_end(ls, tagregs, t0, t1, sleep=2):
        l0, l1 = ls
        a("s_waitcnt vmcnt(0)")
        a(f"v_xor_b32 v{t0}, v{vNon}, v{tagregs[0]}")
        for r in tagregs[1:]:
            a(f"v_xor_b32 v{t1}, v{vNon}, v{r}")
            a(f"v_or_b32 v{t0}, v{t0}, v{t1}")
        a(f"v_cmp_ne_u32 vcc, 0, v{t0}")
        a(f"s_cbranch_vccz {l1}")
        a(f"s_sub_u32 s{sCnt}, s{sCnt}, 1")
        a(f"s_cmp_eq_u32 s{sCnt}, 0")
        a(f"s_cbranch_scc1 {l1}")
        a(f"s_sleep {sleep}")
        a(f"s_branch {l0}")
        a.label(l1)
    def silu(x):
        a(f"v_mul_f32 v{vt[2]}, s{sLog2e}, v{x}")
        a(f"v_exp_f32 v{vt[2]}, -v{vt[2]}")
        a.nop(1)
        a(f"v_add_f32 v{vt[2]}, 1.0, v{vt[2]}")
        a(f"v_rcp_f32 v{vt[3]}, v{vt[2]}")
        a.nop(1)
        a(f"v_mul_f32 v{vt[4]}, v{x}, v{vt[3]}")
        a(f"v_fma_f32 v{vt[5]}, -v{vt[4]}, v{vt[2]}, v{x}")
        a(f"v_fma_f32 v{x}, v{vt[5]}, v{vt[3]}, v{vt[4]}")
        a(f"v_cmp_eq_f32 vcc, 0x7f800000, v{vt[2]}")
        a.nop(2)
        a(f"v_cndmask_b32 v{x}, v{x}, v{vt[4]}, vcc")
        bf16_round(a, x, x)
    def combine(n, mreg, lreg, oreg, M, Lr, Or):
        a(f"v_max3_f32 v{M}, v{mreg[0]}, v{mreg[1]}, v{mreg[2]}")
        k = 3
        while k < n:
            if k + 1 < n:
                a(f"v_max3_f32 v{M}, v{M}, v{mreg[k]}, v{mreg[k+1]}"); k += 2
            else:
                a(f"v_max_f32 v{M}, v{M}, v{mreg[k]}"); k += 1
        for w in range(n):
            a(f"v_sub_f32 v{mreg[w]}, v{mreg[w]}, v{M}")
        for w in range(n):
            a(f"v_exp_f32 v{mreg[w]}, v{mreg[w]}")
        a.nop(1)
        a(f"v_mul_f32 v{Lr}, v{mreg[0]}, v{lreg[0]}")
        a(f"v_mul_f32 v{Or}, v{mreg[0]}, v{oreg[0]}")
        for w in range(1, n):
            a(f"v_fmac_f32 v{Lr}, v{mreg[w]}, v{lreg[w]}")
            a(f"v_fmac_f32 v{Or}, v{mreg[w]}, v{oreg[w]}")
    def mk(r, p, off_s=None, size=None):
        if off_s is None:
            a(f"s_mov_b32 s{r}, s{p}")
            a(f"s_and_b32 s{r+1}, s{p+1}, 0xffff")
        else:
            a(f"s_add_u32 s{r}, s{p}, s{off_s}")
            a(f"s_addc_u32 s{r+1}, s{p+1}, 0")
            a(f"s_and_b32 s{r+1}, s{r+1}, 0xffff")
        a(f"s_mov_b32 s{r+2}, {size}")
        a(f"s_mov_b32 s{r+3}, 0x20000")

    a.L.append(f"; @launch grid=(256,1,1) block=(768,1,1) lds={LDS_BYTES}")
    a.L.append('.amdgcn_target "amdgcn-amd-amdhsa--gfx950"')
    a.L.append(".text")
    a.L.append(f".globl {KNAME}")
    a.L.append(".p2align 8")
    a.L.append(f".type {KNAME},@function")
    a.label(KNAME)
    a("s_cmp_ge_u32 s2, 256")
    a("s_cbranch_scc1 L_exit")
    a("s_load_dwordx16 s[4:19], s[0:1], 0")
    a("s_load_dwordx8 s[20:27], s[0:1], 64")
    a(f"s_memrealtime s[{sT64}:{sT64+1}]")
    a(f"v_and_b32 v{vL}, 63, v0")
    a(f"v_lshrrev_b32 v{vt[0]}, 6, v0")
    a(f"s_lshr_b32 s{sHP}, s2, 4")
    a(f"s_and_b32 s{sJ}, s2, 15")
    a(f"v_readfirstlane_b32 s{sW}, v{vt[0]}")
    a.nop(1)
    a(f"s_sub_u32 s{sW}, s{sW}, 4")
    a(f"s_add_u32 s{sTmp}, s{sW}, 12")
    a(f"s_cmp_lt_i32 s{sW}, 0")
    a(f"s_cselect_b32 s{sW}, s{sTmp}, s{sW}")
    a(f"s_mov_b32 s{sWGI}, s2")
    a(f"s_lshr_b32 s{sRQ}, s{sJ}, 2")
    a(f"s_and_b32 s{sCQ}, s{sJ}, 3")
    a(f"s_mov_b32 s{sLog2e}, 0x{f32bits(1.4426950408889634):08x}")
    a(f"v_mov_b32 v{vZ}, 0")
    a(f"v_mov_b32 v{vST}, 0")
    a("s_waitcnt lgkmcnt(0)")
    a(f"s_or_b32 s{sNon}, s{sT64}, 1")
    mk(rWS, sWS, size=WS_BYTES)
    if STAMP:
        a(f"s_add_u32 s96, s{sWS}, {WS_STAMP}")
        a(f"s_addc_u32 s97, s{sWS+1}, 0")
        a(f"s_and_b32 s97, s97, 0xffff")
        a(f"s_mov_b32 s98, {3072*256}")
        a(f"s_mov_b32 s99, 0x20000")
    stamp("start")
    a(f"s_cmp_ge_u32 s{sW}, 8")
    a("s_cbranch_scc1 L_helper")

    vKoff, vVoff, vM, vLs, vMt = 15, 16, 17, 18, 19
    vQ = 20
    vO = 36
    vD = 68
    vP = 76
    vT = 80
    ks, vs = 88, 120
    a.c("stream wave setup")
    a(f"s_mov_b32 s{sSelLo}, 0x05040100")
    a(f"s_mov_b32 s{sSelHi}, 0x07060302")
    a(f"s_mov_b32 s{sScale}, 0x{f32bits(128 ** -0.5):08x}")
    a(f"v_and_b32 v{vt[0]}, 3, v{vL}")
    a(f"v_lshlrev_b32 v{vt[0]}, 10, v{vt[0]}")
    a(f"v_bfe_u32 v{vt[1]}, v{vL}, 2, 2")
    a(f"v_lshlrev_b32 v{vt[1]}, 8, v{vt[1]}")
    a(f"v_lshrrev_b32 v{vt[2]}, 4, v{vL}")
    a(f"v_lshlrev_b32 v{vt[2]}, 4, v{vt[2]}")
    a(f"v_add3_u32 v{vKoff}, v{vt[0]}, v{vt[1]}, v{vt[2]}")
    a(f"v_lshlrev_b32 v{vVoff}, 4, v{vL}")
    a(f"s_lshl_b32 s{sTmp}, s2, 20")
    mk(rK, sK, sTmp, size=1 << 20)
    mk(rV, sV, sTmp, size=1 << 20)
    b0, b1 = sB[0], sB[1]
    a(f"s_lshl_b32 s{b0}, s{sW}, 12")
    a(f"s_add_u32 s{b1}, s{b0}, 32768")
    a("s_mov_b32 s40, 40")
    def Kload(t, i):
        return f"buffer_load_dwordx4 {vr(ks+16*t+4*i,4)}, v{vKoff}, {srd(rK)}, s{b0 if t == 0 else b1} offen offset:{i*64} nt"
    def Vload(t, r):
        return f"buffer_load_dwordx4 {vr(vs+16*t+4*r,4)}, v{vVoff}, {srd(rV)}, s{b0 if t == 0 else b1} offen offset:{r*1024} nt"
    for i in range(4):
        a(Kload(0, i))
    a("s_barrier")
    for i in range(4):
        a(Kload(1, i))
    for t in range(2):
        for r in range(4):
            a(Vload(t, r))
    a(f"s_mov_b32 s{sLeft}, 16")
    if opts.get("sprio"):
        a(f"s_cmp_lt_u32 s{sW}, 4")
        a("s_cbranch_scc1 L_nsp")
        a(f"s_setprio {opts.get('sprio')}")
        a.label("L_nsp")
    if not opts.get("noq"): spin_lds(F_NON, 1, vNon)
    a(f"v_and_b32 v{vt[0]}, 1, v{vL}")
    a(f"v_lshlrev_b32 v{vt[0]}, 8, v{vt[0]}")
    a(f"v_lshrrev_b32 v{vt[1]}, 4, v{vL}")
    a(f"v_lshl_add_u32 v{vt[0]}, v{vt[1]}, 4, v{vt[0]}")
    for i in range(4):
        a(f"ds_read_b128 {vr(vQ+4*i,4)}, v{vt[0]} offset:{QB + i*64}")
    a(f"v_mov_b32 v{vM}, 0xff800000")
    a(f"v_mov_b32 v{vMt}, 0xff800000")
    a(f"v_mov_b32 v{vLs}, 0")
    for i in range(32):
        a(f"v_mov_b32 v{vO+i}, 0")
    a(f"v_mov_b32 v{vt[9]}, 1")
    a("s_waitcnt lgkmcnt(0)")
    stamp("q_ready")
    d = [vD + i for i in range(8)]
    a.L.append(".p2align 6")
    a.label("L_loop")
    a(f"s_add_u32 s{b0}, s{b0}, 65536")
    a(f"s_add_u32 s{b1}, s{b1}, 65536")
    a("s_waitcnt vmcnt(12)")
    for i in range(4):
        cin = "0" if i == 0 else vr(vD, 4)
        a(f"v_mfma_f32_16x16x32_bf16 {vr(vD,4)}, {vr(ks+4*i,4)}, {vr(vQ+4*i,4)}, {cin}")
    a("s_waitcnt vmcnt(8)")
    for i in range(4):
        cin = "0" if i == 0 else vr(vD + 4, 4)
        a(f"v_mfma_f32_16x16x32_bf16 {vr(vD+4,4)}, {vr(ks+16+4*i,4)}, {vr(vQ+4*i,4)}, {cin}")
    S = []
    tt = vt
    for k in range(4):
        S.append(f"v_cvt_pk_bf16_f32 v{tt[k]}, v{d[2*k]}, v{d[2*k+1]}")
    for k in range(4):
        S.append(f"v_lshlrev_b32 v{d[2*k]}, 16, v{tt[k]}")
        S.append(f"v_and_b32 v{d[2*k+1]}, 0xffff0000, v{tt[k]}")
    for k in range(8):
        S.append(f"v_mul_f32 v{d[k]}, s{sScale}, v{d[k]}")
    for k in range(4):
        S.append(f"v_cvt_pk_bf16_f32 v{tt[k]}, v{d[2*k]}, v{d[2*k+1]}")
    for k in range(4):
        S.append(f"v_lshlrev_b32 v{d[2*k]}, 16, v{tt[k]}")
        S.append(f"v_and_b32 v{d[2*k+1]}, 0xffff0000, v{tt[k]}")
    mx = tt[4]
    S.append(f"v_max3_f32 v{mx}, v{d[0]}, v{d[1]}, v{d[2]}")
    S.append(f"v_max3_f32 v{mx}, v{mx}, v{d[3]}, v{d[4]}")
    S.append(f"v_max3_f32 v{mx}, v{mx}, v{d[5]}, v{d[6]}")
    S.append(f"v_max3_f32 v{mx}, v{mx}, v{d[7]}, v{vM}")
    for sw in ("v_permlane32_swap_b32", "v_permlane16_swap_b32"):
        S.append(f"v_mov_b32 v{tt[5]}, v{mx}")
        S.append("s_nop 1")
        S.append(f"{sw} v{mx}, v{tt[5]}")
        S.append("s_nop 0")
        S.append(f"v_max_f32 v{mx}, v{mx}, v{tt[5]}")
    S.append(f"v_mul_f32 v{tt[5]}, s{sLog2e}, v{mx}")
    al = tt[6]
    S.append(f"v_sub_f32 v{al}, v{vMt}, v{tt[5]}")
    S.append(f"v_exp_f32 v{al}, v{al}")
    S.append(f"v_mov_b32 v{vM}, v{mx}")
    S.append(f"v_mov_b32 v{vMt}, v{tt[5]}")
    for k in range(8):
        S.append(f"v_fma_f32 v{d[k]}, v{d[k]}, s{sLog2e}, -v{vMt}")
    for k in range(8):
        S.append(f"v_exp_f32 v{d[k]}, v{d[k]}")
    S.append(f"v_readlane_b32 s{sA0}, v{al}, 0")
    S.append(f"v_readlane_b32 s{sA1}, v{al}, 1")
    S.append(f"v_mul_f32 v{vLs}, v{vLs}, v{al}")
    for k in range(4):
        S.append(f"v_cvt_pk_bf16_f32 v{vP+k}, v{d[2*k]}, v{d[2*k+1]}")
    for k in range(8):
        S.append(f"v_add_f32 v{vLs}, v{vLs}, v{d[k]}")
    for i in range(8):
        S.append(f"v_mul_f32 v{vO+4*i}, s{sA0}, v{vO+4*i}")
        S.append(f"v_mul_f32 v{vO+4*i+1}, s{sA1}, v{vO+4*i+1}")
    KL = [Kload(t, i) for t in range(2) for i in range(4)]
    for k in range(8): a(KL[k])
    if opts.get("nosm"): S = S[:4]
    for ins in S: a(ins)
    a("s_waitcnt vmcnt(8)")
    def perms(i):
        dd, b = i >> 1, i & 1
        sel = sSelHi if b else sSelLo
        for p in range(4):
            lo = vs + 4 * (2 * p) + dd
            hi = vs + 4 * (2 * p + 1) + dd
            a(f"v_perm_b32 v{vT + 4*(i%2) + p}, v{hi}, v{lo}, s{sel}")
    if opts.get("nopv"): perms = lambda i: None
    perms(0)
    for i in range(8):
        if i + 1 < 8:
            perms(i + 1)
        else:
            a(Vload(0, 0)); a(Vload(0, 1))
        if opts.get("nopv"): continue
        a(f"v_mfma_f32_16x16x32_bf16 {vr(vO+4*i,4)}, {vr(vP,4)}, {vr(vT+4*(i%2),4)}, {vr(vO+4*i,4)}")
    for t in range(2):
        for r in range(4):
            if t == 0 and r < 2: continue
            a(Vload(t, r))
    if not opts.get("noprog"):
        a("s_mov_b64 exec, 1")
        a(f"ds_add_u32 v{vZ}, v{vt[9]} offset:{F_PROG}")
        a("s_mov_b64 exec, -1")
    a(f"s_sub_u32 s{sLeft}, s{sLeft}, 1")
    a(f"s_cmp_lg_u32 s{sLeft}, 0")
    a("s_cbranch_scc1 L_loop")
    a.label("L_sdone")
    stamp("s_done")
    a.c("stream wave: write partial to LDS")
    cross_rows(a, "add", vLs, vt[0])
    a.nop(8)
    a(f"s_mul_i32 s{sTmp}, s{sW}, {CSTR}")
    a(f"v_lshlrev_b32 v{vt[0]}, 5, v{vL}")
    a(f"v_add_u32 v{vt[0]}, s{sTmp}, v{vt[0]}")
    a(f"v_add_u32 v{vt[0]}, {COMB}, v{vt[0]}")
    a(f"v_lshlrev_b32 v{vt[1]}, 2, v{vL}")
    a(f"v_add_u32 v{vt[1]}, s{sTmp}, v{vt[1]}")
    a("s_mov_b64 exec, 0xffff")
    for h in range(2):
        for i in range(0, 8, 2):
            a(f"ds_write2_b32 v{vt[0]}, v{vO+4*i+h}, v{vO+4*(i+1)+h} offset0:{h*128+i} offset1:{h*128+i+1}")
    a("s_mov_b64 exec, 3")
    a(f"ds_write_b32 v{vt[1]}, v{vMt} offset:{COMB+1024}")
    a(f"ds_write_b32 v{vt[1]}, v{vLs} offset:{COMB+1032}")
    a("s_mov_b64 exec, -1")
    lds_arrive(F_SCNT, vt[2])
    a("s_branch L_end")

    a.label("L_helper")
    a.c("helper setup")
    a("s_setprio 3")
    sHW = sB[0]
    a(f"s_sub_u32 s{sHW}, s{sW}, 8")
    a(f"s_cmp_lg_u32 s{sW}, 11")
    a("s_cbranch_scc1 L_nz")
    a(f"v_lshlrev_b32 v{vt[0]}, 2, v{vL}")
    a("s_mov_b64 exec, 0xffff")
    a(f"ds_write_b32 v{vt[0]}, v{vZ} offset:{FL}")
    a("s_mov_b64 exec, -1")
    a("s_waitcnt lgkmcnt(0)")
    a.label("L_nz")
    mk(rX, sX, size=1152)
    mk(rWQ, sWQ, size=576 * 8192)
    mk(rDBG, sDBG, size=256)
    hX = 18
    hW = 28
    hF = 36
    hA = 48
    hR = 64
    if opts.get("h0"):
        a("s_barrier"); a("s_branch L_end")
    a(f"s_cmp_eq_u32 s{sW}, 11")
    a("s_cbranch_scc1 L_w7start")
    a(f"v_lshlrev_b32 v{vt[3]}, 2, v{vL}")
    for j in range(5):
        a(f"buffer_load_dword v{hX+j}, v{vt[3]}, {srd(rX)}, 0 offen offset:{j*256}")
    a(f"v_lshrrev_b32 v{vt[0]}, 3, v{vL}")
    a(f"s_mul_i32 s{sTmp}, s{sRQ}, 144")
    a(f"s_mul_i32 s{sTmp2}, s{sHW}, 48")
    a(f"s_add_u32 s{sTmp}, s{sTmp}, s{sTmp2}")
    a(f"v_add_u32 v{vt[1]}, s{sTmp}, v{vt[0]}")
    a(f"v_lshlrev_b32 v{vt[5]}, 2, v{vt[1]}")
    a(f"v_lshlrev_b32 v{vt[4]}, 13, v{vt[1]}")
    a(f"v_and_b32 v{vt[1]}, 7, v{vL}")
    a(f"v_lshl_add_u32 v{vt[4]}, v{vt[1]}, 4, v{vt[4]}")
    a(f"s_lshl_b32 s{sTmp}, s{sHP}, 9")
    a(f"s_lshl_b32 s{sTmp2}, s{sCQ}, 7")
    a(f"s_add_u32 s{sTmp}, s{sTmp}, s{sTmp2}")
    a(f"v_add_u32 v{vt[4]}, s{sTmp}, v{vt[4]}")
    for i in range(6):
        a(f"s_mov_b32 s{sOff}, {i*8*8192}")
        a(f"buffer_load_dwordx4 {vr(hR+4*i,4)}, v{vt[4]}, {srd(rWQ)}, s{sOff} offen{WP}")
    a("s_branch L_nononce")
    a.label("L_w7start")
    a(f"s_mov_b32 s{sB[1]}, s{sNon}")
    a(f"s_mov_b32 s{sB[2]}, 0")
    a(f"s_atomic_cmpswap s[{sB[1]}:{sB[2]}], s[{sDBG}:{sDBG+1}], 0x0 glc")
    a.label("L_nononce")
    a("s_barrier")
    if opts.get("nohelp"): a("s_branch L_end")
    mk(rWG, sWG, size=576 * 9216)
    mk(rWU, sWU, size=576 * 9216)
    mk(rWO, sWO, size=4096 * 1152)
    mk(rWD, sWD, size=4608 * 1152)
    mk(rOUT, sOUT, size=1152)
    a(f"s_cmp_eq_u32 s{sW}, 11")
    a("s_cbranch_scc1 L_w7x")
    a.c("layernorm")
    a("s_waitcnt vmcnt(6)")
    stamp("x_arrived")
    xf = [hF + i for i in range(10)]
    for j in range(5):
        a(f"v_lshlrev_b32 v{xf[2*j]}, 16, v{hX+j}")
        a(f"v_and_b32 v{xf[2*j+1]}, 0xffff0000, v{hX+j}")
    s_ = vt[0]
    a(f"v_add_f32 v{s_}, v{xf[0]}, v{xf[1]}")
    for i in range(2, 10):
        a(f"v_add_f32 v{s_}, v{s_}, v{xf[i]}")
    wave_allreduce(a, "add", s_, vt[1])
    a(f"v_mul_f32 v{s_}, 0x{f32bits(1.0/576):08x}, v{s_}")
    a(f"v_cmp_gt_u32 vcc, 32, v{vL}")
    q_ = vt[2]
    a(f"v_mov_b32 v{q_}, 0")
    for i in range(10):
        a(f"v_sub_f32 v{vt[1]}, v{xf[i]}, v{s_}")
        if i >= 8:
            a(f"v_cndmask_b32 v{vt[1]}, 0, v{vt[1]}, vcc")
        a(f"v_fmac_f32 v{q_}, v{vt[1]}, v{vt[1]}")
    wave_allreduce(a, "add", q_, vt[1])
    a(f"v_mul_f32 v{q_}, 0x{f32bits(1.0/576):08x}, v{q_}")
    bf16_round(a, s_, s_)
    bf16_round(a, q_, q_)
    a(f"v_add_f32 v{q_}, 0x{f32bits(1e-5):08x}, v{q_}")
    bf16_round(a, q_, q_)
    a(f"v_sqrt_f32 v{q_}, v{q_}")
    a.nop(1)
    bf16_round(a, q_, q_)
    rc = vt[1]
    a(f"v_rcp_f32 v{rc}, v{q_}")
    a.nop(1)
    for i in range(10):
        dd = xf[i]
        a(f"v_sub_f32 v{dd}, v{dd}, v{s_}")
        bf16_round(a, dd, dd)
        a(f"v_mul_f32 v{vt[6]}, v{dd}, v{rc}")
        a(f"v_fma_f32 v{vt[7]}, -v{vt[6]}, v{q_}, v{dd}")
        a(f"v_fma_f32 v{dd}, v{vt[7]}, v{rc}, v{vt[6]}")
        bf16_round(a, dd, dd)
        if i >= 8:
            a(f"v_cndmask_b32 v{dd}, 0, v{dd}, vcc")
    a(f"v_lshlrev_b32 v{vt[0]}, 3, v{vL}")
    for j in range(5):
        a(f"ds_write_b64 v{vt[0]}, {vr(xf[2*j],2)} offset:{XN + j*512}")
    a.c("q slice")
    for i in range(6):
        a(f"ds_read_b32 v{hX+i}, v{vt[5]} offset:{XN + i*32}")
    acc = [hA + i for i in range(8)]
    a("s_waitcnt vmcnt(0) lgkmcnt(0)")
    for i in range(6):
        for dd in range(4):
            r = hR + 4 * i + dd
            a(f"v_lshlrev_b32 v{vt[0]}, 16, v{r}")
            a(f"v_and_b32 v{vt[1]}, 0xffff0000, v{r}")
            if i == 0:
                a(f"v_mul_f32 v{acc[2*dd]}, v{vt[0]}, v{hX+i}")
                a(f"v_mul_f32 v{acc[2*dd+1]}, v{vt[1]}, v{hX+i}")
            else:
                a(f"v_fmac_f32 v{acc[2*dd]}, v{vt[0]}, v{hX+i}")
                a(f"v_fmac_f32 v{acc[2*dd+1]}, v{vt[1]}, v{hX+i}")
    a.nop(2)
    for ctrl in ("row_ror:8",):
        for e in range(8):
            a(f"v_add_f32_dpp v{acc[e]}, v{acc[e]}, v{acc[e]} {ctrl} row_mask:0xf bank_mask:0xf")
    tq = [hW + i for i in range(8)]
    for sw in ("v_permlane32_swap_b32", "v_permlane16_swap_b32"):
        for e in range(8):
            a(f"v_mov_b32 v{tq[e]}, v{acc[e]}")
        for e in range(8):
            a(f"{sw} v{acc[e]}, v{tq[e]}")
        for e in range(8):
            a(f"v_add_f32 v{acc[e]}, v{acc[e]}, v{tq[e]}")
    a(f"s_lshl_b32 s{sTmp}, s{sHW}, 8")
    a(f"v_lshlrev_b32 v{vt[0]}, 5, v{vL}")
    a(f"v_add_u32 v{vt[0]}, s{sTmp}, v{vt[0]}")
    a("s_mov_b64 exec, 0xff")
    a(f"ds_write_b128 v{vt[0]}, {vr(acc[0],4)} offset:{QP}")
    a(f"ds_write_b128 v{vt[0]}, {vr(acc[4],4)} offset:{QP+16}")
    a("s_mov_b64 exec, -1")
    lds_arrive(F_QCNT, vt[2])
    stamp("qpart_done")
    a("s_branch L_xskip")
    a.label("L_w7x")
    a.c("q exchange (wave 7)")
    spin_lds(F_QCNT, 3, vt[2], sleep=0)
    a(f"v_lshlrev_b32 v{vt[0]}, 2, v{vL}")
    for w in range(3):
        a(f"ds_read_b32 v{hW+w}, v{vt[0]} offset:{QP + w*256}")
    a("s_waitcnt vmcnt(0) lgkmcnt(0)")
    a(f"s_cmp_eq_u32 s{sB[1]}, 0")
    a(f"s_cselect_b32 s{sNon}, s{sNon}, s{sB[1]}")
    for w in range(1, 3):
        a(f"v_add_f32 v{hW}, v{hW}, v{hW+w}")
    a(f"v_mov_b32 v{hW+1}, s{sNon}")
    a(f"v_mov_b32 v{vNon}, s{sNon}")
    a(f"s_lshl_b32 s{sOff}, s{sHP}, 13")
    a(f"s_add_u32 s{sOff}, s{sOff}, {WS_Q}")
    a(f"s_lshl_b32 s{sTmp}, s{sRQ}, 11")
    a(f"s_lshl_b32 s{sTmp2}, s{sCQ}, 9")
    a(f"s_add_u32 s{sTmp}, s{sTmp}, s{sTmp2}")
    a(f"s_add_u32 s{sTmp}, s{sTmp}, s{sOff}")
    a(f"v_lshlrev_b32 v{vt[0]}, 3, v{vL}")
    a(f"buffer_store_dwordx2 {vr(hW,2)}, v{vt[0]}, {srd(rWS)}, s{sTmp} offen sc1")
    stamp("x_pub")
    a(f"v_lshlrev_b32 v{vt[0]}, 4, v{vL}")
    a(f"s_add_u32 s{sTmp2}, s{sOff}, 4096")
    if opts.get("pdelay", 8): a(f"s_sleep {opts.get('pdelay', 8)}")
    ls = retry_begin()
    for k in range(8):
        a(f"buffer_load_dwordx4 {vr(hR+4*k,4)}, v{vt[0]}, {srd(rWS)}, s{sOff if k < 4 else sTmp2} offen offset:{(k%4)*1024} sc1")
    retry_end(ls, [hR + 4 * k + e for k in range(8) for e in (1, 3)], vt[1], vt[2], sleep=2)
    stamp("x_ok")
    for half in range(2):
        for e in (0, 2):
            for r4 in range(1, 4):
                a(f"v_add_f32 v{hR+4*half+e}, v{hR+4*half+e}, v{hR+4*(2*r4+half)+e}")
        a(f"v_cvt_pk_bf16_f32 v{hR+4*half}, v{hR+4*half}, v{hR+4*half+2}")
    a(f"v_lshlrev_b32 v{vt[0]}, 2, v{vL}")
    a(f"ds_write_b32 v{vt[0]}, v{hR} offset:{QB}")
    a(f"ds_write_b32 v{vt[0]}, v{hR+4} offset:{QB+256}")
    a("s_waitcnt lgkmcnt(0)")
    a(f"ds_write_b32 v{vZ}, v{vNon} offset:{F_NON}")
    a.label("L_xskip")
    if opts.get("hstop") == 1: a("s_branch L_end")
    a.c("ffn phase 1: rows 36j+9hw..+9, cols hp*288..+288 (36 lanes x 16B)")
    a(f"s_mul_i32 s{sTmp}, s{sJ}, 36")
    a(f"s_mul_i32 s{sTmp2}, s{sHW}, 9")
    a(f"s_add_u32 s{sTmp}, s{sTmp}, s{sTmp2}")
    a(f"s_lshl_b32 s{sA0}, s{sTmp}, 2")
    a(f"s_mul_i32 s{sOff}, s{sTmp}, 9216")
    a(f"s_mul_i32 s{sTmp2}, s{sHP}, 576")
    a(f"s_add_u32 s{sOff}, s{sOff}, s{sTmp2}")
    a(f"v_lshlrev_b32 v{vt[0]}, 4, v{vL}")
    a("s_mov_b32 exec_hi, 0xf")
    for r in range(9):
        a(f"buffer_load_dwordx4 {vr(hR+8*r,4)}, v{vt[0]}, {srd(rWG)}, s{sOff} offen{WP}")
        a(f"buffer_load_dwordx4 {vr(hR+8*r+4,4)}, v{vt[0]}, {srd(rWU)}, s{sOff} offen{WP}")
        a(f"s_add_u32 s{sOff}, s{sOff}, 9216")
    a("s_mov_b64 exec, -1")
    if opts.get("hstop") == 2:
        a("s_waitcnt vmcnt(0)"); a("s_branch L_end")
    hW2 = 136
    vR3, vC18, vW2o = 15, 16, 17
    a(f"v_mul_u32_u24 v{vR3}, 57, v{vL}")
    a(f"v_lshrrev_b32 v{vR3}, 10, v{vR3}")
    a(f"v_mul_u32_u24 v{vC18}, 18, v{vR3}")
    a(f"v_sub_u32 v{vC18}, v{vL}, v{vC18}")
    a(f"s_mul_i32 s{sTmp}, s{sHW}, 3")
    a(f"v_add_u32 v{vR3}, s{sTmp}, v{vR3}")
    a(f"s_mov_b32 s{sTmp}, 1152")
    a(f"v_mul_lo_u32 v{vW2o}, v{vR3}, s{sTmp}")
    a(f"v_lshl_add_u32 v{vW2o}, v{vC18}, 4, v{vW2o}")
    a(f"s_mul_i32 s{sTmp}, s{sCQ}, 288")
    a(f"v_add_u32 v{vW2o}, s{sTmp}, v{vW2o}")
    a(f"s_lshl_b32 s{sTmp}, s{sHP}, 2")
    a(f"s_add_u32 s{sTmp}, s{sTmp}, s{sRQ}")
    a(f"s_mul_i32 s{sOff}, s{sTmp}, {64*1152}")
    a(f"s_mul_i32 s{sA1}, s{sTmp}, {72*1152}")
    def wo_loads():
        a(f"s_lshl_b32 s{sTmp}, s{sHP}, 2")
        a(f"s_add_u32 s{sTmp}, s{sTmp}, s{sRQ}")
        a(f"s_mul_i32 s{sOff}, s{sTmp}, {64*1152}")
        for i in range(6):
            a(f"v_add_u32 v{vt[1]}, {12*i}, v{vR3}")
            a(f"v_cmp_gt_u32 vcc, 64, v{vt[1]}")
            a(f"s_mov_b32 s{sEx}, -1")
            a(f"s_mov_b32 s{sEx+1}, 0x3fffff")
            a(f"s_and_b64 vcc, vcc, s[{sEx}:{sEx+1}]")
            for e in range(4):
                a(f"v_mov_b32 v{hW2+4*i+e}, 0")
            a("s_mov_b64 exec, vcc")
            lk = a.newlabel("w2s")
            a(f"s_cbranch_execz {lk}")
            a(f"buffer_load_dwordx4 {vr(hW2+4*i,4)}, v{vW2o}, {srd(rWO)}, s{sOff} offen{WP}")
            a.label(lk)
            a("s_mov_b64 exec, -1")
            a(f"s_add_u32 s{sOff}, s{sOff}, {12*1152}")
    if not opts.get("wolate", 1): wo_loads()
    for i in range(6):
        for e in range(4):
            a(f"v_mov_b32 v{hW2+4*i+e}, 0")
    a("s_mov_b32 exec_hi, 0x3fffff")
    for i in range(6):
        a(f"buffer_load_dwordx4 {vr(hW2+4*i,4)}, v{vW2o}, {srd(rWD)}, s{sA1} offen{WP}")
        a(f"s_add_u32 s{sA1}, s{sA1}, {12*1152}")
    a("s_mov_b64 exec, -1")
    a(f"v_mov_b32 v{vt[1]}, s{sA0}")
    for r in range(9):
        a(f"ds_read_b32 v{hX+r}, v{vt[1]} offset:{XN + r*4}")
    xr = [hX + r for r in range(9)]
    fac = [hA + i for i in range(16)]
    a("s_waitcnt vmcnt(6) lgkmcnt(0)")
    a("s_waitcnt vmcnt(0)") if opts.get("safe_ffn", 1) else None
    for r in range(9):
        for mt in range(2):
            for dd in range(4):
                rg = hR + 8 * r + 4 * mt + dd
                a(f"v_lshlrev_b32 v{vt[2]}, 16, v{rg}")
                a(f"v_and_b32 v{vt[3]}, 0xffff0000, v{rg}")
                if r == 0:
                    a(f"v_mul_f32 v{fac[8*mt+2*dd]}, v{vt[2]}, v{xr[r]}")
                    a(f"v_mul_f32 v{fac[8*mt+2*dd+1]}, v{vt[3]}, v{xr[r]}")
                else:
                    a(f"v_fmac_f32 v{fac[8*mt+2*dd]}, v{vt[2]}, v{xr[r]}")
                    a(f"v_fmac_f32 v{fac[8*mt+2*dd+1]}, v{vt[3]}, v{xr[r]}")
    a(f"s_mul_i32 s{sTmp}, s{sHW}, 2304")
    a(f"v_lshlrev_b32 v{vt[0]}, 5, v{vL}")
    a(f"v_add_u32 v{vt[0]}, s{sTmp}, v{vt[0]}")
    a("s_mov_b32 exec_hi, 0xf")
    for mt in range(2):
        a(f"ds_write_b128 v{vt[0]}, {vr(fac[8*mt],4)} offset:{FFP + mt*1152}")
        a(f"ds_write_b128 v{vt[0]}, {vr(fac[8*mt+4],4)} offset:{FFP + mt*1152 + 16}")
    a("s_mov_b64 exec, -1")
    lds_arrive(F_FCNT, vt[2], ret=True)
    a(f"s_mov_b32 s{sA0}, s{sTmp}")
    stamp("ffn1_done")
    if opts.get("hstop") == 3: a("s_branch L_end")
    spin_lds(F_NON, 1, vNon)
    a(f"s_mov_b32 s{sNon}, s{sTmp}")
    a(f"s_cmp_lg_u32 s{sA0}, 3")
    a("s_cbranch_scc1 L_fpskip")
    a.c("last arriver: sum 4 partials and publish 576 granules")
    a(f"v_lshlrev_b32 v{vt[0]}, 2, v{vL}")
    for k in range(9):
        for w in range(4):
            a(f"ds_read_b32 v{hR+4*k+w}, v{vt[0]} offset:{FFP + w*2304 + k*256}")
    a(f"s_mul_i32 s{sOff}, s{sWGI}, 4608")
    a(f"s_add_u32 s{sOff}, s{sOff}, {WS_FP}")
    a(f"v_lshlrev_b32 v{vt[0]}, 3, v{vL}")
    a("s_waitcnt lgkmcnt(0)")
    for k in range(9):
        a(f"v_add_f32 v{hR+4*k}, v{hR+4*k}, v{hR+4*k+1}")
        a(f"v_add_f32 v{hR+4*k+2}, v{hR+4*k+2}, v{hR+4*k+3}")
        a(f"v_add_f32 v{hR+4*k}, v{hR+4*k}, v{hR+4*k+2}")
        a(f"v_mov_b32 v{hR+4*k+1}, v{vNon}")
        if k == 8:
            a(f"s_add_u32 s{sOff}, s{sOff}, 4096")
        a(f"buffer_store_dwordx2 {vr(hR+4*k,2)}, v{vt[0]}, {srd(rWS)}, s{sOff} offen offset:{(k%8)*512} sc1")
    a.label("L_fpskip")
    a(f"s_setprio {opts.get('hprio', 1)}")
    a(f"s_cmp_lg_u32 s{sW}, 8")
    a("s_cbranch_scc1 L_rsskip")
    a.c("ffn reduce-scatter")
    a(f"v_cmp_le_u32 vcc, 18, v{vL}")
    a(f"v_mov_b32 v{vt[1]}, {2304-144}")
    a.nop(1)
    a(f"v_cndmask_b32 v{vt[1]}, 0, v{vt[1]}, vcc")
    a(f"v_lshl_add_u32 v{vt[0]}, v{vL}, 3, v{vt[1]}")
    a(f"s_mul_i32 s{sTmp}, s{sJ}, 144")
    a(f"v_add_u32 v{vt[0]}, s{sTmp}, v{vt[0]}")
    spin_lds(F_PROG, opts.get("g1", 24), vt[2], sleep=32)
    a("s_mov_b32 exec_hi, 0xf")
    ls = retry_begin()
    a(f"s_mul_i32 s{sOff}, s{sHP}, {16*4608}")
    a(f"s_add_u32 s{sOff}, s{sOff}, {WS_FP}")
    for p in range(16):
        a(f"buffer_load_dwordx2 {vr(hR+2*p,2)}, v{vt[0]}, {srd(rWS)}, s{sOff} offen sc1")
        a(f"s_add_u32 s{sOff}, s{sOff}, 4608")
    retry_end(ls, [hR + 2 * p + 1 for p in range(16)], vt[1], vt[2], sleep=32)
    for p in range(1, 16):
        a(f"v_add_f32 v{hR}, v{hR}, v{hR+2*p}")
    a("s_mov_b64 exec, -1")
    bf16_round(a, hR, hR)
    a(f"v_add_u32 v{vt[0]}, 18, v{vL}")
    a(f"v_lshlrev_b32 v{vt[0]}, 2, v{vt[0]}")
    a(f"v_and_b32 v{vt[0]}, 0xff, v{vt[0]}")
    a(f"ds_bpermute_b32 v{hR+1}, v{vt[0]}, v{hR}")
    silu(hR)
    a("s_waitcnt lgkmcnt(0)")
    a(f"v_mul_f32 v{hR}, v{hR}, v{hR+1}")
    bf16_round(a, hR, hR)
    a(f"v_mov_b32 v{hR+1}, v{vNon}")
    a(f"s_mul_i32 s{sOff}, s{sWGI}, 144")
    a(f"s_add_u32 s{sOff}, s{sOff}, {WS_HB}")
    a(f"v_lshlrev_b32 v{vt[0]}, 3, v{vL}")
    a("s_mov_b64 exec, 0x3ffff")
    a(f"buffer_store_dwordx2 {vr(hR,2)}, v{vt[0]}, {srd(rWS)}, s{sOff} offen sc1")
    a("s_mov_b64 exec, -1")
    stamp("h_pub")
    a.c("all-gather h[hp*288 + rq*72 ..+72] -> LDS INH (wave 4)")
    a(f"s_lshl_b32 s{sTmp}, s{sHP}, 2")
    a(f"s_add_u32 s{sTmp}, s{sTmp}, s{sRQ}")
    a(f"s_mul_i32 s{sOff}, s{sTmp}, 576")
    a(f"s_add_u32 s{sOff}, s{sOff}, {WS_HB}")
    a(f"v_lshlrev_b32 v{vt[0]}, 4, v{vL}")
    spin_lds(F_PROG, opts.get("g2", 44), vt[2], sleep=32)
    a("s_mov_b32 exec_hi, 0xf")
    ls = retry_begin()
    a(f"buffer_load_dwordx4 {vr(hR,4)}, v{vt[0]}, {srd(rWS)}, s{sOff} offen sc1")
    retry_end(ls, [hR + 1, hR + 3], vt[1], vt[2], sleep=32)
    a(f"v_mov_b32 v{hR+1}, v{hR+2}")
    a(f"v_lshlrev_b32 v{vt[0]}, 3, v{vL}")
    a(f"ds_write_b64 v{vt[0]}, {vr(hR,2)} offset:{INH}")
    a("s_mov_b64 exec, -1")
    lds_arrive(F_H, vt[2])
    a.label("L_rsskip")

    def slice_matmul(inaddr, wbase, fin, cnt_flag, wsbase, tagname):
        a(f"v_lshlrev_b32 v{vt[0]}, 2, v{vR3}")
        for i in range(6):
            a(f"ds_read_b32 v{hX+i}, v{vt[0]} offset:{inaddr + i*48}")
        a("s_waitcnt lgkmcnt(0)")
        fa = [hA + e for e in range(8)]
        for i in range(6):
            for dd in range(4):
                rg = wbase + 4 * i + dd
                a(f"v_lshlrev_b32 v{vt[2]}, 16, v{rg}")
                a(f"v_and_b32 v{vt[3]}, 0xffff0000, v{rg}")
                if i == 0:
                    a(f"v_mul_f32 v{fa[2*dd]}, v{vt[2]}, v{hX+i}")
                    a(f"v_mul_f32 v{fa[2*dd+1]}, v{vt[3]}, v{hX+i}")
                else:
                    a(f"v_fmac_f32 v{fa[2*dd]}, v{vt[2]}, v{hX+i}")
                    a(f"v_fmac_f32 v{fa[2*dd+1]}, v{vt[3]}, v{hX+i}")
        a(f"s_lshl_b32 s{sTmp}, s{sHW}, 11")
        a(f"v_lshlrev_b32 v{vt[0]}, 5, v{vL}")
        a(f"v_add_u32 v{vt[0]}, s{sTmp}, v{vt[0]}")
        a(f"ds_write_b128 v{vt[0]}, {vr(fa[0],4)} offset:{fin}")
        a(f"ds_write_b128 v{vt[0]}, {vr(fa[4],4)} offset:{fin+16}")
        lds_arrive(cnt_flag, vt[2], ret=True)
        lk = a.newlabel("sm")
        a(f"s_cmp_lg_u32 s{sTmp}, 3")
        a(f"s_cbranch_scc1 {lk}")
        a(f"v_lshlrev_b32 v{vt[0]}, 2, v{vL}")
        for k in range(3):
            for w in range(4):
                for r3 in range(3):
                    a(f"ds_read_b32 v{hR+12*k+3*w+r3}, v{vt[0]} offset:{fin + w*2048 + r3*576 + k*256}")
        a(f"s_lshl_b32 s{sTmp}, s{sHP}, 2")
        a(f"s_add_u32 s{sTmp}, s{sTmp}, s{sRQ}")
        a(f"s_lshl_b32 s{sOff}, s{sCQ}, 6")
        a(f"s_add_u32 s{sOff}, s{sOff}, s{sTmp}")
        a(f"s_mul_i32 s{sOff}, s{sOff}, 1152")
        a(f"s_add_u32 s{sOff}, s{sOff}, {wsbase}")
        a(f"v_lshlrev_b32 v{vt[0]}, 3, v{vL}")
        a("s_waitcnt lgkmcnt(0)")
        for k in range(3):
            for q in range(1, 12):
                a(f"v_add_f32 v{hR+12*k}, v{hR+12*k}, v{hR+12*k+q}")
            a(f"v_mov_b32 v{hR+12*k+1}, v{vNon}")
            if k == 2:
                a("s_mov_b64 exec, 0xffff")
            a(f"buffer_store_dwordx2 {vr(hR+12*k,2)}, v{vt[0]}, {srd(rWS)}, s{sOff} offen offset:{k*512} sc1")
        a("s_mov_b64 exec, -1")
        stamp(tagname)
        a.label(lk)

    def fin_gather(wsbase, dst, cntflag, sleep):
        a(f"s_mul_i32 s{sTmp}, s{sHW}, 3")
        a(f"v_subrev_u32 v{vt[4]}, s{sTmp}, v{vR3}")
        a(f"s_mov_b32 s{sTmp}, 1152")
        a(f"v_mul_lo_u32 v{vt[0]}, v{vt[4]}, s{sTmp}")
        a(f"v_lshl_add_u32 v{vt[0]}, v{vC18}, 4, v{vt[0]}")
        a(f"s_lshr_b32 s{sTmp}, s{sJ}, 2")
        a(f"s_lshl_b32 s{sTmp}, s{sTmp}, 6")
        a(f"s_lshl_b32 s{sTmp2}, s{sHW}, 4")
        a(f"s_add_u32 s{sTmp}, s{sTmp}, s{sTmp2}")
        a(f"s_mul_i32 s{sA0}, s{sTmp}, 1152")
        a(f"s_and_b32 s{sTmp}, s{sJ}, 3")
        a(f"s_mul_i32 s{sTmp}, s{sTmp}, 288")
        a(f"s_add_u32 s{sA0}, s{sA0}, s{sTmp}")
        a(f"s_add_u32 s{sA0}, s{sA0}, {wsbase}")
        a(f"v_mov_b32 v{hR+20}, 0")
        a(f"v_mov_b32 v{hR+21}, v{vNon}")
        a(f"v_mov_b32 v{hR+22}, 0")
        a(f"v_mov_b32 v{hR+23}, v{vNon}")
        a("s_mov_b32 exec_hi, 0x3fffff")
        ls = retry_begin()
        a(f"s_mov_b32 s{sOff}, s{sA0}")
        for i in range(6):
            if i == 5:
                a("s_mov_b64 exec, 0x3ffff")
            a(f"buffer_load_dwordx4 {vr(hR+4*i,4)}, v{vt[0]}, {srd(rWS)}, s{sOff} offen sc1")
            a(f"s_add_u32 s{sOff}, s{sOff}, {3*1152}")
        a("s_mov_b32 exec_lo, -1")
        a("s_mov_b32 exec_hi, 0x3fffff")
        retry_end(ls, [hR + 4 * i + e for i in range(6) for e in (1, 3)], vt[1], vt[2], sleep=sleep)
        for i in range(1, 6):
            a(f"v_add_f32 v{hR}, v{hR}, v{hR+4*i}")
            a(f"v_add_f32 v{hR+2}, v{hR+2}, v{hR+4*i+2}")
        a(f"v_mov_b32 v{hR+1}, v{hR+2}")
        a(f"s_lshl_b32 s{sTmp}, s{sHW}, 9")
        a(f"v_lshlrev_b32 v{vt[0]}, 3, v{vL}")
        a(f"v_add_u32 v{vt[0]}, s{sTmp}, v{vt[0]}")
        a(f"ds_write_b64 v{vt[0]}, {vr(hR,2)} offset:{dst}")
        a("s_mov_b64 exec, -1")
        lds_arrive(cntflag, vt[2], ret=True)

    a.c("y-part matmul")
    spin_lds(F_H, 1, vt[2], sleep=32)
    slice_matmul(INH, hW2, FIN2, F_YCNT, WS_Y2, "y_pub")
    a(f"v_lshlrev_b32 v{vt[0]}, 2, v{vL}")
    a(f"ds_write_b32 v{vt[0]}, v{vZ} offset:{INO+256}")
    a(f"s_cmp_lg_u32 s{sHP}, s{sJ}")
    a("s_cbranch_scc1 L_noyg")
    spin_lds(F_PROG, opts.get("g3", 68), vt[2], sleep=32)
    fin_gather(WS_Y2, G2 + 2048, F_Y2CNT, 64)
    a.label("L_noyg")
    stamp("h_idle")
    if opts.get("hstop") == 4: a("s_branch L_end")
    a.c("wg combine")
    if opts.get("wolate", 1) == 2:
        spin_lds(F_PROG, opts.get("g4", 17), vt[2], sleep=8)
        wo_loads()
    spin_lds(F_SCNT, 8, vt[2], sleep=opts.get("hsleep", 2))
    a("s_setprio 3")
    if opts.get("dbgstamp"):
        a(f"s_cmp_lg_u32 s{sW}, 9")
        a("s_cbranch_scc1 L_dbs1")
        a(f"s_cmp_ge_u32 s2, 9")
        a("s_cbranch_scc1 L_dbs1")
        a(f"s_memrealtime s[{sT64}:{sT64+1}]")
        a("s_waitcnt lgkmcnt(0)")
        a(f"s_sub_u32 s{sTmp}, s{sT64}, s{sNon}")
        a(f"v_mov_b32 v{vt[0]}, s{sTmp}")
        a(f"s_lshl_b32 s{sTmp}, s2, 2")
        a(f"s_add_u32 s{sTmp}, s{sTmp}, 28")
        a("s_mov_b64 exec, 1")
        a(f"buffer_store_dword v{vt[0]}, v{vZ}, {srd(rDBG)}, s{sTmp} offen")
        a("s_mov_b64 exec, -1")
        a.label("L_dbs1")
    stamp("s_all")
    a(f"v_and_b32 v{vt[5]}, 255, v0")
    a(f"v_lshlrev_b32 v{vt[0]}, 2, v{vt[5]}")
    a(f"v_lshrrev_b32 v{vt[1]}, 7, v{vt[5]}")
    a(f"v_lshlrev_b32 v{vt[1]}, 2, v{vt[1]}")
    mreg = [hR + i for i in range(8)]
    lreg = [hR + 8 + i for i in range(8)]
    oreg = [hR + 16 + i for i in range(8)]
    for w in range(8):
        a(f"ds_read_b32 v{mreg[w]}, v{vt[1]} offset:{COMB + w*CSTR + 1024}")
        a(f"ds_read_b32 v{lreg[w]}, v{vt[1]} offset:{COMB + w*CSTR + 1032}")
        a(f"ds_read_b32 v{oreg[w]}, v{vt[0]} offset:{COMB + w*CSTR}")
    a("s_waitcnt lgkmcnt(0)")
    M, Lr, Or = hA + 8, hA + 10, hA + 12
    combine(8, mreg, lreg, oreg, M, Lr, Or)
    a(f"v_mov_b32 v{M+1}, v{vNon}")
    a(f"v_mov_b32 v{Lr+1}, v{vNon}")
    a(f"v_mov_b32 v{Or+1}, v{vNon}")
    a(f"s_mul_i32 s{sOff}, s{sWGI}, {PSTR}")
    a(f"v_lshlrev_b32 v{vt[0]}, 3, v{vt[5]}")
    a(f"buffer_store_dwordx2 {vr(Or,2)}, v{vt[0]}, {srd(rWS)}, s{sOff} offen sc1")
    a(f"v_lshlrev_b32 v{vt[1]}, 2, v{vt[1]}")
    a(f"s_and_b32 s{sTmp}, s{sHW}, 1")
    a(f"s_cmp_lg_u32 s{sTmp}, 0")
    a("s_cbranch_scc1 L_mlskip")
    a("s_mov_b64 exec, 1")
    a(f"buffer_store_dwordx4 {vr(M,4)}, v{vt[1]}, {srd(rWS)}, s{sOff} offen offset:2048 sc1")
    a("s_mov_b64 exec, -1")
    a.label("L_mlskip")
    if opts.get("wolate", 1) == 1: wo_loads()
    stamp("published")
    a(f"s_cmp_lg_u32 s{sW}, 8")
    a("s_cbranch_scc1 L_l1skip")
    a.c("level-1 poll")
    a(f"v_and_b32 v{vt[0]}, 15, v{vL}")
    a(f"v_mul_u32_u24 v{vt[0]}, {PSTR}, v{vt[0]}")
    a(f"s_lshr_b32 s{sTmp}, s{sRQ}, 1")
    a(f"s_lshl_b32 s{sTmp}, s{sTmp}, 4")
    a(f"s_mul_i32 s{sA0}, s{sHP}, {16*PSTR}")
    a(f"s_add_u32 s{sA1}, s{sA0}, s{sTmp}")
    THR = opts.get("thr", 15)
    a("s_mov_b64 exec, 0xffff")
    l0, l1 = retry_begin()
    a(f"buffer_load_dwordx4 {vr(hR,4)}, v{vt[0]}, {srd(rWS)}, s{sA1} offen offset:2048 sc1")
    a("s_waitcnt vmcnt(0)")
    a(f"v_cmp_eq_u32 vcc, v{vNon}, v{hR+1}")
    a(f"s_bcnt1_i32_b64 s{sTmp}, vcc")
    a(f"s_cmp_ge_u32 s{sTmp}, {THR}")
    a(f"s_cbranch_scc1 {l1}")
    a(f"s_sub_u32 s{sCnt}, s{sCnt}, 1")
    a(f"s_cmp_eq_u32 s{sCnt}, 0")
    a(f"s_cbranch_scc1 {l1}")
    a(f"s_sleep {opts.get('sleep1', 8)}")
    a(f"s_branch {l0}")
    a.label(l1)
    a("s_mov_b64 exec, -1")
    stamp("polled")
    a(f"s_lshl_b32 s{sTmp}, s{sRQ}, 9")
    a(f"s_add_u32 s{sA0}, s{sA0}, s{sTmp}")
    a(f"v_lshlrev_b32 v{vt[3]}, 3, v{vL}")
    hG = hR + 8
    ls = retry_begin()
    a(f"buffer_load_dwordx4 {vr(hR,4)}, v{vt[0]}, {srd(rWS)}, s{sA1} offen offset:2048 sc1")
    a(f"s_mov_b32 s{sOff}, s{sA0}")
    for p in range(16):
        a(f"buffer_load_dwordx2 {vr(hG+2*p,2)}, v{vt[3]}, {srd(rWS)}, s{sOff} offen sc1")
        a(f"s_add_u32 s{sOff}, s{sOff}, {PSTR}")
    retry_end(ls, [hR + 1, hR + 3] + [hG + 2 * p + 1 for p in range(16)], vt[1], vt[2], sleep=opts.get("sleep2", 2))
    mm, ll = hR + 4, hR + 5
    a(f"v_mov_b32 v{mm}, v{hR}")
    for ctrl in ("quad_perm:[1,0,3,2]", "quad_perm:[2,3,0,1]", "row_half_mirror", "row_mirror"):
        a.nop(2)
        a(f"v_max_f32_dpp v{mm}, v{mm}, v{mm} {ctrl} row_mask:0xf bank_mask:0xf")
    a(f"v_sub_f32 v{hR}, v{hR}, v{mm}")
    a(f"v_exp_f32 v{hR}, v{hR}")
    a.nop(1)
    a(f"v_mul_f32 v{ll}, v{hR}, v{hR+2}")
    for ctrl in ("quad_perm:[1,0,3,2]", "quad_perm:[2,3,0,1]", "row_half_mirror", "row_mirror"):
        a.nop(2)
        a(f"v_add_f32_dpp v{ll}, v{ll}, v{ll} {ctrl} row_mask:0xf bank_mask:0xf")
    a.nop(1)
    a(f"v_readlane_b32 s{sA1}, v{ll}, 0")
    for p in range(16):
        a(f"v_readlane_b32 s{sTmp}, v{hR}, {p}")
        a.nop(2)
        if p == 0:
            a(f"v_mul_f32 v{Or}, s{sTmp}, v{hG}")
        else:
            a(f"v_fmac_f32 v{Or}, s{sTmp}, v{hG+2*p}")
    a(f"v_mov_b32 v{Lr}, s{sA1}")
    a(f"v_rcp_f32 v{vt[3]}, v{Lr}")
    a.nop(1)
    a(f"v_mul_f32 v{vt[4]}, v{Or}, v{vt[3]}")
    a(f"v_fma_f32 v{vt[5]}, -v{vt[4]}, v{Lr}, v{Or}")
    a(f"v_fma_f32 v{Or}, v{vt[5]}, v{vt[3]}, v{vt[4]}")
    bf16_round(a, Or, Or)
    a(f"v_lshlrev_b32 v{vt[0]}, 2, v{vL}")
    a(f"ds_write_b32 v{vt[0]}, v{Or} offset:{INO}")
    lds_arrive(F_O, vt[2])
    stamp("gathered")
    a.label("L_l1skip")
    spin_lds(F_O, 1, vt[2], sleep=0)
    a("s_waitcnt vmcnt(0)")
    slice_matmul(INO, hW2, FIN, F_ZCNT, WS_S2, "s_pub")
    a(f"s_cmp_lg_u32 s{sHP}, s{sJ}")
    a("s_cbranch_scc1 L_end")
    fin_gather(WS_S2, G2, F_S2CNT, 2)
    a(f"s_cmp_lg_u32 s{sTmp}, 3")
    a("s_cbranch_scc1 L_end")
    a.c("final: last arriver sums 4 waves x 3 pp for 36 cols")
    a(f"s_mul_i32 s{sTmp}, s{sJ}, 72")
    a(f"v_lshlrev_b32 v{vt[6]}, 1, v{vL}")
    a(f"v_add_u32 v{vt[6]}, s{sTmp}, v{vt[6]}")
    a("s_mov_b32 exec_hi, 0xf")
    a(f"buffer_load_ushort v{vt[7]}, v{vt[6]}, {srd(rX)}, 0 offen")
    a(f"v_lshlrev_b32 v{vt[0]}, 2, v{vL}")
    for part in range(2):
        for w in range(4):
            for pp in range(3):
                a(f"ds_read_b32 v{hR+12*part+3*w+pp}, v{vt[0]} offset:{G2 + part*2048 + w*512 + pp*144}")
    a("s_waitcnt lgkmcnt(0)")
    for part in range(2):
        for q in range(1, 12):
            a(f"v_add_f32 v{hR+12*part}, v{hR+12*part}, v{hR+12*part+q}")
    sS, sY = hR, hR + 12
    bf16_round(a, sS, sS)
    bf16_round(a, sY, sY)
    silu(sY)
    a(f"v_mul_f32 v{sS}, v{sS}, v{sY}")
    bf16_round(a, sS, sS)
    a("s_waitcnt vmcnt(0)")
    a(f"v_lshlrev_b32 v{vt[7]}, 16, v{vt[7]}")
    a(f"v_add_f32 v{sS}, v{sS}, v{vt[7]}")
    a(f"v_cvt_pk_bf16_f32 v{sS}, v{sS}, v{sS}")
    a(f"buffer_store_short v{sS}, v{vt[6]}, {srd(rOUT)}, 0 offen")
    if opts.get("dbgstamp"):
        a(f"s_memrealtime s[{sT64}:{sT64+1}]")
        a("s_waitcnt lgkmcnt(0)")
        a(f"s_sub_u32 s{sTmp}, s{sT64}, s{sNon}")
        a(f"v_mov_b32 v{vt[0]}, s{sTmp}")
        a(f"s_lshl_b32 s{sTmp}, s{sJ}, 2")
        a(f"s_add_u32 s{sTmp}, s{sTmp}, 4")
        a(f"s_cmp_ge_u32 s{sJ}, 6")
        a("s_cbranch_scc1 L_end")
        a("s_mov_b64 exec, 1")
        a(f"buffer_store_dword v{vt[0]}, v{vZ}, {srd(rDBG)}, s{sTmp} offen")
    if STAMP:
        a("s_waitcnt vmcnt(0)")
    stamp("out")
    a.label("L_end")
    stamp_flush()
    a.label("L_exit")
    a("s_endpgm")
    a.L.append('.section .rodata,"a"')
    a.L.append(".p2align 6")
    a.L.append(f".amdhsa_kernel {KNAME}")
    a.L.append("  .amdhsa_next_free_vgpr 168")
    a.L.append("  .amdhsa_next_free_sgpr 102")
    a.L.append("  .amdhsa_accum_offset 168")
    a.L.append("  .amdhsa_group_segment_fixed_size 0")
    a.L.append("  .amdhsa_kernarg_size 96")
    a.L.append("  .amdhsa_user_sgpr_count 2")
    a.L.append("  .amdhsa_user_sgpr_kernarg_segment_ptr 1")
    a.L.append("  .amdhsa_system_sgpr_workgroup_id_x 1")
    a.L.append("  .amdhsa_float_denorm_mode_32 3")
    a.L.append(".end_amdhsa_kernel")
    return "\n".join(a.L) + "\n"

if __name__ == "__main__":
    out = sys.argv[1] if len(sys.argv) > 1 else "recurrent_scan__gqa_block_cached__swiglu_ffn__decode.s"
    opts = {}
    for kv in sys.argv[2:]:
        k, v = kv.split("=")
        opts[k] = int(v) if v.lstrip("-").isdigit() else v
    txt = gen(opts)
    if opts.get("stamp"):
        txt = txt.replace("\n", "\n; stamps=" + ",".join(opts["names"]) + "\n; nw=12\n", 1)
    open(out, "w").write(txt)
    print("wrote", out)
```

```python
import sys, struct

KNAME = "recurrent_scan__gqa_block_cached__swiglu_ffn__decode_kernel"

def f32bits(x):
    return struct.unpack("<I", struct.pack("<f", x))[0]

class Asm:
    def __init__(self):
        self.L = []
        self.uid = 0
    def __call__(self, s):
        self.L.append("    " + s)
    def label(self, s):
        self.L.append(s + ":")
    def c(self, s):
        self.L.append("    ; " + s)
    def nop(self, n):
        while n > 0:
            k = min(n, 16)
            self(f"s_nop {k-1}")
            n -= k
    def newlabel(self, p):
        self.uid += 1
        return f"L_{p}{self.uid}"

FL = 0
F_NON, F_QCNT, F_FCNT, F_H, F_YCNT, F_SCNT, F_O, F_ZCNT, F_Y2CNT, F_S2CNT, F_PROG, F_TK = [FL + 4 * i for i in range(12)]
XN = 64
QP = XN + 2560
QB = QP + 1024
FFP = QB + 512
COMB = FFP + 9216
CSTR = 1056
INO = COMB + 4 * CSTR
INH = INO + 512
FIN = INH + 512
FIN2 = FIN + 8192
G2 = FIN2 + 8192
QQ = G2 + 4096
LDS_BYTES = QQ + 4096
LDS_BYTES = (LDS_BYTES + 1023) // 1024 * 1024
PSTR = 2176
WS_PART = 0
WS_FP = 256 * PSTR
WS_HB = WS_FP + 256 * 4608
WS_S2 = WS_HB + 4608 * 8
WS_Y2 = WS_S2 + 4 * 64 * 1152
WS_Q = WS_Y2 + 4 * 64 * 1152
WS_CNT = WS_Q + 16 * 8192
WS_BYTES = WS_CNT + 16 * 128
WS_STAMP = 4 << 20

sX, sK, sV, sWQ, sWO, sBX, sWG, sWU, sWD, sOUT, sDBG, sWS = [4 + 2 * i for i in range(12)]
rK, rV, rX, rWQ, rWG, rWU, rWO, rWD, rWS, rOUT, rDBG = [28 + 4 * i for i in range(11)]
sHP, sJ, sW, sWGI = 72, 73, 74, 75
sSelLo, sSelHi, sScale, sLog2e = 76, 77, 78, 79
sA0, sA1, sTmp, sTmp2, sOff, sCnt = 80, 81, 82, 83, 84, 85
sEx = 86
sNon = 88
sB = [89, 90, 91]
sStat, sLeft = 92, 93
sT64 = 94
sRQ, sCQ = 100, 101
OOB = 0x40000000

def srd(r): return f"s[{r}:{r+3}]"
def vr(b, n): return f"v[{b}:{b+n-1}]"

def bf16_round(a, dst, src):
    a(f"v_cvt_pk_bf16_f32 v{dst}, v{src}, v{src}")
    a(f"v_lshlrev_b32 v{dst}, 16, v{dst}")

def cross_rows(a, op, x, t):
    o = f"v_{op}_f32"
    for sw in ("v_permlane32_swap_b32", "v_permlane16_swap_b32"):
        a(f"v_mov_b32 v{t}, v{x}")
        a.nop(2)
        a(f"{sw} v{x}, v{t}")
        a.nop(1)
        a(f"{o} v{x}, v{x}, v{t}")

def wave_allreduce(a, op, x, t):
    o = f"v_{op}_f32"
    for ctrl in ("quad_perm:[1,0,3,2]", "quad_perm:[2,3,0,1]", "row_half_mirror", "row_mirror"):
        a.nop(2)
        a(f"{o}_dpp v{x}, v{x}, v{x} {ctrl} row_mask:0xf bank_mask:0xf")
    cross_rows(a, op, x, t)

def gen(opts):
    a = Asm()
    STAMP = opts.get("stamp", False)
    NS = opts.get("ns", 26)
    NPOOL = (32 - NS) * 64
    MAXPOLL = 0x40000
    WP = "" if opts.get("wdef") else " nt"
    stn = [0]
    names = []
    vL, vST, vNon, vZ = 1, 255, 254, 253
    vt = [2, 3, 4, 5, 6, 7, 8, 9, 10, 11]
    def stamp(name):
        if not STAMP: return
        a(f"s_memrealtime s[{sT64}:{sT64+1}]")
        a("s_waitcnt lgkmcnt(0)")
        a(f"v_writelane_b32 v{vST}, s{sT64}, {stn[0]}")
        names.append(name)
        stn[0] += 1
    def stamp_flush():
        if not STAMP: return
        a("s_mov_b64 exec, -1")
        a(f"s_lshl_b32 s{sTmp}, s2, 3")
        a(f"s_add_u32 s{sTmp}, s{sTmp}, s{sW}")
        a(f"s_lshl_b32 s{sTmp}, s{sTmp}, 8")
        a(f"v_lshlrev_b32 v{vt[8]}, 2, v{vL}")
        a(f"buffer_store_dword v{vST}, v{vt[8]}, s[96:99], s{sTmp} offen")
    opts["names"] = names

    def spin_lds(addr, target, tmpv, ge=True, sleep=1):
        l0, l1 = a.newlabel("sp"), a.newlabel("spx")
        a(f"s_mov_b32 s{sCnt}, 0x2000000")
        a.label(l0)
        a(f"ds_read_b32 v{tmpv}, v{vZ} offset:{addr}")
        a("s_waitcnt lgkmcnt(0)")
        a(f"v_readfirstlane_b32 s{sTmp}, v{tmpv}")
        a(f"s_cmp_ge_u32 s{sTmp}, {target}")
        a(f"s_cbranch_scc1 {l1}")
        a(f"s_sub_u32 s{sCnt}, s{sCnt}, 1")
        a(f"s_cmp_eq_u32 s{sCnt}, 0")
        a(f"s_cbranch_scc1 {l1}")
        a(f"s_sleep {sleep}")
        a(f"s_branch {l0}")
        a.label(l1)
    def lds_arrive(addr, tmpv, ret=False):
        a("s_waitcnt lgkmcnt(0)")
        a(f"v_mov_b32 v{tmpv}, 1")
        a("s_mov_b64 exec, 1")
        if ret:
            a(f"ds_add_rtn_u32 v{tmpv}, v{vZ}, v{tmpv} offset:{addr}")
            a("s_waitcnt lgkmcnt(0)")
            a(f"v_readfirstlane_b32 s{sTmp}, v{tmpv}")
        else:
            a(f"ds_add_u32 v{vZ}, v{tmpv} offset:{addr}")
        a("s_mov_b64 exec, -1")
    def retry_begin():
        l0, l1 = a.newlabel("rt"), a.newlabel("rtx")
        a(f"s_mov_b32 s{sCnt}, {MAXPOLL}")
        a.label(l0)
        return l0, l1
    def retry_end(ls, tagregs, t0, t1, sleep=2):
        l0, l1 = ls
        a("s_waitcnt vmcnt(0)")
        a(f"v_xor_b32 v{t0}, v{vNon}, v{tagregs[0]}")
        for r in tagregs[1:]:
            a(f"v_xor_b32 v{t1}, v{vNon}, v{r}")
            a(f"v_or_b32 v{t0}, v{t0}, v{t1}")
        a(f"v_cmp_ne_u32 vcc, 0, v{t0}")
        a(f"s_cbranch_vccz {l1}")
        a(f"s_sub_u32 s{sCnt}, s{sCnt}, 1")
        a(f"s_cmp_eq_u32 s{sCnt}, 0")
        a(f"s_cbranch_scc1 {l1}")
        a(f"s_sleep {sleep}")
        a(f"s_branch {l0}")
        a.label(l1)
    def silu(x):
        a(f"v_mul_f32 v{vt[2]}, s{sLog2e}, v{x}")
        a(f"v_exp_f32 v{vt[2]}, -v{vt[2]}")
        a.nop(1)
        a(f"v_add_f32 v{vt[2]}, 1.0, v{vt[2]}")
        a(f"v_rcp_f32 v{vt[3]}, v{vt[2]}")
        a.nop(1)
        a(f"v_mul_f32 v{vt[4]}, v{x}, v{vt[3]}")
        a(f"v_fma_f32 v{vt[5]}, -v{vt[4]}, v{vt[2]}, v{x}")
        a(f"v_fma_f32 v{x}, v{vt[5]}, v{vt[3]}, v{vt[4]}")
        a(f"v_cmp_eq_f32 vcc, 0x7f800000, v{vt[2]}")
        a.nop(2)
        a(f"v_cndmask_b32 v{x}, v{x}, v{vt[4]}, vcc")
        bf16_round(a, x, x)
    def combine(n, mreg, lreg, oreg, M, Lr, Or):
        a(f"v_max3_f32 v{M}, v{mreg[0]}, v{mreg[1]}, v{mreg[2]}")
        k = 3
        while k < n:
            if k + 1 < n:
                a(f"v_max3_f32 v{M}, v{M}, v{mreg[k]}, v{mreg[k+1]}"); k += 2
            else:
                a(f"v_max_f32 v{M}, v{M}, v{mreg[k]}"); k += 1
        for w in range(n):
            a(f"v_sub_f32 v{mreg[w]}, v{mreg[w]}, v{M}")
        for w in range(n):
            a(f"v_exp_f32 v{mreg[w]}, v{mreg[w]}")
        a.nop(1)
        a(f"v_mul_f32 v{Lr}, v{mreg[0]}, v{lreg[0]}")
        a(f"v_mul_f32 v{Or}, v{mreg[0]}, v{oreg[0]}")
        for w in range(1, n):
            a(f"v_fmac_f32 v{Lr}, v{mreg[w]}, v{lreg[w]}")
            a(f"v_fmac_f32 v{Or}, v{mreg[w]}, v{oreg[w]}")
    def mk(r, p, off_s=None, size=None):
        if off_s is None:
            a(f"s_mov_b32 s{r}, s{p}")
            a(f"s_and_b32 s{r+1}, s{p+1}, 0xffff")
        else:
            a(f"s_add_u32 s{r}, s{p}, s{off_s}")
            a(f"s_addc_u32 s{r+1}, s{p+1}, 0")
            a(f"s_and_b32 s{r+1}, s{r+1}, 0xffff")
        a(f"s_mov_b32 s{r+2}, {size}")
        a(f"s_mov_b32 s{r+3}, 0x20000")

    a.L.append(f"; @launch grid=(256,1,1) block=(512,1,1) lds={LDS_BYTES}")
    a.L.append('.amdgcn_target "amdgcn-amd-amdhsa--gfx950"')
    a.L.append(".text")
    a.L.append(f".globl {KNAME}")
    a.L.append(".p2align 8")
    a.L.append(f".type {KNAME},@function")
    a.label(KNAME)
    a("s_cmp_ge_u32 s2, 256")
    a("s_cbranch_scc1 L_exit")
    a("s_load_dwordx16 s[4:19], s[0:1], 0")
    a("s_load_dwordx8 s[20:27], s[0:1], 64")
    a(f"s_memrealtime s[{sT64}:{sT64+1}]")
    a(f"v_and_b32 v{vL}, 63, v0")
    a(f"v_lshrrev_b32 v{vt[0]}, 6, v0")
    a(f"s_lshr_b32 s{sHP}, s2, 4")
    a(f"s_and_b32 s{sJ}, s2, 15")
    a(f"v_readfirstlane_b32 s{sW}, v{vt[0]}")
    if opts.get("swap", 1):
        a.nop(1)
        a(f"s_xor_b32 s{sW}, s{sW}, 4")
    a(f"s_mov_b32 s{sWGI}, s2")
    a(f"s_lshr_b32 s{sRQ}, s{sJ}, 2")
    a(f"s_and_b32 s{sCQ}, s{sJ}, 3")
    a(f"s_mov_b32 s{sLog2e}, 0x{f32bits(1.4426950408889634):08x}")
    a(f"v_mov_b32 v{vZ}, 0")
    a(f"v_mov_b32 v{vST}, 0")
    a("s_waitcnt lgkmcnt(0)")
    a(f"s_or_b32 s{sNon}, s{sT64}, 1")
    mk(rWS, sWS, size=WS_BYTES)
    if STAMP:
        a(f"s_add_u32 s96, s{sWS}, {WS_STAMP}")
        a(f"s_addc_u32 s97, s{sWS+1}, 0")
        a(f"s_and_b32 s97, s97, 0xffff")
        a(f"s_mov_b32 s98, {2048*256}")
        a(f"s_mov_b32 s99, 0x20000")
    stamp("start")
    a(f"s_cmp_ge_u32 s{sW}, 4")
    a("s_cbranch_scc1 L_helper")

    vKoff, vVoff, vM, vLs, vMt = 12, 13, 14, 15, 16
    vC = [17, 18]
    vCo = 19
    vQ = 20
    vO = 36
    vD = 68
    vP = 76
    vT = 80
    KS = [88, 120]
    VS = [152, 184, 216]
    a.c("stream wave setup")
    a(f"s_mov_b32 s{sSelLo}, 0x05040100")
    a(f"s_mov_b32 s{sSelHi}, 0x07060302")
    a(f"s_mov_b32 s{sScale}, 0x{f32bits(128 ** -0.5):08x}")
    a(f"v_and_b32 v{vt[0]}, 3, v{vL}")
    a(f"v_lshlrev_b32 v{vt[0]}, 10, v{vt[0]}")
    a(f"v_bfe_u32 v{vt[1]}, v{vL}, 2, 2")
    a(f"v_lshlrev_b32 v{vt[1]}, 8, v{vt[1]}")
    a(f"v_lshrrev_b32 v{vt[2]}, 4, v{vL}")
    a(f"v_lshlrev_b32 v{vt[2]}, 4, v{vt[2]}")
    a(f"v_add3_u32 v{vKoff}, v{vt[0]}, v{vt[1]}, v{vt[2]}")
    a(f"v_lshlrev_b32 v{vVoff}, 4, v{vL}")
    a(f"s_lshl_b32 s{sTmp}, s{sHP}, 24")
    mk(rK, sK, sTmp, size=1 << 24)
    mk(rV, sV, sTmp, size=1 << 24)
    a(f"s_lshl_b32 s{sStat}, s{sJ}, 20")
    a(f"s_lshl_b32 s{sTmp}, s{sW}, 12")
    a(f"s_add_u32 s{sStat}, s{sStat}, s{sTmp}")
    sCl = [36, 37]
    sCA = 38
    a(f"s_lshl_b32 s{sTmp}, s{sHP}, 7")
    a(f"s_add_u32 s{sTmp}, s{sTmp}, {WS_CNT}")
    a(f"s_add_u32 s{sCA}, s{sWS}, s{sTmp}")
    a(f"s_addc_u32 s{sCA+1}, s{sWS+1}, 0")
    a(f"s_mov_b32 s{sCl[0]}, {1 if (NS >= 32 and opts.get('lq', 1)) else 0}")
    a(f"s_mov_b32 s{sCl[1]}, 0")
    a("s_mov_b32 s40, 40")
    def stream_body(sfx, KP, VP):
        def Kload(slot, t, i, sb):
            return f"buffer_load_dwordx4 {vr(slot+16*t+4*i,4)}, v{vKoff}, {srd(rK)}, s{sb} offen offset:{i*64}{KP}"
        def Vload(slot, t, r, sb):
            return f"buffer_load_dwordx4 {vr(slot+16*t+4*r,4)}, v{vVoff}, {srd(rV)}, s{sb} offen offset:{r*1024}{VP}"
        NOCL = 1
        for g in range(2):
            a(f"s_mov_b32 s{sB[g]}, s{sStat}")
            a(f"s_add_u32 s{sOff}, s{sStat}, 16384")
            for t in range(2):
                for i in range(4):
                    a(Kload(KS[g], t, i, sB[g] if t == 0 else sOff))
            if g == 0: a("s_barrier")
            for t in range(2):
                for r in range(4):
                    a(Vload(VS[g], t, r, sB[g] if t == 0 else sOff))
            a(f"s_add_u32 s{sStat}, s{sStat}, 32768")
        a(f"s_mov_b32 s{sLeft}, {NS-2}")
        if opts.get("dry", 0):
            a.c("dry run of the loop body (I-cache warm-up), exec=0")
            a(f"s_mov_b32 s41, s{sStat}"); a(f"s_mov_b32 s42, s{sLeft}")
            a(f"s_mov_b32 s43, s{sB[0]}"); a(f"s_mov_b32 s44, s{sB[1]}")
            a("s_mov_b32 s45, 1")
            a("s_mov_b64 exec, 0")
            a(f"s_branch L_loop{sfx}")
            a.label(f"L_dryend{sfx}")
            a("s_mov_b64 exec, -1")
            a(f"s_mov_b32 s{sStat}, s41"); a(f"s_mov_b32 s{sLeft}, s42")
            a(f"s_mov_b32 s{sB[0]}, s43"); a(f"s_mov_b32 s{sB[1]}, s44")
            a("s_mov_b32 s45, 0")
        if not opts.get("noq"): spin_lds(F_NON, 1, vNon)
        a(f"v_and_b32 v{vt[0]}, 1, v{vL}")
        a(f"v_lshlrev_b32 v{vt[0]}, 8, v{vt[0]}")
        a(f"v_lshrrev_b32 v{vt[1]}, 4, v{vL}")
        a(f"v_lshl_add_u32 v{vt[0]}, v{vt[1]}, 4, v{vt[0]}")
        for i in range(4):
            a(f"ds_read_b128 {vr(vQ+4*i,4)}, v{vt[0]} offset:{QB + i*64}")
        a(f"v_mov_b32 v{vM}, 0xff800000")
        a(f"v_mov_b32 v{vMt}, 0xff800000")
        a(f"v_mov_b32 v{vLs}, 0")
        for i in range(32):
            a(f"v_mov_b32 v{vO+i}, 0")
        a("s_waitcnt lgkmcnt(0)")
        stamp("q_ready") if (sfx == "" or not STAMP) else (stn.__setitem__(0, stn[0]-1), names.pop(), stamp("q_ready"))
        d = [vD + i for i in range(8)]
        a.label(f"L_loop{sfx}")
        for u in range(6):
            a.c(f"==== unrolled group {u} ====")
            ks = KS[u % 2]
            vs = VS[u % 3]
            vsn = VS[(u + 2) % 3]
            b0, b2 = sB[u % 3], sB[(u + 2) % 3]
            cs = sCl[u % 2]
            a(f"s_cmp_ge_u32 s{b0}, {OOB}")
            a("s_cbranch_scc1 L_sdone")
            a(f"s_waitcnt vmcnt({28 if NOCL else 29})")
            for i in range(4):
                cin = "0" if i == 0 else vr(vD, 4)
                a(f"v_mfma_f32_16x16x32_bf16 {vr(vD,4)}, {vr(ks+4*i,4)}, {vr(vQ+4*i,4)}, {cin}")
            if opts.get("lq", 1):
                lk, lsp, ldn = a.newlabel("dyn"), a.newlabel("dsp"), a.newlabel("ddn")
                a(f"s_mov_b32 s{b2}, s{sStat}")
                a(f"s_cmp_gt_i32 s{sLeft}, 0")
                a(f"s_cbranch_scc1 {ldn}")
                a(f"s_mov_b32 s{b2}, {OOB}")
                a(f"s_cmp_lg_u32 s{sCl[0]}, 0")
                a(f"s_cbranch_scc1 {ldn}")
                a(f"v_mov_b32 v{vC[0]}, 1")
                a("s_mov_b64 exec, 1")
                a(f"ds_add_rtn_u32 v{vC[0]}, v{vZ}, v{vC[0]} offset:{F_TK}")
                a("s_waitcnt lgkmcnt(0)")
                a(f"v_lshlrev_b32 v{vC[0]}, 2, v{vC[0]}")
                a(f"s_mov_b32 s{sCnt}, 0x1000000")
                a.label(lsp)
                a(f"ds_read_b32 v{vC[1]}, v{vC[0]} offset:{QQ}")
                a("s_waitcnt lgkmcnt(0)")
                a(f"v_readfirstlane_b32 s{b2}, v{vC[1]}")
                a(f"s_cmp_lg_u32 s{b2}, -1")
                a(f"s_cbranch_scc1 {lk}")
                a(f"s_sub_u32 s{sCnt}, s{sCnt}, 1")
                a(f"s_cmp_lg_u32 s{sCnt}, 0")
                a(f"s_cbranch_scc1 {lsp}")
                a(f"s_mov_b32 s{b2}, {OOB}")
                a.label(lk)
                a("s_mov_b64 exec, -1")
                a(f"s_cmp_ge_u32 s{b2}, {OOB}")
                a(f"s_cselect_b32 s{sCl[0]}, 1, 0")
                a.label(ldn)
                a(f"s_add_u32 s{sStat}, s{sStat}, 32768")
                a(f"s_sub_u32 s{sLeft}, s{sLeft}, 1")
                a(f"s_add_u32 s{sOff}, s{b2}, 16384")
            else:
                a("s_waitcnt lgkmcnt(0)")
                a(f"s_mov_b32 s{sTmp}, s{cs}")
                NT = max(4 * (32 - NS), 1)
                assert NT & (NT - 1) == 0
                if opts.get("porder", 1) == 1:
                    a(f"s_lshr_b32 s{sA0}, s{sTmp}, {NT.bit_length()-1}")
                    a(f"s_lshl_b32 s{sA0}, s{sA0}, 20")
                    a(f"s_and_b32 s{sA1}, s{sTmp}, {NT-1}")
                else:
                    a(f"s_and_b32 s{sA0}, s{sTmp}, 15")
                    a(f"s_lshl_b32 s{sA0}, s{sA0}, 20")
                    a(f"s_lshr_b32 s{sA1}, s{sTmp}, 4")
                a(f"s_and_b32 s{sOff}, s{sA1}, 3")
                a(f"s_lshr_b32 s{sA1}, s{sA1}, 2")
                a(f"s_lshl_b32 s{sA1}, s{sA1}, 3")
                a(f"s_add_u32 s{sA1}, s{sA1}, s{sOff}")
                a(f"s_add_u32 s{sA1}, s{sA1}, {NS*8}")
                a(f"s_lshl_b32 s{sA1}, s{sA1}, 12")
                a(f"s_add_u32 s{sA0}, s{sA0}, s{sA1}")
                a(f"s_cmp_lt_u32 s{sTmp}, {NPOOL}")
                a(f"s_cselect_b32 s{sA0}, s{sA0}, {OOB}")
                a(f"s_cmp_gt_i32 s{sLeft}, 0")
                a(f"s_cselect_b32 s{b2}, s{sStat}, s{sA0}")
                a(f"s_add_u32 s{sStat}, s{sStat}, 32768")
                a(f"s_sub_u32 s{sLeft}, s{sLeft}, 1")
                a(f"s_add_u32 s{sOff}, s{b2}, 16384")
                lk = a.newlabel("ncl")
                a(f"s_cmp_lt_i32 s{sLeft}, 2")
                a(f"s_cbranch_scc0 {lk}")
                a(f"s_mov_b32 s{cs}, 1")
                a(f"s_atomic_add s{cs}, s[{sCA}:{sCA+1}], 0x0 glc")
                a.label(lk)
            a(f"s_waitcnt vmcnt({24 if NOCL else 25})")
            for i in range(4):
                cin = "0" if i == 0 else vr(vD + 4, 4)
                a(f"v_mfma_f32_16x16x32_bf16 {vr(vD+4,4)}, {vr(ks+16+4*i,4)}, {vr(vQ+4*i,4)}, {cin}")
            a.nop(4)
            S = []
            tt = vt
            for k in range(4):
                S.append(f"v_cvt_pk_bf16_f32 v{tt[k]}, v{d[2*k]}, v{d[2*k+1]}")
            for k in range(4):
                S.append(f"v_lshlrev_b32 v{d[2*k]}, 16, v{tt[k]}")
                S.append(f"v_and_b32 v{d[2*k+1]}, 0xffff0000, v{tt[k]}")
            for k in range(8):
                S.append(f"v_mul_f32 v{d[k]}, s{sScale}, v{d[k]}")
            for k in range(4):
                S.append(f"v_cvt_pk_bf16_f32 v{tt[k]}, v{d[2*k]}, v{d[2*k+1]}")
            for k in range(4):
                S.append(f"v_lshlrev_b32 v{d[2*k]}, 16, v{tt[k]}")
                S.append(f"v_and_b32 v{d[2*k+1]}, 0xffff0000, v{tt[k]}")
            mx = tt[4]
            S.append(f"v_max3_f32 v{mx}, v{d[0]}, v{d[1]}, v{d[2]}")
            S.append(f"v_max3_f32 v{mx}, v{mx}, v{d[3]}, v{d[4]}")
            S.append(f"v_max3_f32 v{mx}, v{mx}, v{d[5]}, v{d[6]}")
            S.append(f"v_max3_f32 v{mx}, v{mx}, v{d[7]}, v{vM}")
            for sw in ("v_permlane32_swap_b32", "v_permlane16_swap_b32"):
                S.append(f"v_mov_b32 v{tt[5]}, v{mx}")
                S.append("s_nop 1")
                S.append(f"{sw} v{mx}, v{tt[5]}")
                S.append("s_nop 0")
                S.append(f"v_max_f32 v{mx}, v{mx}, v{tt[5]}")
            S.append(f"v_mul_f32 v{tt[5]}, s{sLog2e}, v{mx}")
            al = tt[6]
            S.append(f"v_sub_f32 v{al}, v{vMt}, v{tt[5]}")
            S.append(f"v_exp_f32 v{al}, v{al}")
            S.append(f"v_mov_b32 v{vM}, v{mx}")
            S.append(f"v_mov_b32 v{vMt}, v{tt[5]}")
            for k in range(8):
                S.append(f"v_fma_f32 v{d[k]}, v{d[k]}, s{sLog2e}, -v{vMt}")
            for k in range(8):
                S.append(f"v_exp_f32 v{d[k]}, v{d[k]}")
            S.append(f"v_readlane_b32 s{sA0}, v{al}, 0")
            S.append(f"v_readlane_b32 s{sA1}, v{al}, 1")
            S.append(f"v_mul_f32 v{vLs}, v{vLs}, v{al}")
            for k in range(4):
                S.append(f"v_cvt_pk_bf16_f32 v{vP+k}, v{d[2*k]}, v{d[2*k+1]}")
            for k in range(8):
                S.append(f"v_add_f32 v{vLs}, v{vLs}, v{d[k]}")
            for i in range(8):
                S.append(f"v_mul_f32 v{vO+4*i}, s{sA0}, v{vO+4*i}")
                S.append(f"v_mul_f32 v{vO+4*i+1}, s{sA1}, v{vO+4*i+1}")
            KL = [Kload(ks, t, i, b2 if t == 0 else sOff) for t in range(2) for i in range(4)]
            a(KL[0]); a(KL[1])
            a.nop(3)
            if opts.get("nosm"): S = S[:8]
            step = max(1, len(S) // 7)
            if opts.get("burst"): step = 1
            kq = 2
            for n, ins in enumerate(S):
                a(ins)
                if (n + 1) % step == 0 and kq < 8:
                    a(KL[kq]); kq += 1
            while kq < 8:
                a(KL[kq]); kq += 1
            a(f"s_waitcnt vmcnt({24 if NOCL else 26})")
            VL = [Vload(vsn, t, r, b2 if t == 0 else sOff) for t in range(2) for r in range(4)]
            def perms(i):
                dd, b = i >> 1, i & 1
                sel = sSelHi if b else sSelLo
                for p in range(4):
                    lo = vs + 4 * (2 * p) + dd
                    hi = vs + 4 * (2 * p + 1) + dd
                    a(f"v_perm_b32 v{vT + 4*(i%2) + p}, v{hi}, v{lo}, s{sel}")
            if not opts.get("nopv"): perms(0)
            for i in range(8):
                if opts.get("nopv"):
                    a(VL[i]); continue
                if i + 1 < 8:
                    perms(i + 1)
                else:
                    a.nop(2)
                a(f"v_mfma_f32_16x16x32_bf16 {vr(vO+4*i,4)}, {vr(vP,4)}, {vr(vT+4*(i%2),4)}, {vr(vO+4*i,4)}")
                a(VL[i])
        if opts.get("dry", 0):
            a("s_cmp_lg_u32 s45, 0")
            a(f"s_cbranch_scc1 L_dryend{sfx}")
        a(f"v_mov_b32 v{vt[9]}, 1")
        a("s_mov_b64 exec, 1")
        a(f"ds_add_u32 v{vZ}, v{vt[9]} offset:{F_PROG}")
        a("s_mov_b64 exec, -1")
        if STAMP:
            a(f"s_memrealtime s[{sT64}:{sT64+1}]")
            a("s_waitcnt lgkmcnt(0)")
            a("s_mov_b32 m0, s40")
            a(f"v_writelane_b32 v{vST}, s{sT64}, m0")
            a("s_add_u32 s40, s40, 1")
        a(f"s_branch L_loop{sfx}")

    VH0 = opts.get("vh0", 16)
    KH0 = opts.get("kh0", 16)
    if VH0 < 16:
        a(f"s_cmp_ge_u32 s{sHP}, {VH0}")
        a("s_cbranch_scc1 L_streamB")
    stream_body("", " nt", " nt")
    if VH0 < 16:
        a.label("L_streamB")
        if KH0 < 16:
            a(f"s_cmp_ge_u32 s{sHP}, {KH0}")
            a("s_cbranch_scc1 L_streamC")
        stream_body("B", " nt", "")
        if KH0 < 16:
            a.label("L_streamC")
            stream_body("C", "", "")
    a.label("L_sdone")
    stamp("s_done")
    a.c("stream wave: write partial to LDS")
    cross_rows(a, "add", vLs, vt[0])
    a.nop(8)
    a(f"s_mul_i32 s{sTmp}, s{sW}, {CSTR}")
    a(f"v_lshlrev_b32 v{vt[0]}, 5, v{vL}")
    a(f"v_add_u32 v{vt[0]}, s{sTmp}, v{vt[0]}")
    a(f"v_add_u32 v{vt[0]}, {COMB}, v{vt[0]}")
    a(f"v_lshlrev_b32 v{vt[1]}, 2, v{vL}")
    a(f"v_add_u32 v{vt[1]}, s{sTmp}, v{vt[1]}")
    a("s_mov_b64 exec, 0xffff")
    for h in range(2):
        for i in range(0, 8, 2):
            a(f"ds_write2_b32 v{vt[0]}, v{vO+4*i+h}, v{vO+4*(i+1)+h} offset0:{h*128+i} offset1:{h*128+i+1}")
    a("s_mov_b64 exec, 3")
    a(f"ds_write_b32 v{vt[1]}, v{vMt} offset:{COMB+1024}")
    a(f"ds_write_b32 v{vt[1]}, v{vLs} offset:{COMB+1032}")
    a("s_mov_b64 exec, -1")
    lds_arrive(F_SCNT, vt[2])
    a("s_branch L_end")

    a.label("L_helper")
    a.c("helper setup")
    a("s_setprio 3")
    sHW = sB[0]
    a(f"s_sub_u32 s{sHW}, s{sW}, 4")
    a(f"s_cmp_lg_u32 s{sW}, 7")
    a("s_cbranch_scc1 L_nz")
    a(f"v_lshlrev_b32 v{vt[0]}, 2, v{vL}")
    a("s_mov_b64 exec, 0xffff")
    a(f"ds_write_b32 v{vt[0]}, v{vZ} offset:{FL}")
    a("s_mov_b64 exec, -1")
    a(f"v_lshlrev_b32 v{vt[0]}, 4, v{vL}")
    for e in range(4):
        a(f"v_mov_b32 v{16+e}, -1")
    for k in range(4):
        a(f"ds_write_b128 v{vt[0]}, v[16:19] offset:{QQ + k*1024}")
    a("s_waitcnt lgkmcnt(0)")
    a.label("L_nz")
    mk(rX, sX, size=1152)
    mk(rWQ, sWQ, size=576 * 8192)
    mk(rDBG, sDBG, size=256)
    hX = 16
    hW = 28
    hF = 48
    hA = 60
    hR = 76
    if opts.get("h0"):
        a("s_barrier"); a("s_branch L_end")
    a(f"s_cmp_eq_u32 s{sW}, 7")
    a("s_cbranch_scc1 L_w7start")
    a(f"v_lshlrev_b32 v{vt[3]}, 2, v{vL}")
    for j in range(5):
        a(f"buffer_load_dword v{hX+j}, v{vt[3]}, {srd(rX)}, 0 offen offset:{j*256}")
    a(f"v_lshrrev_b32 v{vt[0]}, 3, v{vL}")
    a(f"s_mul_i32 s{sTmp}, s{sRQ}, 144")
    a(f"s_mul_i32 s{sTmp2}, s{sHW}, 48")
    a(f"s_add_u32 s{sTmp}, s{sTmp}, s{sTmp2}")
    a(f"v_add_u32 v{vt[1]}, s{sTmp}, v{vt[0]}")
    a(f"v_lshlrev_b32 v{vt[5]}, 2, v{vt[1]}")
    a(f"v_lshlrev_b32 v{vt[4]}, 13, v{vt[1]}")
    a(f"v_and_b32 v{vt[1]}, 7, v{vL}")
    a(f"v_lshl_add_u32 v{vt[4]}, v{vt[1]}, 4, v{vt[4]}")
    a(f"s_lshl_b32 s{sTmp}, s{sHP}, 9")
    a(f"s_lshl_b32 s{sTmp2}, s{sCQ}, 7")
    a(f"s_add_u32 s{sTmp}, s{sTmp}, s{sTmp2}")
    a(f"v_add_u32 v{vt[4]}, s{sTmp}, v{vt[4]}")
    for i in range(6):
        a(f"s_mov_b32 s{sOff}, {i*8*8192}")
        a(f"buffer_load_dwordx4 {vr(hR+4*i,4)}, v{vt[4]}, {srd(rWQ)}, s{sOff} offen{WP}")
    a("s_branch L_nononce")
    a.label("L_w7start")
    a(f"s_mov_b32 s{sB[1]}, s{sNon}")
    a(f"s_mov_b32 s{sB[2]}, 0")
    a(f"s_atomic_cmpswap s[{sB[1]}:{sB[2]}], s[{sDBG}:{sDBG+1}], 0x0 glc")
    a("s_mov_b64 exec, 1")
    a(f"s_lshl_b32 s{sTmp}, s{sHP}, 7")
    a(f"s_lshl_b32 s{sTmp2}, s{sJ}, 2")
    a(f"s_add_u32 s{sTmp}, s{sTmp}, s{sTmp2}")
    a(f"s_add_u32 s{sTmp}, s{sTmp}, {WS_CNT}")
    a(f"buffer_store_dword v{vZ}, v{vZ}, {srd(rWS)}, s{sTmp} offen sc1")
    a("s_mov_b64 exec, -1")
    a.label("L_nononce")
    a("s_barrier")
    if opts.get("nohelp"): a("s_branch L_end")
    mk(rWG, sWG, size=576 * 9216)
    mk(rWU, sWU, size=576 * 9216)
    mk(rWO, sWO, size=4096 * 1152)
    mk(rWD, sWD, size=4608 * 1152)
    mk(rOUT, sOUT, size=1152)
    a(f"s_cmp_eq_u32 s{sW}, 7")
    a("s_cbranch_scc1 L_w7x")
    a.c("layernorm")
    a("s_waitcnt vmcnt(6)")
    stamp("x_arrived")
    xf = [hF + i for i in range(10)]
    for j in range(5):
        a(f"v_lshlrev_b32 v{xf[2*j]}, 16, v{hX+j}")
        a(f"v_and_b32 v{xf[2*j+1]}, 0xffff0000, v{hX+j}")
    s_ = vt[0]
    a(f"v_add_f32 v{s_}, v{xf[0]}, v{xf[1]}")
    for i in range(2, 10):
        a(f"v_add_f32 v{s_}, v{s_}, v{xf[i]}")
    wave_allreduce(a, "add", s_, vt[1])
    a(f"v_mul_f32 v{s_}, 0x{f32bits(1.0/576):08x}, v{s_}")
    a(f"v_cmp_gt_u32 vcc, 32, v{vL}")
    q_ = vt[2]
    a(f"v_mov_b32 v{q_}, 0")
    for i in range(10):
        a(f"v_sub_f32 v{vt[1]}, v{xf[i]}, v{s_}")
        if i >= 8:
            a(f"v_cndmask_b32 v{vt[1]}, 0, v{vt[1]}, vcc")
        a(f"v_fmac_f32 v{q_}, v{vt[1]}, v{vt[1]}")
    wave_allreduce(a, "add", q_, vt[1])
    a(f"v_mul_f32 v{q_}, 0x{f32bits(1.0/576):08x}, v{q_}")
    bf16_round(a, s_, s_)
    bf16_round(a, q_, q_)
    a(f"v_add_f32 v{q_}, 0x{f32bits(1e-5):08x}, v{q_}")
    bf16_round(a, q_, q_)
    a(f"v_sqrt_f32 v{q_}, v{q_}")
    a.nop(1)
    bf16_round(a, q_, q_)
    rc = vt[1]
    a(f"v_rcp_f32 v{rc}, v{q_}")
    a.nop(1)
    for i in range(10):
        dd = xf[i]
        a(f"v_sub_f32 v{dd}, v{dd}, v{s_}")
        bf16_round(a, dd, dd)
        a(f"v_mul_f32 v{vt[6]}, v{dd}, v{rc}")
        a(f"v_fma_f32 v{vt[7]}, -v{vt[6]}, v{q_}, v{dd}")
        a(f"v_fma_f32 v{dd}, v{vt[7]}, v{rc}, v{vt[6]}")
        bf16_round(a, dd, dd)
        if i >= 8:
            a(f"v_cndmask_b32 v{dd}, 0, v{dd}, vcc")
    a(f"v_lshlrev_b32 v{vt[0]}, 3, v{vL}")
    for j in range(5):
        a(f"ds_write_b64 v{vt[0]}, {vr(xf[2*j],2)} offset:{XN + j*512}")
    a.c("q slice")
    for i in range(6):
        a(f"ds_read_b32 v{hX+i}, v{vt[5]} offset:{XN + i*32}")
    acc = [hA + i for i in range(8)]
    a("s_waitcnt vmcnt(0) lgkmcnt(0)")
    for i in range(6):
        for dd in range(4):
            r = hR + 4 * i + dd
            a(f"v_lshlrev_b32 v{vt[0]}, 16, v{r}")
            a(f"v_and_b32 v{vt[1]}, 0xffff0000, v{r}")
            if i == 0:
                a(f"v_mul_f32 v{acc[2*dd]}, v{vt[0]}, v{hX+i}")
                a(f"v_mul_f32 v{acc[2*dd+1]}, v{vt[1]}, v{hX+i}")
            else:
                a(f"v_fmac_f32 v{acc[2*dd]}, v{vt[0]}, v{hX+i}")
                a(f"v_fmac_f32 v{acc[2*dd+1]}, v{vt[1]}, v{hX+i}")
    a.nop(2)
    for ctrl in ("row_ror:8",):
        for e in range(8):
            a(f"v_add_f32_dpp v{acc[e]}, v{acc[e]}, v{acc[e]} {ctrl} row_mask:0xf bank_mask:0xf")
    tq = [hW + i for i in range(8)]
    for sw in ("v_permlane32_swap_b32", "v_permlane16_swap_b32"):
        for e in range(8):
            a(f"v_mov_b32 v{tq[e]}, v{acc[e]}")
        for e in range(8):
            a(f"{sw} v{acc[e]}, v{tq[e]}")
        for e in range(8):
            a(f"v_add_f32 v{acc[e]}, v{acc[e]}, v{tq[e]}")
    a(f"s_lshl_b32 s{sTmp}, s{sHW}, 8")
    a(f"v_lshlrev_b32 v{vt[0]}, 5, v{vL}")
    a(f"v_add_u32 v{vt[0]}, s{sTmp}, v{vt[0]}")
    a("s_mov_b64 exec, 0xff")
    a(f"ds_write_b128 v{vt[0]}, {vr(acc[0],4)} offset:{QP}")
    a(f"ds_write_b128 v{vt[0]}, {vr(acc[4],4)} offset:{QP+16}")
    a("s_mov_b64 exec, -1")
    lds_arrive(F_QCNT, vt[2])
    stamp("qpart_done")
    a("s_branch L_xskip")
    a.label("L_w7x")
    a.c("q exchange (wave 7)")
    spin_lds(F_QCNT, 3, vt[2], sleep=0)
    a(f"v_lshlrev_b32 v{vt[0]}, 2, v{vL}")
    for w in range(3):
        a(f"ds_read_b32 v{hW+w}, v{vt[0]} offset:{QP + w*256}")
    a("s_waitcnt vmcnt(0) lgkmcnt(0)")
    a(f"s_cmp_eq_u32 s{sB[1]}, 0")
    a(f"s_cselect_b32 s{sNon}, s{sNon}, s{sB[1]}")
    for w in range(1, 3):
        a(f"v_add_f32 v{hW}, v{hW}, v{hW+w}")
    a(f"v_mov_b32 v{hW+1}, s{sNon}")
    a(f"v_mov_b32 v{vNon}, s{sNon}")
    a(f"s_lshl_b32 s{sOff}, s{sHP}, 13")
    a(f"s_add_u32 s{sOff}, s{sOff}, {WS_Q}")
    a(f"s_lshl_b32 s{sTmp}, s{sRQ}, 11")
    a(f"s_lshl_b32 s{sTmp2}, s{sCQ}, 9")
    a(f"s_add_u32 s{sTmp}, s{sTmp}, s{sTmp2}")
    a(f"s_add_u32 s{sTmp}, s{sTmp}, s{sOff}")
    a(f"v_lshlrev_b32 v{vt[0]}, 3, v{vL}")
    a(f"buffer_store_dwordx2 {vr(hW,2)}, v{vt[0]}, {srd(rWS)}, s{sTmp} offen sc1")
    stamp("x_pub")
    a(f"v_lshlrev_b32 v{vt[0]}, 4, v{vL}")
    a(f"s_add_u32 s{sTmp2}, s{sOff}, 4096")
    if opts.get("pdelay", 8): a(f"s_sleep {opts.get('pdelay', 8)}")
    ls = retry_begin()
    for k in range(8):
        a(f"buffer_load_dwordx4 {vr(hR+4*k,4)}, v{vt[0]}, {srd(rWS)}, s{sOff if k < 4 else sTmp2} offen offset:{(k%4)*1024} sc1")
    retry_end(ls, [hR + 4 * k + e for k in range(8) for e in (1, 3)], vt[1], vt[2], sleep=2)
    stamp("x_ok")
    for half in range(2):
        for e in (0, 2):
            for r4 in range(1, 4):
                a(f"v_add_f32 v{hR+4*half+e}, v{hR+4*half+e}, v{hR+4*(2*r4+half)+e}")
        a(f"v_cvt_pk_bf16_f32 v{hR+4*half}, v{hR+4*half}, v{hR+4*half+2}")
    a(f"v_lshlrev_b32 v{vt[0]}, 2, v{vL}")
    a(f"ds_write_b32 v{vt[0]}, v{hR} offset:{QB}")
    a(f"ds_write_b32 v{vt[0]}, v{hR+4} offset:{QB+256}")
    a("s_waitcnt lgkmcnt(0)")
    a(f"ds_write_b32 v{vZ}, v{vNon} offset:{F_NON}")
    a.label("L_xskip")
    if opts.get("hstop") == 1: a("s_branch L_end")
    a.c("ffn phase 1: rows 36j+9hw..+9, cols hp*288..+288 (36 lanes x 16B)")
    a(f"s_mul_i32 s{sTmp}, s{sJ}, 36")
    a(f"s_mul_i32 s{sTmp2}, s{sHW}, 9")
    a(f"s_add_u32 s{sTmp}, s{sTmp}, s{sTmp2}")
    a(f"s_lshl_b32 s{sA0}, s{sTmp}, 2")
    a(f"s_mul_i32 s{sOff}, s{sTmp}, 9216")
    a(f"s_mul_i32 s{sTmp2}, s{sHP}, 576")
    a(f"s_add_u32 s{sOff}, s{sOff}, s{sTmp2}")
    a(f"v_lshlrev_b32 v{vt[0]}, 4, v{vL}")
    a("s_mov_b32 exec_hi, 0xf")
    for r in range(9):
        a(f"buffer_load_dwordx4 {vr(hR+8*r,4)}, v{vt[0]}, {srd(rWG)}, s{sOff} offen{WP}")
        a(f"buffer_load_dwordx4 {vr(hR+8*r+4,4)}, v{vt[0]}, {srd(rWU)}, s{sOff} offen{WP}")
        a(f"s_add_u32 s{sOff}, s{sOff}, 9216")
    a("s_mov_b64 exec, -1")
    if opts.get("hstop") == 2:
        a("s_waitcnt vmcnt(0)"); a("s_branch L_end")
    hW2 = 148
    vR3, vC18, vW2o = 12, 13, 14
    a(f"v_mul_u32_u24 v{vR3}, 57, v{vL}")
    a(f"v_lshrrev_b32 v{vR3}, 10, v{vR3}")
    a(f"v_mul_u32_u24 v{vC18}, 18, v{vR3}")
    a(f"v_sub_u32 v{vC18}, v{vL}, v{vC18}")
    a(f"s_mul_i32 s{sTmp}, s{sHW}, 3")
    a(f"v_add_u32 v{vR3}, s{sTmp}, v{vR3}")
    a(f"s_mov_b32 s{sTmp}, 1152")
    a(f"v_mul_lo_u32 v{vW2o}, v{vR3}, s{sTmp}")
    a(f"v_lshl_add_u32 v{vW2o}, v{vC18}, 4, v{vW2o}")
    a(f"s_mul_i32 s{sTmp}, s{sCQ}, 288")
    a(f"v_add_u32 v{vW2o}, s{sTmp}, v{vW2o}")
    a(f"s_lshl_b32 s{sTmp}, s{sHP}, 2")
    a(f"s_add_u32 s{sTmp}, s{sTmp}, s{sRQ}")
    a(f"s_mul_i32 s{sOff}, s{sTmp}, {64*1152}")
    a(f"s_mul_i32 s{sA1}, s{sTmp}, {72*1152}")
    def wo_loads():
        a(f"s_lshl_b32 s{sTmp}, s{sHP}, 2")
        a(f"s_add_u32 s{sTmp}, s{sTmp}, s{sRQ}")
        a(f"s_mul_i32 s{sOff}, s{sTmp}, {64*1152}")
        for i in range(6):
            a(f"v_add_u32 v{vt[1]}, {12*i}, v{vR3}")
            a(f"v_cmp_gt_u32 vcc, 64, v{vt[1]}")
            a(f"s_mov_b32 s{sEx}, -1")
            a(f"s_mov_b32 s{sEx+1}, 0x3fffff")
            a(f"s_and_b64 vcc, vcc, s[{sEx}:{sEx+1}]")
            for e in range(4):
                a(f"v_mov_b32 v{hW2+4*i+e}, 0")
            a("s_mov_b64 exec, vcc")
            lk = a.newlabel("w2s")
            a(f"s_cbranch_execz {lk}")
            a(f"buffer_load_dwordx4 {vr(hW2+4*i,4)}, v{vW2o}, {srd(rWO)}, s{sOff} offen{WP}")
            a.label(lk)
            a("s_mov_b64 exec, -1")
            a(f"s_add_u32 s{sOff}, s{sOff}, {12*1152}")
    if not opts.get("wolate", 1): wo_loads()
    for i in range(6):
        for e in range(4):
            a(f"v_mov_b32 v{hW2+24+4*i+e}, 0")
    a("s_mov_b32 exec_hi, 0x3fffff")
    for i in range(6):
        a(f"buffer_load_dwordx4 {vr(hW2+24+4*i,4)}, v{vW2o}, {srd(rWD)}, s{sA1} offen{WP}")
        a(f"s_add_u32 s{sA1}, s{sA1}, {12*1152}")
    a("s_mov_b64 exec, -1")
    a(f"v_mov_b32 v{vt[1]}, s{sA0}")
    for r in range(9):
        a(f"ds_read_b32 v{hX+r}, v{vt[1]} offset:{XN + r*4}")
    xr = [hX + r for r in range(9)]
    fac = [hA + i for i in range(16)]
    a("s_waitcnt vmcnt(6) lgkmcnt(0)")
    a("s_waitcnt vmcnt(0)") if opts.get("safe_ffn", 1) else None
    for r in range(9):
        for mt in range(2):
            for dd in range(4):
                rg = hR + 8 * r + 4 * mt + dd
                a(f"v_lshlrev_b32 v{vt[2]}, 16, v{rg}")
                a(f"v_and_b32 v{vt[3]}, 0xffff0000, v{rg}")
                if r == 0:
                    a(f"v_mul_f32 v{fac[8*mt+2*dd]}, v{vt[2]}, v{xr[r]}")
                    a(f"v_mul_f32 v{fac[8*mt+2*dd+1]}, v{vt[3]}, v{xr[r]}")
                else:
                    a(f"v_fmac_f32 v{fac[8*mt+2*dd]}, v{vt[2]}, v{xr[r]}")
                    a(f"v_fmac_f32 v{fac[8*mt+2*dd+1]}, v{vt[3]}, v{xr[r]}")
    a(f"s_mul_i32 s{sTmp}, s{sHW}, 2304")
    a(f"v_lshlrev_b32 v{vt[0]}, 5, v{vL}")
    a(f"v_add_u32 v{vt[0]}, s{sTmp}, v{vt[0]}")
    a("s_mov_b32 exec_hi, 0xf")
    for mt in range(2):
        a(f"ds_write_b128 v{vt[0]}, {vr(fac[8*mt],4)} offset:{FFP + mt*1152}")
        a(f"ds_write_b128 v{vt[0]}, {vr(fac[8*mt+4],4)} offset:{FFP + mt*1152 + 16}")
    a("s_mov_b64 exec, -1")
    lds_arrive(F_FCNT, vt[2], ret=True)
    a(f"s_mov_b32 s{sA0}, s{sTmp}")
    stamp("ffn1_done")
    if opts.get("hstop") == 3: a("s_branch L_end")
    spin_lds(F_NON, 1, vNon)
    a(f"s_mov_b32 s{sNon}, s{sTmp}")
    a(f"s_cmp_lg_u32 s{sA0}, 3")
    a("s_cbranch_scc1 L_fpskip")
    a.c("last arriver: sum 4 partials and publish 576 granules")
    a(f"v_lshlrev_b32 v{vt[0]}, 2, v{vL}")
    for k in range(9):
        for w in range(4):
            a(f"ds_read_b32 v{hR+4*k+w}, v{vt[0]} offset:{FFP + w*2304 + k*256}")
    a(f"s_mul_i32 s{sOff}, s{sWGI}, 4608")
    a(f"s_add_u32 s{sOff}, s{sOff}, {WS_FP}")
    a(f"v_lshlrev_b32 v{vt[0]}, 3, v{vL}")
    a("s_waitcnt lgkmcnt(0)")
    for k in range(9):
        a(f"v_add_f32 v{hR+4*k}, v{hR+4*k}, v{hR+4*k+1}")
        a(f"v_add_f32 v{hR+4*k+2}, v{hR+4*k+2}, v{hR+4*k+3}")
        a(f"v_add_f32 v{hR+4*k}, v{hR+4*k}, v{hR+4*k+2}")
        a(f"v_mov_b32 v{hR+4*k+1}, v{vNon}")
        if k == 8:
            a(f"s_add_u32 s{sOff}, s{sOff}, 4096")
        a(f"buffer_store_dwordx2 {vr(hR+4*k,2)}, v{vt[0]}, {srd(rWS)}, s{sOff} offen offset:{(k%8)*512} sc1")
    a.label("L_fpskip")
    a(f"s_setprio {opts.get('hprio', 1)}")
    a(f"s_cmp_lg_u32 s{sW}, 4")
    a("s_cbranch_scc1 L_rsskip")
    a.c("ffn reduce-scatter")
    a(f"v_cmp_le_u32 vcc, 18, v{vL}")
    a(f"v_mov_b32 v{vt[1]}, {2304-144}")
    a.nop(1)
    a(f"v_cndmask_b32 v{vt[1]}, 0, v{vt[1]}, vcc")
    a(f"v_lshl_add_u32 v{vt[0]}, v{vL}, 3, v{vt[1]}")
    a(f"s_mul_i32 s{sTmp}, s{sJ}, 144")
    a(f"v_add_u32 v{vt[0]}, s{sTmp}, v{vt[0]}")
    spin_lds(F_PROG, opts.get("g1", 4), vt[2], sleep=32)
    a("s_mov_b32 exec_hi, 0xf")
    ls = retry_begin()
    a(f"s_mul_i32 s{sOff}, s{sHP}, {16*4608}")
    a(f"s_add_u32 s{sOff}, s{sOff}, {WS_FP}")
    for p in range(16):
        a(f"buffer_load_dwordx2 {vr(hR+2*p,2)}, v{vt[0]}, {srd(rWS)}, s{sOff} offen sc1")
        a(f"s_add_u32 s{sOff}, s{sOff}, 4608")
    retry_end(ls, [hR + 2 * p + 1 for p in range(16)], vt[1], vt[2], sleep=32)
    for p in range(1, 16):
        a(f"v_add_f32 v{hR}, v{hR}, v{hR+2*p}")
    a("s_mov_b64 exec, -1")
    bf16_round(a, hR, hR)
    a(f"v_add_u32 v{vt[0]}, 18, v{vL}")
    a(f"v_lshlrev_b32 v{vt[0]}, 2, v{vt[0]}")
    a(f"v_and_b32 v{vt[0]}, 0xff, v{vt[0]}")
    a(f"ds_bpermute_b32 v{hR+1}, v{vt[0]}, v{hR}")
    silu(hR)
    a("s_waitcnt lgkmcnt(0)")
    a(f"v_mul_f32 v{hR}, v{hR}, v{hR+1}")
    bf16_round(a, hR, hR)
    a(f"v_mov_b32 v{hR+1}, v{vNon}")
    a(f"s_mul_i32 s{sOff}, s{sWGI}, 144")
    a(f"s_add_u32 s{sOff}, s{sOff}, {WS_HB}")
    a(f"v_lshlrev_b32 v{vt[0]}, 3, v{vL}")
    a("s_mov_b64 exec, 0x3ffff")
    a(f"buffer_store_dwordx2 {vr(hR,2)}, v{vt[0]}, {srd(rWS)}, s{sOff} offen sc1")
    a("s_mov_b64 exec, -1")
    stamp("h_pub")
    a.c("all-gather h[hp*288 + rq*72 ..+72] -> LDS INH (wave 4)")
    a(f"s_lshl_b32 s{sTmp}, s{sHP}, 2")
    a(f"s_add_u32 s{sTmp}, s{sTmp}, s{sRQ}")
    a(f"s_mul_i32 s{sOff}, s{sTmp}, 576")
    a(f"s_add_u32 s{sOff}, s{sOff}, {WS_HB}")
    a(f"v_lshlrev_b32 v{vt[0]}, 4, v{vL}")
    spin_lds(F_PROG, opts.get("g2", 7), vt[2], sleep=32)
    a("s_mov_b32 exec_hi, 0xf")
    ls = retry_begin()
    a(f"buffer_load_dwordx4 {vr(hR,4)}, v{vt[0]}, {srd(rWS)}, s{sOff} offen sc1")
    retry_end(ls, [hR + 1, hR + 3], vt[1], vt[2], sleep=32)
    a(f"v_mov_b32 v{hR+1}, v{hR+2}")
    a(f"v_lshlrev_b32 v{vt[0]}, 3, v{vL}")
    a(f"ds_write_b64 v{vt[0]}, {vr(hR,2)} offset:{INH}")
    a("s_mov_b64 exec, -1")
    lds_arrive(F_H, vt[2])
    a.label("L_rsskip")

    def slice_matmul(inaddr, wbase, fin, cnt_flag, wsbase, tagname):
        a(f"v_lshlrev_b32 v{vt[0]}, 2, v{vR3}")
        for i in range(6):
            a(f"ds_read_b32 v{hX+i}, v{vt[0]} offset:{inaddr + i*48}")
        a("s_waitcnt lgkmcnt(0)")
        fa = [hA + e for e in range(8)]
        for i in range(6):
            for dd in range(4):
                rg = wbase + 4 * i + dd
                a(f"v_lshlrev_b32 v{vt[2]}, 16, v{rg}")
                a(f"v_and_b32 v{vt[3]}, 0xffff0000, v{rg}")
                if i == 0:
                    a(f"v_mul_f32 v{fa[2*dd]}, v{vt[2]}, v{hX+i}")
                    a(f"v_mul_f32 v{fa[2*dd+1]}, v{vt[3]}, v{hX+i}")
                else:
                    a(f"v_fmac_f32 v{fa[2*dd]}, v{vt[2]}, v{hX+i}")
                    a(f"v_fmac_f32 v{fa[2*dd+1]}, v{vt[3]}, v{hX+i}")
        a(f"s_lshl_b32 s{sTmp}, s{sHW}, 11")
        a(f"v_lshlrev_b32 v{vt[0]}, 5, v{vL}")
        a(f"v_add_u32 v{vt[0]}, s{sTmp}, v{vt[0]}")
        a(f"ds_write_b128 v{vt[0]}, {vr(fa[0],4)} offset:{fin}")
        a(f"ds_write_b128 v{vt[0]}, {vr(fa[4],4)} offset:{fin+16}")
        lds_arrive(cnt_flag, vt[2], ret=True)
        lk = a.newlabel("sm")
        a(f"s_cmp_lg_u32 s{sTmp}, 3")
        a(f"s_cbranch_scc1 {lk}")
        a(f"v_lshlrev_b32 v{vt[0]}, 2, v{vL}")
        for k in range(3):
            for w in range(4):
                for r3 in range(3):
                    a(f"ds_read_b32 v{hR+12*k+3*w+r3}, v{vt[0]} offset:{fin + w*2048 + r3*576 + k*256}")
        a(f"s_lshl_b32 s{sTmp}, s{sHP}, 2")
        a(f"s_add_u32 s{sTmp}, s{sTmp}, s{sRQ}")
        a(f"s_lshl_b32 s{sOff}, s{sCQ}, 6")
        a(f"s_add_u32 s{sOff}, s{sOff}, s{sTmp}")
        a(f"s_mul_i32 s{sOff}, s{sOff}, 1152")
        a(f"s_add_u32 s{sOff}, s{sOff}, {wsbase}")
        a(f"v_lshlrev_b32 v{vt[0]}, 3, v{vL}")
        a("s_waitcnt lgkmcnt(0)")
        for k in range(3):
            for q in range(1, 12):
                a(f"v_add_f32 v{hR+12*k}, v{hR+12*k}, v{hR+12*k+q}")
            a(f"v_mov_b32 v{hR+12*k+1}, v{vNon}")
            if k == 2:
                a("s_mov_b64 exec, 0xffff")
            a(f"buffer_store_dwordx2 {vr(hR+12*k,2)}, v{vt[0]}, {srd(rWS)}, s{sOff} offen offset:{k*512} sc1")
        a("s_mov_b64 exec, -1")
        stamp(tagname)
        a.label(lk)

    def fin_gather(wsbase, dst, cntflag, sleep):
        a(f"s_mul_i32 s{sTmp}, s{sHW}, 3")
        a(f"v_subrev_u32 v{vt[4]}, s{sTmp}, v{vR3}")
        a(f"s_mov_b32 s{sTmp}, 1152")
        a(f"v_mul_lo_u32 v{vt[0]}, v{vt[4]}, s{sTmp}")
        a(f"v_lshl_add_u32 v{vt[0]}, v{vC18}, 4, v{vt[0]}")
        a(f"s_lshr_b32 s{sTmp}, s{sJ}, 2")
        a(f"s_lshl_b32 s{sTmp}, s{sTmp}, 6")
        a(f"s_lshl_b32 s{sTmp2}, s{sHW}, 4")
        a(f"s_add_u32 s{sTmp}, s{sTmp}, s{sTmp2}")
        a(f"s_mul_i32 s{sA0}, s{sTmp}, 1152")
        a(f"s_and_b32 s{sTmp}, s{sJ}, 3")
        a(f"s_mul_i32 s{sTmp}, s{sTmp}, 288")
        a(f"s_add_u32 s{sA0}, s{sA0}, s{sTmp}")
        a(f"s_add_u32 s{sA0}, s{sA0}, {wsbase}")
        a(f"v_mov_b32 v{hR+20}, 0")
        a(f"v_mov_b32 v{hR+21}, v{vNon}")
        a(f"v_mov_b32 v{hR+22}, 0")
        a(f"v_mov_b32 v{hR+23}, v{vNon}")
        a("s_mov_b32 exec_hi, 0x3fffff")
        ls = retry_begin()
        a(f"s_mov_b32 s{sOff}, s{sA0}")
        for i in range(6):
            if i == 5:
                a("s_mov_b64 exec, 0x3ffff")
            a(f"buffer_load_dwordx4 {vr(hR+4*i,4)}, v{vt[0]}, {srd(rWS)}, s{sOff} offen sc1")
            a(f"s_add_u32 s{sOff}, s{sOff}, {3*1152}")
        a("s_mov_b32 exec_lo, -1")
        a("s_mov_b32 exec_hi, 0x3fffff")
        retry_end(ls, [hR + 4 * i + e for i in range(6) for e in (1, 3)], vt[1], vt[2], sleep=sleep)
        for i in range(1, 6):
            a(f"v_add_f32 v{hR}, v{hR}, v{hR+4*i}")
            a(f"v_add_f32 v{hR+2}, v{hR+2}, v{hR+4*i+2}")
        a(f"v_mov_b32 v{hR+1}, v{hR+2}")
        a(f"s_lshl_b32 s{sTmp}, s{sHW}, 9")
        a(f"v_lshlrev_b32 v{vt[0]}, 3, v{vL}")
        a(f"v_add_u32 v{vt[0]}, s{sTmp}, v{vt[0]}")
        a(f"ds_write_b64 v{vt[0]}, {vr(hR,2)} offset:{dst}")
        a("s_mov_b64 exec, -1")
        lds_arrive(cntflag, vt[2], ret=True)

    a.c("y-part matmul")
    spin_lds(F_H, 1, vt[2], sleep=32)
    slice_matmul(INH, hW2 + 24, FIN2, F_YCNT, WS_Y2, "y_pub")
    a(f"v_lshlrev_b32 v{vt[0]}, 2, v{vL}")
    a(f"ds_write_b32 v{vt[0]}, v{vZ} offset:{INO+256}")
    a(f"s_cmp_lg_u32 s{sHP}, s{sJ}")
    a("s_cbranch_scc1 L_noyg")
    spin_lds(F_PROG, opts.get("g3", 11), vt[2], sleep=32)
    fin_gather(WS_Y2, G2 + 2048, F_Y2CNT, 64)
    a.label("L_noyg")
    stamp("h_idle")
    if opts.get("hstop") == 4: a("s_branch L_end")
    if opts.get("lq", 1) and NS < 32:
        a.c("dispatcher (wave 5)")
        LA, BB = opts.get("la", 4), opts.get("bb", 2)
        NT = 4 * (32 - NS)
        a(f"s_cmp_lg_u32 s{sW}, 5")
        a("s_cbranch_scc1 L_dskip")
        spin_lds(F_PROG, 4 * ((NS - 4) // 6), vt[2], sleep=16)
        sFil, sP = sB[1], sB[2]
        sVic, sBat = sA0, sA1
        a(f"s_lshl_b32 s{sTmp}, s{sHP}, 7")
        a(f"s_add_u32 s{sTmp2}, s{sTmp}, {WS_CNT}")
        a(f"s_add_u32 s{sEx}, s{sWS}, s{sTmp2}")
        a(f"s_addc_u32 s{sEx+1}, s{sWS+1}, 0")
        a(f"s_mov_b32 s{sFil}, 0")
        a(f"s_mov_b32 s{sVic}, s{sJ}")
        a(f"s_mov_b32 s{sBat}, {BB}")
        a(f"s_mov_b32 s{sCnt}, 0x1000000")
        a(f"v_lshlrev_b32 v{vt[4]}, 2, v{vL}")
        a.label("L_dloop")
        a(f"ds_read_b32 v{vt[2]}, v{vZ} offset:{F_TK}")
        a("s_waitcnt lgkmcnt(0)")
        a(f"v_readfirstlane_b32 s{sTmp}, v{vt[2]}")
        a(f"s_add_u32 s{sTmp}, s{sTmp}, {LA}")
        a(f"s_cmp_lt_u32 s{sFil}, s{sTmp}")
        a("s_cbranch_scc1 L_dclaim")
        a(f"s_sub_u32 s{sCnt}, s{sCnt}, 1")
        a(f"s_cmp_eq_u32 s{sCnt}, 0")
        a("s_cbranch_scc1 L_dend")
        a("s_sleep 2")
        a("s_branch L_dloop")
        a.label("L_dclaim")
        a(f"s_mov_b32 s{sP}, s{sBat}")
        a(f"s_lshl_b32 s{sOff}, s{sVic}, 2")
        a(f"s_atomic_add s{sP}, s[{sEx}:{sEx+1}], s{sOff} glc")
        a("s_waitcnt lgkmcnt(0)")
        a(f"s_sub_i32 s{sTmp}, {NT}, s{sP}")
        a(f"s_max_i32 s{sTmp}, s{sTmp}, 0")
        a(f"s_min_i32 s{sTmp}, s{sTmp}, s{sBat}")
        a(f"s_cmp_eq_u32 s{sTmp}, 0")
        a("s_cbranch_scc1 L_dscan")
        a(f"v_add_u32 v{vt[2]}, s{sP}, v{vL}")
        a(f"v_lshrrev_b32 v{vt[3]}, 2, v{vt[2]}")
        a(f"v_lshlrev_b32 v{vt[3]}, 3, v{vt[3]}")
        a(f"v_and_b32 v{vt[2]}, 3, v{vt[2]}")
        a(f"v_add_u32 v{vt[2]}, v{vt[2]}, v{vt[3]}")
        a(f"v_add_u32 v{vt[2]}, {NS*8}, v{vt[2]}")
        a(f"v_lshlrev_b32 v{vt[2]}, 12, v{vt[2]}")
        a(f"s_lshl_b32 s{sOff}, s{sVic}, 20")
        a(f"v_add_u32 v{vt[1]}, s{sOff}, v{vt[2]}")
        a(f"v_add_u32 v{vt[0]}, s{sFil}, v{vL}")
        a(f"v_lshlrev_b32 v{vt[0]}, 2, v{vt[0]}")
        a(f"s_lshl_b32 s{sOff}, 1, s{sTmp}")
        a(f"s_sub_u32 s{sOff}, s{sOff}, 1")
        a(f"s_mov_b32 exec_lo, s{sOff}")
        a("s_mov_b32 exec_hi, 0")
        a(f"ds_write_b32 v{vt[0]}, v{vt[1]} offset:{QQ}")
        a("s_mov_b64 exec, -1")
        a(f"s_add_u32 s{sFil}, s{sFil}, s{sTmp}")
        a(f"s_cmp_eq_u32 s{sVic}, s{sJ}")
        a("s_cbranch_scc1 L_dloop")
        a.label("L_dwait")
        a(f"ds_read_b32 v{vt[2]}, v{vZ} offset:{F_TK}")
        a("s_waitcnt lgkmcnt(0)")
        a(f"v_readfirstlane_b32 s{sTmp}, v{vt[2]}")
        a(f"s_add_u32 s{sTmp}, s{sTmp}, {opts.get('la2', LA)}")
        a(f"s_cmp_lt_u32 s{sFil}, s{sTmp}")
        a("s_cbranch_scc1 L_dscan")
        a(f"s_sub_u32 s{sCnt}, s{sCnt}, 1")
        a(f"s_cmp_eq_u32 s{sCnt}, 0")
        a("s_cbranch_scc1 L_dend")
        a("s_sleep 2")
        a("s_branch L_dwait")
        a.label("L_dscan")
        a("s_mov_b64 exec, 0xffff")
        a(f"buffer_load_dword v{vt[0]}, v{vt[4]}, {srd(rWS)}, s{sTmp2} offen sc1")
        a("s_waitcnt vmcnt(0)")
        a(f"v_sub_u32 v{vt[0]}, {NT}, v{vt[0]}")
        a(f"v_max_i32 v{vt[0]}, 0, v{vt[0]}")
        a(f"v_subrev_u32 v{vt[1]}, s{sJ}, v{vL}")
        a(f"v_and_b32 v{vt[1]}, 15, v{vt[1]}")
        a(f"v_lshl_add_u32 v{vt[0]}, v{vt[0]}, 4, v{vt[1]}")
        a(f"v_mov_b32 v{vt[1]}, v{vt[0]}")
        for ctrl in ("quad_perm:[1,0,3,2]", "quad_perm:[2,3,0,1]", "row_half_mirror", "row_mirror"):
            a.nop(2)
            a(f"v_max_u32_dpp v{vt[1]}, v{vt[1]}, v{vt[1]} {ctrl} row_mask:0xf bank_mask:0xf")
        a.nop(1)
        a(f"v_readfirstlane_b32 s{sTmp}, v{vt[1]}")
        a("s_mov_b64 exec, -1")
        a(f"s_cmp_lt_u32 s{sTmp}, {16 * opts.get('minrem', 1)}")
        a("s_cbranch_scc1 L_dend")
        a(f"s_and_b32 s{sTmp}, s{sTmp}, 15")
        a(f"s_add_u32 s{sTmp}, s{sTmp}, s{sJ}")
        a(f"s_and_b32 s{sVic}, s{sTmp}, 15")
        a(f"s_mov_b32 s{sBat}, 1")
        a("s_branch L_dclaim")
        a.label("L_dend")
        a(f"v_add_u32 v{vt[0]}, s{sFil}, v{vL}")
        a(f"v_lshlrev_b32 v{vt[0]}, 2, v{vt[0]}")
        a(f"v_mov_b32 v{vt[1]}, {OOB}")
        a("s_mov_b64 exec, 0xff")
        a(f"ds_write_b32 v{vt[0]}, v{vt[1]} offset:{QQ}")
        a("s_mov_b64 exec, -1")
        a.label("L_dskip")
    a.c("wg combine")
    if opts.get("wolate", 1) == 2:
        spin_lds(F_PROG, opts.get("g4", 17), vt[2], sleep=8)
        wo_loads()
    spin_lds(F_SCNT, 4, vt[2], sleep=opts.get("hsleep", 2))
    a("s_setprio 3")
    if opts.get("dbgstamp") == 2:
        a(f"s_cmp_lg_u32 s{sW}, 5")
        a("s_cbranch_scc1 L_dbs1")
        a(f"s_cmp_lg_u32 s{sJ}, 3")
        a("s_cbranch_scc1 L_dbs1")
        a(f"s_cmp_eq_u32 s{sHP}, 0")
        a("s_cbranch_scc1 L_dbs1")
        a(f"s_memrealtime s[{sT64}:{sT64+1}]")
        a("s_waitcnt lgkmcnt(0)")
        a(f"s_sub_u32 s{sTmp}, s{sT64}, s{sNon}")
        a(f"v_mov_b32 v{vt[0]}, s{sTmp}")
        a(f"s_lshl_b32 s{sTmp}, s{sHP}, 2")
        a("s_mov_b64 exec, 1")
        a(f"buffer_store_dword v{vt[0]}, v{vZ}, {srd(rDBG)}, s{sTmp} offen")
        a("s_mov_b64 exec, -1")
        a.label("L_dbs1")
    stamp("s_all")
    a(f"v_and_b32 v{vt[5]}, 255, v0")
    a(f"v_lshlrev_b32 v{vt[0]}, 2, v{vt[5]}")
    a(f"v_lshrrev_b32 v{vt[1]}, 7, v{vt[5]}")
    a(f"v_lshlrev_b32 v{vt[1]}, 2, v{vt[1]}")
    mreg = [hR + i for i in range(4)]
    lreg = [hR + 4 + i for i in range(4)]
    oreg = [hR + 8 + i for i in range(4)]
    for w in range(4):
        a(f"ds_read_b32 v{mreg[w]}, v{vt[1]} offset:{COMB + w*CSTR + 1024}")
        a(f"ds_read_b32 v{lreg[w]}, v{vt[1]} offset:{COMB + w*CSTR + 1032}")
        a(f"ds_read_b32 v{oreg[w]}, v{vt[0]} offset:{COMB + w*CSTR}")
    a("s_waitcnt lgkmcnt(0)")
    M, Lr, Or = hA + 8, hA + 10, hA + 12
    combine(4, mreg, lreg, oreg, M, Lr, Or)
    a(f"v_mov_b32 v{M+1}, v{vNon}")
    a(f"v_mov_b32 v{Lr+1}, v{vNon}")
    a(f"v_mov_b32 v{Or+1}, v{vNon}")
    a(f"s_mul_i32 s{sOff}, s{sWGI}, {PSTR}")
    a(f"v_lshlrev_b32 v{vt[0]}, 3, v{vt[5]}")
    a(f"buffer_store_dwordx2 {vr(Or,2)}, v{vt[0]}, {srd(rWS)}, s{sOff} offen sc1")
    a(f"v_lshlrev_b32 v{vt[1]}, 2, v{vt[1]}")
    a(f"s_and_b32 s{sTmp}, s{sHW}, 1")
    a(f"s_cmp_lg_u32 s{sTmp}, 0")
    a("s_cbranch_scc1 L_mlskip")
    a("s_mov_b64 exec, 1")
    a(f"buffer_store_dwordx4 {vr(M,4)}, v{vt[1]}, {srd(rWS)}, s{sOff} offen offset:2048 sc1")
    a("s_mov_b64 exec, -1")
    a.label("L_mlskip")
    if opts.get("wolate", 1) == 1: wo_loads()
    stamp("published")
    a(f"s_cmp_lg_u32 s{sW}, 4")
    a("s_cbranch_scc1 L_l1skip")
    a.c("level-1 poll")
    a(f"v_and_b32 v{vt[0]}, 15, v{vL}")
    a(f"v_mul_u32_u24 v{vt[0]}, {PSTR}, v{vt[0]}")
    a(f"s_lshr_b32 s{sTmp}, s{sRQ}, 1")
    a(f"s_lshl_b32 s{sTmp}, s{sTmp}, 4")
    a(f"s_mul_i32 s{sA0}, s{sHP}, {16*PSTR}")
    a(f"s_add_u32 s{sA1}, s{sA0}, s{sTmp}")
    THR = opts.get("thr", 15)
    a("s_mov_b64 exec, 0xffff")
    l0, l1 = retry_begin()
    a(f"buffer_load_dwordx4 {vr(hR,4)}, v{vt[0]}, {srd(rWS)}, s{sA1} offen offset:2048 sc1")
    a("s_waitcnt vmcnt(0)")
    a(f"v_cmp_eq_u32 vcc, v{vNon}, v{hR+1}")
    a(f"s_bcnt1_i32_b64 s{sTmp}, vcc")
    a(f"s_cmp_ge_u32 s{sTmp}, {THR}")
    a(f"s_cbranch_scc1 {l1}")
    a(f"s_sub_u32 s{sCnt}, s{sCnt}, 1")
    a(f"s_cmp_eq_u32 s{sCnt}, 0")
    a(f"s_cbranch_scc1 {l1}")
    a(f"s_sleep {opts.get('sleep1', 8)}")
    a(f"s_branch {l0}")
    a.label(l1)
    a("s_mov_b64 exec, -1")
    stamp("polled")
    a(f"s_lshl_b32 s{sTmp}, s{sRQ}, 9")
    a(f"s_add_u32 s{sA0}, s{sA0}, s{sTmp}")
    a(f"v_lshlrev_b32 v{vt[3]}, 3, v{vL}")
    hG = hR + 8
    ls = retry_begin()
    a(f"buffer_load_dwordx4 {vr(hR,4)}, v{vt[0]}, {srd(rWS)}, s{sA1} offen offset:2048 sc1")
    a(f"s_mov_b32 s{sOff}, s{sA0}")
    for p in range(16):
        a(f"buffer_load_dwordx2 {vr(hG+2*p,2)}, v{vt[3]}, {srd(rWS)}, s{sOff} offen sc1")
        a(f"s_add_u32 s{sOff}, s{sOff}, {PSTR}")
    retry_end(ls, [hR + 1, hR + 3] + [hG + 2 * p + 1 for p in range(16)], vt[1], vt[2], sleep=opts.get("sleep2", 2))
    mm, ll = hR + 4, hR + 5
    a(f"v_mov_b32 v{mm}, v{hR}")
    for ctrl in ("quad_perm:[1,0,3,2]", "quad_perm:[2,3,0,1]", "row_half_mirror", "row_mirror"):
        a.nop(2)
        a(f"v_max_f32_dpp v{mm}, v{mm}, v{mm} {ctrl} row_mask:0xf bank_mask:0xf")
    a(f"v_sub_f32 v{hR}, v{hR}, v{mm}")
    a(f"v_exp_f32 v{hR}, v{hR}")
    a.nop(1)
    a(f"v_mul_f32 v{ll}, v{hR}, v{hR+2}")
    for ctrl in ("quad_perm:[1,0,3,2]", "quad_perm:[2,3,0,1]", "row_half_mirror", "row_mirror"):
        a.nop(2)
        a(f"v_add_f32_dpp v{ll}, v{ll}, v{ll} {ctrl} row_mask:0xf bank_mask:0xf")
    a.nop(1)
    a(f"v_readlane_b32 s{sA1}, v{ll}, 0")
    for p in range(16):
        a(f"v_readlane_b32 s{sTmp}, v{hR}, {p}")
        a.nop(2)
        if p == 0:
            a(f"v_mul_f32 v{Or}, s{sTmp}, v{hG}")
        else:
            a(f"v_fmac_f32 v{Or}, s{sTmp}, v{hG+2*p}")
    a(f"v_mov_b32 v{Lr}, s{sA1}")
    a(f"v_rcp_f32 v{vt[3]}, v{Lr}")
    a.nop(1)
    a(f"v_mul_f32 v{vt[4]}, v{Or}, v{vt[3]}")
    a(f"v_fma_f32 v{vt[5]}, -v{vt[4]}, v{Lr}, v{Or}")
    a(f"v_fma_f32 v{Or}, v{vt[5]}, v{vt[3]}, v{vt[4]}")
    bf16_round(a, Or, Or)
    a(f"v_lshlrev_b32 v{vt[0]}, 2, v{vL}")
    a(f"ds_write_b32 v{vt[0]}, v{Or} offset:{INO}")
    lds_arrive(F_O, vt[2])
    stamp("gathered")
    a.label("L_l1skip")
    spin_lds(F_O, 1, vt[2], sleep=0)
    a("s_waitcnt vmcnt(0)")
    slice_matmul(INO, hW2, FIN, F_ZCNT, WS_S2, "s_pub")
    a(f"s_cmp_lg_u32 s{sHP}, s{sJ}")
    a("s_cbranch_scc1 L_end")
    fin_gather(WS_S2, G2, F_S2CNT, 2)
    a(f"s_cmp_lg_u32 s{sTmp}, 3")
    a("s_cbranch_scc1 L_end")
    a.c("final: last arriver sums 4 waves x 3 pp for 36 cols")
    a(f"s_mul_i32 s{sTmp}, s{sJ}, 72")
    a(f"v_lshlrev_b32 v{vt[6]}, 1, v{vL}")
    a(f"v_add_u32 v{vt[6]}, s{sTmp}, v{vt[6]}")
    a("s_mov_b32 exec_hi, 0xf")
    a(f"buffer_load_ushort v{vt[7]}, v{vt[6]}, {srd(rX)}, 0 offen")
    a(f"v_lshlrev_b32 v{vt[0]}, 2, v{vL}")
    for part in range(2):
        for w in range(4):
            for pp in range(3):
                a(f"ds_read_b32 v{hR+12*part+3*w+pp}, v{vt[0]} offset:{G2 + part*2048 + w*512 + pp*144}")
    a("s_waitcnt lgkmcnt(0)")
    for part in range(2):
        for q in range(1, 12):
            a(f"v_add_f32 v{hR+12*part}, v{hR+12*part}, v{hR+12*part+q}")
    sS, sY = hR, hR + 12
    bf16_round(a, sS, sS)
    bf16_round(a, sY, sY)
    silu(sY)
    a(f"v_mul_f32 v{sS}, v{sS}, v{sY}")
    bf16_round(a, sS, sS)
    a("s_waitcnt vmcnt(0)")
    a(f"v_lshlrev_b32 v{vt[7]}, 16, v{vt[7]}")
    a(f"v_add_f32 v{sS}, v{sS}, v{vt[7]}")
    a(f"v_cvt_pk_bf16_f32 v{sS}, v{sS}, v{sS}")
    a(f"buffer_store_short v{sS}, v{vt[6]}, {srd(rOUT)}, 0 offen")
    if opts.get("dbgstamp") == 1:
        a(f"s_memrealtime s[{sT64}:{sT64+1}]")
        a("s_waitcnt lgkmcnt(0)")
        a(f"s_sub_u32 s{sTmp}, s{sT64}, s{sNon}")
        a(f"v_mov_b32 v{vt[0]}, s{sTmp}")
        a(f"s_lshl_b32 s{sTmp}, s{sJ}, 2")
        a(f"s_add_u32 s{sTmp}, s{sTmp}, 4")
        a(f"s_cmp_ge_u32 s{sJ}, 6")
        a("s_cbranch_scc1 L_end")
        a("s_mov_b64 exec, 1")
        a(f"buffer_store_dword v{vt[0]}, v{vZ}, {srd(rDBG)}, s{sTmp} offen")
    if STAMP:
        a("s_waitcnt vmcnt(0)")
    stamp("out")
    a.label("L_end")
    stamp_flush()
    a.label("L_exit")
    a("s_endpgm")
    a.L.append('.section .rodata,"a"')
    a.L.append(".p2align 6")
    a.L.append(f".amdhsa_kernel {KNAME}")
    a.L.append("  .amdhsa_next_free_vgpr 256")
    a.L.append("  .amdhsa_next_free_sgpr 102")
    a.L.append("  .amdhsa_accum_offset 256")
    a.L.append("  .amdhsa_group_segment_fixed_size 0")
    a.L.append("  .amdhsa_kernarg_size 96")
    a.L.append("  .amdhsa_user_sgpr_count 2")
    a.L.append("  .amdhsa_user_sgpr_kernarg_segment_ptr 1")
    a.L.append("  .amdhsa_system_sgpr_workgroup_id_x 1")
    a.L.append("  .amdhsa_float_denorm_mode_32 3")
    a.L.append(".end_amdhsa_kernel")
    return "\n".join(a.L) + "\n"

if __name__ == "__main__":
    out = sys.argv[1] if len(sys.argv) > 1 else "recurrent_scan__gqa_block_cached__swiglu_ffn__decode.s"
    opts = {}
    for kv in sys.argv[2:]:
        k, v = kv.split("=")
        opts[k] = int(v) if v.lstrip("-").isdigit() else v
    txt = gen(opts)
    if opts.get("stamp"):
        txt = txt.replace("\n", "\n; stamps=" + ",".join(opts["names"]) + "\n", 1)
    open(out, "w").write(txt)
    print("wrote", out)
```

```python
import sys, struct

KNAME = "recurrent_scan__gqa_block_cached__swiglu_ffn__decode_kernel"

def f32bits(x):
    return struct.unpack("<I", struct.pack("<f", x))[0]

class Asm:
    def __init__(self):
        self.L = []
        self.uid = 0
    def __call__(self, s):
        self.L.append("    " + s)
    def label(self, s):
        self.L.append(s + ":")
    def c(self, s):
        self.L.append("    ; " + s)
    def nop(self, n):
        while n > 0:
            k = min(n, 16)
            self(f"s_nop {k-1}")
            n -= k
    def newlabel(self, p):
        self.uid += 1
        return f"L_{p}{self.uid}"

FL = 0
F_NON, F_QCNT, F_FCNT, F_H, F_YCNT, F_SCNT, F_O, F_ZCNT, F_Y2CNT, F_S2CNT, F_PROG, F_TK = [FL + 4 * i for i in range(12)]
F_C = FL + 48
F_T = FL + 56
XN = 64
QP = XN + 2560
QB = QP + 1024
FFP = QB + 512
COMB = FFP + 9216
CSTR = 1056
INO = COMB + 4 * CSTR
INH = INO + 512
FIN = INH + 512
FIN2 = FIN + 8192
G2 = FIN2 + 8192
QQ = G2 + 4096
LDS_BYTES = QQ + 4096
LDS_BYTES = (LDS_BYTES + 1023) // 1024 * 1024
PSTR = 2176
WS_PART = 0
WS_FP = 256 * PSTR
WS_HB = WS_FP + 256 * 4608
WS_S2 = WS_HB + 4608 * 8
WS_Y2 = WS_S2 + 4 * 64 * 1152
WS_Q = WS_Y2 + 4 * 64 * 1152
WS_CNT = WS_Q + 16 * 8192
WS_BYTES = WS_CNT + 16 * 128
WS_STAMP = 4 << 20

sX, sK, sV, sWQ, sWO, sBX, sWG, sWU, sWD, sOUT, sDBG, sWS = [4 + 2 * i for i in range(12)]
rK, rV, rX, rWQ, rWG, rWU, rWO, rWD, rWS, rOUT, rDBG = [28 + 4 * i for i in range(11)]
sHP, sJ, sW, sWGI = 72, 73, 74, 75
sSelLo, sSelHi, sScale, sLog2e = 76, 77, 78, 79
sA0, sA1, sTmp, sTmp2, sOff, sCnt = 80, 81, 82, 83, 84, 85
sEx = 86
sNon = 88
sB = [89, 90, 91]
sStat, sLeft = 92, 93
sT64 = 94
sRQ, sCQ = 100, 101
OOB = 0x40000000

def srd(r): return f"s[{r}:{r+3}]"
def vr(b, n): return f"v[{b}:{b+n-1}]"

def bf16_round(a, dst, src):
    a(f"v_cvt_pk_bf16_f32 v{dst}, v{src}, v{src}")
    a(f"v_lshlrev_b32 v{dst}, 16, v{dst}")

def cross_rows(a, op, x, t):
    o = f"v_{op}_f32"
    for sw in ("v_permlane32_swap_b32", "v_permlane16_swap_b32"):
        a(f"v_mov_b32 v{t}, v{x}")
        a.nop(2)
        a(f"{sw} v{x}, v{t}")
        a.nop(1)
        a(f"{o} v{x}, v{x}, v{t}")

def wave_allreduce(a, op, x, t):
    o = f"v_{op}_f32"
    for ctrl in ("quad_perm:[1,0,3,2]", "quad_perm:[2,3,0,1]", "row_half_mirror", "row_mirror"):
        a.nop(2)
        a(f"{o}_dpp v{x}, v{x}, v{x} {ctrl} row_mask:0xf bank_mask:0xf")
    cross_rows(a, op, x, t)

def gen(opts):
    a = Asm()
    STAMP = opts.get("stamp", False)
    NS = opts.get("ns", 26)
    NPOOL = (32 - NS) * 64
    MAXPOLL = 0x40000
    WP = "" if opts.get("wdef") else " nt"
    stn = [0]
    names = []
    vL, vST, vNon, vZ = 1, 255, 254, 253
    vt = [2, 3, 4, 5, 6, 7, 8, 9, 10, 11]
    def stamp(name):
        if not STAMP: return
        a(f"s_memrealtime s[{sT64}:{sT64+1}]")
        a("s_waitcnt lgkmcnt(0)")
        a(f"v_writelane_b32 v{vST}, s{sT64}, {stn[0]}")
        names.append(name)
        stn[0] += 1
    def stamp_flush():
        if not STAMP: return
        a("s_mov_b64 exec, -1")
        a(f"s_lshl_b32 s{sTmp}, s2, 3")
        a(f"s_add_u32 s{sTmp}, s{sTmp}, s{sW}")
        a(f"s_lshl_b32 s{sTmp}, s{sTmp}, 8")
        a(f"v_lshlrev_b32 v{vt[8]}, 2, v{vL}")
        a(f"buffer_store_dword v{vST}, v{vt[8]}, s[96:99], s{sTmp} offen")
    opts["names"] = names

    def spin_lds(addr, target, tmpv, ge=True, sleep=1):
        l0, l1 = a.newlabel("sp"), a.newlabel("spx")
        a(f"s_mov_b32 s{sCnt}, 0x2000000")
        a.label(l0)
        a(f"ds_read_b32 v{tmpv}, v{vZ} offset:{addr}")
        a("s_waitcnt lgkmcnt(0)")
        a(f"v_readfirstlane_b32 s{sTmp}, v{tmpv}")
        a(f"s_cmp_ge_u32 s{sTmp}, {target}")
        a(f"s_cbranch_scc1 {l1}")
        a(f"s_sub_u32 s{sCnt}, s{sCnt}, 1")
        a(f"s_cmp_eq_u32 s{sCnt}, 0")
        a(f"s_cbranch_scc1 {l1}")
        a(f"s_sleep {sleep}")
        a(f"s_branch {l0}")
        a.label(l1)
    def lds_arrive(addr, tmpv, ret=False):
        a("s_waitcnt lgkmcnt(0)")
        a(f"v_mov_b32 v{tmpv}, 1")
        a("s_mov_b64 exec, 1")
        if ret:
            a(f"ds_add_rtn_u32 v{tmpv}, v{vZ}, v{tmpv} offset:{addr}")
            a("s_waitcnt lgkmcnt(0)")
            a(f"v_readfirstlane_b32 s{sTmp}, v{tmpv}")
        else:
            a(f"ds_add_u32 v{vZ}, v{tmpv} offset:{addr}")
        a("s_mov_b64 exec, -1")
    def retry_begin():
        l0, l1 = a.newlabel("rt"), a.newlabel("rtx")
        a(f"s_mov_b32 s{sCnt}, {MAXPOLL}")
        a.label(l0)
        return l0, l1
    def retry_end(ls, tagregs, t0, t1, sleep=2):
        l0, l1 = ls
        a("s_waitcnt vmcnt(0)")
        a(f"v_xor_b32 v{t0}, v{vNon}, v{tagregs[0]}")
        for r in tagregs[1:]:
            a(f"v_xor_b32 v{t1}, v{vNon}, v{r}")
            a(f"v_or_b32 v{t0}, v{t0}, v{t1}")
        a(f"v_cmp_ne_u32 vcc, 0, v{t0}")
        a(f"s_cbranch_vccz {l1}")
        a(f"s_sub_u32 s{sCnt}, s{sCnt}, 1")
        a(f"s_cmp_eq_u32 s{sCnt}, 0")
        a(f"s_cbranch_scc1 {l1}")
        a(f"s_sleep {sleep}")
        a(f"s_branch {l0}")
        a.label(l1)
    def silu(x):
        a(f"v_mul_f32 v{vt[2]}, s{sLog2e}, v{x}")
        a(f"v_exp_f32 v{vt[2]}, -v{vt[2]}")
        a.nop(1)
        a(f"v_add_f32 v{vt[2]}, 1.0, v{vt[2]}")
        a(f"v_rcp_f32 v{vt[3]}, v{vt[2]}")
        a.nop(1)
        a(f"v_mul_f32 v{vt[4]}, v{x}, v{vt[3]}")
        a(f"v_fma_f32 v{vt[5]}, -v{vt[4]}, v{vt[2]}, v{x}")
        a(f"v_fma_f32 v{x}, v{vt[5]}, v{vt[3]}, v{vt[4]}")
        a(f"v_cmp_eq_f32 vcc, 0x7f800000, v{vt[2]}")
        a.nop(2)
        a(f"v_cndmask_b32 v{x}, v{x}, v{vt[4]}, vcc")
        bf16_round(a, x, x)
    def combine(n, mreg, lreg, oreg, M, Lr, Or):
        a(f"v_max3_f32 v{M}, v{mreg[0]}, v{mreg[1]}, v{mreg[2]}")
        k = 3
        while k < n:
            if k + 1 < n:
                a(f"v_max3_f32 v{M}, v{M}, v{mreg[k]}, v{mreg[k+1]}"); k += 2
            else:
                a(f"v_max_f32 v{M}, v{M}, v{mreg[k]}"); k += 1
        for w in range(n):
            a(f"v_sub_f32 v{mreg[w]}, v{mreg[w]}, v{M}")
        for w in range(n):
            a(f"v_exp_f32 v{mreg[w]}, v{mreg[w]}")
        a.nop(1)
        a(f"v_mul_f32 v{Lr}, v{mreg[0]}, v{lreg[0]}")
        a(f"v_mul_f32 v{Or}, v{mreg[0]}, v{oreg[0]}")
        for w in range(1, n):
            a(f"v_fmac_f32 v{Lr}, v{mreg[w]}, v{lreg[w]}")
            a(f"v_fmac_f32 v{Or}, v{mreg[w]}, v{oreg[w]}")
    def mk(r, p, off_s=None, size=None):
        if off_s is None:
            a(f"s_mov_b32 s{r}, s{p}")
            a(f"s_and_b32 s{r+1}, s{p+1}, 0xffff")
        else:
            a(f"s_add_u32 s{r}, s{p}, s{off_s}")
            a(f"s_addc_u32 s{r+1}, s{p+1}, 0")
            a(f"s_and_b32 s{r+1}, s{r+1}, 0xffff")
        a(f"s_mov_b32 s{r+2}, {size}")
        a(f"s_mov_b32 s{r+3}, 0x20000")

    a.L.append(f"; @launch grid=(256,1,1) block=(512,1,1) lds={LDS_BYTES}")
    a.L.append('.amdgcn_target "amdgcn-amd-amdhsa--gfx950"')
    a.L.append(".text")
    a.L.append(f".globl {KNAME}")
    a.L.append(".p2align 8")
    a.L.append(f".type {KNAME},@function")
    a.label(KNAME)
    a("s_cmp_ge_u32 s2, 256")
    a("s_cbranch_scc1 L_exit")
    a("s_load_dwordx16 s[4:19], s[0:1], 0")
    a("s_load_dwordx8 s[20:27], s[0:1], 64")
    a(f"s_memrealtime s[{sT64}:{sT64+1}]")
    a(f"v_and_b32 v{vL}, 63, v0")
    a(f"v_lshrrev_b32 v{vt[0]}, 6, v0")
    a(f"s_lshr_b32 s{sHP}, s2, 4")
    a(f"s_and_b32 s{sJ}, s2, 15")
    a(f"v_readfirstlane_b32 s{sW}, v{vt[0]}")
    if opts.get("swap", 1):
        a.nop(1)
        a(f"s_xor_b32 s{sW}, s{sW}, 4")
    a(f"s_mov_b32 s{sWGI}, s2")
    a(f"s_lshr_b32 s{sRQ}, s{sJ}, 2")
    a(f"s_and_b32 s{sCQ}, s{sJ}, 3")
    a(f"s_mov_b32 s{sLog2e}, 0x{f32bits(1.4426950408889634):08x}")
    a(f"v_mov_b32 v{vZ}, 0")
    a(f"v_mov_b32 v{vST}, 0")
    a("s_waitcnt lgkmcnt(0)")
    a(f"s_or_b32 s{sNon}, s{sT64}, 1")
    mk(rWS, sWS, size=WS_BYTES)
    if STAMP:
        a(f"s_add_u32 s96, s{sWS}, {WS_STAMP}")
        a(f"s_addc_u32 s97, s{sWS+1}, 0")
        a(f"s_and_b32 s97, s97, 0xffff")
        a(f"s_mov_b32 s98, {2048*256}")
        a(f"s_mov_b32 s99, 0x20000")
    stamp("start")
    a(f"s_cmp_ge_u32 s{sW}, 4")
    a("s_cbranch_scc1 L_helper")

    vKoff, vVoff, vM, vLs, vMt = 12, 13, 14, 15, 16
    vC = [17, 18]
    vCo = 19
    vQ = 20
    vO = 36
    vD = 68
    vP = 76
    vT = 80
    KS = [88, 120]
    VS = [152, 184, 216]
    a.c("stream wave setup")
    a(f"s_mov_b32 s{sSelLo}, 0x05040100")
    a(f"s_mov_b32 s{sSelHi}, 0x07060302")
    a(f"s_mov_b32 s{sScale}, 0x{f32bits(128 ** -0.5):08x}")
    a(f"v_and_b32 v{vt[0]}, 3, v{vL}")
    a(f"v_lshlrev_b32 v{vt[0]}, 10, v{vt[0]}")
    a(f"v_bfe_u32 v{vt[1]}, v{vL}, 2, 2")
    a(f"v_lshlrev_b32 v{vt[1]}, 8, v{vt[1]}")
    a(f"v_lshrrev_b32 v{vt[2]}, 4, v{vL}")
    a(f"v_lshlrev_b32 v{vt[2]}, 4, v{vt[2]}")
    a(f"v_add3_u32 v{vKoff}, v{vt[0]}, v{vt[1]}, v{vt[2]}")
    a(f"v_lshlrev_b32 v{vVoff}, 4, v{vL}")
    a(f"s_lshl_b32 s{sTmp}, s{sHP}, 24")
    mk(rK, sK, sTmp, size=1 << 24)
    mk(rV, sV, sTmp, size=1 << 24)
    a(f"s_lshl_b32 s{sStat}, s{sJ}, 20")
    a(f"s_lshl_b32 s{sTmp}, s{sW}, 12")
    a(f"s_add_u32 s{sStat}, s{sStat}, s{sTmp}")
    sCl = [36, 37]
    sCA = 38
    a(f"s_lshl_b32 s{sTmp}, s{sHP}, 7")
    a(f"s_add_u32 s{sTmp}, s{sTmp}, {WS_CNT}")
    a(f"s_add_u32 s{sCA}, s{sWS}, s{sTmp}")
    a(f"s_addc_u32 s{sCA+1}, s{sWS+1}, 0")
    a(f"s_mov_b32 s{sCl[0]}, {1 if (NS >= 32 and opts.get('lq', 1)) else 0}")
    a(f"s_mov_b32 s{sCl[1]}, 0")
    a("s_mov_b32 s40, 40")
    def stream_body(sfx, KP, VP):
        def Kload(slot, t, i, sb):
            return f"buffer_load_dwordx4 {vr(slot+16*t+4*i,4)}, v{vKoff}, {srd(rK)}, s{sb} offen offset:{i*64}{KP}"
        def Vload(slot, t, r, sb):
            return f"buffer_load_dwordx4 {vr(slot+16*t+4*r,4)}, v{vVoff}, {srd(rV)}, s{sb} offen offset:{r*1024}{VP}"
        NOCL = 1
        for g in range(2):
            a(f"s_mov_b32 s{sB[g]}, s{sStat}")
            a(f"s_add_u32 s{sOff}, s{sStat}, 16384")
            for t in range(2):
                for i in range(4):
                    a(Kload(KS[g], t, i, sB[g] if t == 0 else sOff))
            if g == 0: a("s_barrier")
            for t in range(2):
                for r in range(4):
                    a(Vload(VS[g], t, r, sB[g] if t == 0 else sOff))
            a(f"s_add_u32 s{sStat}, s{sStat}, 32768")
        a(f"s_mov_b32 s{sLeft}, {NS-2}")
        if opts.get("dry", 0):
            a.c("dry run of the loop body (I-cache warm-up), exec=0")
            a(f"s_mov_b32 s41, s{sStat}"); a(f"s_mov_b32 s42, s{sLeft}")
            a(f"s_mov_b32 s43, s{sB[0]}"); a(f"s_mov_b32 s44, s{sB[1]}")
            a("s_mov_b32 s45, 1")
            a("s_mov_b64 exec, 0")
            a(f"s_branch L_loop{sfx}")
            a.label(f"L_dryend{sfx}")
            a("s_mov_b64 exec, -1")
            a(f"s_mov_b32 s{sStat}, s41"); a(f"s_mov_b32 s{sLeft}, s42")
            a(f"s_mov_b32 s{sB[0]}, s43"); a(f"s_mov_b32 s{sB[1]}, s44")
            a("s_mov_b32 s45, 0")
        if not opts.get("noq"): spin_lds(F_NON, 1, vNon)
        a(f"v_and_b32 v{vt[0]}, 1, v{vL}")
        a(f"v_lshlrev_b32 v{vt[0]}, 8, v{vt[0]}")
        a(f"v_lshrrev_b32 v{vt[1]}, 4, v{vL}")
        a(f"v_lshl_add_u32 v{vt[0]}, v{vt[1]}, 4, v{vt[0]}")
        for i in range(4):
            a(f"ds_read_b128 {vr(vQ+4*i,4)}, v{vt[0]} offset:{QB + i*64}")
        a(f"v_mov_b32 v{vM}, 0xff800000")
        a(f"v_mov_b32 v{vMt}, 0xff800000")
        a(f"v_mov_b32 v{vLs}, 0")
        for i in range(32):
            a(f"v_mov_b32 v{vO+i}, 0")
        a("s_waitcnt lgkmcnt(0)")
        stamp("q_ready") if (sfx == "" or not STAMP) else (stn.__setitem__(0, stn[0]-1), names.pop(), stamp("q_ready"))
        d = [vD + i for i in range(8)]
        a.label(f"L_loop{sfx}")
        for u in range(6):
            a.c(f"==== unrolled group {u} ====")
            ks = KS[u % 2]
            vs = VS[u % 3]
            vsn = VS[(u + 2) % 3]
            b0, b2 = sB[u % 3], sB[(u + 2) % 3]
            cs = sCl[u % 2]
            a(f"s_cmp_ge_u32 s{b0}, {OOB}")
            a("s_cbranch_scc1 L_sdone")
            a(f"s_waitcnt vmcnt({28 if NOCL else 29})")
            for i in range(4):
                cin = "0" if i == 0 else vr(vD, 4)
                a(f"v_mfma_f32_16x16x32_bf16 {vr(vD,4)}, {vr(ks+4*i,4)}, {vr(vQ+4*i,4)}, {cin}")
            if opts.get("lq", 1):
                lk, lsp, ldn = a.newlabel("dyn"), a.newlabel("dsp"), a.newlabel("ddn")
                a(f"s_mov_b32 s{b2}, s{sStat}")
                a(f"s_cmp_gt_i32 s{sLeft}, 0")
                a(f"s_cbranch_scc1 {ldn}")
                a(f"s_mov_b32 s{b2}, {OOB}")
                a(f"s_cmp_lg_u32 s{sCl[0]}, 0")
                a(f"s_cbranch_scc1 {ldn}")
                a(f"v_mov_b32 v{vC[0]}, 1")
                a("s_mov_b64 exec, 1")
                a(f"ds_add_rtn_u32 v{vC[0]}, v{vZ}, v{vC[0]} offset:{F_TK}")
                a("s_waitcnt lgkmcnt(0)")
                if opts.get("rb"):
                    NTb = (4 * (32 - NS))
                    assert NTb & (NTb - 1) == 0
                    a(f"v_readfirstlane_b32 s{sTmp}, v{vC[0]}")
                    a(f"s_mov_b32 s{sCnt}, 0x1000000")
                    a.label(lsp)
                    a(f"ds_read_b64 v[18:19], v{vZ} offset:{F_C}")
                    a("s_waitcnt lgkmcnt(0)")
                    a(f"v_readfirstlane_b32 s{sA1}, v19")
                    a(f"v_readfirstlane_b32 s{sA0}, v18")
                    a(f"s_sub_u32 s{sCnt}, s{sCnt}, 1")
                    a(f"s_cmp_eq_u32 s{sCnt}, 0")
                    a(f"s_cselect_b32 s{sA1}, 1, s{sA1}")
                    a(f"s_cmp_eq_u32 s{sA1}, 0")
                    a(f"s_cbranch_scc1 {lsp}")
                    a(f"s_sub_u32 s{sA1}, s{sA1}, 1")
                    a(f"s_add_u32 s{sTmp}, s{sTmp}, s{sA0}")
                    a(f"s_cmp_ge_u32 s{sTmp}, s{sA1}")
                    a(f"s_cbranch_scc1 {lk}")
                    a(f"s_lshr_b32 s{sA0}, s{sTmp}, {NTb.bit_length()-1}")
                    a(f"s_lshl_b32 s{sA0}, s{sA0}, 20")
                    a(f"s_and_b32 s{sA1}, s{sTmp}, {NTb-1}")
                    a(f"s_and_b32 s{sOff}, s{sA1}, 3")
                    a(f"s_lshr_b32 s{sA1}, s{sA1}, 2")
                    a(f"s_lshl_b32 s{sA1}, s{sA1}, 3")
                    a(f"s_add_u32 s{sA1}, s{sA1}, s{sOff}")
                    a(f"s_add_u32 s{sA1}, s{sA1}, {NS*8}")
                    a(f"s_lshl_b32 s{sA1}, s{sA1}, 12")
                    a(f"s_add_u32 s{b2}, s{sA0}, s{sA1}")
                else:
                    a(f"v_lshlrev_b32 v{vC[0]}, 2, v{vC[0]}")
                    a(f"s_mov_b32 s{sCnt}, 0x1000000")
                    a.label(lsp)
                    a(f"ds_read_b32 v{vC[1]}, v{vC[0]} offset:{QQ}")
                    a("s_waitcnt lgkmcnt(0)")
                    a(f"v_readfirstlane_b32 s{b2}, v{vC[1]}")
                    a(f"s_cmp_lg_u32 s{b2}, -1")
                    a(f"s_cbranch_scc1 {lk}")
                    a(f"s_sub_u32 s{sCnt}, s{sCnt}, 1")
                    a(f"s_cmp_lg_u32 s{sCnt}, 0")
                    a(f"s_cbranch_scc1 {lsp}")
                    a(f"s_mov_b32 s{b2}, {OOB}")
                a.label(lk)
                a("s_mov_b64 exec, -1")
                a(f"s_cmp_ge_u32 s{b2}, {OOB}")
                a(f"s_cselect_b32 s{sCl[0]}, 1, 0")
                a.label(ldn)
                a(f"s_add_u32 s{sStat}, s{sStat}, 32768")
                a(f"s_sub_u32 s{sLeft}, s{sLeft}, 1")
                a(f"s_add_u32 s{sOff}, s{b2}, 16384")
            else:
                a("s_waitcnt lgkmcnt(0)")
                a(f"s_mov_b32 s{sTmp}, s{cs}")
                NT = max(4 * (32 - NS), 1)
                assert NT & (NT - 1) == 0
                if opts.get("porder", 1) == 1:
                    a(f"s_lshr_b32 s{sA0}, s{sTmp}, {NT.bit_length()-1}")
                    a(f"s_lshl_b32 s{sA0}, s{sA0}, 20")
                    a(f"s_and_b32 s{sA1}, s{sTmp}, {NT-1}")
                else:
                    a(f"s_and_b32 s{sA0}, s{sTmp}, 15")
                    a(f"s_lshl_b32 s{sA0}, s{sA0}, 20")
                    a(f"s_lshr_b32 s{sA1}, s{sTmp}, 4")
                a(f"s_and_b32 s{sOff}, s{sA1}, 3")
                a(f"s_lshr_b32 s{sA1}, s{sA1}, 2")
                a(f"s_lshl_b32 s{sA1}, s{sA1}, 3")
                a(f"s_add_u32 s{sA1}, s{sA1}, s{sOff}")
                a(f"s_add_u32 s{sA1}, s{sA1}, {NS*8}")
                a(f"s_lshl_b32 s{sA1}, s{sA1}, 12")
                a(f"s_add_u32 s{sA0}, s{sA0}, s{sA1}")
                a(f"s_cmp_lt_u32 s{sTmp}, {NPOOL}")
                a(f"s_cselect_b32 s{sA0}, s{sA0}, {OOB}")
                a(f"s_cmp_gt_i32 s{sLeft}, 0")
                a(f"s_cselect_b32 s{b2}, s{sStat}, s{sA0}")
                a(f"s_add_u32 s{sStat}, s{sStat}, 32768")
                a(f"s_sub_u32 s{sLeft}, s{sLeft}, 1")
                a(f"s_add_u32 s{sOff}, s{b2}, 16384")
                lk = a.newlabel("ncl")
                a(f"s_cmp_lt_i32 s{sLeft}, 2")
                a(f"s_cbranch_scc0 {lk}")
                a(f"s_mov_b32 s{cs}, 1")
                a(f"s_atomic_add s{cs}, s[{sCA}:{sCA+1}], 0x0 glc")
                a.label(lk)
            a(f"s_waitcnt vmcnt({24 if NOCL else 25})")
            for i in range(4):
                cin = "0" if i == 0 else vr(vD + 4, 4)
                a(f"v_mfma_f32_16x16x32_bf16 {vr(vD+4,4)}, {vr(ks+16+4*i,4)}, {vr(vQ+4*i,4)}, {cin}")
            a.nop(4)
            S = []
            tt = vt
            for k in range(4):
                S.append(f"v_cvt_pk_bf16_f32 v{tt[k]}, v{d[2*k]}, v{d[2*k+1]}")
            for k in range(4):
                S.append(f"v_lshlrev_b32 v{d[2*k]}, 16, v{tt[k]}")
                S.append(f"v_and_b32 v{d[2*k+1]}, 0xffff0000, v{tt[k]}")
            for k in range(8):
                S.append(f"v_mul_f32 v{d[k]}, s{sScale}, v{d[k]}")
            for k in range(4):
                S.append(f"v_cvt_pk_bf16_f32 v{tt[k]}, v{d[2*k]}, v{d[2*k+1]}")
            for k in range(4):
                S.append(f"v_lshlrev_b32 v{d[2*k]}, 16, v{tt[k]}")
                S.append(f"v_and_b32 v{d[2*k+1]}, 0xffff0000, v{tt[k]}")
            mx = tt[4]
            S.append(f"v_max3_f32 v{mx}, v{d[0]}, v{d[1]}, v{d[2]}")
            S.append(f"v_max3_f32 v{mx}, v{mx}, v{d[3]}, v{d[4]}")
            S.append(f"v_max3_f32 v{mx}, v{mx}, v{d[5]}, v{d[6]}")
            S.append(f"v_max3_f32 v{mx}, v{mx}, v{d[7]}, v{vM}")
            for sw in ("v_permlane32_swap_b32", "v_permlane16_swap_b32"):
                S.append(f"v_mov_b32 v{tt[5]}, v{mx}")
                S.append("s_nop 1")
                S.append(f"{sw} v{mx}, v{tt[5]}")
                S.append("s_nop 0")
                S.append(f"v_max_f32 v{mx}, v{mx}, v{tt[5]}")
            S.append(f"v_mul_f32 v{tt[5]}, s{sLog2e}, v{mx}")
            al = tt[6]
            S.append(f"v_sub_f32 v{al}, v{vMt}, v{tt[5]}")
            S.append(f"v_exp_f32 v{al}, v{al}")
            S.append(f"v_mov_b32 v{vM}, v{mx}")
            S.append(f"v_mov_b32 v{vMt}, v{tt[5]}")
            for k in range(8):
                S.append(f"v_fma_f32 v{d[k]}, v{d[k]}, s{sLog2e}, -v{vMt}")
            for k in range(8):
                S.append(f"v_exp_f32 v{d[k]}, v{d[k]}")
            S.append(f"v_readlane_b32 s{sA0}, v{al}, 0")
            S.append(f"v_readlane_b32 s{sA1}, v{al}, 1")
            S.append(f"v_mul_f32 v{vLs}, v{vLs}, v{al}")
            for k in range(4):
                S.append(f"v_cvt_pk_bf16_f32 v{vP+k}, v{d[2*k]}, v{d[2*k+1]}")
            for k in range(8):
                S.append(f"v_add_f32 v{vLs}, v{vLs}, v{d[k]}")
            for i in range(8):
                S.append(f"v_mul_f32 v{vO+4*i}, s{sA0}, v{vO+4*i}")
                S.append(f"v_mul_f32 v{vO+4*i+1}, s{sA1}, v{vO+4*i+1}")
            KL = [Kload(ks, t, i, b2 if t == 0 else sOff) for t in range(2) for i in range(4)]
            a(KL[0]); a(KL[1])
            a.nop(3)
            if opts.get("nosm"): S = S[:8]
            step = max(1, len(S) // 7)
            if opts.get("burst"): step = 1
            kq = 2
            for n, ins in enumerate(S):
                a(ins)
                if (n + 1) % step == 0 and kq < 8:
                    a(KL[kq]); kq += 1
            while kq < 8:
                a(KL[kq]); kq += 1
            a(f"s_waitcnt vmcnt({24 if NOCL else 26})")
            VL = [Vload(vsn, t, r, b2 if t == 0 else sOff) for t in range(2) for r in range(4)]
            def perms(i):
                dd, b = i >> 1, i & 1
                sel = sSelHi if b else sSelLo
                for p in range(4):
                    lo = vs + 4 * (2 * p) + dd
                    hi = vs + 4 * (2 * p + 1) + dd
                    a(f"v_perm_b32 v{vT + 4*(i%2) + p}, v{hi}, v{lo}, s{sel}")
            if not opts.get("nopv"): perms(0)
            for i in range(8):
                if opts.get("nopv"):
                    a(VL[i]); continue
                if i + 1 < 8:
                    perms(i + 1)
                else:
                    a.nop(2)
                a(f"v_mfma_f32_16x16x32_bf16 {vr(vO+4*i,4)}, {vr(vP,4)}, {vr(vT+4*(i%2),4)}, {vr(vO+4*i,4)}")
                a(VL[i])
        if opts.get("dry", 0):
            a("s_cmp_lg_u32 s45, 0")
            a(f"s_cbranch_scc1 L_dryend{sfx}")
        a(f"v_mov_b32 v{vt[9]}, 1")
        a("s_mov_b64 exec, 1")
        if opts.get("rb"):
            lt = a.newlabel("nt")
            a(f"ds_add_rtn_u32 v{vt[9]}, v{vZ}, v{vt[9]} offset:{F_PROG}")
            a(f"s_memrealtime s[{sT64}:{sT64+1}]")
            a("s_waitcnt lgkmcnt(0)")
            a(f"v_readfirstlane_b32 s{sTmp}, v{vt[9]}")
            a(f"s_cmp_lg_u32 s{sTmp}, {opts.get('p1', 12) - 1}")
            a(f"s_cbranch_scc1 {lt}")
            a(f"s_or_b32 s{sTmp}, s{sT64}, 1")
            a(f"v_mov_b32 v{vt[9]}, s{sTmp}")
            a(f"ds_write_b32 v{vZ}, v{vt[9]} offset:{F_T}")
            a.label(lt)
        else:
            a(f"ds_add_u32 v{vZ}, v{vt[9]} offset:{F_PROG}")
        a("s_mov_b64 exec, -1")
        if STAMP:
            a(f"s_memrealtime s[{sT64}:{sT64+1}]")
            a("s_waitcnt lgkmcnt(0)")
            a("s_mov_b32 m0, s40")
            a(f"v_writelane_b32 v{vST}, s{sT64}, m0")
            a("s_add_u32 s40, s40, 1")
        a(f"s_branch L_loop{sfx}")

    VH0 = opts.get("vh0", 16)
    KH0 = opts.get("kh0", 16)
    if VH0 < 16:
        a(f"s_cmp_ge_u32 s{sHP}, {VH0}")
        a("s_cbranch_scc1 L_streamB")
    stream_body("", " nt", " nt")
    if VH0 < 16:
        a.label("L_streamB")
        if KH0 < 16:
            a(f"s_cmp_ge_u32 s{sHP}, {KH0}")
            a("s_cbranch_scc1 L_streamC")
        stream_body("B", " nt", "")
        if KH0 < 16:
            a.label("L_streamC")
            stream_body("C", "", "")
    a.label("L_sdone")
    stamp("s_done")
    a.c("stream wave: write partial to LDS")
    cross_rows(a, "add", vLs, vt[0])
    a.nop(8)
    a(f"s_mul_i32 s{sTmp}, s{sW}, {CSTR}")
    a(f"v_lshlrev_b32 v{vt[0]}, 5, v{vL}")
    a(f"v_add_u32 v{vt[0]}, s{sTmp}, v{vt[0]}")
    a(f"v_add_u32 v{vt[0]}, {COMB}, v{vt[0]}")
    a(f"v_lshlrev_b32 v{vt[1]}, 2, v{vL}")
    a(f"v_add_u32 v{vt[1]}, s{sTmp}, v{vt[1]}")
    a("s_mov_b64 exec, 0xffff")
    for h in range(2):
        for i in range(0, 8, 2):
            a(f"ds_write2_b32 v{vt[0]}, v{vO+4*i+h}, v{vO+4*(i+1)+h} offset0:{h*128+i} offset1:{h*128+i+1}")
    a("s_mov_b64 exec, 3")
    a(f"ds_write_b32 v{vt[1]}, v{vMt} offset:{COMB+1024}")
    a(f"ds_write_b32 v{vt[1]}, v{vLs} offset:{COMB+1032}")
    a("s_mov_b64 exec, -1")
    lds_arrive(F_SCNT, vt[2])
    a("s_branch L_end")

    a.label("L_helper")
    a.c("helper setup")
    a("s_setprio 3")
    sHW = sB[0]
    a(f"s_sub_u32 s{sHW}, s{sW}, 4")
    a(f"s_cmp_lg_u32 s{sW}, 7")
    a("s_cbranch_scc1 L_nz")
    a(f"v_lshlrev_b32 v{vt[0]}, 2, v{vL}")
    a("s_mov_b64 exec, 0xffff")
    a(f"ds_write_b32 v{vt[0]}, v{vZ} offset:{FL}")
    a("s_mov_b64 exec, -1")
    a(f"v_lshlrev_b32 v{vt[0]}, 4, v{vL}")
    for e in range(4):
        a(f"v_mov_b32 v{16+e}, -1")
    for k in range(4):
        a(f"ds_write_b128 v{vt[0]}, v[16:19] offset:{QQ + k*1024}")
    a("s_waitcnt lgkmcnt(0)")
    a.label("L_nz")
    mk(rX, sX, size=1152)
    mk(rWQ, sWQ, size=576 * 8192)
    mk(rDBG, sDBG, size=256)
    hX = 16
    hW = 28
    hF = 48
    hA = 60
    hR = 76
    if opts.get("h0"):
        a("s_barrier"); a("s_branch L_end")
    a(f"s_cmp_eq_u32 s{sW}, 7")
    a("s_cbranch_scc1 L_w7start")
    a(f"v_lshlrev_b32 v{vt[3]}, 2, v{vL}")
    for j in range(5):
        a(f"buffer_load_dword v{hX+j}, v{vt[3]}, {srd(rX)}, 0 offen offset:{j*256}")
    a(f"v_lshrrev_b32 v{vt[0]}, 3, v{vL}")
    a(f"s_mul_i32 s{sTmp}, s{sRQ}, 144")
    a(f"s_mul_i32 s{sTmp2}, s{sHW}, 48")
    a(f"s_add_u32 s{sTmp}, s{sTmp}, s{sTmp2}")
    a(f"v_add_u32 v{vt[1]}, s{sTmp}, v{vt[0]}")
    a(f"v_lshlrev_b32 v{vt[5]}, 2, v{vt[1]}")
    a(f"v_lshlrev_b32 v{vt[4]}, 13, v{vt[1]}")
    a(f"v_and_b32 v{vt[1]}, 7, v{vL}")
    a(f"v_lshl_add_u32 v{vt[4]}, v{vt[1]}, 4, v{vt[4]}")
    a(f"s_lshl_b32 s{sTmp}, s{sHP}, 9")
    a(f"s_lshl_b32 s{sTmp2}, s{sCQ}, 7")
    a(f"s_add_u32 s{sTmp}, s{sTmp}, s{sTmp2}")
    a(f"v_add_u32 v{vt[4]}, s{sTmp}, v{vt[4]}")
    for i in range(6):
        a(f"s_mov_b32 s{sOff}, {i*8*8192}")
        a(f"buffer_load_dwordx4 {vr(hR+4*i,4)}, v{vt[4]}, {srd(rWQ)}, s{sOff} offen{WP}")
    a("s_branch L_nononce")
    a.label("L_w7start")
    a(f"s_mov_b32 s{sB[1]}, s{sNon}")
    a(f"s_mov_b32 s{sB[2]}, 0")
    a(f"s_atomic_cmpswap s[{sB[1]}:{sB[2]}], s[{sDBG}:{sDBG+1}], 0x0 glc")
    a("s_mov_b64 exec, 1")
    a(f"s_lshl_b32 s{sTmp}, s{sHP}, 7")
    a(f"s_lshl_b32 s{sTmp2}, s{sJ}, 2")
    a(f"s_add_u32 s{sTmp}, s{sTmp}, s{sTmp2}")
    a(f"s_add_u32 s{sTmp}, s{sTmp}, {WS_CNT}")
    a(f"buffer_store_dword v{vZ}, v{vZ}, {srd(rWS)}, s{sTmp} offen sc1")
    a("s_mov_b64 exec, -1")
    a.label("L_nononce")
    a("s_barrier")
    if opts.get("nohelp"): a("s_branch L_end")
    mk(rWG, sWG, size=576 * 9216)
    mk(rWU, sWU, size=576 * 9216)
    mk(rWO, sWO, size=4096 * 1152)
    mk(rWD, sWD, size=4608 * 1152)
    mk(rOUT, sOUT, size=1152)
    a(f"s_cmp_eq_u32 s{sW}, 7")
    a("s_cbranch_scc1 L_w7x")
    a.c("layernorm")
    a("s_waitcnt vmcnt(6)")
    stamp("x_arrived")
    xf = [hF + i for i in range(10)]
    for j in range(5):
        a(f"v_lshlrev_b32 v{xf[2*j]}, 16, v{hX+j}")
        a(f"v_and_b32 v{xf[2*j+1]}, 0xffff0000, v{hX+j}")
    s_ = vt[0]
    a(f"v_add_f32 v{s_}, v{xf[0]}, v{xf[1]}")
    for i in range(2, 10):
        a(f"v_add_f32 v{s_}, v{s_}, v{xf[i]}")
    wave_allreduce(a, "add", s_, vt[1])
    a(f"v_mul_f32 v{s_}, 0x{f32bits(1.0/576):08x}, v{s_}")
    a(f"v_cmp_gt_u32 vcc, 32, v{vL}")
    q_ = vt[2]
    a(f"v_mov_b32 v{q_}, 0")
    for i in range(10):
        a(f"v_sub_f32 v{vt[1]}, v{xf[i]}, v{s_}")
        if i >= 8:
            a(f"v_cndmask_b32 v{vt[1]}, 0, v{vt[1]}, vcc")
        a(f"v_fmac_f32 v{q_}, v{vt[1]}, v{vt[1]}")
    wave_allreduce(a, "add", q_, vt[1])
    a(f"v_mul_f32 v{q_}, 0x{f32bits(1.0/576):08x}, v{q_}")
    bf16_round(a, s_, s_)
    bf16_round(a, q_, q_)
    a(f"v_add_f32 v{q_}, 0x{f32bits(1e-5):08x}, v{q_}")
    bf16_round(a, q_, q_)
    a(f"v_sqrt_f32 v{q_}, v{q_}")
    a.nop(1)
    bf16_round(a, q_, q_)
    rc = vt[1]
    a(f"v_rcp_f32 v{rc}, v{q_}")
    a.nop(1)
    for i in range(10):
        dd = xf[i]
        a(f"v_sub_f32 v{dd}, v{dd}, v{s_}")
        bf16_round(a, dd, dd)
        a(f"v_mul_f32 v{vt[6]}, v{dd}, v{rc}")
        a(f"v_fma_f32 v{vt[7]}, -v{vt[6]}, v{q_}, v{dd}")
        a(f"v_fma_f32 v{dd}, v{vt[7]}, v{rc}, v{vt[6]}")
        bf16_round(a, dd, dd)
        if i >= 8:
            a(f"v_cndmask_b32 v{dd}, 0, v{dd}, vcc")
    a(f"v_lshlrev_b32 v{vt[0]}, 3, v{vL}")
    for j in range(5):
        a(f"ds_write_b64 v{vt[0]}, {vr(xf[2*j],2)} offset:{XN + j*512}")
    a.c("q slice")
    for i in range(6):
        a(f"ds_read_b32 v{hX+i}, v{vt[5]} offset:{XN + i*32}")
    acc = [hA + i for i in range(8)]
    a("s_waitcnt vmcnt(0) lgkmcnt(0)")
    for i in range(6):
        for dd in range(4):
            r = hR + 4 * i + dd
            a(f"v_lshlrev_b32 v{vt[0]}, 16, v{r}")
            a(f"v_and_b32 v{vt[1]}, 0xffff0000, v{r}")
            if i == 0:
                a(f"v_mul_f32 v{acc[2*dd]}, v{vt[0]}, v{hX+i}")
                a(f"v_mul_f32 v{acc[2*dd+1]}, v{vt[1]}, v{hX+i}")
            else:
                a(f"v_fmac_f32 v{acc[2*dd]}, v{vt[0]}, v{hX+i}")
                a(f"v_fmac_f32 v{acc[2*dd+1]}, v{vt[1]}, v{hX+i}")
    a.nop(2)
    for ctrl in ("row_ror:8",):
        for e in range(8):
            a(f"v_add_f32_dpp v{acc[e]}, v{acc[e]}, v{acc[e]} {ctrl} row_mask:0xf bank_mask:0xf")
    tq = [hW + i for i in range(8)]
    for sw in ("v_permlane32_swap_b32", "v_permlane16_swap_b32"):
        for e in range(8):
            a(f"v_mov_b32 v{tq[e]}, v{acc[e]}")
        for e in range(8):
            a(f"{sw} v{acc[e]}, v{tq[e]}")
        for e in range(8):
            a(f"v_add_f32 v{acc[e]}, v{acc[e]}, v{tq[e]}")
    a(f"s_lshl_b32 s{sTmp}, s{sHW}, 8")
    a(f"v_lshlrev_b32 v{vt[0]}, 5, v{vL}")
    a(f"v_add_u32 v{vt[0]}, s{sTmp}, v{vt[0]}")
    a("s_mov_b64 exec, 0xff")
    a(f"ds_write_b128 v{vt[0]}, {vr(acc[0],4)} offset:{QP}")
    a(f"ds_write_b128 v{vt[0]}, {vr(acc[4],4)} offset:{QP+16}")
    a("s_mov_b64 exec, -1")
    lds_arrive(F_QCNT, vt[2])
    stamp("qpart_done")
    a("s_branch L_xskip")
    a.label("L_w7x")
    a.c("q exchange (wave 7)")
    spin_lds(F_QCNT, 3, vt[2], sleep=0)
    a(f"v_lshlrev_b32 v{vt[0]}, 2, v{vL}")
    for w in range(3):
        a(f"ds_read_b32 v{hW+w}, v{vt[0]} offset:{QP + w*256}")
    a("s_waitcnt vmcnt(0) lgkmcnt(0)")
    a(f"s_cmp_eq_u32 s{sB[1]}, 0")
    a(f"s_cselect_b32 s{sNon}, s{sNon}, s{sB[1]}")
    for w in range(1, 3):
        a(f"v_add_f32 v{hW}, v{hW}, v{hW+w}")
    a(f"v_mov_b32 v{hW+1}, s{sNon}")
    a(f"v_mov_b32 v{vNon}, s{sNon}")
    a(f"s_lshl_b32 s{sOff}, s{sHP}, 13")
    a(f"s_add_u32 s{sOff}, s{sOff}, {WS_Q}")
    a(f"s_lshl_b32 s{sTmp}, s{sRQ}, 11")
    a(f"s_lshl_b32 s{sTmp2}, s{sCQ}, 9")
    a(f"s_add_u32 s{sTmp}, s{sTmp}, s{sTmp2}")
    a(f"s_add_u32 s{sTmp}, s{sTmp}, s{sOff}")
    a(f"v_lshlrev_b32 v{vt[0]}, 3, v{vL}")
    a(f"buffer_store_dwordx2 {vr(hW,2)}, v{vt[0]}, {srd(rWS)}, s{sTmp} offen sc1")
    stamp("x_pub")
    a(f"v_lshlrev_b32 v{vt[0]}, 4, v{vL}")
    a(f"s_add_u32 s{sTmp2}, s{sOff}, 4096")
    if opts.get("pdelay", 8): a(f"s_sleep {opts.get('pdelay', 8)}")
    ls = retry_begin()
    for k in range(8):
        a(f"buffer_load_dwordx4 {vr(hR+4*k,4)}, v{vt[0]}, {srd(rWS)}, s{sOff if k < 4 else sTmp2} offen offset:{(k%4)*1024} sc1")
    retry_end(ls, [hR + 4 * k + e for k in range(8) for e in (1, 3)], vt[1], vt[2], sleep=2)
    stamp("x_ok")
    for half in range(2):
        for e in (0, 2):
            for r4 in range(1, 4):
                a(f"v_add_f32 v{hR+4*half+e}, v{hR+4*half+e}, v{hR+4*(2*r4+half)+e}")
        a(f"v_cvt_pk_bf16_f32 v{hR+4*half}, v{hR+4*half}, v{hR+4*half+2}")
    a(f"v_lshlrev_b32 v{vt[0]}, 2, v{vL}")
    a(f"ds_write_b32 v{vt[0]}, v{hR} offset:{QB}")
    a(f"ds_write_b32 v{vt[0]}, v{hR+4} offset:{QB+256}")
    a("s_waitcnt lgkmcnt(0)")
    a(f"ds_write_b32 v{vZ}, v{vNon} offset:{F_NON}")
    a.label("L_xskip")
    if opts.get("hstop") == 1: a("s_branch L_end")
    a.c("ffn phase 1: rows 36j+9hw..+9, cols hp*288..+288 (36 lanes x 16B)")
    a(f"s_mul_i32 s{sTmp}, s{sJ}, 36")
    a(f"s_mul_i32 s{sTmp2}, s{sHW}, 9")
    a(f"s_add_u32 s{sTmp}, s{sTmp}, s{sTmp2}")
    a(f"s_lshl_b32 s{sA0}, s{sTmp}, 2")
    a(f"s_mul_i32 s{sOff}, s{sTmp}, 9216")
    a(f"s_mul_i32 s{sTmp2}, s{sHP}, 576")
    a(f"s_add_u32 s{sOff}, s{sOff}, s{sTmp2}")
    a(f"v_lshlrev_b32 v{vt[0]}, 4, v{vL}")
    a("s_mov_b32 exec_hi, 0xf")
    for r in range(9):
        a(f"buffer_load_dwordx4 {vr(hR+8*r,4)}, v{vt[0]}, {srd(rWG)}, s{sOff} offen{WP}")
        a(f"buffer_load_dwordx4 {vr(hR+8*r+4,4)}, v{vt[0]}, {srd(rWU)}, s{sOff} offen{WP}")
        a(f"s_add_u32 s{sOff}, s{sOff}, 9216")
    a("s_mov_b64 exec, -1")
    if opts.get("hstop") == 2:
        a("s_waitcnt vmcnt(0)"); a("s_branch L_end")
    hW2 = 148
    vR3, vC18, vW2o = 12, 13, 14
    a(f"v_mul_u32_u24 v{vR3}, 57, v{vL}")
    a(f"v_lshrrev_b32 v{vR3}, 10, v{vR3}")
    a(f"v_mul_u32_u24 v{vC18}, 18, v{vR3}")
    a(f"v_sub_u32 v{vC18}, v{vL}, v{vC18}")
    a(f"s_mul_i32 s{sTmp}, s{sHW}, 3")
    a(f"v_add_u32 v{vR3}, s{sTmp}, v{vR3}")
    a(f"s_mov_b32 s{sTmp}, 1152")
    a(f"v_mul_lo_u32 v{vW2o}, v{vR3}, s{sTmp}")
    a(f"v_lshl_add_u32 v{vW2o}, v{vC18}, 4, v{vW2o}")
    a(f"s_mul_i32 s{sTmp}, s{sCQ}, 288")
    a(f"v_add_u32 v{vW2o}, s{sTmp}, v{vW2o}")
    a(f"s_lshl_b32 s{sTmp}, s{sHP}, 2")
    a(f"s_add_u32 s{sTmp}, s{sTmp}, s{sRQ}")
    a(f"s_mul_i32 s{sOff}, s{sTmp}, {64*1152}")
    a(f"s_mul_i32 s{sA1}, s{sTmp}, {72*1152}")
    def wo_loads():
        a(f"s_lshl_b32 s{sTmp}, s{sHP}, 2")
        a(f"s_add_u32 s{sTmp}, s{sTmp}, s{sRQ}")
        a(f"s_mul_i32 s{sOff}, s{sTmp}, {64*1152}")
        for i in range(6):
            a(f"v_add_u32 v{vt[1]}, {12*i}, v{vR3}")
            a(f"v_cmp_gt_u32 vcc, 64, v{vt[1]}")
            a(f"s_mov_b32 s{sEx}, -1")
            a(f"s_mov_b32 s{sEx+1}, 0x3fffff")
            a(f"s_and_b64 vcc, vcc, s[{sEx}:{sEx+1}]")
            for e in range(4):
                a(f"v_mov_b32 v{hW2+4*i+e}, 0")
            a("s_mov_b64 exec, vcc")
            lk = a.newlabel("w2s")
            a(f"s_cbranch_execz {lk}")
            a(f"buffer_load_dwordx4 {vr(hW2+4*i,4)}, v{vW2o}, {srd(rWO)}, s{sOff} offen{WP}")
            a.label(lk)
            a("s_mov_b64 exec, -1")
            a(f"s_add_u32 s{sOff}, s{sOff}, {12*1152}")
    if not opts.get("wolate", 1): wo_loads()
    for i in range(6):
        for e in range(4):
            a(f"v_mov_b32 v{hW2+24+4*i+e}, 0")
    a("s_mov_b32 exec_hi, 0x3fffff")
    for i in range(6):
        a(f"buffer_load_dwordx4 {vr(hW2+24+4*i,4)}, v{vW2o}, {srd(rWD)}, s{sA1} offen{WP}")
        a(f"s_add_u32 s{sA1}, s{sA1}, {12*1152}")
    a("s_mov_b64 exec, -1")
    a(f"v_mov_b32 v{vt[1]}, s{sA0}")
    for r in range(9):
        a(f"ds_read_b32 v{hX+r}, v{vt[1]} offset:{XN + r*4}")
    xr = [hX + r for r in range(9)]
    fac = [hA + i for i in range(16)]
    a("s_waitcnt vmcnt(6) lgkmcnt(0)")
    a("s_waitcnt vmcnt(0)") if opts.get("safe_ffn", 1) else None
    for r in range(9):
        for mt in range(2):
            for dd in range(4):
                rg = hR + 8 * r + 4 * mt + dd
                a(f"v_lshlrev_b32 v{vt[2]}, 16, v{rg}")
                a(f"v_and_b32 v{vt[3]}, 0xffff0000, v{rg}")
                if r == 0:
                    a(f"v_mul_f32 v{fac[8*mt+2*dd]}, v{vt[2]}, v{xr[r]}")
                    a(f"v_mul_f32 v{fac[8*mt+2*dd+1]}, v{vt[3]}, v{xr[r]}")
                else:
                    a(f"v_fmac_f32 v{fac[8*mt+2*dd]}, v{vt[2]}, v{xr[r]}")
                    a(f"v_fmac_f32 v{fac[8*mt+2*dd+1]}, v{vt[3]}, v{xr[r]}")
    a(f"s_mul_i32 s{sTmp}, s{sHW}, 2304")
    a(f"v_lshlrev_b32 v{vt[0]}, 5, v{vL}")
    a(f"v_add_u32 v{vt[0]}, s{sTmp}, v{vt[0]}")
    a("s_mov_b32 exec_hi, 0xf")
    for mt in range(2):
        a(f"ds_write_b128 v{vt[0]}, {vr(fac[8*mt],4)} offset:{FFP + mt*1152}")
        a(f"ds_write_b128 v{vt[0]}, {vr(fac[8*mt+4],4)} offset:{FFP + mt*1152 + 16}")
    a("s_mov_b64 exec, -1")
    lds_arrive(F_FCNT, vt[2], ret=True)
    a(f"s_mov_b32 s{sA0}, s{sTmp}")
    stamp("ffn1_done")
    if opts.get("hstop") == 3: a("s_branch L_end")
    spin_lds(F_NON, 1, vNon)
    a(f"s_mov_b32 s{sNon}, s{sTmp}")
    a(f"s_cmp_lg_u32 s{sA0}, 3")
    a("s_cbranch_scc1 L_fpskip")
    a.c("last arriver: sum 4 partials and publish 576 granules")
    a(f"v_lshlrev_b32 v{vt[0]}, 2, v{vL}")
    for k in range(9):
        for w in range(4):
            a(f"ds_read_b32 v{hR+4*k+w}, v{vt[0]} offset:{FFP + w*2304 + k*256}")
    a(f"s_mul_i32 s{sOff}, s{sWGI}, 4608")
    a(f"s_add_u32 s{sOff}, s{sOff}, {WS_FP}")
    a(f"v_lshlrev_b32 v{vt[0]}, 3, v{vL}")
    a("s_waitcnt lgkmcnt(0)")
    for k in range(9):
        a(f"v_add_f32 v{hR+4*k}, v{hR+4*k}, v{hR+4*k+1}")
        a(f"v_add_f32 v{hR+4*k+2}, v{hR+4*k+2}, v{hR+4*k+3}")
        a(f"v_add_f32 v{hR+4*k}, v{hR+4*k}, v{hR+4*k+2}")
        a(f"v_mov_b32 v{hR+4*k+1}, v{vNon}")
        if k == 8:
            a(f"s_add_u32 s{sOff}, s{sOff}, 4096")
        a(f"buffer_store_dwordx2 {vr(hR+4*k,2)}, v{vt[0]}, {srd(rWS)}, s{sOff} offen offset:{(k%8)*512} sc1")
    a.label("L_fpskip")
    a(f"s_setprio {opts.get('hprio', 1)}")
    a(f"s_cmp_lg_u32 s{sW}, 4")
    a("s_cbranch_scc1 L_rsskip")
    a.c("ffn reduce-scatter")
    a(f"v_cmp_le_u32 vcc, 18, v{vL}")
    a(f"v_mov_b32 v{vt[1]}, {2304-144}")
    a.nop(1)
    a(f"v_cndmask_b32 v{vt[1]}, 0, v{vt[1]}, vcc")
    a(f"v_lshl_add_u32 v{vt[0]}, v{vL}, 3, v{vt[1]}")
    a(f"s_mul_i32 s{sTmp}, s{sJ}, 144")
    a(f"v_add_u32 v{vt[0]}, s{sTmp}, v{vt[0]}")
    spin_lds(F_PROG, opts.get("g1", 4), vt[2], sleep=32)
    a("s_mov_b32 exec_hi, 0xf")
    ls = retry_begin()
    a(f"s_mul_i32 s{sOff}, s{sHP}, {16*4608}")
    a(f"s_add_u32 s{sOff}, s{sOff}, {WS_FP}")
    for p in range(16):
        a(f"buffer_load_dwordx2 {vr(hR+2*p,2)}, v{vt[0]}, {srd(rWS)}, s{sOff} offen sc1")
        a(f"s_add_u32 s{sOff}, s{sOff}, 4608")
    retry_end(ls, [hR + 2 * p + 1 for p in range(16)], vt[1], vt[2], sleep=32)
    for p in range(1, 16):
        a(f"v_add_f32 v{hR}, v{hR}, v{hR+2*p}")
    a("s_mov_b64 exec, -1")
    bf16_round(a, hR, hR)
    a(f"v_add_u32 v{vt[0]}, 18, v{vL}")
    a(f"v_lshlrev_b32 v{vt[0]}, 2, v{vt[0]}")
    a(f"v_and_b32 v{vt[0]}, 0xff, v{vt[0]}")
    a(f"ds_bpermute_b32 v{hR+1}, v{vt[0]}, v{hR}")
    silu(hR)
    a("s_waitcnt lgkmcnt(0)")
    a(f"v_mul_f32 v{hR}, v{hR}, v{hR+1}")
    bf16_round(a, hR, hR)
    a(f"v_mov_b32 v{hR+1}, v{vNon}")
    a(f"s_mul_i32 s{sOff}, s{sWGI}, 144")
    a(f"s_add_u32 s{sOff}, s{sOff}, {WS_HB}")
    a(f"v_lshlrev_b32 v{vt[0]}, 3, v{vL}")
    a("s_mov_b64 exec, 0x3ffff")
    a(f"buffer_store_dwordx2 {vr(hR,2)}, v{vt[0]}, {srd(rWS)}, s{sOff} offen sc1")
    a("s_mov_b64 exec, -1")
    stamp("h_pub")
    a.c("all-gather h[hp*288 + rq*72 ..+72] -> LDS INH (wave 4)")
    a(f"s_lshl_b32 s{sTmp}, s{sHP}, 2")
    a(f"s_add_u32 s{sTmp}, s{sTmp}, s{sRQ}")
    a(f"s_mul_i32 s{sOff}, s{sTmp}, 576")
    a(f"s_add_u32 s{sOff}, s{sOff}, {WS_HB}")
    a(f"v_lshlrev_b32 v{vt[0]}, 4, v{vL}")
    spin_lds(F_PROG, opts.get("g2", 7), vt[2], sleep=32)
    a("s_mov_b32 exec_hi, 0xf")
    ls = retry_begin()
    a(f"buffer_load_dwordx4 {vr(hR,4)}, v{vt[0]}, {srd(rWS)}, s{sOff} offen sc1")
    retry_end(ls, [hR + 1, hR + 3], vt[1], vt[2], sleep=32)
    a(f"v_mov_b32 v{hR+1}, v{hR+2}")
    a(f"v_lshlrev_b32 v{vt[0]}, 3, v{vL}")
    a(f"ds_write_b64 v{vt[0]}, {vr(hR,2)} offset:{INH}")
    a("s_mov_b64 exec, -1")
    lds_arrive(F_H, vt[2])
    a.label("L_rsskip")

    def slice_matmul(inaddr, wbase, fin, cnt_flag, wsbase, tagname):
        a(f"v_lshlrev_b32 v{vt[0]}, 2, v{vR3}")
        for i in range(6):
            a(f"ds_read_b32 v{hX+i}, v{vt[0]} offset:{inaddr + i*48}")
        a("s_waitcnt lgkmcnt(0)")
        fa = [hA + e for e in range(8)]
        for i in range(6):
            for dd in range(4):
                rg = wbase + 4 * i + dd
                a(f"v_lshlrev_b32 v{vt[2]}, 16, v{rg}")
                a(f"v_and_b32 v{vt[3]}, 0xffff0000, v{rg}")
                if i == 0:
                    a(f"v_mul_f32 v{fa[2*dd]}, v{vt[2]}, v{hX+i}")
                    a(f"v_mul_f32 v{fa[2*dd+1]}, v{vt[3]}, v{hX+i}")
                else:
                    a(f"v_fmac_f32 v{fa[2*dd]}, v{vt[2]}, v{hX+i}")
                    a(f"v_fmac_f32 v{fa[2*dd+1]}, v{vt[3]}, v{hX+i}")
        a(f"s_lshl_b32 s{sTmp}, s{sHW}, 11")
        a(f"v_lshlrev_b32 v{vt[0]}, 5, v{vL}")
        a(f"v_add_u32 v{vt[0]}, s{sTmp}, v{vt[0]}")
        a(f"ds_write_b128 v{vt[0]}, {vr(fa[0],4)} offset:{fin}")
        a(f"ds_write_b128 v{vt[0]}, {vr(fa[4],4)} offset:{fin+16}")
        lds_arrive(cnt_flag, vt[2], ret=True)
        lk = a.newlabel("sm")
        a(f"s_cmp_lg_u32 s{sTmp}, 3")
        a(f"s_cbranch_scc1 {lk}")
        a(f"v_lshlrev_b32 v{vt[0]}, 2, v{vL}")
        for k in range(3):
            for w in range(4):
                for r3 in range(3):
                    a(f"ds_read_b32 v{hR+12*k+3*w+r3}, v{vt[0]} offset:{fin + w*2048 + r3*576 + k*256}")
        a(f"s_lshl_b32 s{sTmp}, s{sHP}, 2")
        a(f"s_add_u32 s{sTmp}, s{sTmp}, s{sRQ}")
        a(f"s_lshl_b32 s{sOff}, s{sCQ}, 6")
        a(f"s_add_u32 s{sOff}, s{sOff}, s{sTmp}")
        a(f"s_mul_i32 s{sOff}, s{sOff}, 1152")
        a(f"s_add_u32 s{sOff}, s{sOff}, {wsbase}")
        a(f"v_lshlrev_b32 v{vt[0]}, 3, v{vL}")
        a("s_waitcnt lgkmcnt(0)")
        for k in range(3):
            for q in range(1, 12):
                a(f"v_add_f32 v{hR+12*k}, v{hR+12*k}, v{hR+12*k+q}")
            a(f"v_mov_b32 v{hR+12*k+1}, v{vNon}")
            if k == 2:
                a("s_mov_b64 exec, 0xffff")
            a(f"buffer_store_dwordx2 {vr(hR+12*k,2)}, v{vt[0]}, {srd(rWS)}, s{sOff} offen offset:{k*512} sc1")
        a("s_mov_b64 exec, -1")
        stamp(tagname)
        a.label(lk)

    def fin_gather(wsbase, dst, cntflag, sleep):
        a(f"s_mul_i32 s{sTmp}, s{sHW}, 3")
        a(f"v_subrev_u32 v{vt[4]}, s{sTmp}, v{vR3}")
        a(f"s_mov_b32 s{sTmp}, 1152")
        a(f"v_mul_lo_u32 v{vt[0]}, v{vt[4]}, s{sTmp}")
        a(f"v_lshl_add_u32 v{vt[0]}, v{vC18}, 4, v{vt[0]}")
        a(f"s_lshr_b32 s{sTmp}, s{sJ}, 2")
        a(f"s_lshl_b32 s{sTmp}, s{sTmp}, 6")
        a(f"s_lshl_b32 s{sTmp2}, s{sHW}, 4")
        a(f"s_add_u32 s{sTmp}, s{sTmp}, s{sTmp2}")
        a(f"s_mul_i32 s{sA0}, s{sTmp}, 1152")
        a(f"s_and_b32 s{sTmp}, s{sJ}, 3")
        a(f"s_mul_i32 s{sTmp}, s{sTmp}, 288")
        a(f"s_add_u32 s{sA0}, s{sA0}, s{sTmp}")
        a(f"s_add_u32 s{sA0}, s{sA0}, {wsbase}")
        a(f"v_mov_b32 v{hR+20}, 0")
        a(f"v_mov_b32 v{hR+21}, v{vNon}")
        a(f"v_mov_b32 v{hR+22}, 0")
        a(f"v_mov_b32 v{hR+23}, v{vNon}")
        a("s_mov_b32 exec_hi, 0x3fffff")
        ls = retry_begin()
        a(f"s_mov_b32 s{sOff}, s{sA0}")
        for i in range(6):
            if i == 5:
                a("s_mov_b64 exec, 0x3ffff")
            a(f"buffer_load_dwordx4 {vr(hR+4*i,4)}, v{vt[0]}, {srd(rWS)}, s{sOff} offen sc1")
            a(f"s_add_u32 s{sOff}, s{sOff}, {3*1152}")
        a("s_mov_b32 exec_lo, -1")
        a("s_mov_b32 exec_hi, 0x3fffff")
        retry_end(ls, [hR + 4 * i + e for i in range(6) for e in (1, 3)], vt[1], vt[2], sleep=sleep)
        for i in range(1, 6):
            a(f"v_add_f32 v{hR}, v{hR}, v{hR+4*i}")
            a(f"v_add_f32 v{hR+2}, v{hR+2}, v{hR+4*i+2}")
        a(f"v_mov_b32 v{hR+1}, v{hR+2}")
        a(f"s_lshl_b32 s{sTmp}, s{sHW}, 9")
        a(f"v_lshlrev_b32 v{vt[0]}, 3, v{vL}")
        a(f"v_add_u32 v{vt[0]}, s{sTmp}, v{vt[0]}")
        a(f"ds_write_b64 v{vt[0]}, {vr(hR,2)} offset:{dst}")
        a("s_mov_b64 exec, -1")
        lds_arrive(cntflag, vt[2], ret=True)

    a.c("y-part matmul")
    spin_lds(F_H, 1, vt[2], sleep=32)
    slice_matmul(INH, hW2 + 24, FIN2, F_YCNT, WS_Y2, "y_pub")
    a(f"v_lshlrev_b32 v{vt[0]}, 2, v{vL}")
    a(f"ds_write_b32 v{vt[0]}, v{vZ} offset:{INO+256}")
    a(f"s_cmp_lg_u32 s{sHP}, s{sJ}")
    a("s_cbranch_scc1 L_noyg")
    spin_lds(F_PROG, opts.get("g3", 11), vt[2], sleep=32)
    fin_gather(WS_Y2, G2 + 2048, F_Y2CNT, 64)
    a.label("L_noyg")
    stamp("h_idle")
    if opts.get("hstop") == 4: a("s_branch L_end")
    if opts.get("rb"):
        a.c("rate-balance partition (wave 6)")
        NTb = 4 * (32 - NS)
        G = 16 * NTb
        a(f"s_cmp_lg_u32 s{sW}, 6")
        a("s_cbranch_scc1 L_rbskip")
        spin_lds(F_T, 1, vt[2], sleep=4)
        a(f"s_sub_u32 s{sTmp}, s{sTmp}, s{sNon}")
        a(f"v_mov_b32 v{hR}, s{sTmp}")
        a(f"v_mov_b32 v{hR+1}, v{vNon}")
        a(f"s_lshl_b32 s{sOff}, s{sHP}, 7")
        a(f"s_add_u32 s{sOff}, s{sOff}, {WS_CNT}")
        a(f"s_lshl_b32 s{sTmp}, s{sJ}, 3")
        a(f"s_add_u32 s{sTmp}, s{sTmp}, s{sOff}")
        a("s_mov_b64 exec, 1")
        a(f"buffer_store_dwordx2 {vr(hR,2)}, v{vZ}, {srd(rWS)}, s{sTmp} offen sc1")
        a("s_mov_b64 exec, -1")
        spin_lds(F_PROG, opts.get("p2", 14), vt[2], sleep=8)
        a(f"v_lshlrev_b32 v{vt[0]}, 3, v{vL}")
        a("s_mov_b64 exec, 0xffff")
        ls = retry_begin()
        a(f"buffer_load_dwordx2 {vr(hR,2)}, v{vt[0]}, {srd(rWS)}, s{sOff} offen sc1")
        retry_end(ls, [hR + 1], vt[1], vt[2], sleep=16)
        x_, sm = hR + 2, hR + 3
        a(f"v_cvt_f32_u32 v{x_}, v{hR}")
        a(f"v_rcp_f32 v{x_}, v{x_}")
        a.nop(1)
        a(f"v_mov_b32 v{sm}, v{x_}")
        for ctrl in ("quad_perm:[1,0,3,2]", "quad_perm:[2,3,0,1]", "row_half_mirror", "row_mirror"):
            a.nop(2)
            a(f"v_add_f32_dpp v{sm}, v{sm}, v{sm} {ctrl} row_mask:0xf bank_mask:0xf")
        a(f"v_rcp_f32 v{sm}, v{sm}")
        a.nop(1)
        a(f"v_mul_f32 v{x_}, v{x_}, v{sm}")
        W = float(opts.get("wtot", 138))
        a(f"v_mul_f32 v{x_}, 0x{f32bits(16*W):08x}, v{x_}")
        a(f"v_add_f32 v{x_}, 0x{f32bits(NTb - W):08x}, v{x_}")
        a(f"v_max_f32 v{x_}, 0, v{x_}")
        for sh in (1, 2, 4, 8):
            a.nop(2)
            a(f"v_add_f32_dpp v{x_}, v{x_}, v{x_} row_shr:{sh} row_mask:0xf bank_mask:0xf bound_ctrl:0")
        a.nop(1)
        a(f"v_readlane_b32 s{sTmp}, v{x_}, 15")
        a.nop(2)
        a(f"v_mov_b32 v{sm}, s{sTmp}")
        a(f"v_rcp_f32 v{sm}, v{sm}")
        a.nop(1)
        a(f"v_mul_f32 v{x_}, v{x_}, v{sm}")
        a(f"v_mul_f32 v{x_}, 0x{f32bits(float(G)):08x}, v{x_}")
        a(f"v_add_f32 v{x_}, 0.5, v{x_}")
        a(f"v_cvt_u32_f32 v{x_}, v{x_}")
        a(f"v_min_u32 v{x_}, {G}, v{x_}")
        a("s_mov_b64 exec, -1")
        a.nop(1)
        a(f"s_mov_b32 m0, s{sJ}")
        a(f"v_readlane_b32 s{sA1}, v{x_}, m0")
        a(f"s_cmp_eq_u32 s{sJ}, 15")
        a(f"s_cselect_b32 s{sA1}, {G}, s{sA1}")
        a(f"s_sub_u32 s{sTmp}, s{sJ}, 1")
        a(f"s_max_i32 s{sTmp}, s{sTmp}, 0")
        a(f"s_mov_b32 m0, s{sTmp}")
        a(f"v_readlane_b32 s{sA0}, v{x_}, m0")
        a(f"s_cmp_eq_u32 s{sJ}, 0")
        a(f"s_cselect_b32 s{sA0}, 0, s{sA0}")
        a(f"s_add_u32 s{sA1}, s{sA1}, 1")
        a(f"v_mov_b32 v{hR}, s{sA0}")
        a(f"v_mov_b32 v{hR+1}, s{sA1}")
        a(f"ds_write_b64 v{vZ}, {vr(hR,2)} offset:{F_C}")
        a.label("L_rbskip")
    if opts.get("lq", 1) and NS < 32 and not opts.get("rb"):
        a.c("dispatcher (wave 5)")
        LA, BB = opts.get("la", 4), opts.get("bb", 2)
        NT = 4 * (32 - NS)
        a(f"s_cmp_lg_u32 s{sW}, 5")
        a("s_cbranch_scc1 L_dskip")
        spin_lds(F_PROG, 4 * ((NS - 4) // 6), vt[2], sleep=16)
        sFil, sP = sB[1], sB[2]
        sVic, sBat = sA0, sA1
        a(f"s_lshl_b32 s{sTmp}, s{sHP}, 7")
        a(f"s_add_u32 s{sTmp2}, s{sTmp}, {WS_CNT}")
        a(f"s_add_u32 s{sEx}, s{sWS}, s{sTmp2}")
        a(f"s_addc_u32 s{sEx+1}, s{sWS+1}, 0")
        a(f"s_mov_b32 s{sFil}, 0")
        a(f"s_mov_b32 s{sVic}, s{sJ}")
        a(f"s_mov_b32 s{sBat}, {BB}")
        a(f"s_mov_b32 s{sCnt}, 0x1000000")
        a(f"v_lshlrev_b32 v{vt[4]}, 2, v{vL}")
        a.label("L_dloop")
        a(f"ds_read_b32 v{vt[2]}, v{vZ} offset:{F_TK}")
        a("s_waitcnt lgkmcnt(0)")
        a(f"v_readfirstlane_b32 s{sTmp}, v{vt[2]}")
        a(f"s_add_u32 s{sTmp}, s{sTmp}, {LA}")
        a(f"s_cmp_lt_u32 s{sFil}, s{sTmp}")
        a("s_cbranch_scc1 L_dclaim")
        a(f"s_sub_u32 s{sCnt}, s{sCnt}, 1")
        a(f"s_cmp_eq_u32 s{sCnt}, 0")
        a("s_cbranch_scc1 L_dend")
        a("s_sleep 2")
        a("s_branch L_dloop")
        a.label("L_dclaim")
        a(f"s_mov_b32 s{sP}, s{sBat}")
        a(f"s_lshl_b32 s{sOff}, s{sVic}, 2")
        a(f"s_atomic_add s{sP}, s[{sEx}:{sEx+1}], s{sOff} glc")
        a("s_waitcnt lgkmcnt(0)")
        a(f"s_sub_i32 s{sTmp}, {NT}, s{sP}")
        a(f"s_max_i32 s{sTmp}, s{sTmp}, 0")
        a(f"s_min_i32 s{sTmp}, s{sTmp}, s{sBat}")
        a(f"s_cmp_eq_u32 s{sTmp}, 0")
        a("s_cbranch_scc1 L_dscan")
        a(f"v_add_u32 v{vt[2]}, s{sP}, v{vL}")
        a(f"v_lshrrev_b32 v{vt[3]}, 2, v{vt[2]}")
        a(f"v_lshlrev_b32 v{vt[3]}, 3, v{vt[3]}")
        a(f"v_and_b32 v{vt[2]}, 3, v{vt[2]}")
        a(f"v_add_u32 v{vt[2]}, v{vt[2]}, v{vt[3]}")
        a(f"v_add_u32 v{vt[2]}, {NS*8}, v{vt[2]}")
        a(f"v_lshlrev_b32 v{vt[2]}, 12, v{vt[2]}")
        a(f"s_lshl_b32 s{sOff}, s{sVic}, 20")
        a(f"v_add_u32 v{vt[1]}, s{sOff}, v{vt[2]}")
        a(f"v_add_u32 v{vt[0]}, s{sFil}, v{vL}")
        a(f"v_lshlrev_b32 v{vt[0]}, 2, v{vt[0]}")
        a(f"s_lshl_b32 s{sOff}, 1, s{sTmp}")
        a(f"s_sub_u32 s{sOff}, s{sOff}, 1")
        a(f"s_mov_b32 exec_lo, s{sOff}")
        a("s_mov_b32 exec_hi, 0")
        a(f"ds_write_b32 v{vt[0]}, v{vt[1]} offset:{QQ}")
        a("s_mov_b64 exec, -1")
        a(f"s_add_u32 s{sFil}, s{sFil}, s{sTmp}")
        a(f"s_cmp_eq_u32 s{sVic}, s{sJ}")
        a("s_cbranch_scc1 L_dloop")
        a.label("L_dwait")
        a(f"ds_read_b32 v{vt[2]}, v{vZ} offset:{F_TK}")
        a("s_waitcnt lgkmcnt(0)")
        a(f"v_readfirstlane_b32 s{sTmp}, v{vt[2]}")
        a(f"s_add_u32 s{sTmp}, s{sTmp}, {opts.get('la2', LA)}")
        a(f"s_cmp_lt_u32 s{sFil}, s{sTmp}")
        a("s_cbranch_scc1 L_dscan")
        a(f"s_sub_u32 s{sCnt}, s{sCnt}, 1")
        a(f"s_cmp_eq_u32 s{sCnt}, 0")
        a("s_cbranch_scc1 L_dend")
        a("s_sleep 2")
        a("s_branch L_dwait")
        a.label("L_dscan")
        a("s_mov_b64 exec, 0xffff")
        a(f"buffer_load_dword v{vt[0]}, v{vt[4]}, {srd(rWS)}, s{sTmp2} offen sc1")
        a("s_waitcnt vmcnt(0)")
        a(f"v_sub_u32 v{vt[0]}, {NT}, v{vt[0]}")
        a(f"v_max_i32 v{vt[0]}, 0, v{vt[0]}")
        a(f"v_subrev_u32 v{vt[1]}, s{sJ}, v{vL}")
        a(f"v_and_b32 v{vt[1]}, 15, v{vt[1]}")
        a(f"v_lshl_add_u32 v{vt[0]}, v{vt[0]}, 4, v{vt[1]}")
        a(f"v_mov_b32 v{vt[1]}, v{vt[0]}")
        for ctrl in ("quad_perm:[1,0,3,2]", "quad_perm:[2,3,0,1]", "row_half_mirror", "row_mirror"):
            a.nop(2)
            a(f"v_max_u32_dpp v{vt[1]}, v{vt[1]}, v{vt[1]} {ctrl} row_mask:0xf bank_mask:0xf")
        a.nop(1)
        a(f"v_readfirstlane_b32 s{sTmp}, v{vt[1]}")
        a("s_mov_b64 exec, -1")
        a(f"s_cmp_lt_u32 s{sTmp}, {16 * opts.get('minrem', 1)}")
        a("s_cbranch_scc1 L_dend")
        a(f"s_and_b32 s{sTmp}, s{sTmp}, 15")
        a(f"s_add_u32 s{sTmp}, s{sTmp}, s{sJ}")
        a(f"s_and_b32 s{sVic}, s{sTmp}, 15")
        a(f"s_mov_b32 s{sBat}, 1")
        a("s_branch L_dclaim")
        a.label("L_dend")
        a(f"v_add_u32 v{vt[0]}, s{sFil}, v{vL}")
        a(f"v_lshlrev_b32 v{vt[0]}, 2, v{vt[0]}")
        a(f"v_mov_b32 v{vt[1]}, {OOB}")
        a("s_mov_b64 exec, 0xff")
        a(f"ds_write_b32 v{vt[0]}, v{vt[1]} offset:{QQ}")
        a("s_mov_b64 exec, -1")
        a.label("L_dskip")
    a.c("wg combine")
    if opts.get("wolate", 1) == 2:
        spin_lds(F_PROG, opts.get("g4", 17), vt[2], sleep=8)
        wo_loads()
    if opts.get("wolate", 1) == 3:
        spin_lds(F_SCNT, 1, vt[2], sleep=4)
        wo_loads()
    spin_lds(F_SCNT, 4, vt[2], sleep=opts.get("hsleep", 2))
    a("s_setprio 3")
    if opts.get("dbgstamp") == 2:
        a(f"s_cmp_lg_u32 s{sW}, 5")
        a("s_cbranch_scc1 L_dbs1")
        a(f"s_cmp_lg_u32 s{sJ}, 3")
        a("s_cbranch_scc1 L_dbs1")
        a(f"s_cmp_eq_u32 s{sHP}, 0")
        a("s_cbranch_scc1 L_dbs1")
        a(f"s_memrealtime s[{sT64}:{sT64+1}]")
        a("s_waitcnt lgkmcnt(0)")
        a(f"s_sub_u32 s{sTmp}, s{sT64}, s{sNon}")
        a(f"v_mov_b32 v{vt[0]}, s{sTmp}")
        a(f"s_lshl_b32 s{sTmp}, s{sHP}, 2")
        a("s_mov_b64 exec, 1")
        a(f"buffer_store_dword v{vt[0]}, v{vZ}, {srd(rDBG)}, s{sTmp} offen")
        a("s_mov_b64 exec, -1")
        a.label("L_dbs1")
    stamp("s_all")
    a(f"v_and_b32 v{vt[5]}, 255, v0")
    a(f"v_lshlrev_b32 v{vt[0]}, 2, v{vt[5]}")
    a(f"v_lshrrev_b32 v{vt[1]}, 7, v{vt[5]}")
    a(f"v_lshlrev_b32 v{vt[1]}, 2, v{vt[1]}")
    mreg = [hR + i for i in range(4)]
    lreg = [hR + 4 + i for i in range(4)]
    oreg = [hR + 8 + i for i in range(4)]
    for w in range(4):
        a(f"ds_read_b32 v{mreg[w]}, v{vt[1]} offset:{COMB + w*CSTR + 1024}")
        a(f"ds_read_b32 v{lreg[w]}, v{vt[1]} offset:{COMB + w*CSTR + 1032}")
        a(f"ds_read_b32 v{oreg[w]}, v{vt[0]} offset:{COMB + w*CSTR}")
    a("s_waitcnt lgkmcnt(0)")
    M, Lr, Or = hA + 8, hA + 10, hA + 12
    combine(4, mreg, lreg, oreg, M, Lr, Or)
    a(f"v_mov_b32 v{M+1}, v{vNon}")
    a(f"v_mov_b32 v{Lr+1}, v{vNon}")
    a(f"v_mov_b32 v{Or+1}, v{vNon}")
    a(f"s_mul_i32 s{sOff}, s{sWGI}, {PSTR}")
    a(f"v_lshlrev_b32 v{vt[0]}, 3, v{vt[5]}")
    a(f"buffer_store_dwordx2 {vr(Or,2)}, v{vt[0]}, {srd(rWS)}, s{sOff} offen sc1")
    a(f"v_lshlrev_b32 v{vt[1]}, 2, v{vt[1]}")
    a(f"s_and_b32 s{sTmp}, s{sHW}, 1")
    a(f"s_cmp_lg_u32 s{sTmp}, 0")
    a("s_cbranch_scc1 L_mlskip")
    a("s_mov_b64 exec, 1")
    a(f"buffer_store_dwordx4 {vr(M,4)}, v{vt[1]}, {srd(rWS)}, s{sOff} offen offset:2048 sc1")
    a("s_mov_b64 exec, -1")
    a.label("L_mlskip")
    if opts.get("wolate", 1) == 1: wo_loads()
    stamp("published")
    a(f"s_cmp_lg_u32 s{sW}, 4")
    a("s_cbranch_scc1 L_l1skip")
    a.c("level-1 poll")
    a(f"v_and_b32 v{vt[0]}, 15, v{vL}")
    a(f"v_mul_u32_u24 v{vt[0]}, {PSTR}, v{vt[0]}")
    a(f"s_lshr_b32 s{sTmp}, s{sRQ}, 1")
    a(f"s_lshl_b32 s{sTmp}, s{sTmp}, 4")
    a(f"s_mul_i32 s{sA0}, s{sHP}, {16*PSTR}")
    a(f"s_add_u32 s{sA1}, s{sA0}, s{sTmp}")
    THR = opts.get("thr", 15)
    a("s_mov_b64 exec, 0xffff")
    l0, l1 = retry_begin()
    a(f"buffer_load_dwordx4 {vr(hR,4)}, v{vt[0]}, {srd(rWS)}, s{sA1} offen offset:2048 sc1")
    a("s_waitcnt vmcnt(0)")
    a(f"v_cmp_eq_u32 vcc, v{vNon}, v{hR+1}")
    a(f"s_bcnt1_i32_b64 s{sTmp}, vcc")
    a(f"s_cmp_ge_u32 s{sTmp}, {THR}")
    a(f"s_cbranch_scc1 {l1}")
    a(f"s_sub_u32 s{sCnt}, s{sCnt}, 1")
    a(f"s_cmp_eq_u32 s{sCnt}, 0")
    a(f"s_cbranch_scc1 {l1}")
    a(f"s_sleep {opts.get('sleep1', 8)}")
    a(f"s_branch {l0}")
    a.label(l1)
    a("s_mov_b64 exec, -1")
    stamp("polled")
    a(f"s_lshl_b32 s{sTmp}, s{sRQ}, 9")
    a(f"s_add_u32 s{sA0}, s{sA0}, s{sTmp}")
    a(f"v_lshlrev_b32 v{vt[3]}, 3, v{vL}")
    hG = hR + 8
    ls = retry_begin()
    a(f"buffer_load_dwordx4 {vr(hR,4)}, v{vt[0]}, {srd(rWS)}, s{sA1} offen offset:2048 sc1")
    a(f"s_mov_b32 s{sOff}, s{sA0}")
    for p in range(16):
        a(f"buffer_load_dwordx2 {vr(hG+2*p,2)}, v{vt[3]}, {srd(rWS)}, s{sOff} offen sc1")
        a(f"s_add_u32 s{sOff}, s{sOff}, {PSTR}")
    retry_end(ls, [hR + 1, hR + 3] + [hG + 2 * p + 1 for p in range(16)], vt[1], vt[2], sleep=opts.get("sleep2", 2))
    mm, ll = hR + 4, hR + 5
    a(f"v_mov_b32 v{mm}, v{hR}")
    for ctrl in ("quad_perm:[1,0,3,2]", "quad_perm:[2,3,0,1]", "row_half_mirror", "row_mirror"):
        a.nop(2)
        a(f"v_max_f32_dpp v{mm}, v{mm}, v{mm} {ctrl} row_mask:0xf bank_mask:0xf")
    a(f"v_sub_f32 v{hR}, v{hR}, v{mm}")
    a(f"v_exp_f32 v{hR}, v{hR}")
    a.nop(1)
    a(f"v_mul_f32 v{ll}, v{hR}, v{hR+2}")
    for ctrl in ("quad_perm:[1,0,3,2]", "quad_perm:[2,3,0,1]", "row_half_mirror", "row_mirror"):
        a.nop(2)
        a(f"v_add_f32_dpp v{ll}, v{ll}, v{ll} {ctrl} row_mask:0xf bank_mask:0xf")
    a.nop(1)
    a(f"v_readlane_b32 s{sA1}, v{ll}, 0")
    for p in range(16):
        a(f"v_readlane_b32 s{sTmp}, v{hR}, {p}")
        a.nop(2)
        if p == 0:
            a(f"v_mul_f32 v{Or}, s{sTmp}, v{hG}")
        else:
            a(f"v_fmac_f32 v{Or}, s{sTmp}, v{hG+2*p}")
    a(f"v_mov_b32 v{Lr}, s{sA1}")
    a(f"v_rcp_f32 v{vt[3]}, v{Lr}")
    a.nop(1)
    a(f"v_mul_f32 v{vt[4]}, v{Or}, v{vt[3]}")
    a(f"v_fma_f32 v{vt[5]}, -v{vt[4]}, v{Lr}, v{Or}")
    a(f"v_fma_f32 v{Or}, v{vt[5]}, v{vt[3]}, v{vt[4]}")
    bf16_round(a, Or, Or)
    a(f"v_lshlrev_b32 v{vt[0]}, 2, v{vL}")
    a(f"ds_write_b32 v{vt[0]}, v{Or} offset:{INO}")
    lds_arrive(F_O, vt[2])
    stamp("gathered")
    a.label("L_l1skip")
    spin_lds(F_O, 1, vt[2], sleep=0)
    a("s_waitcnt vmcnt(0)")
    slice_matmul(INO, hW2, FIN, F_ZCNT, WS_S2, "s_pub")
    a(f"s_cmp_lg_u32 s{sHP}, s{sJ}")
    a("s_cbranch_scc1 L_end")
    fin_gather(WS_S2, G2, F_S2CNT, 2)
    a(f"s_cmp_lg_u32 s{sTmp}, 3")
    a("s_cbranch_scc1 L_end")
    a.c("final: last arriver sums 4 waves x 3 pp for 36 cols")
    a(f"s_mul_i32 s{sTmp}, s{sJ}, 72")
    a(f"v_lshlrev_b32 v{vt[6]}, 1, v{vL}")
    a(f"v_add_u32 v{vt[6]}, s{sTmp}, v{vt[6]}")
    a("s_mov_b32 exec_hi, 0xf")
    a(f"buffer_load_ushort v{vt[7]}, v{vt[6]}, {srd(rX)}, 0 offen")
    a(f"v_lshlrev_b32 v{vt[0]}, 2, v{vL}")
    for part in range(2):
        for w in range(4):
            for pp in range(3):
                a(f"ds_read_b32 v{hR+12*part+3*w+pp}, v{vt[0]} offset:{G2 + part*2048 + w*512 + pp*144}")
    a("s_waitcnt lgkmcnt(0)")
    for part in range(2):
        for q in range(1, 12):
            a(f"v_add_f32 v{hR+12*part}, v{hR+12*part}, v{hR+12*part+q}")
    sS, sY = hR, hR + 12
    bf16_round(a, sS, sS)
    bf16_round(a, sY, sY)
    silu(sY)
    a(f"v_mul_f32 v{sS}, v{sS}, v{sY}")
    bf16_round(a, sS, sS)
    a("s_waitcnt vmcnt(0)")
    a(f"v_lshlrev_b32 v{vt[7]}, 16, v{vt[7]}")
    a(f"v_add_f32 v{sS}, v{sS}, v{vt[7]}")
    a(f"v_cvt_pk_bf16_f32 v{sS}, v{sS}, v{sS}")
    a(f"buffer_store_short v{sS}, v{vt[6]}, {srd(rOUT)}, 0 offen")
    if opts.get("dbgstamp") == 1:
        a(f"s_memrealtime s[{sT64}:{sT64+1}]")
        a("s_waitcnt lgkmcnt(0)")
        a(f"s_sub_u32 s{sTmp}, s{sT64}, s{sNon}")
        a(f"v_mov_b32 v{vt[0]}, s{sTmp}")
        a(f"s_lshl_b32 s{sTmp}, s{sJ}, 2")
        a(f"s_add_u32 s{sTmp}, s{sTmp}, 4")
        a(f"s_cmp_ge_u32 s{sJ}, 6")
        a("s_cbranch_scc1 L_end")
        a("s_mov_b64 exec, 1")
        a(f"buffer_store_dword v{vt[0]}, v{vZ}, {srd(rDBG)}, s{sTmp} offen")
    if STAMP:
        a("s_waitcnt vmcnt(0)")
    stamp("out")
    a.label("L_end")
    stamp_flush()
    a.label("L_exit")
    a("s_endpgm")
    a.L.append('.section .rodata,"a"')
    a.L.append(".p2align 6")
    a.L.append(f".amdhsa_kernel {KNAME}")
    a.L.append("  .amdhsa_next_free_vgpr 256")
    a.L.append("  .amdhsa_next_free_sgpr 102")
    a.L.append("  .amdhsa_accum_offset 256")
    a.L.append("  .amdhsa_group_segment_fixed_size 0")
    a.L.append("  .amdhsa_kernarg_size 96")
    a.L.append("  .amdhsa_user_sgpr_count 2")
    a.L.append("  .amdhsa_user_sgpr_kernarg_segment_ptr 1")
    a.L.append("  .amdhsa_system_sgpr_workgroup_id_x 1")
    a.L.append("  .amdhsa_float_denorm_mode_32 3")
    a.L.append(".end_amdhsa_kernel")
    return "\n".join(a.L) + "\n"

if __name__ == "__main__":
    out = sys.argv[1] if len(sys.argv) > 1 else "recurrent_scan__gqa_block_cached__swiglu_ffn__decode.s"
    opts = {}
    for kv in sys.argv[2:]:
        k, v = kv.split("=")
        opts[k] = int(v) if v.lstrip("-").isdigit() else v
    txt = gen(opts)
    if opts.get("stamp"):
        txt = txt.replace("\n", "\n; stamps=" + ",".join(opts["names"]) + "\n", 1)
    open(out, "w").write(txt)
    print("wrote", out)
```

```python
import sys, struct

KNAME = "recurrent_scan__gqa_block_cached__swiglu_ffn__decode_kernel"

def f32bits(x):
    return struct.unpack("<I", struct.pack("<f", x))[0]

class Asm:
    def __init__(self):
        self.L = []
        self.uid = 0
    def __call__(self, s):
        self.L.append("    " + s)
    def label(self, s):
        self.L.append(s + ":")
    def c(self, s):
        self.L.append("    ; " + s)
    def nop(self, n):
        while n > 0:
            k = min(n, 16)
            self(f"s_nop {k-1}")
            n -= k
    def newlabel(self, p):
        self.uid += 1
        return f"L_{p}{self.uid}"

FL = 0
F_NON, F_QCNT, F_FCNT, F_H, F_YCNT, F_SCNT, F_O, F_ZCNT, F_Y2CNT, F_S2CNT, F_PROG, F_TK = [FL + 4 * i for i in range(12)]
F_C = FL + 48
F_T = FL + 56
XN = 64
QP = XN + 2560
QB = QP + 1024
FFP = QB + 512
COMB = FFP + 16384
CSTR = 1056
INO = COMB + 4 * CSTR
INH = INO + 512
FIN = INH + 512
FIN2 = FIN + 8192
G2 = FIN2 + 8192
QQ = G2 + 4096
LDS_BYTES = QQ + 4096
LDS_BYTES = (LDS_BYTES + 1023) // 1024 * 1024
PSTR = 2176
WS_PART = 0
WS_FP = 256 * PSTR
WS_HB = WS_FP + 256 * 4608
WS_S2 = WS_HB + 4608 * 8
WS_Y2 = WS_S2 + 4 * 64 * 1152
WS_Q = WS_Y2 + 4 * 64 * 1152
WS_CNT = WS_Q + 16 * 8192
WS_BYTES = WS_CNT + 16 * 128
WS_STAMP = 4 << 20

sX, sK, sV, sWQ, sWO, sBX, sWG, sWU, sWD, sOUT, sDBG, sWS = [4 + 2 * i for i in range(12)]
rK, rV, rX, rWQ, rWG, rWU, rWO, rWD, rWS, rOUT, rDBG = [28 + 4 * i for i in range(11)]
sHP, sJ, sW, sWGI = 72, 73, 74, 75
sSelLo, sSelHi, sScale, sLog2e = 76, 77, 78, 79
sA0, sA1, sTmp, sTmp2, sOff, sCnt = 80, 81, 82, 83, 84, 85
sEx = 86
sNon = 88
sB = [89, 90, 91]
sStat, sLeft = 92, 93
sT64 = 94
sRQ, sCQ = 100, 101
OOB = 0x40000000

def srd(r): return f"s[{r}:{r+3}]"
def vr(b, n): return f"v[{b}:{b+n-1}]"

def bf16_round(a, dst, src):
    a(f"v_cvt_pk_bf16_f32 v{dst}, v{src}, v{src}")
    a(f"v_lshlrev_b32 v{dst}, 16, v{dst}")

def cross_rows(a, op, x, t):
    o = f"v_{op}_f32"
    for sw in ("v_permlane32_swap_b32", "v_permlane16_swap_b32"):
        a(f"v_mov_b32 v{t}, v{x}")
        a.nop(2)
        a(f"{sw} v{x}, v{t}")
        a.nop(1)
        a(f"{o} v{x}, v{x}, v{t}")

def wave_allreduce(a, op, x, t):
    o = f"v_{op}_f32"
    for ctrl in ("quad_perm:[1,0,3,2]", "quad_perm:[2,3,0,1]", "row_half_mirror", "row_mirror"):
        a.nop(2)
        a(f"{o}_dpp v{x}, v{x}, v{x} {ctrl} row_mask:0xf bank_mask:0xf")
    cross_rows(a, op, x, t)

def gen(opts):
    a = Asm()
    STAMP = opts.get("stamp", False)
    NS = opts.get("ns", 26)
    NPOOL = (32 - NS) * 64
    MAXPOLL = 0x10000
    WP = "" if opts.get("wdef") else " nt"
    WP2 = "" if (opts.get("wdef") or opts.get("w2def")) else " nt"
    stn = [0]
    names = []
    vL, vST, vNon, vZ = 1, 255, 254, 253
    vt = [2, 3, 4, 5, 6, 7, 8, 9, 10, 11]
    def stamp(name):
        if not STAMP: return
        a(f"s_memrealtime s[{sT64}:{sT64+1}]")
        a("s_waitcnt lgkmcnt(0)")
        a(f"v_writelane_b32 v{vST}, s{sT64}, {stn[0]}")
        names.append(name)
        stn[0] += 1
    def stamp_flush():
        if not STAMP: return
        a("s_mov_b64 exec, -1")
        a(f"s_lshl_b32 s{sTmp}, s2, 3")
        a(f"s_add_u32 s{sTmp}, s{sTmp}, s{sW}")
        a(f"s_lshl_b32 s{sTmp}, s{sTmp}, 8")
        a(f"v_lshlrev_b32 v{vt[8]}, 2, v{vL}")
        a(f"buffer_store_dword v{vST}, v{vt[8]}, s[96:99], s{sTmp} offen")
    opts["names"] = names

    def spin_lds(addr, target, tmpv, ge=True, sleep=1):
        l0, l1 = a.newlabel("sp"), a.newlabel("spx")
        a(f"s_mov_b32 s{sCnt}, {int(2.4e8 / (64 * sleep + 120))}")
        a.label(l0)
        a(f"ds_read_b32 v{tmpv}, v{vZ} offset:{addr}")
        a("s_waitcnt lgkmcnt(0)")
        a(f"v_readfirstlane_b32 s{sTmp}, v{tmpv}")
        a(f"s_cmp_ge_u32 s{sTmp}, {target}")
        a(f"s_cbranch_scc1 {l1}")
        a(f"s_sub_u32 s{sCnt}, s{sCnt}, 1")
        a(f"s_cmp_eq_u32 s{sCnt}, 0")
        a(f"s_cbranch_scc1 {l1}")
        a(f"s_sleep {sleep}")
        a(f"s_branch {l0}")
        a.label(l1)
    def lds_arrive(addr, tmpv, ret=False):
        a("s_waitcnt lgkmcnt(0)")
        a(f"v_mov_b32 v{tmpv}, 1")
        a("s_mov_b64 exec, 1")
        if ret:
            a(f"ds_add_rtn_u32 v{tmpv}, v{vZ}, v{tmpv} offset:{addr}")
            a("s_waitcnt lgkmcnt(0)")
            a(f"v_readfirstlane_b32 s{sTmp}, v{tmpv}")
        else:
            a(f"ds_add_u32 v{vZ}, v{tmpv} offset:{addr}")
        a("s_mov_b64 exec, -1")
    def retry_begin():
        l0, l1 = a.newlabel("rt"), a.newlabel("rtx")
        a(f"s_mov_b32 s{sCnt}, {MAXPOLL}")
        a.label(l0)
        return l0, l1
    def retry_end(ls, tagregs, t0, t1, sleep=2):
        l0, l1 = ls
        a("s_waitcnt vmcnt(0)")
        a(f"v_xor_b32 v{t0}, v{vNon}, v{tagregs[0]}")
        for r in tagregs[1:]:
            a(f"v_xor_b32 v{t1}, v{vNon}, v{r}")
            a(f"v_or_b32 v{t0}, v{t0}, v{t1}")
        a(f"v_cmp_ne_u32 vcc, 0, v{t0}")
        a(f"s_cbranch_vccz {l1}")
        a(f"s_sub_u32 s{sCnt}, s{sCnt}, 1")
        a(f"s_cmp_eq_u32 s{sCnt}, 0")
        a(f"s_cbranch_scc1 {l1}")
        a(f"s_sleep {sleep}")
        a(f"s_branch {l0}")
        a.label(l1)
    def silu(x):
        a(f"v_mul_f32 v{vt[2]}, s{sLog2e}, v{x}")
        a(f"v_exp_f32 v{vt[2]}, -v{vt[2]}")
        a.nop(1)
        a(f"v_add_f32 v{vt[2]}, 1.0, v{vt[2]}")
        a(f"v_rcp_f32 v{vt[3]}, v{vt[2]}")
        a.nop(1)
        a(f"v_mul_f32 v{vt[4]}, v{x}, v{vt[3]}")
        a(f"v_fma_f32 v{vt[5]}, -v{vt[4]}, v{vt[2]}, v{x}")
        a(f"v_fma_f32 v{x}, v{vt[5]}, v{vt[3]}, v{vt[4]}")
        a(f"v_cmp_eq_f32 vcc, 0x7f800000, v{vt[2]}")
        a.nop(2)
        a(f"v_cndmask_b32 v{x}, v{x}, v{vt[4]}, vcc")
        bf16_round(a, x, x)
    def combine(n, mreg, lreg, oreg, M, Lr, Or):
        a(f"v_max3_f32 v{M}, v{mreg[0]}, v{mreg[1]}, v{mreg[2]}")
        k = 3
        while k < n:
            if k + 1 < n:
                a(f"v_max3_f32 v{M}, v{M}, v{mreg[k]}, v{mreg[k+1]}"); k += 2
            else:
                a(f"v_max_f32 v{M}, v{M}, v{mreg[k]}"); k += 1
        for w in range(n):
            a(f"v_sub_f32 v{mreg[w]}, v{mreg[w]}, v{M}")
        for w in range(n):
            a(f"v_exp_f32 v{mreg[w]}, v{mreg[w]}")
        a.nop(1)
        a(f"v_mul_f32 v{Lr}, v{mreg[0]}, v{lreg[0]}")
        a(f"v_mul_f32 v{Or}, v{mreg[0]}, v{oreg[0]}")
        for w in range(1, n):
            a(f"v_fmac_f32 v{Lr}, v{mreg[w]}, v{lreg[w]}")
            a(f"v_fmac_f32 v{Or}, v{mreg[w]}, v{oreg[w]}")
    def mk(r, p, off_s=None, size=None):
        if off_s is None:
            a(f"s_mov_b32 s{r}, s{p}")
            a(f"s_and_b32 s{r+1}, s{p+1}, 0xffff")
        else:
            a(f"s_add_u32 s{r}, s{p}, s{off_s}")
            a(f"s_addc_u32 s{r+1}, s{p+1}, 0")
            a(f"s_and_b32 s{r+1}, s{r+1}, 0xffff")
        a(f"s_mov_b32 s{r+2}, {size}")
        a(f"s_mov_b32 s{r+3}, 0x20000")

    a.L.append(f"; @launch grid=(256,1,1) block=(512,1,1) lds={LDS_BYTES}")
    a.L.append('.amdgcn_target "amdgcn-amd-amdhsa--gfx950"')
    a.L.append(".text")
    a.L.append(f".globl {KNAME}")
    a.L.append(".p2align 8")
    a.L.append(f".type {KNAME},@function")
    a.label(KNAME)
    a("s_cmp_ge_u32 s2, 256")
    a("s_cbranch_scc1 L_exit")
    a("s_load_dwordx16 s[4:19], s[0:1], 0")
    a("s_load_dwordx8 s[20:27], s[0:1], 64")
    a(f"s_memrealtime s[{sT64}:{sT64+1}]")
    a(f"v_and_b32 v{vL}, 63, v0")
    a(f"v_lshrrev_b32 v{vt[0]}, 6, v0")
    a(f"s_lshr_b32 s{sHP}, s2, 4")
    a(f"s_and_b32 s{sJ}, s2, 15")
    a(f"v_readfirstlane_b32 s{sW}, v{vt[0]}")
    if opts.get("swap", 1):
        a.nop(1)
        a(f"s_xor_b32 s{sW}, s{sW}, 4")
    a(f"s_mov_b32 s{sWGI}, s2")
    a(f"s_lshr_b32 s{sRQ}, s{sJ}, 2")
    a(f"s_and_b32 s{sCQ}, s{sJ}, 3")
    a(f"s_mov_b32 s{sLog2e}, 0x{f32bits(1.4426950408889634):08x}")
    a(f"v_mov_b32 v{vZ}, 0")
    a(f"v_mov_b32 v{vST}, 0")
    a("s_waitcnt lgkmcnt(0)")
    a(f"s_or_b32 s{sNon}, s{sT64}, 1")
    mk(rWS, sWS, size=WS_BYTES)
    if STAMP:
        a(f"s_add_u32 s96, s{sWS}, {WS_STAMP}")
        a(f"s_addc_u32 s97, s{sWS+1}, 0")
        a(f"s_and_b32 s97, s97, 0xffff")
        a(f"s_mov_b32 s98, {2048*256}")
        a(f"s_mov_b32 s99, 0x20000")
    stamp("start")
    a(f"s_cmp_ge_u32 s{sW}, 4")
    a("s_cbranch_scc1 L_helper")

    vKoff, vVoff, vM, vLs, vMt = 12, 13, 14, 15, 16
    vC = [17, 18]
    vCo = 19
    vQ = 20
    vO = 36
    vD = 68
    vP = 76
    vT = 80
    KS = [88, 120]
    VS = [152, 184, 216]
    a.c("stream wave setup")
    a(f"s_mov_b32 s{sSelLo}, 0x05040100")
    a(f"s_mov_b32 s{sSelHi}, 0x07060302")
    a(f"s_mov_b32 s{sScale}, 0x{f32bits(128 ** -0.5):08x}")
    a(f"v_and_b32 v{vt[0]}, 3, v{vL}")
    a(f"v_lshlrev_b32 v{vt[0]}, 10, v{vt[0]}")
    a(f"v_bfe_u32 v{vt[1]}, v{vL}, 2, 2")
    a(f"v_lshlrev_b32 v{vt[1]}, 8, v{vt[1]}")
    a(f"v_lshrrev_b32 v{vt[2]}, 4, v{vL}")
    a(f"v_lshlrev_b32 v{vt[2]}, 4, v{vt[2]}")
    a(f"v_add3_u32 v{vKoff}, v{vt[0]}, v{vt[1]}, v{vt[2]}")
    a(f"v_lshlrev_b32 v{vVoff}, 4, v{vL}")
    a(f"s_lshl_b32 s{sTmp}, s{sHP}, 24")
    mk(rK, sK, sTmp, size=1 << 24)
    mk(rV, sV, sTmp, size=1 << 24)
    a(f"s_lshl_b32 s{sStat}, s{sJ}, 20")
    a(f"s_lshl_b32 s{sTmp}, s{sW}, 12")
    a(f"s_add_u32 s{sStat}, s{sStat}, s{sTmp}")
    sCl = [36, 37]
    sCA = 38
    a(f"s_lshl_b32 s{sTmp}, s{sHP}, 7")
    a(f"s_add_u32 s{sTmp}, s{sTmp}, {WS_CNT}")
    a(f"s_add_u32 s{sCA}, s{sWS}, s{sTmp}")
    a(f"s_addc_u32 s{sCA+1}, s{sWS+1}, 0")
    a(f"s_mov_b32 s{sCl[0]}, {1 if (NS >= 32 and opts.get('lq', 1)) else 0}")
    a(f"s_mov_b32 s{sCl[1]}, 0")
    a("s_mov_b32 s40, 40")
    def stream_body(sfx, KP, VP):
        def Kload(slot, t, i, sb):
            return f"buffer_load_dwordx4 {vr(slot+16*t+4*i,4)}, v{vKoff}, {srd(rK)}, s{sb} offen offset:{i*64}{KP}"
        def Vload(slot, t, r, sb):
            return f"buffer_load_dwordx4 {vr(slot+16*t+4*r,4)}, v{vVoff}, {srd(rV)}, s{sb} offen offset:{r*1024}{VP}"
        NOCL = 1
        for g in range(2):
            a(f"s_mov_b32 s{sB[g]}, s{sStat}")
            a(f"s_add_u32 s{sOff}, s{sStat}, 16384")
            for t in range(2):
                for i in range(4):
                    a(Kload(KS[g], t, i, sB[g] if t == 0 else sOff))
            if g == 0 and not opts.get("latebar"): a("s_barrier")
            for t in range(2):
                for r in range(4):
                    a(Vload(VS[g], t, r, sB[g] if t == 0 else sOff))
            if g == 0 and opts.get("latebar"): a("s_barrier")
            a(f"s_add_u32 s{sStat}, s{sStat}, 32768")
        a(f"s_mov_b32 s{sLeft}, {NS-2}")
        if opts.get("dry", 0):
            a.c("dry run of the loop body (I-cache warm-up), exec=0")
            a(f"s_mov_b32 s41, s{sStat}"); a(f"s_mov_b32 s42, s{sLeft}")
            a(f"s_mov_b32 s43, s{sB[0]}"); a(f"s_mov_b32 s44, s{sB[1]}")
            a("s_mov_b32 s45, 1")
            a("s_mov_b64 exec, 0")
            a(f"s_branch L_loop{sfx}")
            a.label(f"L_dryend{sfx}")
            a("s_mov_b64 exec, -1")
            a(f"s_mov_b32 s{sStat}, s41"); a(f"s_mov_b32 s{sLeft}, s42")
            a(f"s_mov_b32 s{sB[0]}, s43"); a(f"s_mov_b32 s{sB[1]}, s44")
            a("s_mov_b32 s45, 0")
        if not opts.get("noq"): spin_lds(F_NON, 1, vNon)
        a(f"v_and_b32 v{vt[0]}, 1, v{vL}")
        a(f"v_lshlrev_b32 v{vt[0]}, 8, v{vt[0]}")
        a(f"v_lshrrev_b32 v{vt[1]}, 4, v{vL}")
        a(f"v_lshl_add_u32 v{vt[0]}, v{vt[1]}, 4, v{vt[0]}")
        for i in range(4):
            a(f"ds_read_b128 {vr(vQ+4*i,4)}, v{vt[0]} offset:{QB + i*64}")
        a(f"v_mov_b32 v{vM}, 0xff800000")
        a(f"v_mov_b32 v{vMt}, 0xff800000")
        a(f"v_mov_b32 v{vLs}, 0")
        for i in range(32):
            a(f"v_mov_b32 v{vO+i}, 0")
        a("s_waitcnt lgkmcnt(0)")
        stamp("q_ready") if (sfx == "" or not STAMP) else (stn.__setitem__(0, stn[0]-1), names.pop(), stamp("q_ready"))
        d = [vD + i for i in range(8)]
        a.label(f"L_loop{sfx}")
        for u in range(6):
            a.c(f"==== unrolled group {u} ====")
            ks = KS[u % 2]
            vs = VS[u % 3]
            vsn = VS[(u + 2) % 3]
            b0, b2 = sB[u % 3], sB[(u + 2) % 3]
            cs = sCl[u % 2]
            a(f"s_cmp_ge_u32 s{b0}, {OOB}")
            a("s_cbranch_scc1 L_sdone")
            a(f"s_waitcnt vmcnt({28 if NOCL else 29})")
            for i in range(4):
                cin = "0" if i == 0 else vr(vD, 4)
                a(f"v_mfma_f32_16x16x32_bf16 {vr(vD,4)}, {vr(ks+4*i,4)}, {vr(vQ+4*i,4)}, {cin}")
            if opts.get("lq", 1):
                lk, lsp, ldn = a.newlabel("dyn"), a.newlabel("dsp"), a.newlabel("ddn")
                a(f"s_mov_b32 s{b2}, s{sStat}")
                a(f"s_cmp_gt_i32 s{sLeft}, 0")
                a(f"s_cbranch_scc1 {ldn}")
                a(f"s_mov_b32 s{b2}, {OOB}")
                a(f"s_cmp_lg_u32 s{sCl[0]}, 0")
                a(f"s_cbranch_scc1 {ldn}")
                a(f"v_mov_b32 v{vC[0]}, 1")
                a("s_mov_b64 exec, 1")
                a(f"ds_add_rtn_u32 v{vC[0]}, v{vZ}, v{vC[0]} offset:{F_TK}")
                a("s_waitcnt lgkmcnt(0)")
                if opts.get("rb"):
                    NTb = (4 * (32 - NS))
                    assert NTb & (NTb - 1) == 0
                    a(f"v_readfirstlane_b32 s{sTmp}, v{vC[0]}")
                    a(f"s_mov_b32 s{sCnt}, 0x200000")
                    a.label(lsp)
                    a(f"ds_read_b64 v[18:19], v{vZ} offset:{F_C}")
                    a("s_waitcnt lgkmcnt(0)")
                    a(f"v_readfirstlane_b32 s{sA1}, v19")
                    a(f"v_readfirstlane_b32 s{sA0}, v18")
                    a(f"s_sub_u32 s{sCnt}, s{sCnt}, 1")
                    a(f"s_cmp_eq_u32 s{sCnt}, 0")
                    a(f"s_cselect_b32 s{sA1}, 1, s{sA1}")
                    a(f"s_cmp_eq_u32 s{sA1}, 0")
                    a(f"s_cbranch_scc1 {lsp}")
                    a(f"s_sub_u32 s{sA1}, s{sA1}, 1")
                    a(f"s_add_u32 s{sTmp}, s{sTmp}, s{sA0}")
                    a(f"s_cmp_ge_u32 s{sTmp}, s{sA1}")
                    a(f"s_cbranch_scc1 {lk}")
                    a(f"s_lshr_b32 s{sA0}, s{sTmp}, {NTb.bit_length()-1}")
                    a(f"s_lshl_b32 s{sA0}, s{sA0}, 20")
                    a(f"s_and_b32 s{sA1}, s{sTmp}, {NTb-1}")
                    a(f"s_and_b32 s{sOff}, s{sA1}, 3")
                    a(f"s_lshr_b32 s{sA1}, s{sA1}, 2")
                    a(f"s_lshl_b32 s{sA1}, s{sA1}, 3")
                    a(f"s_add_u32 s{sA1}, s{sA1}, s{sOff}")
                    a(f"s_add_u32 s{sA1}, s{sA1}, {NS*8}")
                    a(f"s_lshl_b32 s{sA1}, s{sA1}, 12")
                    a(f"s_add_u32 s{b2}, s{sA0}, s{sA1}")
                else:
                    a(f"v_lshlrev_b32 v{vC[0]}, 2, v{vC[0]}")
                    a(f"s_mov_b32 s{sCnt}, 0x200000")
                    a.label(lsp)
                    a(f"ds_read_b32 v{vC[1]}, v{vC[0]} offset:{QQ}")
                    a("s_waitcnt lgkmcnt(0)")
                    a(f"v_readfirstlane_b32 s{b2}, v{vC[1]}")
                    a(f"s_cmp_lg_u32 s{b2}, -1")
                    a(f"s_cbranch_scc1 {lk}")
                    a(f"s_sub_u32 s{sCnt}, s{sCnt}, 1")
                    a(f"s_cmp_lg_u32 s{sCnt}, 0")
                    a(f"s_cbranch_scc1 {lsp}")
                    a(f"s_mov_b32 s{b2}, {OOB}")
                a.label(lk)
                a("s_mov_b64 exec, -1")
                a(f"s_cmp_ge_u32 s{b2}, {OOB}")
                a(f"s_cselect_b32 s{sCl[0]}, 1, 0")
                a.label(ldn)
                a(f"s_add_u32 s{sStat}, s{sStat}, 32768")
                a(f"s_sub_u32 s{sLeft}, s{sLeft}, 1")
                a(f"s_add_u32 s{sOff}, s{b2}, 16384")
            else:
                a("s_waitcnt lgkmcnt(0)")
                a(f"s_mov_b32 s{sTmp}, s{cs}")
                NT = max(4 * (32 - NS), 1)
                assert NT & (NT - 1) == 0
                if opts.get("porder", 1) == 1:
                    a(f"s_lshr_b32 s{sA0}, s{sTmp}, {NT.bit_length()-1}")
                    a(f"s_lshl_b32 s{sA0}, s{sA0}, 20")
                    a(f"s_and_b32 s{sA1}, s{sTmp}, {NT-1}")
                else:
                    a(f"s_and_b32 s{sA0}, s{sTmp}, 15")
                    a(f"s_lshl_b32 s{sA0}, s{sA0}, 20")
                    a(f"s_lshr_b32 s{sA1}, s{sTmp}, 4")
                a(f"s_and_b32 s{sOff}, s{sA1}, 3")
                a(f"s_lshr_b32 s{sA1}, s{sA1}, 2")
                a(f"s_lshl_b32 s{sA1}, s{sA1}, 3")
                a(f"s_add_u32 s{sA1}, s{sA1}, s{sOff}")
                a(f"s_add_u32 s{sA1}, s{sA1}, {NS*8}")
                a(f"s_lshl_b32 s{sA1}, s{sA1}, 12")
                a(f"s_add_u32 s{sA0}, s{sA0}, s{sA1}")
                a(f"s_cmp_lt_u32 s{sTmp}, {NPOOL}")
                a(f"s_cselect_b32 s{sA0}, s{sA0}, {OOB}")
                a(f"s_cmp_gt_i32 s{sLeft}, 0")
                a(f"s_cselect_b32 s{b2}, s{sStat}, s{sA0}")
                a(f"s_add_u32 s{sStat}, s{sStat}, 32768")
                a(f"s_sub_u32 s{sLeft}, s{sLeft}, 1")
                a(f"s_add_u32 s{sOff}, s{b2}, 16384")
                lk = a.newlabel("ncl")
                a(f"s_cmp_lt_i32 s{sLeft}, 2")
                a(f"s_cbranch_scc0 {lk}")
                a(f"s_mov_b32 s{cs}, 1")
                a(f"s_atomic_add s{cs}, s[{sCA}:{sCA+1}], 0x0 glc")
                a.label(lk)
            a(f"s_waitcnt vmcnt({24 if NOCL else 25})")
            for i in range(4):
                cin = "0" if i == 0 else vr(vD + 4, 4)
                a(f"v_mfma_f32_16x16x32_bf16 {vr(vD+4,4)}, {vr(ks+16+4*i,4)}, {vr(vQ+4*i,4)}, {cin}")
            a.nop(4)
            S = []
            tt = vt
            for k in range(4):
                S.append(f"v_cvt_pk_bf16_f32 v{tt[k]}, v{d[2*k]}, v{d[2*k+1]}")
            for k in range(4):
                S.append(f"v_lshlrev_b32 v{d[2*k]}, 16, v{tt[k]}")
                S.append(f"v_and_b32 v{d[2*k+1]}, 0xffff0000, v{tt[k]}")
            for k in range(8):
                S.append(f"v_mul_f32 v{d[k]}, s{sScale}, v{d[k]}")
            for k in range(4):
                S.append(f"v_cvt_pk_bf16_f32 v{tt[k]}, v{d[2*k]}, v{d[2*k+1]}")
            for k in range(4):
                S.append(f"v_lshlrev_b32 v{d[2*k]}, 16, v{tt[k]}")
                S.append(f"v_and_b32 v{d[2*k+1]}, 0xffff0000, v{tt[k]}")
            mx = tt[4]
            S.append(f"v_max3_f32 v{mx}, v{d[0]}, v{d[1]}, v{d[2]}")
            S.append(f"v_max3_f32 v{mx}, v{mx}, v{d[3]}, v{d[4]}")
            S.append(f"v_max3_f32 v{mx}, v{mx}, v{d[5]}, v{d[6]}")
            S.append(f"v_max3_f32 v{mx}, v{mx}, v{d[7]}, v{vM}")
            for sw in ("v_permlane32_swap_b32", "v_permlane16_swap_b32"):
                S.append(f"v_mov_b32 v{tt[5]}, v{mx}")
                S.append("s_nop 1")
                S.append(f"{sw} v{mx}, v{tt[5]}")
                S.append("s_nop 0")
                S.append(f"v_max_f32 v{mx}, v{mx}, v{tt[5]}")
            S.append(f"v_mul_f32 v{tt[5]}, s{sLog2e}, v{mx}")
            al = tt[6]
            S.append(f"v_sub_f32 v{al}, v{vMt}, v{tt[5]}")
            S.append(f"v_exp_f32 v{al}, v{al}")
            S.append(f"v_mov_b32 v{vM}, v{mx}")
            S.append(f"v_mov_b32 v{vMt}, v{tt[5]}")
            for k in range(8):
                S.append(f"v_fma_f32 v{d[k]}, v{d[k]}, s{sLog2e}, -v{vMt}")
            for k in range(8):
                S.append(f"v_exp_f32 v{d[k]}, v{d[k]}")
            S.append(f"v_readlane_b32 s{sA0}, v{al}, 0")
            S.append(f"v_readlane_b32 s{sA1}, v{al}, 1")
            S.append(f"v_mul_f32 v{vLs}, v{vLs}, v{al}")
            for k in range(4):
                S.append(f"v_cvt_pk_bf16_f32 v{vP+k}, v{d[2*k]}, v{d[2*k+1]}")
            for k in range(8):
                S.append(f"v_add_f32 v{vLs}, v{vLs}, v{d[k]}")
            for i in range(8):
                S.append(f"v_mul_f32 v{vO+4*i}, s{sA0}, v{vO+4*i}")
                S.append(f"v_mul_f32 v{vO+4*i+1}, s{sA1}, v{vO+4*i+1}")
            KL = [Kload(ks, t, i, b2 if t == 0 else sOff) for t in range(2) for i in range(4)]
            a(KL[0]); a(KL[1])
            a.nop(3)
            if opts.get("nosm"): S = S[:8]
            step = max(1, len(S) // 7)
            if opts.get("burst"): step = 1
            kq = 2
            for n, ins in enumerate(S):
                a(ins)
                if (n + 1) % step == 0 and kq < 8:
                    a(KL[kq]); kq += 1
            while kq < 8:
                a(KL[kq]); kq += 1
            a(f"s_waitcnt vmcnt({24 if NOCL else 26})")
            VL = [Vload(vsn, t, r, b2 if t == 0 else sOff) for t in range(2) for r in range(4)]
            def perms(i):
                dd, b = i >> 1, i & 1
                sel = sSelHi if b else sSelLo
                for p in range(4):
                    lo = vs + 4 * (2 * p) + dd
                    hi = vs + 4 * (2 * p + 1) + dd
                    a(f"v_perm_b32 v{vT + 4*(i%2) + p}, v{hi}, v{lo}, s{sel}")
            if not opts.get("nopv"): perms(0)
            for i in range(8):
                if opts.get("nopv"):
                    a(VL[i]); continue
                if i + 1 < 8:
                    perms(i + 1)
                else:
                    a.nop(2)
                a(f"v_mfma_f32_16x16x32_bf16 {vr(vO+4*i,4)}, {vr(vP,4)}, {vr(vT+4*(i%2),4)}, {vr(vO+4*i,4)}")
                a(VL[i])
        if opts.get("dry", 0):
            a("s_cmp_lg_u32 s45, 0")
            a(f"s_cbranch_scc1 L_dryend{sfx}")
        a(f"v_mov_b32 v{vt[9]}, 1")
        a("s_mov_b64 exec, 1")
        if opts.get("rb"):
            lt = a.newlabel("nt")
            a(f"ds_add_rtn_u32 v{vt[9]}, v{vZ}, v{vt[9]} offset:{F_PROG}")
            a(f"s_memrealtime s[{sT64}:{sT64+1}]")
            a("s_waitcnt lgkmcnt(0)")
            a(f"v_readfirstlane_b32 s{sTmp}, v{vt[9]}")
            a(f"s_cmp_lg_u32 s{sTmp}, {opts.get('p1', 12) - 1}")
            a(f"s_cbranch_scc1 {lt}")
            a(f"s_or_b32 s{sTmp}, s{sT64}, 1")
            a(f"v_mov_b32 v{vt[9]}, s{sTmp}")
            a(f"ds_write_b32 v{vZ}, v{vt[9]} offset:{F_T}")
            a.label(lt)
        else:
            a(f"ds_add_u32 v{vZ}, v{vt[9]} offset:{F_PROG}")
        a("s_mov_b64 exec, -1")
        if STAMP:
            a(f"s_memrealtime s[{sT64}:{sT64+1}]")
            a("s_waitcnt lgkmcnt(0)")
            a("s_mov_b32 m0, s40")
            a(f"v_writelane_b32 v{vST}, s{sT64}, m0")
            a("s_add_u32 s40, s40, 1")
        a(f"s_branch L_loop{sfx}")

    VH0 = opts.get("vh0", 16)
    KH0 = opts.get("kh0", 16)
    if VH0 < 16:
        a(f"s_cmp_ge_u32 s{sHP}, {VH0}")
        a("s_cbranch_scc1 L_streamB")
    stream_body("", " nt", " nt")
    if VH0 < 16:
        a.label("L_streamB")
        if KH0 < 16:
            a(f"s_cmp_ge_u32 s{sHP}, {KH0}")
            a("s_cbranch_scc1 L_streamC")
        stream_body("B", " nt", "")
        if KH0 < 16:
            a.label("L_streamC")
            stream_body("C", "", "")
    a.label("L_sdone")
    stamp("s_done")
    a.c("stream wave: write partial to LDS")
    cross_rows(a, "add", vLs, vt[0])
    a.nop(8)
    a(f"s_mul_i32 s{sTmp}, s{sW}, {CSTR}")
    a(f"v_lshlrev_b32 v{vt[0]}, 5, v{vL}")
    a(f"v_add_u32 v{vt[0]}, s{sTmp}, v{vt[0]}")
    a(f"v_add_u32 v{vt[0]}, {COMB}, v{vt[0]}")
    a(f"v_lshlrev_b32 v{vt[1]}, 2, v{vL}")
    a(f"v_add_u32 v{vt[1]}, s{sTmp}, v{vt[1]}")
    a("s_mov_b64 exec, 0xffff")
    for h in range(2):
        for i in range(0, 8, 2):
            a(f"ds_write2_b32 v{vt[0]}, v{vO+4*i+h}, v{vO+4*(i+1)+h} offset0:{h*128+i} offset1:{h*128+i+1}")
    a("s_mov_b64 exec, 3")
    a(f"ds_write_b32 v{vt[1]}, v{vMt} offset:{COMB+1024}")
    a(f"ds_write_b32 v{vt[1]}, v{vLs} offset:{COMB+1032}")
    a("s_mov_b64 exec, -1")
    lds_arrive(F_SCNT, vt[2])
    a("s_branch L_end")

    a.label("L_helper")
    a.c("helper setup")
    a("s_setprio 3")
    sHW = sB[0]
    a(f"s_sub_u32 s{sHW}, s{sW}, 4")
    a(f"s_cmp_lg_u32 s{sW}, 7")
    a("s_cbranch_scc1 L_nz")
    a(f"v_lshlrev_b32 v{vt[0]}, 2, v{vL}")
    a("s_mov_b64 exec, 0xffff")
    a(f"ds_write_b32 v{vt[0]}, v{vZ} offset:{FL}")
    a("s_mov_b64 exec, -1")
    a(f"v_lshlrev_b32 v{vt[0]}, 4, v{vL}")
    for e in range(4):
        a(f"v_mov_b32 v{16+e}, -1")
    for k in range(4):
        a(f"ds_write_b128 v{vt[0]}, v[16:19] offset:{QQ + k*1024}")
    a("s_waitcnt lgkmcnt(0)")
    a.label("L_nz")
    mk(rX, sX, size=1152)
    mk(rWQ, sWQ, size=576 * 8192)
    mk(rDBG, sDBG, size=256)
    hX = 16
    hW = 28
    hF = 48
    hA = 60
    hR = 76
    if opts.get("h0"):
        a("s_barrier"); a("s_branch L_end")
    a(f"s_cmp_eq_u32 s{sW}, 7")
    a("s_cbranch_scc1 L_w7start")
    a(f"v_lshlrev_b32 v{vt[3]}, 2, v{vL}")
    for j in range(5):
        a(f"buffer_load_dword v{hX+j}, v{vt[3]}, {srd(rX)}, 0 offen offset:{j*256}")
    a(f"v_lshrrev_b32 v{vt[0]}, 3, v{vL}")
    a(f"s_mul_i32 s{sTmp}, s{sRQ}, 144")
    a(f"s_mul_i32 s{sTmp2}, s{sHW}, 48")
    a(f"s_add_u32 s{sTmp}, s{sTmp}, s{sTmp2}")
    a(f"v_add_u32 v{vt[1]}, s{sTmp}, v{vt[0]}")
    a(f"v_lshlrev_b32 v{vt[5]}, 2, v{vt[1]}")
    a(f"v_lshlrev_b32 v{vt[4]}, 13, v{vt[1]}")
    a(f"v_and_b32 v{vt[1]}, 7, v{vL}")
    a(f"v_lshl_add_u32 v{vt[4]}, v{vt[1]}, 4, v{vt[4]}")
    a(f"s_lshl_b32 s{sTmp}, s{sHP}, 9")
    a(f"s_lshl_b32 s{sTmp2}, s{sCQ}, 7")
    a(f"s_add_u32 s{sTmp}, s{sTmp}, s{sTmp2}")
    a(f"v_add_u32 v{vt[4]}, s{sTmp}, v{vt[4]}")
    if opts.get("fake") == 2:
        a(f"s_mul_i32 s{sTmp}, s{sWGI}, 18432")
        a(f"s_mul_i32 s{sTmp2}, s{sHW}, 6144")
        a(f"s_add_u32 s{sTmp}, s{sTmp}, s{sTmp2}")
        a(f"v_lshlrev_b32 v{vt[4]}, 4, v{vL}")
        a(f"v_add_u32 v{vt[4]}, s{sTmp}, v{vt[4]}")
    for i in range(6):
        a(f"s_mov_b32 s{sOff}, {i*1024 if opts.get('fake') == 2 else i*8*8192}")
        a(f"buffer_load_dwordx4 {vr(hR+4*i,4)}, v{vt[4]}, {srd(rWQ)}, s{sOff} offen{WP}")
    a("s_branch L_nononce")
    a.label("L_w7start")
    a(f"s_mov_b32 s{sB[1]}, s{sNon}")
    a(f"s_mov_b32 s{sB[2]}, 0")
    a(f"s_atomic_cmpswap s[{sB[1]}:{sB[2]}], s[{sDBG}:{sDBG+1}], 0x0 glc")
    a("s_mov_b64 exec, 1")
    a(f"s_lshl_b32 s{sTmp}, s{sHP}, 7")
    a(f"s_lshl_b32 s{sTmp2}, s{sJ}, 2")
    a(f"s_add_u32 s{sTmp}, s{sTmp}, s{sTmp2}")
    a(f"s_add_u32 s{sTmp}, s{sTmp}, {WS_CNT}")
    a(f"buffer_store_dword v{vZ}, v{vZ}, {srd(rWS)}, s{sTmp} offen sc1")
    a("s_mov_b64 exec, -1")
    a.label("L_nononce")
    a("s_barrier")
    if opts.get("nohelp"): a("s_branch L_end")
    mk(rWG, sWG, size=576 * 9216)
    mk(rWU, sWU, size=576 * 9216)
    mk(rWO, sWO, size=4096 * 1152)
    mk(rWD, sWD, size=4608 * 1152)
    mk(rOUT, sOUT, size=1152)
    a(f"s_cmp_eq_u32 s{sW}, 7")
    a("s_cbranch_scc1 L_w7x")
    a.c("layernorm")
    a("s_waitcnt vmcnt(6)")
    stamp("x_arrived")
    xf = [hF + i for i in range(10)]
    for j in range(5):
        a(f"v_lshlrev_b32 v{xf[2*j]}, 16, v{hX+j}")
        a(f"v_and_b32 v{xf[2*j+1]}, 0xffff0000, v{hX+j}")
    s_ = vt[0]
    a(f"v_add_f32 v{s_}, v{xf[0]}, v{xf[1]}")
    for i in range(2, 10):
        a(f"v_add_f32 v{s_}, v{s_}, v{xf[i]}")
    wave_allreduce(a, "add", s_, vt[1])
    a(f"v_mul_f32 v{s_}, 0x{f32bits(1.0/576):08x}, v{s_}")
    a(f"v_cmp_gt_u32 vcc, 32, v{vL}")
    q_ = vt[2]
    a(f"v_mov_b32 v{q_}, 0")
    for i in range(10):
        a(f"v_sub_f32 v{vt[1]}, v{xf[i]}, v{s_}")
        if i >= 8:
            a(f"v_cndmask_b32 v{vt[1]}, 0, v{vt[1]}, vcc")
        a(f"v_fmac_f32 v{q_}, v{vt[1]}, v{vt[1]}")
    wave_allreduce(a, "add", q_, vt[1])
    a(f"v_mul_f32 v{q_}, 0x{f32bits(1.0/576):08x}, v{q_}")
    bf16_round(a, s_, s_)
    bf16_round(a, q_, q_)
    a(f"v_add_f32 v{q_}, 0x{f32bits(1e-5):08x}, v{q_}")
    bf16_round(a, q_, q_)
    a(f"v_sqrt_f32 v{q_}, v{q_}")
    a.nop(1)
    bf16_round(a, q_, q_)
    rc = vt[1]
    a(f"v_rcp_f32 v{rc}, v{q_}")
    a.nop(1)
    for i in range(10):
        dd = xf[i]
        a(f"v_sub_f32 v{dd}, v{dd}, v{s_}")
        bf16_round(a, dd, dd)
        a(f"v_mul_f32 v{vt[6]}, v{dd}, v{rc}")
        a(f"v_fma_f32 v{vt[7]}, -v{vt[6]}, v{q_}, v{dd}")
        a(f"v_fma_f32 v{dd}, v{vt[7]}, v{rc}, v{vt[6]}")
        bf16_round(a, dd, dd)
        if i >= 8:
            a(f"v_cndmask_b32 v{dd}, 0, v{dd}, vcc")
    a(f"v_lshlrev_b32 v{vt[0]}, 3, v{vL}")
    for j in range(5):
        a(f"ds_write_b64 v{vt[0]}, {vr(xf[2*j],2)} offset:{XN + j*512}")
    a.c("q slice")
    for i in range(6):
        a(f"ds_read_b32 v{hX+i}, v{vt[5]} offset:{XN + i*32}")
    acc = [hA + i for i in range(8)]
    a("s_waitcnt vmcnt(0) lgkmcnt(0)")
    for i in range(6):
        for dd in range(4):
            r = hR + 4 * i + dd
            a(f"v_lshlrev_b32 v{vt[0]}, 16, v{r}")
            a(f"v_and_b32 v{vt[1]}, 0xffff0000, v{r}")
            if i == 0:
                a(f"v_mul_f32 v{acc[2*dd]}, v{vt[0]}, v{hX+i}")
                a(f"v_mul_f32 v{acc[2*dd+1]}, v{vt[1]}, v{hX+i}")
            else:
                a(f"v_fmac_f32 v{acc[2*dd]}, v{vt[0]}, v{hX+i}")
                a(f"v_fmac_f32 v{acc[2*dd+1]}, v{vt[1]}, v{hX+i}")
    a.nop(2)
    for ctrl in ("row_ror:8",):
        for e in range(8):
            a(f"v_add_f32_dpp v{acc[e]}, v{acc[e]}, v{acc[e]} {ctrl} row_mask:0xf bank_mask:0xf")
    tq = [hW + i for i in range(8)]
    for sw in ("v_permlane32_swap_b32", "v_permlane16_swap_b32"):
        for e in range(8):
            a(f"v_mov_b32 v{tq[e]}, v{acc[e]}")
        for e in range(8):
            a(f"{sw} v{acc[e]}, v{tq[e]}")
        for e in range(8):
            a(f"v_add_f32 v{acc[e]}, v{acc[e]}, v{tq[e]}")
    a(f"s_lshl_b32 s{sTmp}, s{sHW}, 8")
    a(f"v_lshlrev_b32 v{vt[0]}, 5, v{vL}")
    a(f"v_add_u32 v{vt[0]}, s{sTmp}, v{vt[0]}")
    a("s_mov_b64 exec, 0xff")
    a(f"ds_write_b128 v{vt[0]}, {vr(acc[0],4)} offset:{QP}")
    a(f"ds_write_b128 v{vt[0]}, {vr(acc[4],4)} offset:{QP+16}")
    a("s_mov_b64 exec, -1")
    lds_arrive(F_QCNT, vt[2])
    stamp("qpart_done")
    a("s_branch L_xskip")
    a.label("L_w7x")
    a.c("q exchange (wave 7)")
    spin_lds(F_QCNT, 3, vt[2], sleep=0)
    a(f"v_lshlrev_b32 v{vt[0]}, 2, v{vL}")
    for w in range(3):
        a(f"ds_read_b32 v{hW+w}, v{vt[0]} offset:{QP + w*256}")
    a("s_waitcnt vmcnt(0) lgkmcnt(0)")
    a(f"s_cmp_eq_u32 s{sB[1]}, 0")
    a(f"s_cselect_b32 s{sNon}, s{sNon}, s{sB[1]}")
    for w in range(1, 3):
        a(f"v_add_f32 v{hW}, v{hW}, v{hW+w}")
    a(f"v_mov_b32 v{hW+1}, s{sNon}")
    a(f"v_mov_b32 v{vNon}, s{sNon}")
    a(f"s_lshl_b32 s{sOff}, s{sHP}, 13")
    a(f"s_add_u32 s{sOff}, s{sOff}, {WS_Q}")
    a(f"s_lshl_b32 s{sTmp}, s{sRQ}, 11")
    a(f"s_lshl_b32 s{sTmp2}, s{sCQ}, 9")
    a(f"s_add_u32 s{sTmp}, s{sTmp}, s{sTmp2}")
    a(f"s_add_u32 s{sTmp}, s{sTmp}, s{sOff}")
    a(f"v_lshlrev_b32 v{vt[0]}, 3, v{vL}")
    a(f"buffer_store_dwordx2 {vr(hW,2)}, v{vt[0]}, {srd(rWS)}, s{sTmp} offen sc1")
    stamp("x_pub")
    a(f"v_lshlrev_b32 v{vt[0]}, 4, v{vL}")
    a(f"s_add_u32 s{sTmp2}, s{sOff}, 4096")
    if opts.get("pdelay", 8): a(f"s_sleep {opts.get('pdelay', 8)}")
    if opts.get("qpre", 1):
        a(f"v_lshlrev_b32 v{vt[3]}, 9, v{vL}")
        a("s_mov_b64 exec, 0xffff")
        ls = retry_begin()
        a(f"buffer_load_dwordx2 {vr(hR,2)}, v{vt[3]}, {srd(rWS)}, s{sOff} offen sc1")
        retry_end(ls, [hR + 1], vt[1], vt[2], sleep=2)
        a("s_mov_b64 exec, -1")
    ls = retry_begin()
    for k in range(8):
        a(f"buffer_load_dwordx4 {vr(hR+4*k,4)}, v{vt[0]}, {srd(rWS)}, s{sOff if k < 4 else sTmp2} offen offset:{(k%4)*1024} sc1")
    retry_end(ls, [hR + 4 * k + e for k in range(8) for e in (1, 3)], vt[1], vt[2], sleep=2)
    stamp("x_ok")
    for half in range(2):
        for e in (0, 2):
            for r4 in range(1, 4):
                a(f"v_add_f32 v{hR+4*half+e}, v{hR+4*half+e}, v{hR+4*(2*r4+half)+e}")
        a(f"v_cvt_pk_bf16_f32 v{hR+4*half}, v{hR+4*half}, v{hR+4*half+2}")
    a(f"v_lshlrev_b32 v{vt[0]}, 2, v{vL}")
    a(f"ds_write_b32 v{vt[0]}, v{hR} offset:{QB}")
    a(f"ds_write_b32 v{vt[0]}, v{hR+4} offset:{QB+256}")
    a("s_waitcnt lgkmcnt(0)")
    a(f"ds_write_b32 v{vZ}, v{vNon} offset:{F_NON}")
    a.label("L_xskip")
    sHPw, sJw, sRho = sSelLo, sSelHi, sScale
    a(f"s_mov_b32 s{sHPw}, s{sHP}")
    a(f"s_mov_b32 s{sJw}, s{sJ}")
    if opts.get("rho", 1):
        a(f"s_and_b32 s{sRho}, s2, 7")
        a(f"s_lshl_b32 s{sRho}, s{sRho}, 5")
        a(f"s_lshr_b32 s{sTmp}, s2, 3")
        a(f"s_or_b32 s{sRho}, s{sRho}, s{sTmp}")
    else:
        a(f"s_mov_b32 s{sRho}, s2")
    a(f"s_lshr_b32 s{sHP}, s{sRho}, 4")
    a(f"s_and_b32 s{sJ}, s{sRho}, 15")
    a(f"s_lshr_b32 s{sRQ}, s{sJ}, 2")
    a(f"s_and_b32 s{sCQ}, s{sJ}, 3")
    if opts.get("hstop") == 1: a("s_branch L_end")
    a.c("ffn phase 1: colblock hp*4+rq (72 cols), rows 144cq+36hw+rr+7i ; lane (rr=l/9, jj=l%9)")
    vFr, vFo, vFo2 = hW, hW + 1, hW + 2
    a(f"v_mul_u32_u24 v{vt[0]}, 57, v{vL}")
    a(f"v_lshrrev_b32 v{vt[0]}, 9, v{vt[0]}")
    a(f"v_mul_u32_u24 v{vt[1]}, 9, v{vt[0]}")
    a(f"v_sub_u32 v{vt[1]}, v{vL}, v{vt[1]}")
    a(f"s_mul_i32 s{sTmp}, s{sCQ}, 144")
    a(f"s_mul_i32 s{sTmp2}, s{sHW}, 36")
    a(f"s_add_u32 s{sTmp}, s{sTmp}, s{sTmp2}")
    a(f"v_add_u32 v{vFr}, s{sTmp}, v{vt[0]}")
    a(f"s_mov_b32 s{sTmp}, 9216")
    a(f"v_mul_lo_u32 v{vFo}, v{vFr}, s{sTmp}")
    a(f"v_lshl_add_u32 v{vFo}, v{vt[1]}, 4, v{vFo}")
    a(f"s_lshl_b32 s{sTmp}, s{sHP}, 2")
    a(f"s_add_u32 s{sTmp}, s{sTmp}, s{sRQ}")
    a(f"s_mul_i32 s{sTmp}, s{sTmp}, 144")
    a(f"v_add_u32 v{vFo}, s{sTmp}, v{vFo}")
    a(f"v_mov_b32 v{vt[1]}, 0x7f000000")
    a(f"v_cmp_gt_u32 vcc, 63, v{vL}")
    a.nop(2)
    a(f"v_cndmask_b32 v{vFo}, v{vt[1]}, v{vFo}, vcc")
    a(f"v_cmp_gt_u32 vcc, 9, v{vL}")
    a.nop(2)
    a(f"v_cndmask_b32 v{vFo2}, v{vt[1]}, v{vFo}, vcc")
    for i in range(6):
        a(f"s_mov_b32 s{sOff}, {i*7*9216}")
        a(f"buffer_load_dwordx4 {vr(hR+8*i,4)}, v{vFo if i < 5 else vFo2}, {srd(rWG)}, s{sOff} offen{WP2}")
        a(f"buffer_load_dwordx4 {vr(hR+8*i+4,4)}, v{vFo if i < 5 else vFo2}, {srd(rWU)}, s{sOff} offen{WP2}")
    if opts.get("hstop") == 2:
        a("s_waitcnt vmcnt(0)"); a("s_branch L_end")
    hW2 = 148
    vR3, vC18, vW2o = 12, 13, 14
    a(f"v_mul_u32_u24 v{vR3}, 57, v{vL}")
    a(f"v_lshrrev_b32 v{vR3}, 10, v{vR3}")
    a(f"v_mul_u32_u24 v{vC18}, 18, v{vR3}")
    a(f"v_sub_u32 v{vC18}, v{vL}, v{vC18}")
    a(f"s_mul_i32 s{sTmp}, s{sHW}, 3")
    a(f"v_add_u32 v{vR3}, s{sTmp}, v{vR3}")
    a(f"s_mov_b32 s{sTmp}, 1152")
    a(f"v_mul_lo_u32 v{vW2o}, v{vR3}, s{sTmp}")
    a(f"v_lshl_add_u32 v{vW2o}, v{vC18}, 4, v{vW2o}")
    a(f"s_mul_i32 s{sTmp}, s{sCQ}, 288")
    a(f"v_add_u32 v{vW2o}, s{sTmp}, v{vW2o}")
    a(f"s_lshl_b32 s{sTmp}, s{sHP}, 2")
    a(f"s_add_u32 s{sTmp}, s{sTmp}, s{sRQ}")
    a(f"s_mul_i32 s{sOff}, s{sTmp}, {64*1152}")
    a(f"s_mul_i32 s{sA1}, s{sTmp}, {72*1152}")
    def wo_loads():
        a(f"s_lshl_b32 s{sTmp}, s{sHP}, 2")
        a(f"s_add_u32 s{sTmp}, s{sTmp}, s{sRQ}")
        a(f"s_mul_i32 s{sOff}, s{sTmp}, {64*1152}")
        for i in range(6):
            a(f"v_add_u32 v{vt[1]}, {12*i}, v{vR3}")
            a(f"v_cmp_gt_u32 vcc, 64, v{vt[1]}")
            a(f"s_mov_b32 s{sEx}, -1")
            a(f"s_mov_b32 s{sEx+1}, 0x3fffff")
            a(f"s_and_b64 vcc, vcc, s[{sEx}:{sEx+1}]")
            for e in range(4):
                a(f"v_mov_b32 v{hW2+4*i+e}, 0")
            a("s_mov_b64 exec, vcc")
            lk = a.newlabel("w2s")
            a(f"s_cbranch_execz {lk}")
            a(f"buffer_load_dwordx4 {vr(hW2+4*i,4)}, v{vW2o}, {srd(rWO)}, s{sOff} offen{WP2}")
            a.label(lk)
            a("s_mov_b64 exec, -1")
            a(f"s_add_u32 s{sOff}, s{sOff}, {12*1152}")
    if not opts.get("wolate", 1): wo_loads()
    for i in range(6):
        for e in range(4):
            a(f"v_mov_b32 v{hW2+24+4*i+e}, 0")
    a("s_mov_b32 exec_hi, 0x3fffff")
    if opts.get("fake"):
        a(f"s_mul_i32 s{sA1}, s{sWGI}, 20736")
        a(f"s_mul_i32 s{sTmp2}, s{sHW}, {6*864}")
        a(f"s_add_u32 s{sA1}, s{sA1}, s{sTmp2}")
    for i in range(6):
        a(f"buffer_load_dwordx4 {vr(hW2+24+4*i,4)}, v{vt[0] if opts.get('fake') else vW2o}, {srd(rWD)}, s{sA1} offen{WP2}")
        a(f"s_add_u32 s{sA1}, s{sA1}, {864 if opts.get('fake') else 12*1152}")
    a("s_mov_b64 exec, -1")
    a(f"v_lshlrev_b32 v{vt[1]}, 2, v{vFr}")
    for r in range(6):
        a(f"ds_read_b32 v{hX+r}, v{vt[1]} offset:{XN + r*28}")
    xr = [hX + r for r in range(6)]
    fac = [hA + i for i in range(16)]
    a("s_waitcnt vmcnt(0) lgkmcnt(0)")
    for r in range(6):
        for mt in range(2):
            for dd in range(4):
                rg = hR + 8 * r + 4 * mt + dd
                a(f"v_lshlrev_b32 v{vt[2]}, 16, v{rg}")
                a(f"v_and_b32 v{vt[3]}, 0xffff0000, v{rg}")
                if r == 0:
                    a(f"v_mul_f32 v{fac[8*mt+2*dd]}, v{vt[2]}, v{xr[r]}")
                    a(f"v_mul_f32 v{fac[8*mt+2*dd+1]}, v{vt[3]}, v{xr[r]}")
                else:
                    a(f"v_fmac_f32 v{fac[8*mt+2*dd]}, v{vt[2]}, v{xr[r]}")
                    a(f"v_fmac_f32 v{fac[8*mt+2*dd+1]}, v{vt[3]}, v{xr[r]}")
    a(f"s_lshl_b32 s{sTmp}, s{sHW}, 12")
    a(f"v_lshlrev_b32 v{vt[0]}, 6, v{vL}")
    a(f"v_add_u32 v{vt[0]}, s{sTmp}, v{vt[0]}")
    for k in range(4):
        a(f"ds_write_b128 v{vt[0]}, {vr(fac[4*k],4)} offset:{FFP + k*16}")
    lds_arrive(F_FCNT, vt[2], ret=True)
    a(f"s_mov_b32 s{sA0}, s{sTmp}")
    stamp("ffn1_done")
    if opts.get("hstop") == 3: a("s_branch L_end")
    spin_lds(F_NON, 1, vNon)
    a(f"s_mov_b32 s{sNon}, s{sTmp}")
    a(f"s_cmp_lg_u32 s{sA0}, 3")
    a("s_cbranch_scc1 L_fpskip")
    a.c("last arriver: sum 28 partials for 144 outputs, publish")
    a(f"v_lshrrev_b32 v{vt[0]}, 2, v{vL}")
    a(f"v_lshlrev_b32 v{vt[0]}, 6, v{vt[0]}")
    a(f"v_and_b32 v{vt[1]}, 3, v{vL}")
    a(f"v_lshl_add_u32 v{vt[0]}, v{vt[1]}, 3, v{vt[0]}")
    a("s_mov_b32 exec_hi, 0xf")
    for mt in range(2):
        for w in range(4):
            for rr in range(7):
                k = w * 7 + rr
                a(f"ds_read_b64 {vr(hR+2*k,2)}, v{vt[0]} offset:{FFP + (w*64 + rr*9)*64 + mt*32}")
        a("s_waitcnt lgkmcnt(0)")
        a(f"v_add_f32 v{hA+4*mt}, v{hR}, v{hR+2}")
        a(f"v_add_f32 v{hA+4*mt+2}, v{hR+1}, v{hR+3}")
        for k in range(2, 28):
            a(f"v_add_f32 v{hA+4*mt}, v{hA+4*mt}, v{hR+2*k}")
            a(f"v_add_f32 v{hA+4*mt+2}, v{hA+4*mt+2}, v{hR+2*k+1}")
        a(f"v_mov_b32 v{hA+4*mt+1}, v{vNon}")
        a(f"v_mov_b32 v{hA+4*mt+3}, v{vNon}")
    a(f"s_mul_i32 s{sOff}, s{sRho}, 1152")
    a(f"s_add_u32 s{sOff}, s{sOff}, {WS_FP}")
    a(f"v_lshlrev_b32 v{vt[0]}, 4, v{vL}")
    a(f"buffer_store_dwordx4 {vr(hA,4)}, v{vt[0]}, {srd(rWS)}, s{sOff} offen sc1")
    a(f"buffer_store_dwordx4 {vr(hA+4,4)}, v{vt[0]}, {srd(rWS)}, s{sOff} offen offset:576 sc1")
    a("s_mov_b64 exec, -1")
    a.label("L_fpskip")
    if opts.get("hstop") == 5: a("s_branch L_end")
    a(f"s_setprio {opts.get('hprio', 1)}")
    a(f"s_cmp_lg_u32 s{sW}, 4")
    a("s_cbranch_scc1 L_rsskip")
    a.c("gather 4 quarter-partials -> h[72] -> LDS INH (wave 4)")
    a(f"s_and_b32 s{sTmp}, s{sRho}, 0xfc")
    a(f"s_mul_i32 s{sA0}, s{sTmp}, 1152")
    a(f"s_add_u32 s{sA0}, s{sA0}, {WS_FP}")
    a(f"s_add_u32 s{sA1}, s{sA0}, 2304")
    a(f"v_lshlrev_b32 v{vt[0]}, 4, v{vL}")
    spin_lds(F_PROG, opts.get("g1", 4), vt[2], sleep=32)
    a("s_mov_b32 exec_hi, 0xf")
    ls = retry_begin()
    for k in range(4):
        for mt in range(2):
            a(f"buffer_load_dwordx4 {vr(hR+8*k+4*mt,4)}, v{vt[0]}, {srd(rWS)}, s{sA0 if k < 2 else sA1} offen offset:{(k%2)*1152 + mt*576} sc1")
    retry_end(ls, [hR + 4 * k + e for k in range(8) for e in (1, 3)], vt[1], vt[2], sleep=32)
    for k in range(1, 4):
        for q in (0, 2, 4, 6):
            a(f"v_add_f32 v{hR+q}, v{hR+q}, v{hR+8*k+q}")
    for q in (0, 2, 4, 6):
        bf16_round(a, hR + q, hR + q)
    for q in (0, 2):
        silu(hR + q)
        a(f"v_mul_f32 v{hR+q}, v{hR+q}, v{hR+4+q}")
        bf16_round(a, hR + q, hR + q)
    a(f"v_mov_b32 v{hR+1}, v{hR+2}")
    a(f"v_lshlrev_b32 v{vt[0]}, 3, v{vL}")
    a(f"ds_write_b64 v{vt[0]}, {vr(hR,2)} offset:{INH}")
    a("s_mov_b64 exec, -1")
    lds_arrive(F_H, vt[2])
    stamp("h_pub")
    a.label("L_rsskip")
    if opts.get("hstop") == 6: a("s_branch L_end")

    def slice_matmul(inaddr, wbase, fin, cnt_flag, wsbase, tagname):
        a(f"v_lshlrev_b32 v{vt[0]}, 2, v{vR3}")
        for i in range(6):
            a(f"ds_read_b32 v{hX+i}, v{vt[0]} offset:{inaddr + i*48}")
        a("s_waitcnt lgkmcnt(0)")
        fa = [hA + e for e in range(8)]
        for i in range(6):
            for dd in range(4):
                rg = wbase + 4 * i + dd
                a(f"v_lshlrev_b32 v{vt[2]}, 16, v{rg}")
                a(f"v_and_b32 v{vt[3]}, 0xffff0000, v{rg}")
                if i == 0:
                    a(f"v_mul_f32 v{fa[2*dd]}, v{vt[2]}, v{hX+i}")
                    a(f"v_mul_f32 v{fa[2*dd+1]}, v{vt[3]}, v{hX+i}")
                else:
                    a(f"v_fmac_f32 v{fa[2*dd]}, v{vt[2]}, v{hX+i}")
                    a(f"v_fmac_f32 v{fa[2*dd+1]}, v{vt[3]}, v{hX+i}")
        a(f"s_lshl_b32 s{sTmp}, s{sHW}, 11")
        a(f"v_lshlrev_b32 v{vt[0]}, 5, v{vL}")
        a(f"v_add_u32 v{vt[0]}, s{sTmp}, v{vt[0]}")
        a(f"ds_write_b128 v{vt[0]}, {vr(fa[0],4)} offset:{fin}")
        a(f"ds_write_b128 v{vt[0]}, {vr(fa[4],4)} offset:{fin+16}")
        lds_arrive(cnt_flag, vt[2], ret=True)
        lk = a.newlabel("sm")
        a(f"s_cmp_lg_u32 s{sTmp}, 3")
        a(f"s_cbranch_scc1 {lk}")
        a(f"v_lshlrev_b32 v{vt[0]}, 2, v{vL}")
        for k in range(3):
            for w in range(4):
                for r3 in range(3):
                    a(f"ds_read_b32 v{hR+12*k+3*w+r3}, v{vt[0]} offset:{fin + w*2048 + r3*576 + k*256}")
        a(f"s_lshl_b32 s{sTmp}, s{sHP}, 2")
        a(f"s_add_u32 s{sTmp}, s{sTmp}, s{sRQ}")
        a(f"s_lshl_b32 s{sOff}, s{sCQ}, 6")
        a(f"s_add_u32 s{sOff}, s{sOff}, s{sTmp}")
        a(f"s_mul_i32 s{sOff}, s{sOff}, 1152")
        a(f"s_add_u32 s{sOff}, s{sOff}, {wsbase}")
        a(f"v_lshlrev_b32 v{vt[0]}, 3, v{vL}")
        a("s_waitcnt lgkmcnt(0)")
        for k in range(3):
            for q in range(1, 12):
                a(f"v_add_f32 v{hR+12*k}, v{hR+12*k}, v{hR+12*k+q}")
            a(f"v_mov_b32 v{hR+12*k+1}, v{vNon}")
            if k == 2:
                a("s_mov_b64 exec, 0xffff")
            a(f"buffer_store_dwordx2 {vr(hR+12*k,2)}, v{vt[0]}, {srd(rWS)}, s{sOff} offen offset:{k*512} sc1")
        a("s_mov_b64 exec, -1")
        stamp(tagname)
        a.label(lk)

    def fin_gather(wsbase, dst, cntflag, sleep):
        a(f"s_mul_i32 s{sTmp}, s{sHW}, 3")
        a(f"v_subrev_u32 v{vt[4]}, s{sTmp}, v{vR3}")
        a(f"s_mov_b32 s{sTmp}, 1152")
        a(f"v_mul_lo_u32 v{vt[0]}, v{vt[4]}, s{sTmp}")
        a(f"v_lshl_add_u32 v{vt[0]}, v{vC18}, 4, v{vt[0]}")
        a(f"s_lshr_b32 s{sTmp}, s{sJ}, 2")
        a(f"s_lshl_b32 s{sTmp}, s{sTmp}, 6")
        a(f"s_lshl_b32 s{sTmp2}, s{sHW}, 4")
        a(f"s_add_u32 s{sTmp}, s{sTmp}, s{sTmp2}")
        a(f"s_mul_i32 s{sA0}, s{sTmp}, 1152")
        a(f"s_and_b32 s{sTmp}, s{sJ}, 3")
        a(f"s_mul_i32 s{sTmp}, s{sTmp}, 288")
        a(f"s_add_u32 s{sA0}, s{sA0}, s{sTmp}")
        a(f"s_add_u32 s{sA0}, s{sA0}, {wsbase}")
        a(f"v_mov_b32 v{hR+20}, 0")
        a(f"v_mov_b32 v{hR+21}, v{vNon}")
        a(f"v_mov_b32 v{hR+22}, 0")
        a(f"v_mov_b32 v{hR+23}, v{vNon}")
        a("s_mov_b32 exec_hi, 0x3fffff")
        ls = retry_begin()
        a(f"s_mov_b32 s{sOff}, s{sA0}")
        for i in range(6):
            if i == 5:
                a("s_mov_b64 exec, 0x3ffff")
            a(f"buffer_load_dwordx4 {vr(hR+4*i,4)}, v{vt[0]}, {srd(rWS)}, s{sOff} offen sc1")
            a(f"s_add_u32 s{sOff}, s{sOff}, {3*1152}")
        a("s_mov_b32 exec_lo, -1")
        a("s_mov_b32 exec_hi, 0x3fffff")
        retry_end(ls, [hR + 4 * i + e for i in range(6) for e in (1, 3)], vt[1], vt[2], sleep=sleep)
        for i in range(1, 6):
            a(f"v_add_f32 v{hR}, v{hR}, v{hR+4*i}")
            a(f"v_add_f32 v{hR+2}, v{hR+2}, v{hR+4*i+2}")
        a(f"v_mov_b32 v{hR+1}, v{hR+2}")
        a(f"s_lshl_b32 s{sTmp}, s{sHW}, 9")
        a(f"v_lshlrev_b32 v{vt[0]}, 3, v{vL}")
        a(f"v_add_u32 v{vt[0]}, s{sTmp}, v{vt[0]}")
        a(f"ds_write_b64 v{vt[0]}, {vr(hR,2)} offset:{dst}")
        a("s_mov_b64 exec, -1")
        lds_arrive(cntflag, vt[2], ret=True)

    a.c("y-part matmul")
    spin_lds(F_H, 1, vt[2], sleep=32)
    slice_matmul(INH, hW2 + 24, FIN2, F_YCNT, WS_Y2, "y_pub")
    if opts.get("hstop") == 7: a("s_branch L_end")
    a(f"v_lshlrev_b32 v{vt[0]}, 2, v{vL}")
    a(f"ds_write_b32 v{vt[0]}, v{vZ} offset:{INO+256}")
    a(f"s_cmp_lg_u32 s{sHP}, s{sJ}")
    a("s_cbranch_scc1 L_noyg")
    spin_lds(F_PROG, opts.get("g3", 8), vt[2], sleep=32)
    fin_gather(WS_Y2, G2 + 2048, F_Y2CNT, 64)
    a.label("L_noyg")
    stamp("h_idle")
    if opts.get("hstop") == 4: a("s_branch L_end")
    if opts.get("rb"):
        a.c("rate-balance partition (wave 6)")
        NTb = 4 * (32 - NS)
        G = 16 * NTb
        a(f"s_cmp_lg_u32 s{sW}, 6")
        a("s_cbranch_scc1 L_rbskip")
        spin_lds(F_T, 1, vt[2], sleep=4)
        a(f"s_sub_u32 s{sTmp}, s{sTmp}, s{sNon}")
        a(f"v_mov_b32 v{hR}, s{sTmp}")
        a(f"v_mov_b32 v{hR+1}, v{vNon}")
        a(f"s_lshl_b32 s{sOff}, s{sHPw}, 7")
        a(f"s_add_u32 s{sOff}, s{sOff}, {WS_CNT}")
        a(f"s_lshl_b32 s{sTmp}, s{sJw}, 3")
        a(f"s_add_u32 s{sTmp}, s{sTmp}, s{sOff}")
        a("s_mov_b64 exec, 1")
        a(f"buffer_store_dwordx2 {vr(hR,2)}, v{vZ}, {srd(rWS)}, s{sTmp} offen sc1")
        a("s_mov_b64 exec, -1")
        spin_lds(F_PROG, opts.get("p2", 14), vt[2], sleep=8)
        a(f"v_lshlrev_b32 v{vt[0]}, 3, v{vL}")
        a("s_mov_b64 exec, 0xffff")
        ls = retry_begin()
        a(f"buffer_load_dwordx2 {vr(hR,2)}, v{vt[0]}, {srd(rWS)}, s{sOff} offen sc1")
        retry_end(ls, [hR + 1], vt[1], vt[2], sleep=16)
        x_, sm = hR + 2, hR + 3
        a(f"v_cvt_f32_u32 v{x_}, v{hR}")
        a(f"v_rcp_f32 v{x_}, v{x_}")
        a.nop(1)
        a(f"v_mov_b32 v{sm}, v{x_}")
        for ctrl in ("quad_perm:[1,0,3,2]", "quad_perm:[2,3,0,1]", "row_half_mirror", "row_mirror"):
            a.nop(2)
            a(f"v_add_f32_dpp v{sm}, v{sm}, v{sm} {ctrl} row_mask:0xf bank_mask:0xf")
        a(f"v_rcp_f32 v{sm}, v{sm}")
        a.nop(1)
        a(f"v_mul_f32 v{x_}, v{x_}, v{sm}")
        W = float(opts.get("wtot", 138))
        a(f"v_mul_f32 v{x_}, 0x{f32bits(16*W):08x}, v{x_}")
        a(f"v_add_f32 v{x_}, 0x{f32bits(NTb - W):08x}, v{x_}")
        a(f"v_max_f32 v{x_}, 0, v{x_}")
        for sh in (1, 2, 4, 8):
            a.nop(2)
            a(f"v_add_f32_dpp v{x_}, v{x_}, v{x_} row_shr:{sh} row_mask:0xf bank_mask:0xf bound_ctrl:0")
        a.nop(1)
        a(f"v_readlane_b32 s{sTmp}, v{x_}, 15")
        a.nop(2)
        a(f"v_mov_b32 v{sm}, s{sTmp}")
        a(f"v_rcp_f32 v{sm}, v{sm}")
        a.nop(1)
        a(f"v_mul_f32 v{x_}, v{x_}, v{sm}")
        a(f"v_mul_f32 v{x_}, 0x{f32bits(float(G)):08x}, v{x_}")
        a(f"v_add_f32 v{x_}, 0.5, v{x_}")
        a(f"v_cvt_u32_f32 v{x_}, v{x_}")
        a(f"v_min_u32 v{x_}, {G}, v{x_}")
        a("s_mov_b64 exec, -1")
        a.nop(1)
        a(f"s_mov_b32 m0, s{sJw}")
        a(f"v_readlane_b32 s{sA1}, v{x_}, m0")
        a(f"s_cmp_eq_u32 s{sJw}, 15")
        a(f"s_cselect_b32 s{sA1}, {G}, s{sA1}")
        a(f"s_sub_u32 s{sTmp}, s{sJw}, 1")
        a(f"s_max_i32 s{sTmp}, s{sTmp}, 0")
        a(f"s_mov_b32 m0, s{sTmp}")
        a(f"v_readlane_b32 s{sA0}, v{x_}, m0")
        a(f"s_cmp_eq_u32 s{sJw}, 0")
        a(f"s_cselect_b32 s{sA0}, 0, s{sA0}")
        a(f"s_add_u32 s{sA1}, s{sA1}, 1")
        a(f"v_mov_b32 v{hR}, s{sA0}")
        a(f"v_mov_b32 v{hR+1}, s{sA1}")
        a(f"ds_write_b64 v{vZ}, {vr(hR,2)} offset:{F_C}")
        a.label("L_rbskip")
    if opts.get("lq", 1) and NS < 32 and not opts.get("rb"):
        a.c("dispatcher (wave 5)")
        LA, BB = opts.get("la", 4), opts.get("bb", 2)
        NT = 4 * (32 - NS)
        a(f"s_cmp_lg_u32 s{sW}, 5")
        a("s_cbranch_scc1 L_dskip")
        spin_lds(F_PROG, 4 * ((NS - 4) // 6), vt[2], sleep=16)
        sFil, sP = sB[1], sB[2]
        sVic, sBat = sA0, sA1
        a(f"s_lshl_b32 s{sTmp}, s{sHP}, 7")
        a(f"s_add_u32 s{sTmp2}, s{sTmp}, {WS_CNT}")
        a(f"s_add_u32 s{sEx}, s{sWS}, s{sTmp2}")
        a(f"s_addc_u32 s{sEx+1}, s{sWS+1}, 0")
        a(f"s_mov_b32 s{sFil}, 0")
        a(f"s_mov_b32 s{sVic}, s{sJ}")
        a(f"s_mov_b32 s{sBat}, {BB}")
        a(f"s_mov_b32 s{sCnt}, 0x200000")
        a(f"v_lshlrev_b32 v{vt[4]}, 2, v{vL}")
        a.label("L_dloop")
        a(f"ds_read_b32 v{vt[2]}, v{vZ} offset:{F_TK}")
        a("s_waitcnt lgkmcnt(0)")
        a(f"v_readfirstlane_b32 s{sTmp}, v{vt[2]}")
        a(f"s_add_u32 s{sTmp}, s{sTmp}, {LA}")
        a(f"s_cmp_lt_u32 s{sFil}, s{sTmp}")
        a("s_cbranch_scc1 L_dclaim")
        a(f"s_sub_u32 s{sCnt}, s{sCnt}, 1")
        a(f"s_cmp_eq_u32 s{sCnt}, 0")
        a("s_cbranch_scc1 L_dend")
        a("s_sleep 2")
        a("s_branch L_dloop")
        a.label("L_dclaim")
        a(f"s_mov_b32 s{sP}, s{sBat}")
        a(f"s_lshl_b32 s{sOff}, s{sVic}, 2")
        a(f"s_atomic_add s{sP}, s[{sEx}:{sEx+1}], s{sOff} glc")
        a("s_waitcnt lgkmcnt(0)")
        a(f"s_sub_i32 s{sTmp}, {NT}, s{sP}")
        a(f"s_max_i32 s{sTmp}, s{sTmp}, 0")
        a(f"s_min_i32 s{sTmp}, s{sTmp}, s{sBat}")
        a(f"s_cmp_eq_u32 s{sTmp}, 0")
        a("s_cbranch_scc1 L_dscan")
        a(f"v_add_u32 v{vt[2]}, s{sP}, v{vL}")
        a(f"v_lshrrev_b32 v{vt[3]}, 2, v{vt[2]}")
        a(f"v_lshlrev_b32 v{vt[3]}, 3, v{vt[3]}")
        a(f"v_and_b32 v{vt[2]}, 3, v{vt[2]}")
        a(f"v_add_u32 v{vt[2]}, v{vt[2]}, v{vt[3]}")
        a(f"v_add_u32 v{vt[2]}, {NS*8}, v{vt[2]}")
        a(f"v_lshlrev_b32 v{vt[2]}, 12, v{vt[2]}")
        a(f"s_lshl_b32 s{sOff}, s{sVic}, 20")
        a(f"v_add_u32 v{vt[1]}, s{sOff}, v{vt[2]}")
        a(f"v_add_u32 v{vt[0]}, s{sFil}, v{vL}")
        a(f"v_lshlrev_b32 v{vt[0]}, 2, v{vt[0]}")
        a(f"s_lshl_b32 s{sOff}, 1, s{sTmp}")
        a(f"s_sub_u32 s{sOff}, s{sOff}, 1")
        a(f"s_mov_b32 exec_lo, s{sOff}")
        a("s_mov_b32 exec_hi, 0")
        a(f"ds_write_b32 v{vt[0]}, v{vt[1]} offset:{QQ}")
        a("s_mov_b64 exec, -1")
        a(f"s_add_u32 s{sFil}, s{sFil}, s{sTmp}")
        a(f"s_cmp_eq_u32 s{sVic}, s{sJ}")
        a("s_cbranch_scc1 L_dloop")
        a.label("L_dwait")
        a(f"ds_read_b32 v{vt[2]}, v{vZ} offset:{F_TK}")
        a("s_waitcnt lgkmcnt(0)")
        a(f"v_readfirstlane_b32 s{sTmp}, v{vt[2]}")
        a(f"s_add_u32 s{sTmp}, s{sTmp}, {opts.get('la2', LA)}")
        a(f"s_cmp_lt_u32 s{sFil}, s{sTmp}")
        a("s_cbranch_scc1 L_dscan")
        a(f"s_sub_u32 s{sCnt}, s{sCnt}, 1")
        a(f"s_cmp_eq_u32 s{sCnt}, 0")
        a("s_cbranch_scc1 L_dend")
        a("s_sleep 2")
        a("s_branch L_dwait")
        a.label("L_dscan")
        a("s_mov_b64 exec, 0xffff")
        a(f"buffer_load_dword v{vt[0]}, v{vt[4]}, {srd(rWS)}, s{sTmp2} offen sc1")
        a("s_waitcnt vmcnt(0)")
        a(f"v_sub_u32 v{vt[0]}, {NT}, v{vt[0]}")
        a(f"v_max_i32 v{vt[0]}, 0, v{vt[0]}")
        a(f"v_subrev_u32 v{vt[1]}, s{sJ}, v{vL}")
        a(f"v_and_b32 v{vt[1]}, 15, v{vt[1]}")
        a(f"v_lshl_add_u32 v{vt[0]}, v{vt[0]}, 4, v{vt[1]}")
        a(f"v_mov_b32 v{vt[1]}, v{vt[0]}")
        for ctrl in ("quad_perm:[1,0,3,2]", "quad_perm:[2,3,0,1]", "row_half_mirror", "row_mirror"):
            a.nop(2)
            a(f"v_max_u32_dpp v{vt[1]}, v{vt[1]}, v{vt[1]} {ctrl} row_mask:0xf bank_mask:0xf")
        a.nop(1)
        a(f"v_readfirstlane_b32 s{sTmp}, v{vt[1]}")
        a("s_mov_b64 exec, -1")
        a(f"s_cmp_lt_u32 s{sTmp}, {16 * opts.get('minrem', 1)}")
        a("s_cbranch_scc1 L_dend")
        a(f"s_and_b32 s{sTmp}, s{sTmp}, 15")
        a(f"s_add_u32 s{sTmp}, s{sTmp}, s{sJ}")
        a(f"s_and_b32 s{sVic}, s{sTmp}, 15")
        a(f"s_mov_b32 s{sBat}, 1")
        a("s_branch L_dclaim")
        a.label("L_dend")
        a(f"v_add_u32 v{vt[0]}, s{sFil}, v{vL}")
        a(f"v_lshlrev_b32 v{vt[0]}, 2, v{vt[0]}")
        a(f"v_mov_b32 v{vt[1]}, {OOB}")
        a("s_mov_b64 exec, 0xff")
        a(f"ds_write_b32 v{vt[0]}, v{vt[1]} offset:{QQ}")
        a("s_mov_b64 exec, -1")
        a.label("L_dskip")
    a.c("wg combine")
    if opts.get("wolate", 1) == 2:
        spin_lds(F_PROG, opts.get("g4", 17), vt[2], sleep=8)
        wo_loads()
    if opts.get("wolate", 1) == 3:
        spin_lds(F_SCNT, 1, vt[2], sleep=4)
        wo_loads()
    spin_lds(F_SCNT, 4, vt[2], sleep=opts.get("hsleep", 2))
    a("s_setprio 3")
    if opts.get("dbgstamp") == 2:
        a(f"s_cmp_lg_u32 s{sW}, 5")
        a("s_cbranch_scc1 L_dbs1")
        a(f"s_cmp_lg_u32 s{sJ}, 3")
        a("s_cbranch_scc1 L_dbs1")
        a(f"s_cmp_eq_u32 s{sHP}, 0")
        a("s_cbranch_scc1 L_dbs1")
        a(f"s_memrealtime s[{sT64}:{sT64+1}]")
        a("s_waitcnt lgkmcnt(0)")
        a(f"s_sub_u32 s{sTmp}, s{sT64}, s{sNon}")
        a(f"v_mov_b32 v{vt[0]}, s{sTmp}")
        a(f"s_lshl_b32 s{sTmp}, s{sHP}, 2")
        a("s_mov_b64 exec, 1")
        a(f"buffer_store_dword v{vt[0]}, v{vZ}, {srd(rDBG)}, s{sTmp} offen")
        a("s_mov_b64 exec, -1")
        a.label("L_dbs1")
    stamp("s_all")
    a(f"v_and_b32 v{vt[5]}, 255, v0")
    a(f"v_lshlrev_b32 v{vt[0]}, 2, v{vt[5]}")
    a(f"v_lshrrev_b32 v{vt[1]}, 7, v{vt[5]}")
    a(f"v_lshlrev_b32 v{vt[1]}, 2, v{vt[1]}")
    mreg = [hR + i for i in range(4)]
    lreg = [hR + 4 + i for i in range(4)]
    oreg = [hR + 8 + i for i in range(4)]
    for w in range(4):
        a(f"ds_read_b32 v{mreg[w]}, v{vt[1]} offset:{COMB + w*CSTR + 1024}")
        a(f"ds_read_b32 v{lreg[w]}, v{vt[1]} offset:{COMB + w*CSTR + 1032}")
        a(f"ds_read_b32 v{oreg[w]}, v{vt[0]} offset:{COMB + w*CSTR}")
    a("s_waitcnt lgkmcnt(0)")
    M, Lr, Or = hA + 8, hA + 10, hA + 12
    combine(4, mreg, lreg, oreg, M, Lr, Or)
    a(f"v_mov_b32 v{M+1}, v{vNon}")
    a(f"v_mov_b32 v{Lr+1}, v{vNon}")
    a(f"v_mov_b32 v{Or+1}, v{vNon}")
    a(f"s_mul_i32 s{sOff}, s{sWGI}, {PSTR}")
    a(f"v_lshlrev_b32 v{vt[0]}, 3, v{vt[5]}")
    a(f"buffer_store_dwordx2 {vr(Or,2)}, v{vt[0]}, {srd(rWS)}, s{sOff} offen sc1")
    a(f"v_lshlrev_b32 v{vt[1]}, 2, v{vt[1]}")
    a(f"s_and_b32 s{sTmp}, s{sHW}, 1")
    a(f"s_cmp_lg_u32 s{sTmp}, 0")
    a("s_cbranch_scc1 L_mlskip")
    a("s_mov_b64 exec, 1")
    a(f"buffer_store_dwordx4 {vr(M,4)}, v{vt[1]}, {srd(rWS)}, s{sOff} offen offset:2048 sc1")
    a("s_mov_b64 exec, -1")
    a.label("L_mlskip")
    if opts.get("wolate", 1) == 1: wo_loads()
    stamp("published")
    a(f"s_cmp_lg_u32 s{sW}, 4")
    a("s_cbranch_scc1 L_l1skip")
    a.c("level-1 poll")
    a(f"v_and_b32 v{vt[0]}, 15, v{vL}")
    a(f"v_mul_u32_u24 v{vt[0]}, {PSTR}, v{vt[0]}")
    a(f"s_lshr_b32 s{sTmp}, s{sRQ}, 1")
    a(f"s_lshl_b32 s{sTmp}, s{sTmp}, 4")
    a(f"s_mul_i32 s{sA0}, s{sHP}, {16*PSTR}")
    a(f"s_add_u32 s{sA1}, s{sA0}, s{sTmp}")
    THR = opts.get("thr", 15)
    a("s_mov_b64 exec, 0xffff")
    l0, l1 = retry_begin()
    a(f"buffer_load_dwordx4 {vr(hR,4)}, v{vt[0]}, {srd(rWS)}, s{sA1} offen offset:2048 sc1")
    a("s_waitcnt vmcnt(0)")
    a(f"v_cmp_eq_u32 vcc, v{vNon}, v{hR+1}")
    a(f"s_bcnt1_i32_b64 s{sTmp}, vcc")
    a(f"s_cmp_ge_u32 s{sTmp}, {THR}")
    a(f"s_cbranch_scc1 {l1}")
    a(f"s_sub_u32 s{sCnt}, s{sCnt}, 1")
    a(f"s_cmp_eq_u32 s{sCnt}, 0")
    a(f"s_cbranch_scc1 {l1}")
    a(f"s_sleep {opts.get('sleep1', 8)}")
    a(f"s_branch {l0}")
    a.label(l1)
    a("s_mov_b64 exec, -1")
    stamp("polled")
    a(f"s_lshl_b32 s{sTmp}, s{sRQ}, 9")
    a(f"s_add_u32 s{sA0}, s{sA0}, s{sTmp}")
    a(f"v_lshlrev_b32 v{vt[3]}, 3, v{vL}")
    hG = hR + 8
    ls = retry_begin()
    a(f"buffer_load_dwordx4 {vr(hR,4)}, v{vt[0]}, {srd(rWS)}, s{sA1} offen offset:2048 sc1")
    a(f"s_mov_b32 s{sOff}, s{sA0}")
    for p in range(16):
        a(f"buffer_load_dwordx2 {vr(hG+2*p,2)}, v{vt[3]}, {srd(rWS)}, s{sOff} offen sc1")
        a(f"s_add_u32 s{sOff}, s{sOff}, {PSTR}")
    retry_end(ls, [hR + 1, hR + 3] + [hG + 2 * p + 1 for p in range(16)], vt[1], vt[2], sleep=opts.get("sleep2", 2))
    mm, ll = hR + 4, hR + 5
    a(f"v_mov_b32 v{mm}, v{hR}")
    for ctrl in ("quad_perm:[1,0,3,2]", "quad_perm:[2,3,0,1]", "row_half_mirror", "row_mirror"):
        a.nop(2)
        a(f"v_max_f32_dpp v{mm}, v{mm}, v{mm} {ctrl} row_mask:0xf bank_mask:0xf")
    a(f"v_sub_f32 v{hR}, v{hR}, v{mm}")
    a(f"v_exp_f32 v{hR}, v{hR}")
    a.nop(1)
    a(f"v_mul_f32 v{ll}, v{hR}, v{hR+2}")
    for ctrl in ("quad_perm:[1,0,3,2]", "quad_perm:[2,3,0,1]", "row_half_mirror", "row_mirror"):
        a.nop(2)
        a(f"v_add_f32_dpp v{ll}, v{ll}, v{ll} {ctrl} row_mask:0xf bank_mask:0xf")
    a.nop(1)
    a(f"v_readlane_b32 s{sA1}, v{ll}, 0")
    for p in range(16):
        a(f"v_readlane_b32 s{sTmp}, v{hR}, {p}")
        a.nop(2)
        if p == 0:
            a(f"v_mul_f32 v{Or}, s{sTmp}, v{hG}")
        else:
            a(f"v_fmac_f32 v{Or}, s{sTmp}, v{hG+2*p}")
    a(f"v_mov_b32 v{Lr}, s{sA1}")
    a(f"v_rcp_f32 v{vt[3]}, v{Lr}")
    a.nop(1)
    a(f"v_mul_f32 v{vt[4]}, v{Or}, v{vt[3]}")
    a(f"v_fma_f32 v{vt[5]}, -v{vt[4]}, v{Lr}, v{Or}")
    a(f"v_fma_f32 v{Or}, v{vt[5]}, v{vt[3]}, v{vt[4]}")
    bf16_round(a, Or, Or)
    a(f"v_lshlrev_b32 v{vt[0]}, 2, v{vL}")
    a(f"ds_write_b32 v{vt[0]}, v{Or} offset:{INO}")
    lds_arrive(F_O, vt[2])
    stamp("gathered")
    a.label("L_l1skip")
    spin_lds(F_O, 1, vt[2], sleep=0)
    a("s_waitcnt vmcnt(0)")
    slice_matmul(INO, hW2, FIN, F_ZCNT, WS_S2, "s_pub")
    a(f"s_cmp_lg_u32 s{sHP}, s{sJ}")
    a("s_cbranch_scc1 L_end")
    fin_gather(WS_S2, G2, F_S2CNT, 2)
    a(f"s_cmp_lg_u32 s{sTmp}, 3")
    a("s_cbranch_scc1 L_end")
    a.c("final: last arriver sums 4 waves x 3 pp for 36 cols")
    a(f"s_mul_i32 s{sTmp}, s{sJ}, 72")
    a(f"v_lshlrev_b32 v{vt[6]}, 1, v{vL}")
    a(f"v_add_u32 v{vt[6]}, s{sTmp}, v{vt[6]}")
    a("s_mov_b32 exec_hi, 0xf")
    a(f"buffer_load_ushort v{vt[7]}, v{vt[6]}, {srd(rX)}, 0 offen")
    a(f"v_lshlrev_b32 v{vt[0]}, 2, v{vL}")
    for part in range(2):
        for w in range(4):
            for pp in range(3):
                a(f"ds_read_b32 v{hR+12*part+3*w+pp}, v{vt[0]} offset:{G2 + part*2048 + w*512 + pp*144}")
    a("s_waitcnt lgkmcnt(0)")
    for part in range(2):
        for q in range(1, 12):
            a(f"v_add_f32 v{hR+12*part}, v{hR+12*part}, v{hR+12*part+q}")
    sS, sY = hR, hR + 12
    bf16_round(a, sS, sS)
    bf16_round(a, sY, sY)
    silu(sY)
    a(f"v_mul_f32 v{sS}, v{sS}, v{sY}")
    bf16_round(a, sS, sS)
    a("s_waitcnt vmcnt(0)")
    a(f"v_lshlrev_b32 v{vt[7]}, 16, v{vt[7]}")
    a(f"v_add_f32 v{sS}, v{sS}, v{vt[7]}")
    a(f"v_cvt_pk_bf16_f32 v{sS}, v{sS}, v{sS}")
    a(f"buffer_store_short v{sS}, v{vt[6]}, {srd(rOUT)}, 0 offen")
    if opts.get("dbgstamp") == 1:
        a(f"s_memrealtime s[{sT64}:{sT64+1}]")
        a("s_waitcnt lgkmcnt(0)")
        a(f"s_sub_u32 s{sTmp}, s{sT64}, s{sNon}")
        a(f"v_mov_b32 v{vt[0]}, s{sTmp}")
        a(f"s_lshl_b32 s{sTmp}, s{sJ}, 2")
        a(f"s_add_u32 s{sTmp}, s{sTmp}, 4")
        a(f"s_cmp_ge_u32 s{sJ}, 6")
        a("s_cbranch_scc1 L_end")
        a("s_mov_b64 exec, 1")
        a(f"buffer_store_dword v{vt[0]}, v{vZ}, {srd(rDBG)}, s{sTmp} offen")
    if STAMP:
        a("s_waitcnt vmcnt(0)")
    stamp("out")
    a.label("L_end")
    stamp_flush()
    a.label("L_exit")
    a("s_endpgm")
    a.L.append('.section .rodata,"a"')
    a.L.append(".p2align 6")
    a.L.append(f".amdhsa_kernel {KNAME}")
    a.L.append("  .amdhsa_next_free_vgpr 256")
    a.L.append("  .amdhsa_next_free_sgpr 102")
    a.L.append("  .amdhsa_accum_offset 256")
    a.L.append("  .amdhsa_group_segment_fixed_size 0")
    a.L.append("  .amdhsa_kernarg_size 96")
    a.L.append("  .amdhsa_user_sgpr_count 2")
    a.L.append("  .amdhsa_user_sgpr_kernarg_segment_ptr 1")
    a.L.append("  .amdhsa_system_sgpr_workgroup_id_x 1")
    a.L.append("  .amdhsa_float_denorm_mode_32 3")
    a.L.append(".end_amdhsa_kernel")
    return "\n".join(a.L) + "\n"

if __name__ == "__main__":
    out = sys.argv[1] if len(sys.argv) > 1 else "recurrent_scan__gqa_block_cached__swiglu_ffn__decode.s"
    opts = {}
    for kv in sys.argv[2:]:
        k, v = kv.split("=")
        opts[k] = int(v) if v.lstrip("-").isdigit() else v
    txt = gen(opts)
    if opts.get("stamp"):
        txt = txt.replace("\n", "\n; stamps=" + ",".join(opts["names"]) + "\n", 1)
    open(out, "w").write(txt)
    print("wrote", out)
```

```python
import sys, struct

KNAME = "recurrent_scan__gqa_block_cached__swiglu_ffn__decode_kernel"

def f32bits(x):
    return struct.unpack("<I", struct.pack("<f", x))[0]

class Asm:
    def __init__(self):
        self.L = []
        self.uid = 0
    def __call__(self, s):
        self.L.append("    " + s)
    def label(self, s):
        self.L.append(s + ":")
    def c(self, s):
        self.L.append("    ; " + s)
    def nop(self, n):
        while n > 0:
            k = min(n, 16)
            self(f"s_nop {k-1}")
            n -= k
    def newlabel(self, p):
        self.uid += 1
        return f"L_{p}{self.uid}"

FL = 0
F_NON, F_QCNT, F_FCNT, F_H, F_YCNT, F_SCNT, F_O, F_ZCNT, F_Y2CNT, F_S2CNT, F_PROG, F_TK = [FL + 4 * i for i in range(12)]
F_C = FL + 48
F_T = FL + 56
XN = 64
QP = XN + 2560
QB = QP + 1024
FFP = QB + 512
COMB = FFP + 16384
CSTR = 1056
INO = COMB + 4 * CSTR
INH = INO + 512
FIN = INH + 512
FIN2 = FIN + 8192
G2 = FIN2 + 8192
GX = G2 + 4096
QQ = GX + 512
LDS_BYTES = QQ + 4096
LDS_BYTES = (LDS_BYTES + 1023) // 1024 * 1024
PSTR = 2176
WS_PART = 0
WS_FP = 256 * PSTR
WS_HB = WS_FP + 256 * 4608
WS_S2 = WS_HB + 4608 * 8
WS_Y2 = WS_S2 + 4 * 64 * 1152
WS_Q = WS_Y2 + 4 * 64 * 1152
WS_CNT = WS_Q + 16 * 8192
WS_BYTES = WS_CNT + 16 * 128
WS_STAMP = 4 << 20

sX, sK, sV, sWQ, sWO, sBX, sWG, sWU, sWD, sOUT, sDBG, sWS = [4 + 2 * i for i in range(12)]
rK, rV, rX, rWQ, rWG, rWU, rWO, rWD, rWS, rOUT, rDBG = [28 + 4 * i for i in range(11)]
sHP, sJ, sW, sWGI = 72, 73, 74, 75
sSelLo, sSelHi, sScale, sLog2e = 76, 77, 78, 79
sA0, sA1, sTmp, sTmp2, sOff, sCnt = 80, 81, 82, 83, 84, 85
sEx = 86
sNon = 88
sB = [89, 90, 91]
sStat, sLeft = 92, 93
sT64 = 94
sRQ, sCQ = 100, 101
OOB = 0x40000000

def srd(r): return f"s[{r}:{r+3}]"
def vr(b, n): return f"v[{b}:{b+n-1}]"

def bf16_round(a, dst, src):
    a(f"v_cvt_pk_bf16_f32 v{dst}, v{src}, v{src}")
    a(f"v_lshlrev_b32 v{dst}, 16, v{dst}")

def cross_rows(a, op, x, t):
    o = f"v_{op}_f32"
    for sw in ("v_permlane32_swap_b32", "v_permlane16_swap_b32"):
        a(f"v_mov_b32 v{t}, v{x}")
        a.nop(2)
        a(f"{sw} v{x}, v{t}")
        a.nop(1)
        a(f"{o} v{x}, v{x}, v{t}")

def wave_allreduce(a, op, x, t):
    o = f"v_{op}_f32"
    for ctrl in ("quad_perm:[1,0,3,2]", "quad_perm:[2,3,0,1]", "row_half_mirror", "row_mirror"):
        a.nop(2)
        a(f"{o}_dpp v{x}, v{x}, v{x} {ctrl} row_mask:0xf bank_mask:0xf")
    cross_rows(a, op, x, t)

def gen(opts):
    a = Asm()
    STAMP = opts.get("stamp", False)
    NS = opts.get("ns", 26)
    NPOOL = (32 - NS) * 64
    MAXPOLL = 0x10000
    WP = "" if opts.get("wdef") else " nt"
    WP2 = "" if (opts.get("wdef") or opts.get("w2def")) else " nt"
    stn = [0]
    names = []
    vL, vST, vNon, vZ = 1, 255, 254, 253
    vt = [2, 3, 4, 5, 6, 7, 8, 9, 10, 11]
    def stamp(name):
        if not STAMP: return
        a(f"s_memrealtime s[{sT64}:{sT64+1}]")
        a("s_waitcnt lgkmcnt(0)")
        a(f"v_writelane_b32 v{vST}, s{sT64}, {stn[0]}")
        names.append(name)
        stn[0] += 1
    def stamp_flush():
        if not STAMP: return
        a("s_mov_b64 exec, -1")
        a(f"s_lshl_b32 s{sTmp}, s2, 3")
        a(f"s_add_u32 s{sTmp}, s{sTmp}, s{sW}")
        a(f"s_lshl_b32 s{sTmp}, s{sTmp}, 8")
        a(f"v_lshlrev_b32 v{vt[8]}, 2, v{vL}")
        a(f"buffer_store_dword v{vST}, v{vt[8]}, s[96:99], s{sTmp} offen")
    opts["names"] = names

    def spin_lds(addr, target, tmpv, ge=True, sleep=1):
        l0, l1 = a.newlabel("sp"), a.newlabel("spx")
        a(f"s_mov_b32 s{sCnt}, {int(2.4e8 / (64 * sleep + 120))}")
        a.label(l0)
        a(f"ds_read_b32 v{tmpv}, v{vZ} offset:{addr}")
        a("s_waitcnt lgkmcnt(0)")
        a(f"v_readfirstlane_b32 s{sTmp}, v{tmpv}")
        a(f"s_cmp_ge_u32 s{sTmp}, {target}")
        a(f"s_cbranch_scc1 {l1}")
        a(f"s_sub_u32 s{sCnt}, s{sCnt}, 1")
        a(f"s_cmp_eq_u32 s{sCnt}, 0")
        a(f"s_cbranch_scc1 {l1}")
        a(f"s_sleep {sleep}")
        a(f"s_branch {l0}")
        a.label(l1)
    def lds_arrive(addr, tmpv, ret=False):
        a("s_waitcnt lgkmcnt(0)")
        a(f"v_mov_b32 v{tmpv}, 1")
        a("s_mov_b64 exec, 1")
        if ret:
            a(f"ds_add_rtn_u32 v{tmpv}, v{vZ}, v{tmpv} offset:{addr}")
            a("s_waitcnt lgkmcnt(0)")
            a(f"v_readfirstlane_b32 s{sTmp}, v{tmpv}")
        else:
            a(f"ds_add_u32 v{vZ}, v{tmpv} offset:{addr}")
        a("s_mov_b64 exec, -1")
    def retry_begin():
        l0, l1 = a.newlabel("rt"), a.newlabel("rtx")
        a(f"s_mov_b32 s{sCnt}, {MAXPOLL}")
        a.label(l0)
        return l0, l1
    def retry_end(ls, tagregs, t0, t1, sleep=2):
        l0, l1 = ls
        a("s_waitcnt vmcnt(0)")
        a(f"v_xor_b32 v{t0}, v{vNon}, v{tagregs[0]}")
        for r in tagregs[1:]:
            a(f"v_xor_b32 v{t1}, v{vNon}, v{r}")
            a(f"v_or_b32 v{t0}, v{t0}, v{t1}")
        a(f"v_cmp_ne_u32 vcc, 0, v{t0}")
        a(f"s_cbranch_vccz {l1}")
        a(f"s_sub_u32 s{sCnt}, s{sCnt}, 1")
        a(f"s_cmp_eq_u32 s{sCnt}, 0")
        a(f"s_cbranch_scc1 {l1}")
        a(f"s_sleep {sleep}")
        a(f"s_branch {l0}")
        a.label(l1)
    def silu(x):
        a(f"v_mul_f32 v{vt[2]}, s{sLog2e}, v{x}")
        a(f"v_exp_f32 v{vt[2]}, -v{vt[2]}")
        a.nop(1)
        a(f"v_add_f32 v{vt[2]}, 1.0, v{vt[2]}")
        a(f"v_rcp_f32 v{vt[3]}, v{vt[2]}")
        a.nop(1)
        a(f"v_mul_f32 v{vt[4]}, v{x}, v{vt[3]}")
        a(f"v_fma_f32 v{vt[5]}, -v{vt[4]}, v{vt[2]}, v{x}")
        a(f"v_fma_f32 v{x}, v{vt[5]}, v{vt[3]}, v{vt[4]}")
        a(f"v_cmp_eq_f32 vcc, 0x7f800000, v{vt[2]}")
        a.nop(2)
        a(f"v_cndmask_b32 v{x}, v{x}, v{vt[4]}, vcc")
        bf16_round(a, x, x)
    def combine(n, mreg, lreg, oreg, M, Lr, Or):
        a(f"v_max3_f32 v{M}, v{mreg[0]}, v{mreg[1]}, v{mreg[2]}")
        k = 3
        while k < n:
            if k + 1 < n:
                a(f"v_max3_f32 v{M}, v{M}, v{mreg[k]}, v{mreg[k+1]}"); k += 2
            else:
                a(f"v_max_f32 v{M}, v{M}, v{mreg[k]}"); k += 1
        for w in range(n):
            a(f"v_sub_f32 v{mreg[w]}, v{mreg[w]}, v{M}")
        for w in range(n):
            a(f"v_exp_f32 v{mreg[w]}, v{mreg[w]}")
        a.nop(1)
        a(f"v_mul_f32 v{Lr}, v{mreg[0]}, v{lreg[0]}")
        a(f"v_mul_f32 v{Or}, v{mreg[0]}, v{oreg[0]}")
        for w in range(1, n):
            a(f"v_fmac_f32 v{Lr}, v{mreg[w]}, v{lreg[w]}")
            a(f"v_fmac_f32 v{Or}, v{mreg[w]}, v{oreg[w]}")
    def mk(r, p, off_s=None, size=None):
        if off_s is None:
            a(f"s_mov_b32 s{r}, s{p}")
            a(f"s_and_b32 s{r+1}, s{p+1}, 0xffff")
        else:
            a(f"s_add_u32 s{r}, s{p}, s{off_s}")
            a(f"s_addc_u32 s{r+1}, s{p+1}, 0")
            a(f"s_and_b32 s{r+1}, s{r+1}, 0xffff")
        a(f"s_mov_b32 s{r+2}, {size}")
        a(f"s_mov_b32 s{r+3}, 0x20000")

    a.L.append(f"; @launch grid=(256,1,1) block=(512,1,1) lds={LDS_BYTES}")
    a.L.append('.amdgcn_target "amdgcn-amd-amdhsa--gfx950"')
    a.L.append(".text")
    a.L.append(f".globl {KNAME}")
    a.L.append(".p2align 8")
    a.L.append(f".type {KNAME},@function")
    a.label(KNAME)
    a("s_cmp_ge_u32 s2, 256")
    a("s_cbranch_scc1 L_exit")
    a("s_load_dwordx16 s[4:19], s[0:1], 0")
    a("s_load_dwordx8 s[20:27], s[0:1], 64")
    a(f"s_memrealtime s[{sT64}:{sT64+1}]")
    a(f"v_and_b32 v{vL}, 63, v0")
    a(f"v_lshrrev_b32 v{vt[0]}, 6, v0")
    a(f"s_lshr_b32 s{sHP}, s2, 4")
    a(f"s_and_b32 s{sJ}, s2, 15")
    a(f"v_readfirstlane_b32 s{sW}, v{vt[0]}")
    if opts.get("swap", 1):
        a.nop(1)
        a(f"s_xor_b32 s{sW}, s{sW}, 4")
    a(f"s_mov_b32 s{sWGI}, s2")
    a(f"s_lshr_b32 s{sRQ}, s{sJ}, 2")
    a(f"s_and_b32 s{sCQ}, s{sJ}, 3")
    a(f"s_mov_b32 s{sLog2e}, 0x{f32bits(1.4426950408889634):08x}")
    a(f"v_mov_b32 v{vZ}, 0")
    a(f"v_mov_b32 v{vST}, 0")
    a("s_waitcnt lgkmcnt(0)")
    a(f"s_or_b32 s{sNon}, s{sT64}, 1")
    mk(rWS, sWS, size=WS_BYTES)
    if STAMP:
        a(f"s_add_u32 s96, s{sWS}, {WS_STAMP}")
        a(f"s_addc_u32 s97, s{sWS+1}, 0")
        a(f"s_and_b32 s97, s97, 0xffff")
        a(f"s_mov_b32 s98, {2048*256}")
        a(f"s_mov_b32 s99, 0x20000")
    stamp("start")
    a(f"s_cmp_ge_u32 s{sW}, 4")
    a("s_cbranch_scc1 L_helper")

    vKoff, vVoff, vM, vLs, vMt = 12, 13, 14, 15, 16
    vC = [17, 18]
    vCo = 19
    vQ = 20
    vO = 36
    vD = 68
    vP = 76
    vT = 80
    KS = [88, 120]
    VS = [152, 184, 216]
    a.c("stream wave setup")
    a(f"s_mov_b32 s{sSelLo}, 0x05040100")
    a(f"s_mov_b32 s{sSelHi}, 0x07060302")
    a(f"s_mov_b32 s{sScale}, 0x{f32bits(128 ** -0.5):08x}")
    a(f"v_and_b32 v{vt[0]}, 3, v{vL}")
    a(f"v_lshlrev_b32 v{vt[0]}, 10, v{vt[0]}")
    a(f"v_bfe_u32 v{vt[1]}, v{vL}, 2, 2")
    a(f"v_lshlrev_b32 v{vt[1]}, 8, v{vt[1]}")
    a(f"v_lshrrev_b32 v{vt[2]}, 4, v{vL}")
    a(f"v_lshlrev_b32 v{vt[2]}, 4, v{vt[2]}")
    a(f"v_add3_u32 v{vKoff}, v{vt[0]}, v{vt[1]}, v{vt[2]}")
    a(f"v_lshlrev_b32 v{vVoff}, 4, v{vL}")
    a(f"s_lshl_b32 s{sTmp}, s{sHP}, 24")
    mk(rK, sK, sTmp, size=1 << 24)
    mk(rV, sV, sTmp, size=1 << 24)
    a(f"s_lshl_b32 s{sStat}, s{sJ}, 20")
    a(f"s_lshl_b32 s{sTmp}, s{sW}, 12")
    a(f"s_add_u32 s{sStat}, s{sStat}, s{sTmp}")
    sCl = [36, 37]
    sCA = 38
    a(f"s_lshl_b32 s{sTmp}, s{sHP}, 7")
    a(f"s_add_u32 s{sTmp}, s{sTmp}, {WS_CNT}")
    a(f"s_add_u32 s{sCA}, s{sWS}, s{sTmp}")
    a(f"s_addc_u32 s{sCA+1}, s{sWS+1}, 0")
    a(f"s_mov_b32 s{sCl[0]}, {1 if (NS >= 32 and opts.get('lq', 1)) else 0}")
    a(f"s_mov_b32 s{sCl[1]}, 0")
    a("s_mov_b32 s40, 40")
    def stream_body(sfx, KP, VP):
        def Kload(slot, t, i, sb):
            return f"buffer_load_dwordx4 {vr(slot+16*t+4*i,4)}, v{vKoff}, {srd(rK)}, s{sb} offen offset:{i*64}{KP}"
        def Vload(slot, t, r, sb):
            return f"buffer_load_dwordx4 {vr(slot+16*t+4*r,4)}, v{vVoff}, {srd(rV)}, s{sb} offen offset:{r*1024}{VP}"
        NOCL = 1
        for g in range(2):
            a(f"s_mov_b32 s{sB[g]}, s{sStat}")
            a(f"s_add_u32 s{sOff}, s{sStat}, 16384")
            for t in range(2):
                for i in range(4):
                    a(Kload(KS[g], t, i, sB[g] if t == 0 else sOff))
            if g == 0 and not opts.get("latebar"): a("s_barrier")
            for t in range(2):
                for r in range(4):
                    a(Vload(VS[g], t, r, sB[g] if t == 0 else sOff))
            if g == 0 and opts.get("latebar"): a("s_barrier")
            a(f"s_add_u32 s{sStat}, s{sStat}, 32768")
        a(f"s_mov_b32 s{sLeft}, {NS-2}")
        if opts.get("dry", 0):
            a.c("dry run of the loop body (I-cache warm-up), exec=0")
            a(f"s_mov_b32 s41, s{sStat}"); a(f"s_mov_b32 s42, s{sLeft}")
            a(f"s_mov_b32 s43, s{sB[0]}"); a(f"s_mov_b32 s44, s{sB[1]}")
            a("s_mov_b32 s45, 1")
            a("s_mov_b64 exec, 0")
            a(f"s_branch L_loop{sfx}")
            a.label(f"L_dryend{sfx}")
            a("s_mov_b64 exec, -1")
            a(f"s_mov_b32 s{sStat}, s41"); a(f"s_mov_b32 s{sLeft}, s42")
            a(f"s_mov_b32 s{sB[0]}, s43"); a(f"s_mov_b32 s{sB[1]}, s44")
            a("s_mov_b32 s45, 0")
        if not opts.get("noq"): spin_lds(F_NON, 1, vNon)
        a(f"v_and_b32 v{vt[0]}, 1, v{vL}")
        a(f"v_lshlrev_b32 v{vt[0]}, 8, v{vt[0]}")
        a(f"v_lshrrev_b32 v{vt[1]}, 4, v{vL}")
        a(f"v_lshl_add_u32 v{vt[0]}, v{vt[1]}, 4, v{vt[0]}")
        for i in range(4):
            a(f"ds_read_b128 {vr(vQ+4*i,4)}, v{vt[0]} offset:{QB + i*64}")
        a(f"v_mov_b32 v{vM}, 0xff800000")
        a(f"v_mov_b32 v{vMt}, 0xff800000")
        a(f"v_mov_b32 v{vLs}, 0")
        for i in range(32):
            a(f"v_mov_b32 v{vO+i}, 0")
        a("s_waitcnt lgkmcnt(0)")
        stamp("q_ready") if (sfx == "" or not STAMP) else (stn.__setitem__(0, stn[0]-1), names.pop(), stamp("q_ready"))
        d = [vD + i for i in range(8)]
        a.label(f"L_loop{sfx}")
        for u in range(6):
            a.c(f"==== unrolled group {u} ====")
            ks = KS[u % 2]
            vs = VS[u % 3]
            vsn = VS[(u + 2) % 3]
            b0, b2 = sB[u % 3], sB[(u + 2) % 3]
            cs = sCl[u % 2]
            a(f"s_cmp_ge_u32 s{b0}, {OOB}")
            a("s_cbranch_scc1 L_sdone")
            a(f"s_waitcnt vmcnt({28 if NOCL else 29})")
            for i in range(4):
                cin = "0" if i == 0 else vr(vD, 4)
                a(f"v_mfma_f32_16x16x32_bf16 {vr(vD,4)}, {vr(ks+4*i,4)}, {vr(vQ+4*i,4)}, {cin}")
            if opts.get("lq", 1):
                lk, lsp, ldn = a.newlabel("dyn"), a.newlabel("dsp"), a.newlabel("ddn")
                a(f"s_mov_b32 s{b2}, s{sStat}")
                a(f"s_cmp_gt_i32 s{sLeft}, 0")
                a(f"s_cbranch_scc1 {ldn}")
                a(f"s_mov_b32 s{b2}, {OOB}")
                a(f"s_cmp_lg_u32 s{sCl[0]}, 0")
                a(f"s_cbranch_scc1 {ldn}")
                a(f"v_mov_b32 v{vC[0]}, 1")
                a("s_mov_b64 exec, 1")
                a(f"ds_add_rtn_u32 v{vC[0]}, v{vZ}, v{vC[0]} offset:{F_TK}")
                a("s_waitcnt lgkmcnt(0)")
                if opts.get("rb"):
                    NTb = (4 * (32 - NS))
                    assert NTb & (NTb - 1) == 0
                    a(f"v_readfirstlane_b32 s{sTmp}, v{vC[0]}")
                    a(f"s_mov_b32 s{sCnt}, 0x200000")
                    a.label(lsp)
                    a(f"ds_read_b64 v[18:19], v{vZ} offset:{F_C}")
                    a("s_waitcnt lgkmcnt(0)")
                    a(f"v_readfirstlane_b32 s{sA1}, v19")
                    a(f"v_readfirstlane_b32 s{sA0}, v18")
                    a(f"s_sub_u32 s{sCnt}, s{sCnt}, 1")
                    a(f"s_cmp_eq_u32 s{sCnt}, 0")
                    a(f"s_cselect_b32 s{sA1}, 1, s{sA1}")
                    a(f"s_cmp_eq_u32 s{sA1}, 0")
                    a(f"s_cbranch_scc1 {lsp}")
                    a(f"s_sub_u32 s{sA1}, s{sA1}, 1")
                    a(f"s_add_u32 s{sTmp}, s{sTmp}, s{sA0}")
                    a(f"s_cmp_ge_u32 s{sTmp}, s{sA1}")
                    a(f"s_cbranch_scc1 {lk}")
                    a(f"s_lshr_b32 s{sA0}, s{sTmp}, {NTb.bit_length()-1}")
                    a(f"s_lshl_b32 s{sA0}, s{sA0}, 20")
                    a(f"s_and_b32 s{sA1}, s{sTmp}, {NTb-1}")
                    a(f"s_and_b32 s{sOff}, s{sA1}, 3")
                    a(f"s_lshr_b32 s{sA1}, s{sA1}, 2")
                    a(f"s_lshl_b32 s{sA1}, s{sA1}, 3")
                    a(f"s_add_u32 s{sA1}, s{sA1}, s{sOff}")
                    a(f"s_add_u32 s{sA1}, s{sA1}, {NS*8}")
                    a(f"s_lshl_b32 s{sA1}, s{sA1}, 12")
                    a(f"s_add_u32 s{b2}, s{sA0}, s{sA1}")
                else:
                    a(f"v_lshlrev_b32 v{vC[0]}, 2, v{vC[0]}")
                    a(f"s_mov_b32 s{sCnt}, 0x200000")
                    a.label(lsp)
                    a(f"ds_read_b32 v{vC[1]}, v{vC[0]} offset:{QQ}")
                    a("s_waitcnt lgkmcnt(0)")
                    a(f"v_readfirstlane_b32 s{b2}, v{vC[1]}")
                    a(f"s_cmp_lg_u32 s{b2}, -1")
                    a(f"s_cbranch_scc1 {lk}")
                    a(f"s_sub_u32 s{sCnt}, s{sCnt}, 1")
                    a(f"s_cmp_lg_u32 s{sCnt}, 0")
                    a(f"s_cbranch_scc1 {lsp}")
                    a(f"s_mov_b32 s{b2}, {OOB}")
                a.label(lk)
                a("s_mov_b64 exec, -1")
                a(f"s_cmp_ge_u32 s{b2}, {OOB}")
                a(f"s_cselect_b32 s{sCl[0]}, 1, 0")
                a.label(ldn)
                a(f"s_add_u32 s{sStat}, s{sStat}, 32768")
                a(f"s_sub_u32 s{sLeft}, s{sLeft}, 1")
                a(f"s_add_u32 s{sOff}, s{b2}, 16384")
            else:
                a("s_waitcnt lgkmcnt(0)")
                a(f"s_mov_b32 s{sTmp}, s{cs}")
                NT = max(4 * (32 - NS), 1)
                assert NT & (NT - 1) == 0
                if opts.get("porder", 1) == 1:
                    a(f"s_lshr_b32 s{sA0}, s{sTmp}, {NT.bit_length()-1}")
                    a(f"s_lshl_b32 s{sA0}, s{sA0}, 20")
                    a(f"s_and_b32 s{sA1}, s{sTmp}, {NT-1}")
                else:
                    a(f"s_and_b32 s{sA0}, s{sTmp}, 15")
                    a(f"s_lshl_b32 s{sA0}, s{sA0}, 20")
                    a(f"s_lshr_b32 s{sA1}, s{sTmp}, 4")
                a(f"s_and_b32 s{sOff}, s{sA1}, 3")
                a(f"s_lshr_b32 s{sA1}, s{sA1}, 2")
                a(f"s_lshl_b32 s{sA1}, s{sA1}, 3")
                a(f"s_add_u32 s{sA1}, s{sA1}, s{sOff}")
                a(f"s_add_u32 s{sA1}, s{sA1}, {NS*8}")
                a(f"s_lshl_b32 s{sA1}, s{sA1}, 12")
                a(f"s_add_u32 s{sA0}, s{sA0}, s{sA1}")
                a(f"s_cmp_lt_u32 s{sTmp}, {NPOOL}")
                a(f"s_cselect_b32 s{sA0}, s{sA0}, {OOB}")
                a(f"s_cmp_gt_i32 s{sLeft}, 0")
                a(f"s_cselect_b32 s{b2}, s{sStat}, s{sA0}")
                a(f"s_add_u32 s{sStat}, s{sStat}, 32768")
                a(f"s_sub_u32 s{sLeft}, s{sLeft}, 1")
                a(f"s_add_u32 s{sOff}, s{b2}, 16384")
                lk = a.newlabel("ncl")
                a(f"s_cmp_lt_i32 s{sLeft}, 2")
                a(f"s_cbranch_scc0 {lk}")
                a(f"s_mov_b32 s{cs}, 1")
                a(f"s_atomic_add s{cs}, s[{sCA}:{sCA+1}], 0x0 glc")
                a.label(lk)
            a(f"s_waitcnt vmcnt({24 if NOCL else 25})")
            for i in range(4):
                cin = "0" if i == 0 else vr(vD + 4, 4)
                a(f"v_mfma_f32_16x16x32_bf16 {vr(vD+4,4)}, {vr(ks+16+4*i,4)}, {vr(vQ+4*i,4)}, {cin}")
            a.nop(4)
            S = []
            tt = vt
            for k in range(4):
                S.append(f"v_cvt_pk_bf16_f32 v{tt[k]}, v{d[2*k]}, v{d[2*k+1]}")
            for k in range(4):
                S.append(f"v_lshlrev_b32 v{d[2*k]}, 16, v{tt[k]}")
                S.append(f"v_and_b32 v{d[2*k+1]}, 0xffff0000, v{tt[k]}")
            for k in range(8):
                S.append(f"v_mul_f32 v{d[k]}, s{sScale}, v{d[k]}")
            for k in range(4):
                S.append(f"v_cvt_pk_bf16_f32 v{tt[k]}, v{d[2*k]}, v{d[2*k+1]}")
            for k in range(4):
                S.append(f"v_lshlrev_b32 v{d[2*k]}, 16, v{tt[k]}")
                S.append(f"v_and_b32 v{d[2*k+1]}, 0xffff0000, v{tt[k]}")
            mx = tt[4]
            S.append(f"v_max3_f32 v{mx}, v{d[0]}, v{d[1]}, v{d[2]}")
            S.append(f"v_max3_f32 v{mx}, v{mx}, v{d[3]}, v{d[4]}")
            S.append(f"v_max3_f32 v{mx}, v{mx}, v{d[5]}, v{d[6]}")
            S.append(f"v_max3_f32 v{mx}, v{mx}, v{d[7]}, v{vM}")
            for sw in ("v_permlane32_swap_b32", "v_permlane16_swap_b32"):
                S.append(f"v_mov_b32 v{tt[5]}, v{mx}")
                S.append("s_nop 1")
                S.append(f"{sw} v{mx}, v{tt[5]}")
                S.append("s_nop 0")
                S.append(f"v_max_f32 v{mx}, v{mx}, v{tt[5]}")
            S.append(f"v_mul_f32 v{tt[5]}, s{sLog2e}, v{mx}")
            al = tt[6]
            S.append(f"v_sub_f32 v{al}, v{vMt}, v{tt[5]}")
            S.append(f"v_exp_f32 v{al}, v{al}")
            S.append(f"v_mov_b32 v{vM}, v{mx}")
            S.append(f"v_mov_b32 v{vMt}, v{tt[5]}")
            for k in range(8):
                S.append(f"v_fma_f32 v{d[k]}, v{d[k]}, s{sLog2e}, -v{vMt}")
            for k in range(8):
                S.append(f"v_exp_f32 v{d[k]}, v{d[k]}")
            S.append(f"v_readlane_b32 s{sA0}, v{al}, 0")
            S.append(f"v_readlane_b32 s{sA1}, v{al}, 1")
            S.append(f"v_mul_f32 v{vLs}, v{vLs}, v{al}")
            for k in range(4):
                S.append(f"v_cvt_pk_bf16_f32 v{vP+k}, v{d[2*k]}, v{d[2*k+1]}")
            for k in range(8):
                S.append(f"v_add_f32 v{vLs}, v{vLs}, v{d[k]}")
            for i in range(8):
                S.append(f"v_mul_f32 v{vO+4*i}, s{sA0}, v{vO+4*i}")
                S.append(f"v_mul_f32 v{vO+4*i+1}, s{sA1}, v{vO+4*i+1}")
            KL = [Kload(ks, t, i, b2 if t == 0 else sOff) for t in range(2) for i in range(4)]
            a(KL[0]); a(KL[1])
            a.nop(3)
            if opts.get("nosm"): S = S[:8]
            step = max(1, len(S) // 7)
            if opts.get("burst"): step = 1
            kq = 2
            for n, ins in enumerate(S):
                a(ins)
                if (n + 1) % step == 0 and kq < 8:
                    a(KL[kq]); kq += 1
            while kq < 8:
                a(KL[kq]); kq += 1
            a(f"s_waitcnt vmcnt({24 if NOCL else 26})")
            VL = [Vload(vsn, t, r, b2 if t == 0 else sOff) for t in range(2) for r in range(4)]
            def perms(i):
                dd, b = i >> 1, i & 1
                sel = sSelHi if b else sSelLo
                for p in range(4):
                    lo = vs + 4 * (2 * p) + dd
                    hi = vs + 4 * (2 * p + 1) + dd
                    a(f"v_perm_b32 v{vT + 4*(i%2) + p}, v{hi}, v{lo}, s{sel}")
            if not opts.get("nopv"): perms(0)
            for i in range(8):
                if opts.get("nopv"):
                    a(VL[i]); continue
                if i + 1 < 8:
                    perms(i + 1)
                else:
                    a.nop(2)
                a(f"v_mfma_f32_16x16x32_bf16 {vr(vO+4*i,4)}, {vr(vP,4)}, {vr(vT+4*(i%2),4)}, {vr(vO+4*i,4)}")
                a(VL[i])
        if opts.get("dry", 0):
            a("s_cmp_lg_u32 s45, 0")
            a(f"s_cbranch_scc1 L_dryend{sfx}")
        a(f"v_mov_b32 v{vt[9]}, 1")
        a("s_mov_b64 exec, 1")
        if opts.get("rb"):
            lt = a.newlabel("nt")
            a(f"ds_add_rtn_u32 v{vt[9]}, v{vZ}, v{vt[9]} offset:{F_PROG}")
            a(f"s_memrealtime s[{sT64}:{sT64+1}]")
            a("s_waitcnt lgkmcnt(0)")
            a(f"v_readfirstlane_b32 s{sTmp}, v{vt[9]}")
            a(f"s_cmp_lg_u32 s{sTmp}, {opts.get('p1', 12) - 1}")
            a(f"s_cbranch_scc1 {lt}")
            a(f"s_or_b32 s{sTmp}, s{sT64}, 1")
            a(f"v_mov_b32 v{vt[9]}, s{sTmp}")
            a(f"ds_write_b32 v{vZ}, v{vt[9]} offset:{F_T}")
            a.label(lt)
        else:
            a(f"ds_add_u32 v{vZ}, v{vt[9]} offset:{F_PROG}")
        a("s_mov_b64 exec, -1")
        if STAMP:
            a(f"s_memrealtime s[{sT64}:{sT64+1}]")
            a("s_waitcnt lgkmcnt(0)")
            a("s_mov_b32 m0, s40")
            a(f"v_writelane_b32 v{vST}, s{sT64}, m0")
            a("s_add_u32 s40, s40, 1")
        a(f"s_branch L_loop{sfx}")

    VH0 = opts.get("vh0", 16)
    KH0 = opts.get("kh0", 16)
    if VH0 < 16:
        a(f"s_cmp_ge_u32 s{sHP}, {VH0}")
        a("s_cbranch_scc1 L_streamB")
    stream_body("", " nt", " nt")
    if VH0 < 16:
        a.label("L_streamB")
        if KH0 < 16:
            a(f"s_cmp_ge_u32 s{sHP}, {KH0}")
            a("s_cbranch_scc1 L_streamC")
        stream_body("B", " nt", "")
        if KH0 < 16:
            a.label("L_streamC")
            stream_body("C", "", "")
    a.label("L_sdone")
    stamp("s_done")
    a.c("stream wave: write partial to LDS")
    cross_rows(a, "add", vLs, vt[0])
    a.nop(8)
    a(f"s_mul_i32 s{sTmp}, s{sW}, {CSTR}")
    a(f"v_lshlrev_b32 v{vt[0]}, 5, v{vL}")
    a(f"v_add_u32 v{vt[0]}, s{sTmp}, v{vt[0]}")
    a(f"v_add_u32 v{vt[0]}, {COMB}, v{vt[0]}")
    a(f"v_lshlrev_b32 v{vt[1]}, 2, v{vL}")
    a(f"v_add_u32 v{vt[1]}, s{sTmp}, v{vt[1]}")
    a("s_mov_b64 exec, 0xffff")
    for h in range(2):
        for i in range(0, 8, 2):
            a(f"ds_write2_b32 v{vt[0]}, v{vO+4*i+h}, v{vO+4*(i+1)+h} offset0:{h*128+i} offset1:{h*128+i+1}")
    a("s_mov_b64 exec, 3")
    a(f"ds_write_b32 v{vt[1]}, v{vMt} offset:{COMB+1024}")
    a(f"ds_write_b32 v{vt[1]}, v{vLs} offset:{COMB+1032}")
    a("s_mov_b64 exec, -1")
    lds_arrive(F_SCNT, vt[2])
    a("s_branch L_end")

    a.label("L_helper")
    a.c("helper setup")
    a("s_setprio 3")
    sHW = sB[0]
    a(f"s_sub_u32 s{sHW}, s{sW}, 4")
    a(f"s_cmp_lg_u32 s{sW}, 7")
    a("s_cbranch_scc1 L_nz")
    a(f"v_lshlrev_b32 v{vt[0]}, 2, v{vL}")
    a("s_mov_b64 exec, 0xffff")
    a(f"ds_write_b32 v{vt[0]}, v{vZ} offset:{FL}")
    a("s_mov_b64 exec, -1")
    a(f"v_lshlrev_b32 v{vt[0]}, 4, v{vL}")
    for e in range(4):
        a(f"v_mov_b32 v{16+e}, -1")
    for k in range(4):
        a(f"ds_write_b128 v{vt[0]}, v[16:19] offset:{QQ + k*1024}")
    a("s_waitcnt lgkmcnt(0)")
    a.label("L_nz")
    mk(rX, sX, size=1152)
    mk(rWQ, sWQ, size=576 * 8192)
    mk(rDBG, sDBG, size=256)
    hX = 16
    hW = 28
    hF = 48
    hA = 60
    hR = 76
    if opts.get("h0"):
        a("s_barrier"); a("s_branch L_end")
    a(f"s_cmp_eq_u32 s{sW}, 7")
    a("s_cbranch_scc1 L_w7start")
    a(f"v_lshlrev_b32 v{vt[3]}, 2, v{vL}")
    for j in range(5):
        a(f"buffer_load_dword v{hX+j}, v{vt[3]}, {srd(rX)}, 0 offen offset:{j*256}")
    a(f"v_lshrrev_b32 v{vt[0]}, 3, v{vL}")
    a(f"s_mul_i32 s{sTmp}, s{sRQ}, 144")
    a(f"s_mul_i32 s{sTmp2}, s{sHW}, 48")
    a(f"s_add_u32 s{sTmp}, s{sTmp}, s{sTmp2}")
    a(f"v_add_u32 v{vt[1]}, s{sTmp}, v{vt[0]}")
    a(f"v_lshlrev_b32 v{vt[5]}, 2, v{vt[1]}")
    a(f"v_lshlrev_b32 v{vt[4]}, 13, v{vt[1]}")
    a(f"v_and_b32 v{vt[1]}, 7, v{vL}")
    a(f"v_lshl_add_u32 v{vt[4]}, v{vt[1]}, 4, v{vt[4]}")
    a(f"s_lshl_b32 s{sTmp}, s{sHP}, 9")
    a(f"s_lshl_b32 s{sTmp2}, s{sCQ}, 7")
    a(f"s_add_u32 s{sTmp}, s{sTmp}, s{sTmp2}")
    a(f"v_add_u32 v{vt[4]}, s{sTmp}, v{vt[4]}")
    if opts.get("fake") == 2:
        a(f"s_mul_i32 s{sTmp}, s{sWGI}, 18432")
        a(f"s_mul_i32 s{sTmp2}, s{sHW}, 6144")
        a(f"s_add_u32 s{sTmp}, s{sTmp}, s{sTmp2}")
        a(f"v_lshlrev_b32 v{vt[4]}, 4, v{vL}")
        a(f"v_add_u32 v{vt[4]}, s{sTmp}, v{vt[4]}")
    for i in range(6):
        a(f"s_mov_b32 s{sOff}, {i*1024 if opts.get('fake') == 2 else i*8*8192}")
        a(f"buffer_load_dwordx4 {vr(hR+4*i,4)}, v{vt[4]}, {srd(rWQ)}, s{sOff} offen{WP}")
    a("s_branch L_nononce")
    a.label("L_w7start")
    a(f"s_mov_b32 s{sB[1]}, s{sNon}")
    a(f"s_mov_b32 s{sB[2]}, 0")
    a(f"s_atomic_cmpswap s[{sB[1]}:{sB[2]}], s[{sDBG}:{sDBG+1}], 0x0 glc")
    a("s_mov_b64 exec, 1")
    a(f"s_lshl_b32 s{sTmp}, s{sHP}, 7")
    a(f"s_lshl_b32 s{sTmp2}, s{sJ}, 2")
    a(f"s_add_u32 s{sTmp}, s{sTmp}, s{sTmp2}")
    a(f"s_add_u32 s{sTmp}, s{sTmp}, {WS_CNT}")
    a(f"buffer_store_dword v{vZ}, v{vZ}, {srd(rWS)}, s{sTmp} offen sc1")
    a("s_mov_b64 exec, -1")
    a.label("L_nononce")
    a("s_barrier")
    if opts.get("nohelp"): a("s_branch L_end")
    mk(rWG, sWG, size=576 * 9216)
    mk(rWU, sWU, size=576 * 9216)
    mk(rWO, sWO, size=4096 * 1152)
    mk(rWD, sWD, size=4608 * 1152)
    mk(rOUT, sOUT, size=1152)
    a(f"s_cmp_eq_u32 s{sW}, 7")
    a("s_cbranch_scc1 L_w7x")
    a.c("layernorm")
    a("s_waitcnt vmcnt(6)")
    stamp("x_arrived")
    xf = [hF + i for i in range(10)]
    for j in range(5):
        a(f"v_lshlrev_b32 v{xf[2*j]}, 16, v{hX+j}")
        a(f"v_and_b32 v{xf[2*j+1]}, 0xffff0000, v{hX+j}")
    s_ = vt[0]
    a(f"v_add_f32 v{s_}, v{xf[0]}, v{xf[1]}")
    for i in range(2, 10):
        a(f"v_add_f32 v{s_}, v{s_}, v{xf[i]}")
    wave_allreduce(a, "add", s_, vt[1])
    a(f"v_mul_f32 v{s_}, 0x{f32bits(1.0/576):08x}, v{s_}")
    a(f"v_cmp_gt_u32 vcc, 32, v{vL}")
    q_ = vt[2]
    a(f"v_mov_b32 v{q_}, 0")
    for i in range(10):
        a(f"v_sub_f32 v{vt[1]}, v{xf[i]}, v{s_}")
        if i >= 8:
            a(f"v_cndmask_b32 v{vt[1]}, 0, v{vt[1]}, vcc")
        a(f"v_fmac_f32 v{q_}, v{vt[1]}, v{vt[1]}")
    wave_allreduce(a, "add", q_, vt[1])
    a(f"v_mul_f32 v{q_}, 0x{f32bits(1.0/576):08x}, v{q_}")
    bf16_round(a, s_, s_)
    bf16_round(a, q_, q_)
    a(f"v_add_f32 v{q_}, 0x{f32bits(1e-5):08x}, v{q_}")
    bf16_round(a, q_, q_)
    a(f"v_sqrt_f32 v{q_}, v{q_}")
    a.nop(1)
    bf16_round(a, q_, q_)
    rc = vt[1]
    a(f"v_rcp_f32 v{rc}, v{q_}")
    a.nop(1)
    for i in range(10):
        dd = xf[i]
        a(f"v_sub_f32 v{dd}, v{dd}, v{s_}")
        bf16_round(a, dd, dd)
        a(f"v_mul_f32 v{vt[6]}, v{dd}, v{rc}")
        a(f"v_fma_f32 v{vt[7]}, -v{vt[6]}, v{q_}, v{dd}")
        a(f"v_fma_f32 v{dd}, v{vt[7]}, v{rc}, v{vt[6]}")
        bf16_round(a, dd, dd)
        if i >= 8:
            a(f"v_cndmask_b32 v{dd}, 0, v{dd}, vcc")
    a(f"v_lshlrev_b32 v{vt[0]}, 3, v{vL}")
    for j in range(5):
        a(f"ds_write_b64 v{vt[0]}, {vr(xf[2*j],2)} offset:{XN + j*512}")
    a.c("q slice")
    for i in range(6):
        a(f"ds_read_b32 v{hX+i}, v{vt[5]} offset:{XN + i*32}")
    acc = [hA + i for i in range(8)]
    a("s_waitcnt vmcnt(0) lgkmcnt(0)")
    for i in range(6):
        for dd in range(4):
            r = hR + 4 * i + dd
            a(f"v_lshlrev_b32 v{vt[0]}, 16, v{r}")
            a(f"v_and_b32 v{vt[1]}, 0xffff0000, v{r}")
            if i == 0:
                a(f"v_mul_f32 v{acc[2*dd]}, v{vt[0]}, v{hX+i}")
                a(f"v_mul_f32 v{acc[2*dd+1]}, v{vt[1]}, v{hX+i}")
            else:
                a(f"v_fmac_f32 v{acc[2*dd]}, v{vt[0]}, v{hX+i}")
                a(f"v_fmac_f32 v{acc[2*dd+1]}, v{vt[1]}, v{hX+i}")
    a.nop(2)
    for ctrl in ("row_ror:8",):
        for e in range(8):
            a(f"v_add_f32_dpp v{acc[e]}, v{acc[e]}, v{acc[e]} {ctrl} row_mask:0xf bank_mask:0xf")
    tq = [hW + i for i in range(8)]
    for sw in ("v_permlane32_swap_b32", "v_permlane16_swap_b32"):
        for e in range(8):
            a(f"v_mov_b32 v{tq[e]}, v{acc[e]}")
        for e in range(8):
            a(f"{sw} v{acc[e]}, v{tq[e]}")
        for e in range(8):
            a(f"v_add_f32 v{acc[e]}, v{acc[e]}, v{tq[e]}")
    a(f"s_lshl_b32 s{sTmp}, s{sHW}, 8")
    a(f"v_lshlrev_b32 v{vt[0]}, 5, v{vL}")
    a(f"v_add_u32 v{vt[0]}, s{sTmp}, v{vt[0]}")
    a("s_mov_b64 exec, 0xff")
    a(f"ds_write_b128 v{vt[0]}, {vr(acc[0],4)} offset:{QP}")
    a(f"ds_write_b128 v{vt[0]}, {vr(acc[4],4)} offset:{QP+16}")
    a("s_mov_b64 exec, -1")
    lds_arrive(F_QCNT, vt[2])
    stamp("qpart_done")
    a("s_branch L_xskip")
    a.label("L_w7x")
    a.c("q exchange (wave 7)")
    spin_lds(F_QCNT, 3, vt[2], sleep=0)
    a(f"v_lshlrev_b32 v{vt[0]}, 2, v{vL}")
    for w in range(3):
        a(f"ds_read_b32 v{hW+w}, v{vt[0]} offset:{QP + w*256}")
    a("s_waitcnt vmcnt(0) lgkmcnt(0)")
    a(f"s_cmp_eq_u32 s{sB[1]}, 0")
    a(f"s_cselect_b32 s{sNon}, s{sNon}, s{sB[1]}")
    for w in range(1, 3):
        a(f"v_add_f32 v{hW}, v{hW}, v{hW+w}")
    a(f"v_mov_b32 v{hW+1}, s{sNon}")
    a(f"v_mov_b32 v{vNon}, s{sNon}")
    a(f"s_lshl_b32 s{sOff}, s{sHP}, 13")
    a(f"s_add_u32 s{sOff}, s{sOff}, {WS_Q}")
    a(f"s_lshl_b32 s{sTmp}, s{sRQ}, 11")
    a(f"s_lshl_b32 s{sTmp2}, s{sCQ}, 9")
    a(f"s_add_u32 s{sTmp}, s{sTmp}, s{sTmp2}")
    a(f"s_add_u32 s{sTmp}, s{sTmp}, s{sOff}")
    a(f"v_lshlrev_b32 v{vt[0]}, 3, v{vL}")
    a(f"buffer_store_dwordx2 {vr(hW,2)}, v{vt[0]}, {srd(rWS)}, s{sTmp} offen sc1")
    stamp("x_pub")
    a(f"v_lshlrev_b32 v{vt[0]}, 4, v{vL}")
    a(f"s_add_u32 s{sTmp2}, s{sOff}, 4096")
    if opts.get("pdelay", 8): a(f"s_sleep {opts.get('pdelay', 8)}")
    if opts.get("qpre", 1):
        a(f"v_lshlrev_b32 v{vt[3]}, 9, v{vL}")
        a("s_mov_b64 exec, 0xffff")
        ls = retry_begin()
        a(f"buffer_load_dwordx2 {vr(hR,2)}, v{vt[3]}, {srd(rWS)}, s{sOff} offen sc1")
        retry_end(ls, [hR + 1], vt[1], vt[2], sleep=2)
        a("s_mov_b64 exec, -1")
    ls = retry_begin()
    for k in range(8):
        a(f"buffer_load_dwordx4 {vr(hR+4*k,4)}, v{vt[0]}, {srd(rWS)}, s{sOff if k < 4 else sTmp2} offen offset:{(k%4)*1024} sc1")
    retry_end(ls, [hR + 4 * k + e for k in range(8) for e in (1, 3)], vt[1], vt[2], sleep=2)
    stamp("x_ok")
    for half in range(2):
        for e in (0, 2):
            for r4 in range(1, 4):
                a(f"v_add_f32 v{hR+4*half+e}, v{hR+4*half+e}, v{hR+4*(2*r4+half)+e}")
        a(f"v_cvt_pk_bf16_f32 v{hR+4*half}, v{hR+4*half}, v{hR+4*half+2}")
    a(f"v_lshlrev_b32 v{vt[0]}, 2, v{vL}")
    a(f"ds_write_b32 v{vt[0]}, v{hR} offset:{QB}")
    a(f"ds_write_b32 v{vt[0]}, v{hR+4} offset:{QB+256}")
    a("s_waitcnt lgkmcnt(0)")
    a(f"ds_write_b32 v{vZ}, v{vNon} offset:{F_NON}")
    a.label("L_xskip")
    sHPw, sJw, sRho = sSelLo, sSelHi, sScale
    a(f"s_mov_b32 s{sHPw}, s{sHP}")
    a(f"s_mov_b32 s{sJw}, s{sJ}")
    if opts.get("rho", 1):
        a(f"s_and_b32 s{sRho}, s2, 7")
        a(f"s_lshl_b32 s{sRho}, s{sRho}, 5")
        a(f"s_lshr_b32 s{sTmp}, s2, 3")
        a(f"s_or_b32 s{sRho}, s{sRho}, s{sTmp}")
    else:
        a(f"s_mov_b32 s{sRho}, s2")
    a(f"s_lshr_b32 s{sHP}, s{sRho}, 4")
    a(f"s_and_b32 s{sJ}, s{sRho}, 15")
    a(f"s_lshr_b32 s{sRQ}, s{sJ}, 2")
    a(f"s_and_b32 s{sCQ}, s{sJ}, 3")
    if opts.get("hstop") == 1: a("s_branch L_end")
    a.c("ffn phase 1: colblock hp*4+rq (72 cols), rows 144cq+36hw+rr+7i ; lane (rr=l/9, jj=l%9)")
    vFr, vFo, vFo2 = hW, hW + 1, hW + 2
    a(f"v_mul_u32_u24 v{vt[0]}, 57, v{vL}")
    a(f"v_lshrrev_b32 v{vt[0]}, 9, v{vt[0]}")
    a(f"v_mul_u32_u24 v{vt[1]}, 9, v{vt[0]}")
    a(f"v_sub_u32 v{vt[1]}, v{vL}, v{vt[1]}")
    a(f"s_mul_i32 s{sTmp}, s{sCQ}, 144")
    a(f"s_mul_i32 s{sTmp2}, s{sHW}, 36")
    a(f"s_add_u32 s{sTmp}, s{sTmp}, s{sTmp2}")
    a(f"v_add_u32 v{vFr}, s{sTmp}, v{vt[0]}")
    a(f"s_mov_b32 s{sTmp}, 9216")
    a(f"v_mul_lo_u32 v{vFo}, v{vFr}, s{sTmp}")
    a(f"v_lshl_add_u32 v{vFo}, v{vt[1]}, 4, v{vFo}")
    a(f"s_lshl_b32 s{sTmp}, s{sHP}, 2")
    a(f"s_add_u32 s{sTmp}, s{sTmp}, s{sRQ}")
    a(f"s_mul_i32 s{sTmp}, s{sTmp}, 144")
    a(f"v_add_u32 v{vFo}, s{sTmp}, v{vFo}")
    a(f"v_mov_b32 v{vt[1]}, 0x7f000000")
    a(f"v_cmp_gt_u32 vcc, 63, v{vL}")
    a.nop(2)
    a(f"v_cndmask_b32 v{vFo}, v{vt[1]}, v{vFo}, vcc")
    a(f"v_cmp_gt_u32 vcc, 9, v{vL}")
    a.nop(2)
    a(f"v_cndmask_b32 v{vFo2}, v{vt[1]}, v{vFo}, vcc")
    for i in range(6):
        a(f"s_mov_b32 s{sOff}, {i*7*9216}")
        a(f"buffer_load_dwordx4 {vr(hR+8*i,4)}, v{vFo if i < 5 else vFo2}, {srd(rWG)}, s{sOff} offen{WP2}")
        a(f"buffer_load_dwordx4 {vr(hR+8*i+4,4)}, v{vFo if i < 5 else vFo2}, {srd(rWU)}, s{sOff} offen{WP2}")
    if opts.get("hstop") == 2:
        a("s_waitcnt vmcnt(0)"); a("s_branch L_end")
    hW2 = 148
    vR3, vC18, vW2o = 12, 13, 14
    a(f"v_mul_u32_u24 v{vR3}, 57, v{vL}")
    a(f"v_lshrrev_b32 v{vR3}, 10, v{vR3}")
    a(f"v_mul_u32_u24 v{vC18}, 18, v{vR3}")
    a(f"v_sub_u32 v{vC18}, v{vL}, v{vC18}")
    a(f"s_mul_i32 s{sTmp}, s{sHW}, 3")
    a(f"v_add_u32 v{vR3}, s{sTmp}, v{vR3}")
    a(f"s_mov_b32 s{sTmp}, 1152")
    a(f"v_mul_lo_u32 v{vW2o}, v{vR3}, s{sTmp}")
    a(f"v_lshl_add_u32 v{vW2o}, v{vC18}, 4, v{vW2o}")
    a(f"s_mul_i32 s{sTmp}, s{sCQ}, 288")
    a(f"v_add_u32 v{vW2o}, s{sTmp}, v{vW2o}")
    a(f"s_lshl_b32 s{sTmp}, s{sHP}, 2")
    a(f"s_add_u32 s{sTmp}, s{sTmp}, s{sRQ}")
    a(f"s_mul_i32 s{sOff}, s{sTmp}, {64*1152}")
    a(f"s_mul_i32 s{sA1}, s{sTmp}, {72*1152}")
    def wo_loads():
        a(f"s_lshl_b32 s{sTmp}, s{sHP}, 2")
        a(f"s_add_u32 s{sTmp}, s{sTmp}, s{sRQ}")
        a(f"s_mul_i32 s{sOff}, s{sTmp}, {64*1152}")
        for i in range(6):
            a(f"v_add_u32 v{vt[1]}, {12*i}, v{vR3}")
            a(f"v_cmp_gt_u32 vcc, 64, v{vt[1]}")
            a(f"s_mov_b32 s{sEx}, -1")
            a(f"s_mov_b32 s{sEx+1}, 0x3fffff")
            a(f"s_and_b64 vcc, vcc, s[{sEx}:{sEx+1}]")
            for e in range(4):
                a(f"v_mov_b32 v{hW2+4*i+e}, 0")
            a("s_mov_b64 exec, vcc")
            lk = a.newlabel("w2s")
            a(f"s_cbranch_execz {lk}")
            a(f"buffer_load_dwordx4 {vr(hW2+4*i,4)}, v{vW2o}, {srd(rWO)}, s{sOff} offen{WP2}")
            a.label(lk)
            a("s_mov_b64 exec, -1")
            a(f"s_add_u32 s{sOff}, s{sOff}, {12*1152}")
    if not opts.get("wolate", 1): wo_loads()
    if not opts.get("wdlate", 1):
        for i in range(6):
            for e in range(4):
                a(f"v_mov_b32 v{hW2+24+4*i+e}, 0")
        a("s_mov_b32 exec_hi, 0x3fffff")
        if opts.get("fake"):
            a(f"s_mul_i32 s{sA1}, s{sWGI}, 20736")
            a(f"s_mul_i32 s{sTmp2}, s{sHW}, {6*864}")
            a(f"s_add_u32 s{sA1}, s{sA1}, s{sTmp2}")
        for i in range(6):
            a(f"buffer_load_dwordx4 {vr(hW2+24+4*i,4)}, v{vt[0] if opts.get('fake') else vW2o}, {srd(rWD)}, s{sA1} offen{WP2}")
            a(f"s_add_u32 s{sA1}, s{sA1}, {864 if opts.get('fake') else 12*1152}")
        a("s_mov_b64 exec, -1")
    vRd, vWdo = 204, 205
    def wd_loads():
        lk = a.newlabel("wd")
        a(f"s_cmp_eq_u32 s{sHW}, 0")
        a(f"s_cbranch_scc1 {lk}")
        a(f"v_subrev_u32 v{vRd}, 3, v{vR3}")
        a(f"v_subrev_u32 v{vWdo}, {3*1152}, v{vW2o}")
        a(f"s_lshl_b32 s{sTmp}, s{sHP}, 2")
        a(f"s_add_u32 s{sTmp}, s{sTmp}, s{sRQ}")
        a(f"s_mul_i32 s{sOff}, s{sTmp}, {72*1152}")
        for i in range(8):
            for e in range(4):
                a(f"v_mov_b32 v{hW2+24+4*i+e}, 0")
        a("s_mov_b32 exec_hi, 0x3fffff")
        for i in range(8):
            a(f"buffer_load_dwordx4 {vr(hW2+24+4*i,4)}, v{vWdo}, {srd(rWD)}, s{sOff} offen{WP2}")
            a(f"s_add_u32 s{sOff}, s{sOff}, {9*1152}")
        a("s_mov_b64 exec, -1")
        a.label(lk)
    a(f"v_lshlrev_b32 v{vt[1]}, 2, v{vFr}")
    for r in range(6):
        a(f"ds_read_b32 v{hX+r}, v{vt[1]} offset:{XN + r*28}")
    xr = [hX + r for r in range(6)]
    fac = [hA + i for i in range(16)]
    a("s_waitcnt vmcnt(0) lgkmcnt(0)")
    for r in range(6):
        for mt in range(2):
            for dd in range(4):
                rg = hR + 8 * r + 4 * mt + dd
                a(f"v_lshlrev_b32 v{vt[2]}, 16, v{rg}")
                a(f"v_and_b32 v{vt[3]}, 0xffff0000, v{rg}")
                if r == 0:
                    a(f"v_mul_f32 v{fac[8*mt+2*dd]}, v{vt[2]}, v{xr[r]}")
                    a(f"v_mul_f32 v{fac[8*mt+2*dd+1]}, v{vt[3]}, v{xr[r]}")
                else:
                    a(f"v_fmac_f32 v{fac[8*mt+2*dd]}, v{vt[2]}, v{xr[r]}")
                    a(f"v_fmac_f32 v{fac[8*mt+2*dd+1]}, v{vt[3]}, v{xr[r]}")
    a(f"s_lshl_b32 s{sTmp}, s{sHW}, 12")
    a(f"v_lshlrev_b32 v{vt[0]}, 6, v{vL}")
    a(f"v_add_u32 v{vt[0]}, s{sTmp}, v{vt[0]}")
    for k in range(4):
        a(f"ds_write_b128 v{vt[0]}, {vr(fac[4*k],4)} offset:{FFP + k*16}")
    lds_arrive(F_FCNT, vt[2], ret=True)
    a(f"s_mov_b32 s{sA0}, s{sTmp}")
    stamp("ffn1_done")
    if opts.get("hstop") == 3: a("s_branch L_end")
    spin_lds(F_NON, 1, vNon)
    a(f"s_mov_b32 s{sNon}, s{sTmp}")
    a(f"s_cmp_lg_u32 s{sA0}, 3")
    a("s_cbranch_scc1 L_fpskip")
    a.c("last arriver: sum 28 partials for 144 outputs, publish")
    a(f"v_lshrrev_b32 v{vt[0]}, 2, v{vL}")
    a(f"v_lshlrev_b32 v{vt[0]}, 6, v{vt[0]}")
    a(f"v_and_b32 v{vt[1]}, 3, v{vL}")
    a(f"v_lshl_add_u32 v{vt[0]}, v{vt[1]}, 3, v{vt[0]}")
    a("s_mov_b32 exec_hi, 0xf")
    for mt in range(2):
        for w in range(4):
            for rr in range(7):
                k = w * 7 + rr
                a(f"ds_read_b64 {vr(hR+2*k,2)}, v{vt[0]} offset:{FFP + (w*64 + rr*9)*64 + mt*32}")
        a("s_waitcnt lgkmcnt(0)")
        a(f"v_add_f32 v{hA+4*mt}, v{hR}, v{hR+2}")
        a(f"v_add_f32 v{hA+4*mt+2}, v{hR+1}, v{hR+3}")
        for k in range(2, 28):
            a(f"v_add_f32 v{hA+4*mt}, v{hA+4*mt}, v{hR+2*k}")
            a(f"v_add_f32 v{hA+4*mt+2}, v{hA+4*mt+2}, v{hR+2*k+1}")
        a(f"v_mov_b32 v{hA+4*mt+1}, v{vNon}")
        a(f"v_mov_b32 v{hA+4*mt+3}, v{vNon}")
    a(f"s_mul_i32 s{sOff}, s{sRho}, 1152")
    a(f"s_add_u32 s{sOff}, s{sOff}, {WS_FP}")
    a(f"v_lshlrev_b32 v{vt[0]}, 4, v{vL}")
    a(f"buffer_store_dwordx4 {vr(hA,4)}, v{vt[0]}, {srd(rWS)}, s{sOff} offen sc1")
    a(f"buffer_store_dwordx4 {vr(hA+4,4)}, v{vt[0]}, {srd(rWS)}, s{sOff} offen offset:576 sc1")
    a("s_mov_b64 exec, -1")
    a.label("L_fpskip")
    if opts.get("hstop") == 5: a("s_branch L_end")
    a(f"s_setprio {opts.get('hprio', 1)}")
    a(f"s_cmp_lg_u32 s{sW}, 4")
    a("s_cbranch_scc1 L_rsskip")
    a.c("gather 4 quarter-partials -> h[72] -> LDS INH (wave 4)")
    a(f"s_and_b32 s{sTmp}, s{sRho}, 0xfc")
    a(f"s_mul_i32 s{sA0}, s{sTmp}, 1152")
    a(f"s_add_u32 s{sA0}, s{sA0}, {WS_FP}")
    a(f"s_add_u32 s{sA1}, s{sA0}, 2304")
    a(f"v_lshlrev_b32 v{vt[0]}, 4, v{vL}")
    spin_lds(F_PROG, opts.get("g1", 4), vt[2], sleep=32)
    a("s_mov_b32 exec_hi, 0xf")
    ls = retry_begin()
    for k in range(4):
        for mt in range(2):
            a(f"buffer_load_dwordx4 {vr(hR+8*k+4*mt,4)}, v{vt[0]}, {srd(rWS)}, s{sA0 if k < 2 else sA1} offen offset:{(k%2)*1152 + mt*576} sc1")
    retry_end(ls, [hR + 4 * k + e for k in range(8) for e in (1, 3)], vt[1], vt[2], sleep=32)
    for k in range(1, 4):
        for q in (0, 2, 4, 6):
            a(f"v_add_f32 v{hR+q}, v{hR+q}, v{hR+8*k+q}")
    for q in (0, 2, 4, 6):
        bf16_round(a, hR + q, hR + q)
    for q in (0, 2):
        silu(hR + q)
        a(f"v_mul_f32 v{hR+q}, v{hR+q}, v{hR+4+q}")
        bf16_round(a, hR + q, hR + q)
    a(f"v_mov_b32 v{hR+1}, v{hR+2}")
    a(f"v_lshlrev_b32 v{vt[0]}, 3, v{vL}")
    a(f"ds_write_b64 v{vt[0]}, {vr(hR,2)} offset:{INH}")
    a("s_mov_b64 exec, -1")
    lds_arrive(F_H, vt[2])
    stamp("h_pub")
    a.label("L_rsskip")
    if opts.get("hstop") == 6: a("s_branch L_end")

    def slice_matmul(inaddr, wbase, fin, cnt_flag, wsbase, tagname, nw=4):
        nl = 6 if nw == 4 else 8
        a(f"v_lshlrev_b32 v{vt[0]}, 2, v{vR3 if nw == 4 else vRd}")
        for i in range(nl):
            a(f"ds_read_b32 v{hX+i}, v{vt[0]} offset:{inaddr + i*(48 if nw == 4 else 36)}")
        a("s_waitcnt lgkmcnt(0)")
        fa = [hA + e for e in range(8)]
        for i in range(nl):
            for dd in range(4):
                rg = wbase + 4 * i + dd
                a(f"v_lshlrev_b32 v{vt[2]}, 16, v{rg}")
                a(f"v_and_b32 v{vt[3]}, 0xffff0000, v{rg}")
                if i == 0:
                    a(f"v_mul_f32 v{fa[2*dd]}, v{vt[2]}, v{hX+i}")
                    a(f"v_mul_f32 v{fa[2*dd+1]}, v{vt[3]}, v{hX+i}")
                else:
                    a(f"v_fmac_f32 v{fa[2*dd]}, v{vt[2]}, v{hX+i}")
                    a(f"v_fmac_f32 v{fa[2*dd+1]}, v{vt[3]}, v{hX+i}")
        a(f"s_lshl_b32 s{sTmp}, s{sHW}, 11")
        a(f"v_lshlrev_b32 v{vt[0]}, 5, v{vL}")
        a(f"v_add_u32 v{vt[0]}, s{sTmp}, v{vt[0]}")
        a(f"ds_write_b128 v{vt[0]}, {vr(fa[0],4)} offset:{fin}")
        a(f"ds_write_b128 v{vt[0]}, {vr(fa[4],4)} offset:{fin+16}")
        lds_arrive(cnt_flag, vt[2], ret=True)
        lk = a.newlabel("sm")
        a(f"s_cmp_lg_u32 s{sTmp}, {nw-1}")
        a(f"s_cbranch_scc1 {lk}")
        a(f"v_lshlrev_b32 v{vt[0]}, 2, v{vL}")
        for k in range(3):
            for w in range(nw):
                for r3 in range(3):
                    a(f"ds_read_b32 v{hR+12*k+3*w+r3}, v{vt[0]} offset:{fin + (w + 4 - nw)*2048 + r3*576 + k*256}")
        a(f"s_lshl_b32 s{sTmp}, s{sHP}, 2")
        a(f"s_add_u32 s{sTmp}, s{sTmp}, s{sRQ}")
        a(f"s_lshl_b32 s{sOff}, s{sCQ}, 6")
        a(f"s_add_u32 s{sOff}, s{sOff}, s{sTmp}")
        a(f"s_mul_i32 s{sOff}, s{sOff}, 1152")
        a(f"s_add_u32 s{sOff}, s{sOff}, {wsbase}")
        a(f"v_lshlrev_b32 v{vt[0]}, 3, v{vL}")
        a("s_waitcnt lgkmcnt(0)")
        for k in range(3):
            for q in range(1, 3 * nw):
                a(f"v_add_f32 v{hR+12*k}, v{hR+12*k}, v{hR+12*k+q}")
            a(f"v_mov_b32 v{hR+12*k+1}, v{vNon}")
            if k == 2:
                a("s_mov_b64 exec, 0xffff")
            a(f"buffer_store_dwordx2 {vr(hR+12*k,2)}, v{vt[0]}, {srd(rWS)}, s{sOff} offen offset:{k*512} sc1")
        a("s_mov_b64 exec, -1")
        stamp(tagname)
        a.label(lk)

    def fin_gather(wsbase, dst, cntflag, sleep, both=False):
        a(f"s_mul_i32 s{sTmp}, s{sHW}, 3")
        a(f"v_subrev_u32 v{vt[4]}, s{sTmp}, v{vR3}")
        a(f"s_mov_b32 s{sTmp}, 1152")
        a(f"v_mul_lo_u32 v{vt[0]}, v{vt[4]}, s{sTmp}")
        a(f"v_lshl_add_u32 v{vt[0]}, v{vC18}, 4, v{vt[0]}")
        a(f"s_lshr_b32 s{sTmp}, s{sJ}, 2")
        a(f"s_lshl_b32 s{sTmp}, s{sTmp}, 6")
        a(f"s_lshl_b32 s{sTmp2}, s{sHW}, 4")
        a(f"s_add_u32 s{sTmp}, s{sTmp}, s{sTmp2}")
        a(f"s_mul_i32 s{sA0}, s{sTmp}, 1152")
        a(f"s_and_b32 s{sTmp}, s{sJ}, 3")
        a(f"s_mul_i32 s{sTmp}, s{sTmp}, 288")
        a(f"s_add_u32 s{sA0}, s{sA0}, s{sTmp}")
        a(f"s_add_u32 s{sA0}, s{sA0}, {wsbase}")
        nb = 2 if both else 1
        for bz in range(nb):
            a(f"v_mov_b32 v{hR+24*bz+20}, 0")
            a(f"v_mov_b32 v{hR+24*bz+21}, v{vNon}")
            a(f"v_mov_b32 v{hR+24*bz+22}, 0")
            a(f"v_mov_b32 v{hR+24*bz+23}, v{vNon}")
        a("s_mov_b32 exec_hi, 0x3fffff")
        ls = retry_begin()
        for bz in range(nb):
            a(f"s_add_u32 s{sOff}, s{sA0}, {bz * (WS_Y2 - WS_S2)}")
            for i in range(6):
                if i == 5:
                    a("s_mov_b64 exec, 0x3ffff")
                a(f"buffer_load_dwordx4 {vr(hR+24*bz+4*i,4)}, v{vt[0]}, {srd(rWS)}, s{sOff} offen sc1")
                a(f"s_add_u32 s{sOff}, s{sOff}, {3*1152}")
            a("s_mov_b32 exec_lo, -1")
            a("s_mov_b32 exec_hi, 0x3fffff")
        retry_end(ls, [hR + 4 * i + e for i in range(6 * nb) for e in (1, 3)], vt[1], vt[2], sleep=sleep)
        a(f"s_lshl_b32 s{sTmp}, s{sHW}, 9")
        a(f"v_lshlrev_b32 v{vt[0]}, 3, v{vL}")
        a(f"v_add_u32 v{vt[0]}, s{sTmp}, v{vt[0]}")
        for bz in range(nb):
            b_ = hR + 24 * bz
            for i in range(1, 6):
                a(f"v_add_f32 v{b_}, v{b_}, v{b_+4*i}")
                a(f"v_add_f32 v{b_+2}, v{b_+2}, v{b_+4*i+2}")
            a(f"v_mov_b32 v{b_+1}, v{b_+2}")
            a(f"ds_write_b64 v{vt[0]}, {vr(b_,2)} offset:{dst + 2048*bz}")
        a("s_mov_b64 exec, -1")
        lds_arrive(cntflag, vt[2], ret=True)

    if opts.get("wdlate", 1):
        a(f"v_lshlrev_b32 v{vt[0]}, 2, v{vL}")
        a(f"ds_write_b32 v{vt[0]}, v{vZ} offset:{INO+256}")
        spin_lds(F_H, 1, vt[2], sleep=32)
        a(f"s_mul_i32 s{sTmp}, s{sJ}, 72")
        a(f"v_lshlrev_b32 v206, 1, v{vL}")
        a(f"v_add_u32 v206, s{sTmp}, v206")
        a(f"buffer_load_ushort v207, v206, {srd(rX)}, 0 offen")
    else:
        a.c("y-part matmul")
        spin_lds(F_H, 1, vt[2], sleep=32)
        slice_matmul(INH, hW2 + 24, FIN2, F_YCNT, WS_Y2, "y_pub")
        if opts.get("hstop") == 7: a("s_branch L_end")
        a(f"v_lshlrev_b32 v{vt[0]}, 2, v{vL}")
        a(f"ds_write_b32 v{vt[0]}, v{vZ} offset:{INO+256}")
        a(f"s_cmp_lg_u32 s{sHP}, s{sJ}")
        a("s_cbranch_scc1 L_noyg")
        spin_lds(F_PROG, opts.get("g3", 8), vt[2], sleep=32)
        fin_gather(WS_Y2, G2 + 2048, F_Y2CNT, 64)
        a(f"s_cmp_lg_u32 s{sTmp}, 3")
        a("s_cbranch_scc1 L_noyg")
        a.c("precompute silu(y) and x for the 36 output columns")
        a(f"s_mul_i32 s{sTmp}, s{sJ}, 72")
        a(f"v_lshlrev_b32 v{vt[6]}, 1, v{vL}")
        a(f"v_add_u32 v{vt[6]}, s{sTmp}, v{vt[6]}")
        a("s_mov_b32 exec_hi, 0xf")
        a(f"buffer_load_ushort v{hR+13}, v{vt[6]}, {srd(rX)}, 0 offen")
        a(f"v_lshlrev_b32 v{vt[0]}, 2, v{vL}")
        for w in range(4):
            for pp in range(3):
                a(f"ds_read_b32 v{hR+3*w+pp}, v{vt[0]} offset:{G2 + 2048 + w*512 + pp*144}")
        a("s_waitcnt lgkmcnt(0)")
        for q in range(1, 12):
            a(f"v_add_f32 v{hR}, v{hR}, v{hR+q}")
        bf16_round(a, hR, hR)
        silu(hR)
        a("s_waitcnt vmcnt(0)")
        a(f"v_lshlrev_b32 v{hR+1}, 16, v{hR+13}")
        a(f"v_lshlrev_b32 v{vt[0]}, 3, v{vL}")
        a(f"ds_write_b64 v{vt[0]}, {vr(hR,2)} offset:{GX}")
        a("s_mov_b64 exec, -1")
        a.label("L_noyg")
    stamp("h_idle")
    if opts.get("hstop") == 4: a("s_branch L_end")
    if opts.get("rb"):
        a.c("rate-balance partition (wave 6)")
        NTb = 4 * (32 - NS)
        G = 16 * NTb
        a(f"s_cmp_lg_u32 s{sW}, 6")
        a("s_cbranch_scc1 L_rbskip")
        spin_lds(F_T, 1, vt[2], sleep=4)
        a(f"s_sub_u32 s{sTmp}, s{sTmp}, s{sNon}")
        a(f"v_mov_b32 v{hR}, s{sTmp}")
        a(f"v_mov_b32 v{hR+1}, v{vNon}")
        a(f"s_lshl_b32 s{sOff}, s{sHPw}, 7")
        a(f"s_add_u32 s{sOff}, s{sOff}, {WS_CNT}")
        a(f"s_lshl_b32 s{sTmp}, s{sJw}, 3")
        a(f"s_add_u32 s{sTmp}, s{sTmp}, s{sOff}")
        a("s_mov_b64 exec, 1")
        a(f"buffer_store_dwordx2 {vr(hR,2)}, v{vZ}, {srd(rWS)}, s{sTmp} offen sc1")
        a("s_mov_b64 exec, -1")
        spin_lds(F_PROG, opts.get("p2", 14), vt[2], sleep=8)
        a(f"v_lshlrev_b32 v{vt[0]}, 3, v{vL}")
        a("s_mov_b64 exec, 0xffff")
        ls = retry_begin()
        a(f"buffer_load_dwordx2 {vr(hR,2)}, v{vt[0]}, {srd(rWS)}, s{sOff} offen sc1")
        retry_end(ls, [hR + 1], vt[1], vt[2], sleep=16)
        x_, sm = hR + 2, hR + 3
        a(f"v_cvt_f32_u32 v{x_}, v{hR}")
        a(f"v_rcp_f32 v{x_}, v{x_}")
        a.nop(1)
        a(f"v_mov_b32 v{sm}, v{x_}")
        for ctrl in ("quad_perm:[1,0,3,2]", "quad_perm:[2,3,0,1]", "row_half_mirror", "row_mirror"):
            a.nop(2)
            a(f"v_add_f32_dpp v{sm}, v{sm}, v{sm} {ctrl} row_mask:0xf bank_mask:0xf")
        a(f"v_rcp_f32 v{sm}, v{sm}")
        a.nop(1)
        a(f"v_mul_f32 v{x_}, v{x_}, v{sm}")
        W = float(opts.get("wtot", 138))
        a(f"v_mul_f32 v{x_}, 0x{f32bits(16*W):08x}, v{x_}")
        a(f"v_add_f32 v{x_}, 0x{f32bits(NTb - W):08x}, v{x_}")
        a(f"v_max_f32 v{x_}, 0, v{x_}")
        for sh in (1, 2, 4, 8):
            a.nop(2)
            a(f"v_add_f32_dpp v{x_}, v{x_}, v{x_} row_shr:{sh} row_mask:0xf bank_mask:0xf bound_ctrl:0")
        a.nop(1)
        a(f"v_readlane_b32 s{sTmp}, v{x_}, 15")
        a.nop(2)
        a(f"v_mov_b32 v{sm}, s{sTmp}")
        a(f"v_rcp_f32 v{sm}, v{sm}")
        a.nop(1)
        a(f"v_mul_f32 v{x_}, v{x_}, v{sm}")
        a(f"v_mul_f32 v{x_}, 0x{f32bits(float(G)):08x}, v{x_}")
        a(f"v_add_f32 v{x_}, 0.5, v{x_}")
        a(f"v_cvt_u32_f32 v{x_}, v{x_}")
        a(f"v_min_u32 v{x_}, {G}, v{x_}")
        a("s_mov_b64 exec, -1")
        a.nop(1)
        a(f"s_mov_b32 m0, s{sJw}")
        a(f"v_readlane_b32 s{sA1}, v{x_}, m0")
        a(f"s_cmp_eq_u32 s{sJw}, 15")
        a(f"s_cselect_b32 s{sA1}, {G}, s{sA1}")
        a(f"s_sub_u32 s{sTmp}, s{sJw}, 1")
        a(f"s_max_i32 s{sTmp}, s{sTmp}, 0")
        a(f"s_mov_b32 m0, s{sTmp}")
        a(f"v_readlane_b32 s{sA0}, v{x_}, m0")
        a(f"s_cmp_eq_u32 s{sJw}, 0")
        a(f"s_cselect_b32 s{sA0}, 0, s{sA0}")
        a(f"s_add_u32 s{sA1}, s{sA1}, 1")
        a(f"v_mov_b32 v{hR}, s{sA0}")
        a(f"v_mov_b32 v{hR+1}, s{sA1}")
        a(f"ds_write_b64 v{vZ}, {vr(hR,2)} offset:{F_C}")
        a.label("L_rbskip")
    if opts.get("lq", 1) and NS < 32 and not opts.get("rb"):
        a.c("dispatcher (wave 5)")
        LA, BB = opts.get("la", 4), opts.get("bb", 2)
        NT = 4 * (32 - NS)
        a(f"s_cmp_lg_u32 s{sW}, 5")
        a("s_cbranch_scc1 L_dskip")
        spin_lds(F_PROG, 4 * ((NS - 4) // 6), vt[2], sleep=16)
        sFil, sP = sB[1], sB[2]
        sVic, sBat = sA0, sA1
        a(f"s_lshl_b32 s{sTmp}, s{sHP}, 7")
        a(f"s_add_u32 s{sTmp2}, s{sTmp}, {WS_CNT}")
        a(f"s_add_u32 s{sEx}, s{sWS}, s{sTmp2}")
        a(f"s_addc_u32 s{sEx+1}, s{sWS+1}, 0")
        a(f"s_mov_b32 s{sFil}, 0")
        a(f"s_mov_b32 s{sVic}, s{sJ}")
        a(f"s_mov_b32 s{sBat}, {BB}")
        a(f"s_mov_b32 s{sCnt}, 0x200000")
        a(f"v_lshlrev_b32 v{vt[4]}, 2, v{vL}")
        a.label("L_dloop")
        a(f"ds_read_b32 v{vt[2]}, v{vZ} offset:{F_TK}")
        a("s_waitcnt lgkmcnt(0)")
        a(f"v_readfirstlane_b32 s{sTmp}, v{vt[2]}")
        a(f"s_add_u32 s{sTmp}, s{sTmp}, {LA}")
        a(f"s_cmp_lt_u32 s{sFil}, s{sTmp}")
        a("s_cbranch_scc1 L_dclaim")
        a(f"s_sub_u32 s{sCnt}, s{sCnt}, 1")
        a(f"s_cmp_eq_u32 s{sCnt}, 0")
        a("s_cbranch_scc1 L_dend")
        a("s_sleep 2")
        a("s_branch L_dloop")
        a.label("L_dclaim")
        a(f"s_mov_b32 s{sP}, s{sBat}")
        a(f"s_lshl_b32 s{sOff}, s{sVic}, 2")
        a(f"s_atomic_add s{sP}, s[{sEx}:{sEx+1}], s{sOff} glc")
        a("s_waitcnt lgkmcnt(0)")
        a(f"s_sub_i32 s{sTmp}, {NT}, s{sP}")
        a(f"s_max_i32 s{sTmp}, s{sTmp}, 0")
        a(f"s_min_i32 s{sTmp}, s{sTmp}, s{sBat}")
        a(f"s_cmp_eq_u32 s{sTmp}, 0")
        a("s_cbranch_scc1 L_dscan")
        a(f"v_add_u32 v{vt[2]}, s{sP}, v{vL}")
        a(f"v_lshrrev_b32 v{vt[3]}, 2, v{vt[2]}")
        a(f"v_lshlrev_b32 v{vt[3]}, 3, v{vt[3]}")
        a(f"v_and_b32 v{vt[2]}, 3, v{vt[2]}")
        a(f"v_add_u32 v{vt[2]}, v{vt[2]}, v{vt[3]}")
        a(f"v_add_u32 v{vt[2]}, {NS*8}, v{vt[2]}")
        a(f"v_lshlrev_b32 v{vt[2]}, 12, v{vt[2]}")
        a(f"s_lshl_b32 s{sOff}, s{sVic}, 20")
        a(f"v_add_u32 v{vt[1]}, s{sOff}, v{vt[2]}")
        a(f"v_add_u32 v{vt[0]}, s{sFil}, v{vL}")
        a(f"v_lshlrev_b32 v{vt[0]}, 2, v{vt[0]}")
        a(f"s_lshl_b32 s{sOff}, 1, s{sTmp}")
        a(f"s_sub_u32 s{sOff}, s{sOff}, 1")
        a(f"s_mov_b32 exec_lo, s{sOff}")
        a("s_mov_b32 exec_hi, 0")
        a(f"ds_write_b32 v{vt[0]}, v{vt[1]} offset:{QQ}")
        a("s_mov_b64 exec, -1")
        a(f"s_add_u32 s{sFil}, s{sFil}, s{sTmp}")
        a(f"s_cmp_eq_u32 s{sVic}, s{sJ}")
        a("s_cbranch_scc1 L_dloop")
        a.label("L_dwait")
        a(f"ds_read_b32 v{vt[2]}, v{vZ} offset:{F_TK}")
        a("s_waitcnt lgkmcnt(0)")
        a(f"v_readfirstlane_b32 s{sTmp}, v{vt[2]}")
        a(f"s_add_u32 s{sTmp}, s{sTmp}, {opts.get('la2', LA)}")
        a(f"s_cmp_lt_u32 s{sFil}, s{sTmp}")
        a("s_cbranch_scc1 L_dscan")
        a(f"s_sub_u32 s{sCnt}, s{sCnt}, 1")
        a(f"s_cmp_eq_u32 s{sCnt}, 0")
        a("s_cbranch_scc1 L_dend")
        a("s_sleep 2")
        a("s_branch L_dwait")
        a.label("L_dscan")
        a("s_mov_b64 exec, 0xffff")
        a(f"buffer_load_dword v{vt[0]}, v{vt[4]}, {srd(rWS)}, s{sTmp2} offen sc1")
        a("s_waitcnt vmcnt(0)")
        a(f"v_sub_u32 v{vt[0]}, {NT}, v{vt[0]}")
        a(f"v_max_i32 v{vt[0]}, 0, v{vt[0]}")
        a(f"v_subrev_u32 v{vt[1]}, s{sJ}, v{vL}")
        a(f"v_and_b32 v{vt[1]}, 15, v{vt[1]}")
        a(f"v_lshl_add_u32 v{vt[0]}, v{vt[0]}, 4, v{vt[1]}")
        a(f"v_mov_b32 v{vt[1]}, v{vt[0]}")
        for ctrl in ("quad_perm:[1,0,3,2]", "quad_perm:[2,3,0,1]", "row_half_mirror", "row_mirror"):
            a.nop(2)
            a(f"v_max_u32_dpp v{vt[1]}, v{vt[1]}, v{vt[1]} {ctrl} row_mask:0xf bank_mask:0xf")
        a.nop(1)
        a(f"v_readfirstlane_b32 s{sTmp}, v{vt[1]}")
        a("s_mov_b64 exec, -1")
        a(f"s_cmp_lt_u32 s{sTmp}, {16 * opts.get('minrem', 1)}")
        a("s_cbranch_scc1 L_dend")
        a(f"s_and_b32 s{sTmp}, s{sTmp}, 15")
        a(f"s_add_u32 s{sTmp}, s{sTmp}, s{sJ}")
        a(f"s_and_b32 s{sVic}, s{sTmp}, 15")
        a(f"s_mov_b32 s{sBat}, 1")
        a("s_branch L_dclaim")
        a.label("L_dend")
        a(f"v_add_u32 v{vt[0]}, s{sFil}, v{vL}")
        a(f"v_lshlrev_b32 v{vt[0]}, 2, v{vt[0]}")
        a(f"v_mov_b32 v{vt[1]}, {OOB}")
        a("s_mov_b64 exec, 0xff")
        a(f"ds_write_b32 v{vt[0]}, v{vt[1]} offset:{QQ}")
        a("s_mov_b64 exec, -1")
        a.label("L_dskip")
    a.c("wg combine")
    if opts.get("wolate", 1) == 2:
        spin_lds(F_PROG, opts.get("g4", 17), vt[2], sleep=8)
        wo_loads()
    if opts.get("wolate", 1) == 3:
        spin_lds(F_SCNT, 1, vt[2], sleep=4)
        if opts.get("wdlate", 1): wd_loads()
        wo_loads()
    spin_lds(F_SCNT, 4, vt[2], sleep=opts.get("hsleep", 2))
    a("s_setprio 3")
    if opts.get("dbgstamp") == 2:
        a(f"s_cmp_lg_u32 s{sW}, 5")
        a("s_cbranch_scc1 L_dbs1")
        a(f"s_cmp_lg_u32 s{sJ}, 3")
        a("s_cbranch_scc1 L_dbs1")
        a(f"s_cmp_eq_u32 s{sHP}, 0")
        a("s_cbranch_scc1 L_dbs1")
        a(f"s_memrealtime s[{sT64}:{sT64+1}]")
        a("s_waitcnt lgkmcnt(0)")
        a(f"s_sub_u32 s{sTmp}, s{sT64}, s{sNon}")
        a(f"v_mov_b32 v{vt[0]}, s{sTmp}")
        a(f"s_lshl_b32 s{sTmp}, s{sHP}, 2")
        a("s_mov_b64 exec, 1")
        a(f"buffer_store_dword v{vt[0]}, v{vZ}, {srd(rDBG)}, s{sTmp} offen")
        a("s_mov_b64 exec, -1")
        a.label("L_dbs1")
    stamp("s_all")
    a(f"v_and_b32 v{vt[5]}, 255, v0")
    a(f"v_lshlrev_b32 v{vt[0]}, 2, v{vt[5]}")
    a(f"v_lshrrev_b32 v{vt[1]}, 7, v{vt[5]}")
    a(f"v_lshlrev_b32 v{vt[1]}, 2, v{vt[1]}")
    mreg = [hR + i for i in range(4)]
    lreg = [hR + 4 + i for i in range(4)]
    oreg = [hR + 8 + i for i in range(4)]
    for w in range(4):
        a(f"ds_read_b32 v{mreg[w]}, v{vt[1]} offset:{COMB + w*CSTR + 1024}")
        a(f"ds_read_b32 v{lreg[w]}, v{vt[1]} offset:{COMB + w*CSTR + 1032}")
        a(f"ds_read_b32 v{oreg[w]}, v{vt[0]} offset:{COMB + w*CSTR}")
    a("s_waitcnt lgkmcnt(0)")
    M, Lr, Or = hA + 8, hA + 10, hA + 12
    combine(4, mreg, lreg, oreg, M, Lr, Or)
    a(f"v_mov_b32 v{M+1}, v{vNon}")
    a(f"v_mov_b32 v{Lr+1}, v{vNon}")
    a(f"v_mov_b32 v{Or+1}, v{vNon}")
    a(f"s_mul_i32 s{sOff}, s{sWGI}, {PSTR}")
    a(f"v_lshlrev_b32 v{vt[0]}, 3, v{vt[5]}")
    a(f"buffer_store_dwordx2 {vr(Or,2)}, v{vt[0]}, {srd(rWS)}, s{sOff} offen sc1")
    a(f"v_lshlrev_b32 v{vt[1]}, 2, v{vt[1]}")
    a(f"s_and_b32 s{sTmp}, s{sHW}, 1")
    a(f"s_cmp_lg_u32 s{sTmp}, 0")
    a("s_cbranch_scc1 L_mlskip")
    a("s_mov_b64 exec, 1")
    a(f"buffer_store_dwordx4 {vr(M,4)}, v{vt[1]}, {srd(rWS)}, s{sOff} offen offset:2048 sc1")
    a("s_mov_b64 exec, -1")
    a.label("L_mlskip")
    if opts.get("wolate", 1) == 1: wo_loads()
    stamp("published")
    a(f"s_cmp_lg_u32 s{sW}, 4")
    a("s_cbranch_scc1 L_ypath" if opts.get("wdlate", 1) else "s_cbranch_scc1 L_l1skip")
    a.c("level-1 poll")
    a(f"v_and_b32 v{vt[0]}, 15, v{vL}")
    a(f"v_mul_u32_u24 v{vt[0]}, {PSTR}, v{vt[0]}")
    a(f"s_lshr_b32 s{sTmp}, s{sRQ}, 1")
    a(f"s_lshl_b32 s{sTmp}, s{sTmp}, 4")
    a(f"s_mul_i32 s{sA0}, s{sHP}, {16*PSTR}")
    a(f"s_add_u32 s{sA1}, s{sA0}, s{sTmp}")
    THR = opts.get("thr", 15)
    a("s_mov_b64 exec, 0xffff")
    l0, l1 = retry_begin()
    a(f"buffer_load_dwordx4 {vr(hR,4)}, v{vt[0]}, {srd(rWS)}, s{sA1} offen offset:2048 sc1")
    a("s_waitcnt vmcnt(0)")
    a(f"v_cmp_eq_u32 vcc, v{vNon}, v{hR+1}")
    a(f"s_bcnt1_i32_b64 s{sTmp}, vcc")
    a(f"s_cmp_ge_u32 s{sTmp}, {THR}")
    a(f"s_cbranch_scc1 {l1}")
    a(f"s_sub_u32 s{sCnt}, s{sCnt}, 1")
    a(f"s_cmp_eq_u32 s{sCnt}, 0")
    a(f"s_cbranch_scc1 {l1}")
    a(f"s_sleep {opts.get('sleep1', 8)}")
    a(f"s_branch {l0}")
    a.label(l1)
    a("s_mov_b64 exec, -1")
    stamp("polled")
    a(f"s_lshl_b32 s{sTmp}, s{sRQ}, 9")
    a(f"s_add_u32 s{sA0}, s{sA0}, s{sTmp}")
    a(f"v_lshlrev_b32 v{vt[3]}, 3, v{vL}")
    hG = hR + 8
    ls = retry_begin()
    a(f"buffer_load_dwordx4 {vr(hR,4)}, v{vt[0]}, {srd(rWS)}, s{sA1} offen offset:2048 sc1")
    a(f"s_mov_b32 s{sOff}, s{sA0}")
    for p in range(16):
        a(f"buffer_load_dwordx2 {vr(hG+2*p,2)}, v{vt[3]}, {srd(rWS)}, s{sOff} offen sc1")
        a(f"s_add_u32 s{sOff}, s{sOff}, {PSTR}")
    retry_end(ls, [hR + 1, hR + 3] + [hG + 2 * p + 1 for p in range(16)], vt[1], vt[2], sleep=opts.get("sleep2", 2))
    mm, ll = hR + 4, hR + 5
    a(f"v_mov_b32 v{mm}, v{hR}")
    for ctrl in ("quad_perm:[1,0,3,2]", "quad_perm:[2,3,0,1]", "row_half_mirror", "row_mirror"):
        a.nop(2)
        a(f"v_max_f32_dpp v{mm}, v{mm}, v{mm} {ctrl} row_mask:0xf bank_mask:0xf")
    a(f"v_sub_f32 v{hR}, v{hR}, v{mm}")
    a(f"v_exp_f32 v{hR}, v{hR}")
    a.nop(1)
    a(f"v_mul_f32 v{ll}, v{hR}, v{hR+2}")
    for ctrl in ("quad_perm:[1,0,3,2]", "quad_perm:[2,3,0,1]", "row_half_mirror", "row_mirror"):
        a.nop(2)
        a(f"v_add_f32_dpp v{ll}, v{ll}, v{ll} {ctrl} row_mask:0xf bank_mask:0xf")
    a.nop(1)
    a(f"v_readlane_b32 s{sA1}, v{ll}, 0")
    for p in range(16):
        a(f"v_readlane_b32 s{sTmp}, v{hR}, {p}")
        a.nop(2)
        if p == 0:
            a(f"v_mul_f32 v{Or}, s{sTmp}, v{hG}")
        else:
            a(f"v_fmac_f32 v{Or}, s{sTmp}, v{hG+2*p}")
    a(f"v_mov_b32 v{Lr}, s{sA1}")
    a(f"v_rcp_f32 v{vt[3]}, v{Lr}")
    a.nop(1)
    a(f"v_mul_f32 v{vt[4]}, v{Or}, v{vt[3]}")
    a(f"v_fma_f32 v{vt[5]}, -v{vt[4]}, v{Lr}, v{Or}")
    a(f"v_fma_f32 v{Or}, v{vt[5]}, v{vt[3]}, v{vt[4]}")
    bf16_round(a, Or, Or)
    a(f"v_lshlrev_b32 v{vt[0]}, 2, v{vL}")
    a(f"ds_write_b32 v{vt[0]}, v{Or} offset:{INO}")
    lds_arrive(F_O, vt[2])
    stamp("gathered")
    if opts.get("wdlate", 1):
        a("s_branch L_l1skip")
        a.label("L_ypath")
        a("s_waitcnt vmcnt(0)")
        slice_matmul(INH, hW2 + 24, FIN2, F_YCNT, WS_Y2, "y_pub", nw=3)
    a.label("L_l1skip")
    spin_lds(F_O, 1, vt[2], sleep=0)
    a("s_waitcnt vmcnt(0)")
    slice_matmul(INO, hW2, FIN, F_ZCNT, WS_S2, "s_pub")
    a(f"s_cmp_lg_u32 s{sHP}, s{sJ}")
    a("s_cbranch_scc1 L_end")
    if opts.get("wdlate", 1) and not opts.get("merge"):
        fin_gather(WS_Y2, G2 + 2048, F_Y2CNT, opts.get('sleep3', 1))
    fin_gather(WS_S2, G2, F_S2CNT, opts.get('sleep3', 1), both=bool(opts.get("wdlate", 1) and opts.get("merge")))
    a(f"s_cmp_lg_u32 s{sTmp}, 3")
    a("s_cbranch_scc1 L_end")
    a.c("final: last arriver sums 4 waves x 3 pp for 36 cols")
    a(f"s_mul_i32 s{sTmp}, s{sJ}, 72")
    a(f"v_lshlrev_b32 v{vt[6]}, 1, v{vL}")
    a(f"v_add_u32 v{vt[6]}, s{sTmp}, v{vt[6]}")
    a("s_mov_b32 exec_hi, 0xf")
    a(f"v_lshlrev_b32 v{vt[0]}, 2, v{vL}")
    for w in range(4):
        for pp in range(3):
            a(f"ds_read_b32 v{hR+3*w+pp}, v{vt[0]} offset:{G2 + w*512 + pp*144}")
    if opts.get("wdlate", 1):
        for w in range(4):
            for pp in range(3):
                a(f"ds_read_b32 v{hR+12+3*w+pp}, v{vt[0]} offset:{G2 + 2048 + w*512 + pp*144}")
        a("s_waitcnt lgkmcnt(0)")
        for q in range(1, 12):
            a(f"v_add_f32 v{hR+12}, v{hR+12}, v{hR+12+q}")
        bf16_round(a, hR + 12, hR + 12)
        silu(hR + 12)
        a(f"v_lshlrev_b32 v{hR+13}, 16, v207")
    else:
        a(f"v_lshlrev_b32 v{vt[0]}, 3, v{vL}")
        a(f"ds_read_b64 {vr(hR+12,2)}, v{vt[0]} offset:{GX}")
        a("s_waitcnt lgkmcnt(0)")
    for q in range(1, 12):
        a(f"v_add_f32 v{hR}, v{hR}, v{hR+q}")
    sS = hR
    bf16_round(a, sS, sS)
    a(f"v_mul_f32 v{sS}, v{sS}, v{hR+12}")
    bf16_round(a, sS, sS)
    a(f"v_add_f32 v{sS}, v{sS}, v{hR+13}")
    a(f"v_cvt_pk_bf16_f32 v{sS}, v{sS}, v{sS}")
    a(f"buffer_store_short v{sS}, v{vt[6]}, {srd(rOUT)}, 0 offen")
    if opts.get("dbgstamp") == 1:
        a(f"s_memrealtime s[{sT64}:{sT64+1}]")
        a("s_waitcnt lgkmcnt(0)")
        a(f"s_sub_u32 s{sTmp}, s{sT64}, s{sNon}")
        a(f"v_mov_b32 v{vt[0]}, s{sTmp}")
        a(f"s_lshl_b32 s{sTmp}, s{sJ}, 2")
        a(f"s_add_u32 s{sTmp}, s{sTmp}, 4")
        a(f"s_cmp_ge_u32 s{sJ}, 6")
        a("s_cbranch_scc1 L_end")
        a("s_mov_b64 exec, 1")
        a(f"buffer_store_dword v{vt[0]}, v{vZ}, {srd(rDBG)}, s{sTmp} offen")
    if STAMP:
        a("s_waitcnt vmcnt(0)")
    stamp("out")
    a.label("L_end")
    stamp_flush()
    a.label("L_exit")
    a("s_endpgm")
    a.L.append('.section .rodata,"a"')
    a.L.append(".p2align 6")
    a.L.append(f".amdhsa_kernel {KNAME}")
    a.L.append("  .amdhsa_next_free_vgpr 256")
    a.L.append("  .amdhsa_next_free_sgpr 102")
    a.L.append("  .amdhsa_accum_offset 256")
    a.L.append("  .amdhsa_group_segment_fixed_size 0")
    a.L.append("  .amdhsa_kernarg_size 96")
    a.L.append("  .amdhsa_user_sgpr_count 2")
    a.L.append("  .amdhsa_user_sgpr_kernarg_segment_ptr 1")
    a.L.append("  .amdhsa_system_sgpr_workgroup_id_x 1")
    a.L.append("  .amdhsa_float_denorm_mode_32 3")
    a.L.append(".end_amdhsa_kernel")
    return "\n".join(a.L) + "\n"

if __name__ == "__main__":
    out = sys.argv[1] if len(sys.argv) > 1 else "recurrent_scan__gqa_block_cached__swiglu_ffn__decode.s"
    opts = {}
    for kv in sys.argv[2:]:
        k, v = kv.split("=")
        opts[k] = int(v) if v.lstrip("-").isdigit() else v
    txt = gen(opts)
    if opts.get("stamp"):
        txt = txt.replace("\n", "\n; stamps=" + ",".join(opts["names"]) + "\n", 1)
    open(out, "w").write(txt)
    print("wrote", out)
```

```python
import sys, struct

KNAME = "recurrent_scan__gqa_block_cached__swiglu_ffn__decode_kernel"

def f32bits(x):
    return struct.unpack("<I", struct.pack("<f", x))[0]

class Asm:
    def __init__(self):
        self.L = []
        self.uid = 0
    def __call__(self, s):
        self.L.append("    " + s)
    def label(self, s):
        self.L.append(s + ":")
    def c(self, s):
        self.L.append("    ; " + s)
    def nop(self, n):
        while n > 0:
            k = min(n, 16)
            self(f"s_nop {k-1}")
            n -= k
    def newlabel(self, p):
        self.uid += 1
        return f"L_{p}{self.uid}"

FL = 0
F_NON, F_QCNT, F_FCNT, F_H, F_YCNT, F_SCNT, F_O, F_ZCNT, F_Y2CNT, F_S2CNT, F_PROG, F_TK = [FL + 4 * i for i in range(12)]
F_C = FL + 48
F_T = FL + 56
XN = 64
QP = XN + 2560
QB = QP + 1024
FFP = QB + 512
COMB = FFP + 16384
CSTR = 1056
INO = COMB + 4 * CSTR
INH = INO + 512
FIN = INH + 512
FIN2 = FIN + 8192
G2 = FIN2 + 8192
GX = G2 + 4096
QQ = GX + 512
LDS_BYTES = QQ + 4096
LDS_BYTES = (LDS_BYTES + 1023) // 1024 * 1024
PSTR = 2176
WS_PART = 0
WS_FP = 256 * PSTR
WS_HB = WS_FP + 256 * 4608
WS_S2 = WS_HB + 4608 * 8
WS_Y2 = WS_S2 + 4 * 64 * 1152
WS_Q = WS_Y2 + 4 * 64 * 1152
WS_CNT = WS_Q + 16 * 8192
WS_BYTES = WS_CNT + 16 * 128
WS_STAMP = 4 << 20

sX, sK, sV, sWQ, sWO, sBX, sWG, sWU, sWD, sOUT, sDBG, sWS = [4 + 2 * i for i in range(12)]
rK, rV, rX, rWQ, rWG, rWU, rWO, rWD, rWS, rOUT, rDBG = [28 + 4 * i for i in range(11)]
sHP, sJ, sW, sWGI = 72, 73, 74, 75
sSelLo, sSelHi, sScale, sLog2e = 76, 77, 78, 79
sA0, sA1, sTmp, sTmp2, sOff, sCnt = 80, 81, 82, 83, 84, 85
sEx = 86
sNon = 88
sB = [89, 90, 91]
sStat, sLeft = 92, 93
sT64 = 94
sRQ, sCQ = 100, 101
OOB = 0x40000000

def srd(r): return f"s[{r}:{r+3}]"
def vr(b, n): return f"v[{b}:{b+n-1}]"

def bf16_round(a, dst, src):
    a(f"v_cvt_pk_bf16_f32 v{dst}, v{src}, v{src}")
    a(f"v_lshlrev_b32 v{dst}, 16, v{dst}")

def cross_rows(a, op, x, t):
    o = f"v_{op}_f32"
    for sw in ("v_permlane32_swap_b32", "v_permlane16_swap_b32"):
        a(f"v_mov_b32 v{t}, v{x}")
        a.nop(2)
        a(f"{sw} v{x}, v{t}")
        a.nop(1)
        a(f"{o} v{x}, v{x}, v{t}")

def wave_allreduce(a, op, x, t):
    o = f"v_{op}_f32"
    for ctrl in ("quad_perm:[1,0,3,2]", "quad_perm:[2,3,0,1]", "row_half_mirror", "row_mirror"):
        a.nop(2)
        a(f"{o}_dpp v{x}, v{x}, v{x} {ctrl} row_mask:0xf bank_mask:0xf")
    cross_rows(a, op, x, t)

def gen(opts):
    a = Asm()
    STAMP = opts.get("stamp", False)
    NS = opts.get("ns", 26)
    NPOOL = (32 - NS) * 64
    MAXPOLL = 0x10000
    WP = "" if opts.get("wdef") else " nt"
    WP2 = "" if (opts.get("wdef") or opts.get("w2def")) else " nt"
    stn = [0]
    names = []
    vL, vST, vNon, vZ = 1, 255, 254, 253
    vt = [2, 3, 4, 5, 6, 7, 8, 9, 10, 11]
    def stamp(name):
        if not STAMP: return
        a(f"s_memrealtime s[{sT64}:{sT64+1}]")
        a("s_waitcnt lgkmcnt(0)")
        a(f"v_writelane_b32 v{vST}, s{sT64}, {stn[0]}")
        names.append(name)
        stn[0] += 1
    def stamp_flush():
        if not STAMP: return
        a("s_mov_b64 exec, -1")
        a(f"s_lshl_b32 s{sTmp}, s2, 3")
        a(f"s_add_u32 s{sTmp}, s{sTmp}, s{sW}")
        a(f"s_lshl_b32 s{sTmp}, s{sTmp}, 8")
        a(f"v_lshlrev_b32 v{vt[8]}, 2, v{vL}")
        a(f"buffer_store_dword v{vST}, v{vt[8]}, s[96:99], s{sTmp} offen")
    opts["names"] = names

    def spin_lds(addr, target, tmpv, ge=True, sleep=1):
        l0, l1 = a.newlabel("sp"), a.newlabel("spx")
        a(f"s_mov_b32 s{sCnt}, {int(2.4e8 / (64 * sleep + 120))}")
        a.label(l0)
        a(f"ds_read_b32 v{tmpv}, v{vZ} offset:{addr}")
        a("s_waitcnt lgkmcnt(0)")
        a(f"v_readfirstlane_b32 s{sTmp}, v{tmpv}")
        a(f"s_cmp_ge_u32 s{sTmp}, {target}")
        a(f"s_cbranch_scc1 {l1}")
        a(f"s_sub_u32 s{sCnt}, s{sCnt}, 1")
        a(f"s_cmp_eq_u32 s{sCnt}, 0")
        a(f"s_cbranch_scc1 {l1}")
        a(f"s_sleep {sleep}")
        a(f"s_branch {l0}")
        a.label(l1)
    def lds_arrive(addr, tmpv, ret=False):
        a("s_waitcnt lgkmcnt(0)")
        a(f"v_mov_b32 v{tmpv}, 1")
        a("s_mov_b64 exec, 1")
        if ret:
            a(f"ds_add_rtn_u32 v{tmpv}, v{vZ}, v{tmpv} offset:{addr}")
            a("s_waitcnt lgkmcnt(0)")
            a(f"v_readfirstlane_b32 s{sTmp}, v{tmpv}")
        else:
            a(f"ds_add_u32 v{vZ}, v{tmpv} offset:{addr}")
        a("s_mov_b64 exec, -1")
    def retry_begin():
        l0, l1 = a.newlabel("rt"), a.newlabel("rtx")
        a(f"s_mov_b32 s{sCnt}, {MAXPOLL}")
        a.label(l0)
        return l0, l1
    def retry_end(ls, tagregs, t0, t1, sleep=2):
        l0, l1 = ls
        a("s_waitcnt vmcnt(0)")
        a(f"v_xor_b32 v{t0}, v{vNon}, v{tagregs[0]}")
        for r in tagregs[1:]:
            a(f"v_xor_b32 v{t1}, v{vNon}, v{r}")
            a(f"v_or_b32 v{t0}, v{t0}, v{t1}")
        a(f"v_cmp_ne_u32 vcc, 0, v{t0}")
        a(f"s_cbranch_vccz {l1}")
        a(f"s_sub_u32 s{sCnt}, s{sCnt}, 1")
        a(f"s_cmp_eq_u32 s{sCnt}, 0")
        a(f"s_cbranch_scc1 {l1}")
        a(f"s_sleep {sleep}")
        a(f"s_branch {l0}")
        a.label(l1)
    def silu(x):
        a(f"v_mul_f32 v{vt[2]}, s{sLog2e}, v{x}")
        a(f"v_exp_f32 v{vt[2]}, -v{vt[2]}")
        a.nop(1)
        a(f"v_add_f32 v{vt[2]}, 1.0, v{vt[2]}")
        a(f"v_rcp_f32 v{vt[3]}, v{vt[2]}")
        a.nop(1)
        a(f"v_mul_f32 v{vt[4]}, v{x}, v{vt[3]}")
        a(f"v_fma_f32 v{vt[5]}, -v{vt[4]}, v{vt[2]}, v{x}")
        a(f"v_fma_f32 v{x}, v{vt[5]}, v{vt[3]}, v{vt[4]}")
        a(f"v_cmp_eq_f32 vcc, 0x7f800000, v{vt[2]}")
        a.nop(2)
        a(f"v_cndmask_b32 v{x}, v{x}, v{vt[4]}, vcc")
        bf16_round(a, x, x)
    def combine(n, mreg, lreg, oreg, M, Lr, Or):
        a(f"v_max3_f32 v{M}, v{mreg[0]}, v{mreg[1]}, v{mreg[2]}")
        k = 3
        while k < n:
            if k + 1 < n:
                a(f"v_max3_f32 v{M}, v{M}, v{mreg[k]}, v{mreg[k+1]}"); k += 2
            else:
                a(f"v_max_f32 v{M}, v{M}, v{mreg[k]}"); k += 1
        for w in range(n):
            a(f"v_sub_f32 v{mreg[w]}, v{mreg[w]}, v{M}")
        for w in range(n):
            a(f"v_exp_f32 v{mreg[w]}, v{mreg[w]}")
        a.nop(1)
        a(f"v_mul_f32 v{Lr}, v{mreg[0]}, v{lreg[0]}")
        a(f"v_mul_f32 v{Or}, v{mreg[0]}, v{oreg[0]}")
        for w in range(1, n):
            a(f"v_fmac_f32 v{Lr}, v{mreg[w]}, v{lreg[w]}")
            a(f"v_fmac_f32 v{Or}, v{mreg[w]}, v{oreg[w]}")
    def mk(r, p, off_s=None, size=None):
        if off_s is None:
            a(f"s_mov_b32 s{r}, s{p}")
            a(f"s_and_b32 s{r+1}, s{p+1}, 0xffff")
        else:
            a(f"s_add_u32 s{r}, s{p}, s{off_s}")
            a(f"s_addc_u32 s{r+1}, s{p+1}, 0")
            a(f"s_and_b32 s{r+1}, s{r+1}, 0xffff")
        a(f"s_mov_b32 s{r+2}, {size}")
        a(f"s_mov_b32 s{r+3}, 0x20000")

    a.L.append(f"; @launch grid=(256,1,1) block=(512,1,1) lds={LDS_BYTES}")
    a.L.append('.amdgcn_target "amdgcn-amd-amdhsa--gfx950"')
    a.L.append(".text")
    a.L.append(f".globl {KNAME}")
    a.L.append(".p2align 8")
    a.L.append(f".type {KNAME},@function")
    a.label(KNAME)
    a("s_cmp_ge_u32 s2, 256")
    a("s_cbranch_scc1 L_exit")
    a("s_load_dwordx16 s[4:19], s[0:1], 0")
    a("s_load_dwordx8 s[20:27], s[0:1], 64")
    a(f"s_memrealtime s[{sT64}:{sT64+1}]")
    a(f"v_and_b32 v{vL}, 63, v0")
    a(f"v_lshrrev_b32 v{vt[0]}, 6, v0")
    a(f"s_lshr_b32 s{sHP}, s2, 4")
    a(f"s_and_b32 s{sJ}, s2, 15")
    a(f"v_readfirstlane_b32 s{sW}, v{vt[0]}")
    if opts.get("swap", 1):
        a.nop(1)
        a(f"s_xor_b32 s{sW}, s{sW}, 4")
    a(f"s_mov_b32 s{sWGI}, s2")
    a(f"s_lshr_b32 s{sRQ}, s{sJ}, 2")
    a(f"s_and_b32 s{sCQ}, s{sJ}, 3")
    a(f"s_mov_b32 s{sLog2e}, 0x{f32bits(1.4426950408889634):08x}")
    a(f"v_mov_b32 v{vZ}, 0")
    a(f"v_mov_b32 v{vST}, 0")
    a("s_waitcnt lgkmcnt(0)")
    a(f"s_or_b32 s{sNon}, s{sT64}, 1")
    mk(rWS, sWS, size=WS_BYTES)
    if STAMP:
        a(f"s_add_u32 s96, s{sWS}, {WS_STAMP}")
        a(f"s_addc_u32 s97, s{sWS+1}, 0")
        a(f"s_and_b32 s97, s97, 0xffff")
        a(f"s_mov_b32 s98, {2048*256}")
        a(f"s_mov_b32 s99, 0x20000")
    stamp("start")
    a(f"s_cmp_ge_u32 s{sW}, 4")
    a("s_cbranch_scc1 L_helper")

    vKoff, vVoff, vM, vLs, vMt = 12, 13, 14, 15, 16
    vC = [17, 18]
    vCo = 19
    vQ = 20
    vO = 36
    vD = 68
    vP = 76
    vT = 80
    KS = [88, 120]
    VS = [152, 184, 216]
    a.c("stream wave setup")
    a(f"s_mov_b32 s{sSelLo}, 0x05040100")
    a(f"s_mov_b32 s{sSelHi}, 0x07060302")
    a(f"s_mov_b32 s{sScale}, 0x{f32bits(128 ** -0.5):08x}")
    a(f"v_and_b32 v{vt[0]}, 3, v{vL}")
    a(f"v_lshlrev_b32 v{vt[0]}, 10, v{vt[0]}")
    a(f"v_bfe_u32 v{vt[1]}, v{vL}, 2, 2")
    a(f"v_lshlrev_b32 v{vt[1]}, 8, v{vt[1]}")
    a(f"v_lshrrev_b32 v{vt[2]}, 4, v{vL}")
    a(f"v_lshlrev_b32 v{vt[2]}, 4, v{vt[2]}")
    a(f"v_add3_u32 v{vKoff}, v{vt[0]}, v{vt[1]}, v{vt[2]}")
    a(f"v_lshlrev_b32 v{vVoff}, 4, v{vL}")
    a(f"s_lshl_b32 s{sTmp}, s{sHP}, 24")
    mk(rK, sK, sTmp, size=1 << 24)
    mk(rV, sV, sTmp, size=1 << 24)
    a(f"s_lshl_b32 s{sStat}, s{sJ}, 20")
    a(f"s_lshl_b32 s{sTmp}, s{sW}, 12")
    a(f"s_add_u32 s{sStat}, s{sStat}, s{sTmp}")
    sCl = [36, 37]
    sCA = 38
    a(f"s_lshl_b32 s{sTmp}, s{sHP}, 7")
    a(f"s_add_u32 s{sTmp}, s{sTmp}, {WS_CNT}")
    a(f"s_add_u32 s{sCA}, s{sWS}, s{sTmp}")
    a(f"s_addc_u32 s{sCA+1}, s{sWS+1}, 0")
    a(f"s_mov_b32 s{sCl[0]}, {1 if (NS >= 32 and opts.get('lq', 1)) else 0}")
    a(f"s_mov_b32 s{sCl[1]}, 0")
    a("s_mov_b32 s40, 40")
    def stream_body(sfx, KP, VP):
        def Kload(slot, t, i, sb):
            return f"buffer_load_dwordx4 {vr(slot+16*t+4*i,4)}, v{vKoff}, {srd(rK)}, s{sb} offen offset:{i*64}{KP}"
        def Vload(slot, t, r, sb):
            return f"buffer_load_dwordx4 {vr(slot+16*t+4*r,4)}, v{vVoff}, {srd(rV)}, s{sb} offen offset:{r*1024}{VP}"
        NOCL = 1
        for g in range(2):
            a(f"s_mov_b32 s{sB[g]}, s{sStat}")
            a(f"s_add_u32 s{sOff}, s{sStat}, 16384")
            for t in range(2):
                for i in range(4):
                    a(Kload(KS[g], t, i, sB[g] if t == 0 else sOff))
            if g == 0 and not opts.get("latebar"): a("s_barrier")
            for t in range(2):
                for r in range(4):
                    a(Vload(VS[g], t, r, sB[g] if t == 0 else sOff))
            if g == 0 and opts.get("latebar"): a("s_barrier")
            a(f"s_add_u32 s{sStat}, s{sStat}, 32768")
        a(f"s_mov_b32 s{sLeft}, {NS-2}")
        if opts.get("dry", 0):
            a.c("dry run of the loop body (I-cache warm-up), exec=0")
            a(f"s_mov_b32 s41, s{sStat}"); a(f"s_mov_b32 s42, s{sLeft}")
            a(f"s_mov_b32 s43, s{sB[0]}"); a(f"s_mov_b32 s44, s{sB[1]}")
            a("s_mov_b32 s45, 1")
            a("s_mov_b64 exec, 0")
            a(f"s_branch L_loop{sfx}")
            a.label(f"L_dryend{sfx}")
            a("s_mov_b64 exec, -1")
            a(f"s_mov_b32 s{sStat}, s41"); a(f"s_mov_b32 s{sLeft}, s42")
            a(f"s_mov_b32 s{sB[0]}, s43"); a(f"s_mov_b32 s{sB[1]}, s44")
            a("s_mov_b32 s45, 0")
        if not opts.get("noq"): spin_lds(F_NON, 1, vNon)
        a(f"v_and_b32 v{vt[0]}, 1, v{vL}")
        a(f"v_lshlrev_b32 v{vt[0]}, 8, v{vt[0]}")
        a(f"v_lshrrev_b32 v{vt[1]}, 4, v{vL}")
        a(f"v_lshl_add_u32 v{vt[0]}, v{vt[1]}, 4, v{vt[0]}")
        for i in range(4):
            a(f"ds_read_b128 {vr(vQ+4*i,4)}, v{vt[0]} offset:{QB + i*64}")
        a(f"v_mov_b32 v{vM}, 0xff800000")
        a(f"v_mov_b32 v{vMt}, 0xff800000")
        a(f"v_mov_b32 v{vLs}, 0")
        for i in range(32):
            a(f"v_mov_b32 v{vO+i}, 0")
        a("s_waitcnt lgkmcnt(0)")
        stamp("q_ready") if (sfx == "" or not STAMP) else (stn.__setitem__(0, stn[0]-1), names.pop(), stamp("q_ready"))
        d = [vD + i for i in range(8)]
        a.label(f"L_loop{sfx}")
        for u in range(6):
            a.c(f"==== unrolled group {u} ====")
            ks = KS[u % 2]
            vs = VS[u % 3]
            vsn = VS[(u + 2) % 3]
            b0, b2 = sB[u % 3], sB[(u + 2) % 3]
            cs = sCl[u % 2]
            a(f"s_cmp_ge_u32 s{b0}, {OOB}")
            a("s_cbranch_scc1 L_sdone")
            a(f"s_waitcnt vmcnt({28 if NOCL else 29})")
            for i in range(4):
                cin = "0" if i == 0 else vr(vD, 4)
                a(f"v_mfma_f32_16x16x32_bf16 {vr(vD,4)}, {vr(ks+4*i,4)}, {vr(vQ+4*i,4)}, {cin}")
            if opts.get("lq", 1):
                lk, lsp, ldn = a.newlabel("dyn"), a.newlabel("dsp"), a.newlabel("ddn")
                a(f"s_mov_b32 s{b2}, s{sStat}")
                a(f"s_cmp_gt_i32 s{sLeft}, 0")
                a(f"s_cbranch_scc1 {ldn}")
                a(f"s_mov_b32 s{b2}, {OOB}")
                a(f"s_cmp_lg_u32 s{sCl[0]}, 0")
                a(f"s_cbranch_scc1 {ldn}")
                a(f"v_mov_b32 v{vC[0]}, 1")
                a("s_mov_b64 exec, 1")
                a(f"ds_add_rtn_u32 v{vC[0]}, v{vZ}, v{vC[0]} offset:{F_TK}")
                a("s_waitcnt lgkmcnt(0)")
                if opts.get("rb"):
                    NTb = (4 * (32 - NS))
                    assert NTb & (NTb - 1) == 0
                    a(f"v_readfirstlane_b32 s{sTmp}, v{vC[0]}")
                    a(f"s_mov_b32 s{sCnt}, 0x200000")
                    a.label(lsp)
                    a(f"ds_read_b64 v[18:19], v{vZ} offset:{F_C}")
                    a("s_waitcnt lgkmcnt(0)")
                    a(f"v_readfirstlane_b32 s{sA1}, v19")
                    a(f"v_readfirstlane_b32 s{sA0}, v18")
                    a(f"s_sub_u32 s{sCnt}, s{sCnt}, 1")
                    a(f"s_cmp_eq_u32 s{sCnt}, 0")
                    a(f"s_cselect_b32 s{sA1}, 1, s{sA1}")
                    a(f"s_cmp_eq_u32 s{sA1}, 0")
                    a(f"s_cbranch_scc1 {lsp}")
                    a(f"s_sub_u32 s{sA1}, s{sA1}, 1")
                    a(f"s_add_u32 s{sTmp}, s{sTmp}, s{sA0}")
                    a(f"s_cmp_ge_u32 s{sTmp}, s{sA1}")
                    a(f"s_cbranch_scc1 {lk}")
                    a(f"s_lshr_b32 s{sA0}, s{sTmp}, {NTb.bit_length()-1}")
                    a(f"s_lshl_b32 s{sA0}, s{sA0}, 20")
                    a(f"s_and_b32 s{sA1}, s{sTmp}, {NTb-1}")
                    a(f"s_and_b32 s{sOff}, s{sA1}, 3")
                    a(f"s_lshr_b32 s{sA1}, s{sA1}, 2")
                    a(f"s_lshl_b32 s{sA1}, s{sA1}, 3")
                    a(f"s_add_u32 s{sA1}, s{sA1}, s{sOff}")
                    a(f"s_add_u32 s{sA1}, s{sA1}, {NS*8}")
                    a(f"s_lshl_b32 s{sA1}, s{sA1}, 12")
                    a(f"s_add_u32 s{b2}, s{sA0}, s{sA1}")
                else:
                    a(f"v_lshlrev_b32 v{vC[0]}, 2, v{vC[0]}")
                    a(f"s_mov_b32 s{sCnt}, 0x200000")
                    a.label(lsp)
                    a(f"ds_read_b32 v{vC[1]}, v{vC[0]} offset:{QQ}")
                    a("s_waitcnt lgkmcnt(0)")
                    a(f"v_readfirstlane_b32 s{b2}, v{vC[1]}")
                    a(f"s_cmp_lg_u32 s{b2}, -1")
                    a(f"s_cbranch_scc1 {lk}")
                    a(f"s_sub_u32 s{sCnt}, s{sCnt}, 1")
                    a(f"s_cmp_lg_u32 s{sCnt}, 0")
                    a(f"s_cbranch_scc1 {lsp}")
                    a(f"s_mov_b32 s{b2}, {OOB}")
                a.label(lk)
                a("s_mov_b64 exec, -1")
                a(f"s_cmp_ge_u32 s{b2}, {OOB}")
                a(f"s_cselect_b32 s{sCl[0]}, 1, 0")
                a.label(ldn)
                a(f"s_add_u32 s{sStat}, s{sStat}, 32768")
                a(f"s_sub_u32 s{sLeft}, s{sLeft}, 1")
                a(f"s_add_u32 s{sOff}, s{b2}, 16384")
            else:
                a("s_waitcnt lgkmcnt(0)")
                a(f"s_mov_b32 s{sTmp}, s{cs}")
                NT = max(4 * (32 - NS), 1)
                assert NT & (NT - 1) == 0
                if opts.get("porder", 1) == 1:
                    a(f"s_lshr_b32 s{sA0}, s{sTmp}, {NT.bit_length()-1}")
                    a(f"s_lshl_b32 s{sA0}, s{sA0}, 20")
                    a(f"s_and_b32 s{sA1}, s{sTmp}, {NT-1}")
                else:
                    a(f"s_and_b32 s{sA0}, s{sTmp}, 15")
                    a(f"s_lshl_b32 s{sA0}, s{sA0}, 20")
                    a(f"s_lshr_b32 s{sA1}, s{sTmp}, 4")
                a(f"s_and_b32 s{sOff}, s{sA1}, 3")
                a(f"s_lshr_b32 s{sA1}, s{sA1}, 2")
                a(f"s_lshl_b32 s{sA1}, s{sA1}, 3")
                a(f"s_add_u32 s{sA1}, s{sA1}, s{sOff}")
                a(f"s_add_u32 s{sA1}, s{sA1}, {NS*8}")
                a(f"s_lshl_b32 s{sA1}, s{sA1}, 12")
                a(f"s_add_u32 s{sA0}, s{sA0}, s{sA1}")
                a(f"s_cmp_lt_u32 s{sTmp}, {NPOOL}")
                a(f"s_cselect_b32 s{sA0}, s{sA0}, {OOB}")
                a(f"s_cmp_gt_i32 s{sLeft}, 0")
                a(f"s_cselect_b32 s{b2}, s{sStat}, s{sA0}")
                a(f"s_add_u32 s{sStat}, s{sStat}, 32768")
                a(f"s_sub_u32 s{sLeft}, s{sLeft}, 1")
                a(f"s_add_u32 s{sOff}, s{b2}, 16384")
                lk = a.newlabel("ncl")
                a(f"s_cmp_lt_i32 s{sLeft}, 2")
                a(f"s_cbranch_scc0 {lk}")
                a(f"s_mov_b32 s{cs}, 1")
                a(f"s_atomic_add s{cs}, s[{sCA}:{sCA+1}], 0x0 glc")
                a.label(lk)
            a(f"s_waitcnt vmcnt({24 if NOCL else 25})")
            for i in range(4):
                cin = "0" if i == 0 else vr(vD + 4, 4)
                a(f"v_mfma_f32_16x16x32_bf16 {vr(vD+4,4)}, {vr(ks+16+4*i,4)}, {vr(vQ+4*i,4)}, {cin}")
            a.nop(4)
            S = []
            tt = vt
            for k in range(4):
                S.append(f"v_cvt_pk_bf16_f32 v{tt[k]}, v{d[2*k]}, v{d[2*k+1]}")
            for k in range(4):
                S.append(f"v_lshlrev_b32 v{d[2*k]}, 16, v{tt[k]}")
                S.append(f"v_and_b32 v{d[2*k+1]}, 0xffff0000, v{tt[k]}")
            for k in range(8):
                S.append(f"v_mul_f32 v{d[k]}, s{sScale}, v{d[k]}")
            for k in range(4):
                S.append(f"v_cvt_pk_bf16_f32 v{tt[k]}, v{d[2*k]}, v{d[2*k+1]}")
            for k in range(4):
                S.append(f"v_lshlrev_b32 v{d[2*k]}, 16, v{tt[k]}")
                S.append(f"v_and_b32 v{d[2*k+1]}, 0xffff0000, v{tt[k]}")
            mx = tt[4]
            S.append(f"v_max3_f32 v{mx}, v{d[0]}, v{d[1]}, v{d[2]}")
            S.append(f"v_max3_f32 v{mx}, v{mx}, v{d[3]}, v{d[4]}")
            S.append(f"v_max3_f32 v{mx}, v{mx}, v{d[5]}, v{d[6]}")
            S.append(f"v_max3_f32 v{mx}, v{mx}, v{d[7]}, v{vM}")
            for sw in ("v_permlane32_swap_b32", "v_permlane16_swap_b32"):
                S.append(f"v_mov_b32 v{tt[5]}, v{mx}")
                S.append("s_nop 1")
                S.append(f"{sw} v{mx}, v{tt[5]}")
                S.append("s_nop 0")
                S.append(f"v_max_f32 v{mx}, v{mx}, v{tt[5]}")
            S.append(f"v_mul_f32 v{tt[5]}, s{sLog2e}, v{mx}")
            al = tt[6]
            S.append(f"v_sub_f32 v{al}, v{vMt}, v{tt[5]}")
            S.append(f"v_exp_f32 v{al}, v{al}")
            S.append(f"v_mov_b32 v{vM}, v{mx}")
            S.append(f"v_mov_b32 v{vMt}, v{tt[5]}")
            for k in range(8):
                S.append(f"v_fma_f32 v{d[k]}, v{d[k]}, s{sLog2e}, -v{vMt}")
            for k in range(8):
                S.append(f"v_exp_f32 v{d[k]}, v{d[k]}")
            S.append(f"v_readlane_b32 s{sA0}, v{al}, 0")
            S.append(f"v_readlane_b32 s{sA1}, v{al}, 1")
            S.append(f"v_mul_f32 v{vLs}, v{vLs}, v{al}")
            for k in range(4):
                S.append(f"v_cvt_pk_bf16_f32 v{vP+k}, v{d[2*k]}, v{d[2*k+1]}")
            for k in range(8):
                S.append(f"v_add_f32 v{vLs}, v{vLs}, v{d[k]}")
            for i in range(8):
                S.append(f"v_mul_f32 v{vO+4*i}, s{sA0}, v{vO+4*i}")
                S.append(f"v_mul_f32 v{vO+4*i+1}, s{sA1}, v{vO+4*i+1}")
            KL = [Kload(ks, t, i, b2 if t == 0 else sOff) for t in range(2) for i in range(4)]
            a(KL[0]); a(KL[1])
            a.nop(3)
            if opts.get("nosm"): S = S[:8]
            step = max(1, len(S) // 7)
            if opts.get("burst"): step = 1
            kq = 2
            for n, ins in enumerate(S):
                a(ins)
                if (n + 1) % step == 0 and kq < 8:
                    a(KL[kq]); kq += 1
            while kq < 8:
                a(KL[kq]); kq += 1
            a(f"s_waitcnt vmcnt({24 if NOCL else 26})")
            VL = [Vload(vsn, t, r, b2 if t == 0 else sOff) for t in range(2) for r in range(4)]
            def perms(i):
                dd, b = i >> 1, i & 1
                sel = sSelHi if b else sSelLo
                for p in range(4):
                    lo = vs + 4 * (2 * p) + dd
                    hi = vs + 4 * (2 * p + 1) + dd
                    a(f"v_perm_b32 v{vT + 4*(i%2) + p}, v{hi}, v{lo}, s{sel}")
            if not opts.get("nopv"): perms(0)
            for i in range(8):
                if opts.get("nopv"):
                    a(VL[i]); continue
                if i + 1 < 8:
                    perms(i + 1)
                else:
                    a.nop(2)
                a(f"v_mfma_f32_16x16x32_bf16 {vr(vO+4*i,4)}, {vr(vP,4)}, {vr(vT+4*(i%2),4)}, {vr(vO+4*i,4)}")
                a(VL[i])
        if opts.get("dry", 0):
            a("s_cmp_lg_u32 s45, 0")
            a(f"s_cbranch_scc1 L_dryend{sfx}")
        a(f"v_mov_b32 v{vt[9]}, 1")
        a("s_mov_b64 exec, 1")
        if opts.get("rb"):
            lt = a.newlabel("nt")
            a(f"ds_add_rtn_u32 v{vt[9]}, v{vZ}, v{vt[9]} offset:{F_PROG}")
            a(f"s_memrealtime s[{sT64}:{sT64+1}]")
            a("s_waitcnt lgkmcnt(0)")
            a(f"v_readfirstlane_b32 s{sTmp}, v{vt[9]}")
            a(f"s_cmp_lg_u32 s{sTmp}, {opts.get('p1', 12) - 1}")
            a(f"s_cbranch_scc1 {lt}")
            a(f"s_or_b32 s{sTmp}, s{sT64}, 1")
            a(f"v_mov_b32 v{vt[9]}, s{sTmp}")
            a(f"ds_write_b32 v{vZ}, v{vt[9]} offset:{F_T}")
            a.label(lt)
        else:
            a(f"ds_add_u32 v{vZ}, v{vt[9]} offset:{F_PROG}")
        a("s_mov_b64 exec, -1")
        if STAMP:
            a(f"s_memrealtime s[{sT64}:{sT64+1}]")
            a("s_waitcnt lgkmcnt(0)")
            a("s_mov_b32 m0, s40")
            a(f"v_writelane_b32 v{vST}, s{sT64}, m0")
            a("s_add_u32 s40, s40, 1")
        a(f"s_branch L_loop{sfx}")

    VH0 = opts.get("vh0", 16)
    KH0 = opts.get("kh0", 16)
    if VH0 < 16:
        a(f"s_cmp_ge_u32 s{sHP}, {VH0}")
        a("s_cbranch_scc1 L_streamB")
    stream_body("", " nt", " nt")
    if VH0 < 16:
        a.label("L_streamB")
        if KH0 < 16:
            a(f"s_cmp_ge_u32 s{sHP}, {KH0}")
            a("s_cbranch_scc1 L_streamC")
        stream_body("B", " nt", "")
        if KH0 < 16:
            a.label("L_streamC")
            stream_body("C", "", "")
    a.label("L_sdone")
    stamp("s_done")
    a.c("stream wave: write partial to LDS")
    cross_rows(a, "add", vLs, vt[0])
    a.nop(8)
    a(f"s_mul_i32 s{sTmp}, s{sW}, {CSTR}")
    a(f"v_lshlrev_b32 v{vt[0]}, 5, v{vL}")
    a(f"v_add_u32 v{vt[0]}, s{sTmp}, v{vt[0]}")
    a(f"v_add_u32 v{vt[0]}, {COMB}, v{vt[0]}")
    a(f"v_lshlrev_b32 v{vt[1]}, 2, v{vL}")
    a(f"v_add_u32 v{vt[1]}, s{sTmp}, v{vt[1]}")
    a("s_mov_b64 exec, 0xffff")
    for h in range(2):
        for i in range(0, 8, 2):
            a(f"ds_write2_b32 v{vt[0]}, v{vO+4*i+h}, v{vO+4*(i+1)+h} offset0:{h*128+i} offset1:{h*128+i+1}")
    a("s_mov_b64 exec, 3")
    a(f"ds_write_b32 v{vt[1]}, v{vMt} offset:{COMB+1024}")
    a(f"ds_write_b32 v{vt[1]}, v{vLs} offset:{COMB+1032}")
    a("s_mov_b64 exec, -1")
    lds_arrive(F_SCNT, vt[2])
    a("s_branch L_end")

    a.label("L_helper")
    a.c("helper setup")
    a("s_setprio 3")
    sHW = sB[0]
    a(f"s_sub_u32 s{sHW}, s{sW}, 4")
    a(f"s_cmp_lg_u32 s{sW}, 7")
    a("s_cbranch_scc1 L_nz")
    a(f"v_lshlrev_b32 v{vt[0]}, 2, v{vL}")
    a("s_mov_b64 exec, 0xffff")
    a(f"ds_write_b32 v{vt[0]}, v{vZ} offset:{FL}")
    a("s_mov_b64 exec, -1")
    a(f"v_lshlrev_b32 v{vt[0]}, 4, v{vL}")
    for e in range(4):
        a(f"v_mov_b32 v{16+e}, -1")
    for k in range(4):
        a(f"ds_write_b128 v{vt[0]}, v[16:19] offset:{QQ + k*1024}")
    a("s_waitcnt lgkmcnt(0)")
    a.label("L_nz")
    mk(rX, sX, size=1152)
    mk(rWQ, sWQ, size=576 * 8192)
    mk(rDBG, sDBG, size=256)
    hX = 16
    hW = 28
    hF = 48
    hA = 60
    hR = 76
    if opts.get("h0"):
        a("s_barrier"); a("s_branch L_end")
    a(f"s_cmp_eq_u32 s{sW}, 7")
    a("s_cbranch_scc1 L_w7start")
    a(f"v_lshlrev_b32 v{vt[3]}, 2, v{vL}")
    for j in range(5):
        a(f"buffer_load_dword v{hX+j}, v{vt[3]}, {srd(rX)}, 0 offen offset:{j*256}")
    a(f"v_lshrrev_b32 v{vt[0]}, 3, v{vL}")
    a(f"s_mul_i32 s{sTmp}, s{sRQ}, 144")
    a(f"s_mul_i32 s{sTmp2}, s{sHW}, 48")
    a(f"s_add_u32 s{sTmp}, s{sTmp}, s{sTmp2}")
    a(f"v_add_u32 v{vt[1]}, s{sTmp}, v{vt[0]}")
    a(f"v_lshlrev_b32 v{vt[5]}, 2, v{vt[1]}")
    a(f"v_lshlrev_b32 v{vt[4]}, 13, v{vt[1]}")
    a(f"v_and_b32 v{vt[1]}, 7, v{vL}")
    a(f"v_lshl_add_u32 v{vt[4]}, v{vt[1]}, 4, v{vt[4]}")
    a(f"s_lshl_b32 s{sTmp}, s{sHP}, 9")
    a(f"s_lshl_b32 s{sTmp2}, s{sCQ}, 7")
    a(f"s_add_u32 s{sTmp}, s{sTmp}, s{sTmp2}")
    a(f"v_add_u32 v{vt[4]}, s{sTmp}, v{vt[4]}")
    if opts.get("fake") == 2:
        a(f"s_mul_i32 s{sTmp}, s{sWGI}, 18432")
        a(f"s_mul_i32 s{sTmp2}, s{sHW}, 6144")
        a(f"s_add_u32 s{sTmp}, s{sTmp}, s{sTmp2}")
        a(f"v_lshlrev_b32 v{vt[4]}, 4, v{vL}")
        a(f"v_add_u32 v{vt[4]}, s{sTmp}, v{vt[4]}")
    for i in range(6):
        a(f"s_mov_b32 s{sOff}, {i*1024 if opts.get('fake') == 2 else i*8*8192}")
        a(f"buffer_load_dwordx4 {vr(hR+4*i,4)}, v{vt[4]}, {srd(rWQ)}, s{sOff} offen{WP}")
    a("s_branch L_nononce")
    a.label("L_w7start")
    a(f"s_mov_b32 s{sB[1]}, s{sNon}")
    a(f"s_mov_b32 s{sB[2]}, 0")
    a(f"s_atomic_cmpswap s[{sB[1]}:{sB[2]}], s[{sDBG}:{sDBG+1}], 0x0 glc")
    a("s_mov_b64 exec, 1")
    a(f"s_lshl_b32 s{sTmp}, s{sHP}, 7")
    a(f"s_lshl_b32 s{sTmp2}, s{sJ}, 2")
    a(f"s_add_u32 s{sTmp}, s{sTmp}, s{sTmp2}")
    a(f"s_add_u32 s{sTmp}, s{sTmp}, {WS_CNT}")
    a(f"buffer_store_dword v{vZ}, v{vZ}, {srd(rWS)}, s{sTmp} offen sc1")
    a("s_mov_b64 exec, -1")
    a.label("L_nononce")
    a("s_barrier")
    if opts.get("nohelp"): a("s_branch L_end")
    mk(rWG, sWG, size=576 * 9216)
    mk(rWU, sWU, size=576 * 9216)
    mk(rWO, sWO, size=4096 * 1152)
    mk(rWD, sWD, size=4608 * 1152)
    mk(rOUT, sOUT, size=1152)
    a(f"s_cmp_eq_u32 s{sW}, 7")
    a("s_cbranch_scc1 L_w7x")
    a.c("layernorm")
    a("s_waitcnt vmcnt(6)")
    stamp("x_arrived")
    xf = [hF + i for i in range(10)]
    for j in range(5):
        a(f"v_lshlrev_b32 v{xf[2*j]}, 16, v{hX+j}")
        a(f"v_and_b32 v{xf[2*j+1]}, 0xffff0000, v{hX+j}")
    s_ = vt[0]
    a(f"v_add_f32 v{s_}, v{xf[0]}, v{xf[1]}")
    for i in range(2, 10):
        a(f"v_add_f32 v{s_}, v{s_}, v{xf[i]}")
    wave_allreduce(a, "add", s_, vt[1])
    a(f"v_mul_f32 v{s_}, 0x{f32bits(1.0/576):08x}, v{s_}")
    a(f"v_cmp_gt_u32 vcc, 32, v{vL}")
    q_ = vt[2]
    a(f"v_mov_b32 v{q_}, 0")
    for i in range(10):
        a(f"v_sub_f32 v{vt[1]}, v{xf[i]}, v{s_}")
        if i >= 8:
            a(f"v_cndmask_b32 v{vt[1]}, 0, v{vt[1]}, vcc")
        a(f"v_fmac_f32 v{q_}, v{vt[1]}, v{vt[1]}")
    wave_allreduce(a, "add", q_, vt[1])
    a(f"v_mul_f32 v{q_}, 0x{f32bits(1.0/576):08x}, v{q_}")
    bf16_round(a, s_, s_)
    bf16_round(a, q_, q_)
    a(f"v_add_f32 v{q_}, 0x{f32bits(1e-5):08x}, v{q_}")
    bf16_round(a, q_, q_)
    a(f"v_sqrt_f32 v{q_}, v{q_}")
    a.nop(1)
    bf16_round(a, q_, q_)
    rc = vt[1]
    a(f"v_rcp_f32 v{rc}, v{q_}")
    a.nop(1)
    for i in range(10):
        dd = xf[i]
        a(f"v_sub_f32 v{dd}, v{dd}, v{s_}")
        bf16_round(a, dd, dd)
        a(f"v_mul_f32 v{vt[6]}, v{dd}, v{rc}")
        a(f"v_fma_f32 v{vt[7]}, -v{vt[6]}, v{q_}, v{dd}")
        a(f"v_fma_f32 v{dd}, v{vt[7]}, v{rc}, v{vt[6]}")
        bf16_round(a, dd, dd)
        if i >= 8:
            a(f"v_cndmask_b32 v{dd}, 0, v{dd}, vcc")
    a(f"v_lshlrev_b32 v{vt[0]}, 3, v{vL}")
    for j in range(5):
        a(f"ds_write_b64 v{vt[0]}, {vr(xf[2*j],2)} offset:{XN + j*512}")
    a.c("q slice")
    for i in range(6):
        a(f"ds_read_b32 v{hX+i}, v{vt[5]} offset:{XN + i*32}")
    acc = [hA + i for i in range(8)]
    a("s_waitcnt vmcnt(0) lgkmcnt(0)")
    for i in range(6):
        for dd in range(4):
            r = hR + 4 * i + dd
            a(f"v_lshlrev_b32 v{vt[0]}, 16, v{r}")
            a(f"v_and_b32 v{vt[1]}, 0xffff0000, v{r}")
            if i == 0:
                a(f"v_mul_f32 v{acc[2*dd]}, v{vt[0]}, v{hX+i}")
                a(f"v_mul_f32 v{acc[2*dd+1]}, v{vt[1]}, v{hX+i}")
            else:
                a(f"v_fmac_f32 v{acc[2*dd]}, v{vt[0]}, v{hX+i}")
                a(f"v_fmac_f32 v{acc[2*dd+1]}, v{vt[1]}, v{hX+i}")
    a.nop(2)
    for ctrl in ("row_ror:8",):
        for e in range(8):
            a(f"v_add_f32_dpp v{acc[e]}, v{acc[e]}, v{acc[e]} {ctrl} row_mask:0xf bank_mask:0xf")
    tq = [hW + i for i in range(8)]
    for sw in ("v_permlane32_swap_b32", "v_permlane16_swap_b32"):
        for e in range(8):
            a(f"v_mov_b32 v{tq[e]}, v{acc[e]}")
        for e in range(8):
            a(f"{sw} v{acc[e]}, v{tq[e]}")
        for e in range(8):
            a(f"v_add_f32 v{acc[e]}, v{acc[e]}, v{tq[e]}")
    a(f"s_lshl_b32 s{sTmp}, s{sHW}, 8")
    a(f"v_lshlrev_b32 v{vt[0]}, 5, v{vL}")
    a(f"v_add_u32 v{vt[0]}, s{sTmp}, v{vt[0]}")
    a("s_mov_b64 exec, 0xff")
    a(f"ds_write_b128 v{vt[0]}, {vr(acc[0],4)} offset:{QP}")
    a(f"ds_write_b128 v{vt[0]}, {vr(acc[4],4)} offset:{QP+16}")
    a("s_mov_b64 exec, -1")
    lds_arrive(F_QCNT, vt[2])
    stamp("qpart_done")
    a("s_branch L_xskip")
    a.label("L_w7x")
    a.c("q exchange (wave 7)")
    spin_lds(F_QCNT, 3, vt[2], sleep=0)
    a(f"v_lshlrev_b32 v{vt[0]}, 2, v{vL}")
    for w in range(3):
        a(f"ds_read_b32 v{hW+w}, v{vt[0]} offset:{QP + w*256}")
    a("s_waitcnt vmcnt(0) lgkmcnt(0)")
    a(f"s_cmp_eq_u32 s{sB[1]}, 0")
    a(f"s_cselect_b32 s{sNon}, s{sNon}, s{sB[1]}")
    for w in range(1, 3):
        a(f"v_add_f32 v{hW}, v{hW}, v{hW+w}")
    a(f"v_mov_b32 v{hW+1}, s{sNon}")
    a(f"v_mov_b32 v{vNon}, s{sNon}")
    a(f"s_lshl_b32 s{sOff}, s{sHP}, 13")
    a(f"s_add_u32 s{sOff}, s{sOff}, {WS_Q}")
    a(f"s_lshl_b32 s{sTmp}, s{sRQ}, 11")
    a(f"s_lshl_b32 s{sTmp2}, s{sCQ}, 9")
    a(f"s_add_u32 s{sTmp}, s{sTmp}, s{sTmp2}")
    a(f"s_add_u32 s{sTmp}, s{sTmp}, s{sOff}")
    a(f"v_lshlrev_b32 v{vt[0]}, 3, v{vL}")
    a(f"buffer_store_dwordx2 {vr(hW,2)}, v{vt[0]}, {srd(rWS)}, s{sTmp} offen sc1")
    stamp("x_pub")
    a(f"v_lshlrev_b32 v{vt[0]}, 4, v{vL}")
    a(f"s_add_u32 s{sTmp2}, s{sOff}, 4096")
    if opts.get("pdelay", 8): a(f"s_sleep {opts.get('pdelay', 8)}")
    if opts.get("qpre", 1):
        a(f"v_lshlrev_b32 v{vt[3]}, 9, v{vL}")
        a("s_mov_b64 exec, 0xffff")
        ls = retry_begin()
        a(f"buffer_load_dwordx2 {vr(hR,2)}, v{vt[3]}, {srd(rWS)}, s{sOff} offen sc1")
        retry_end(ls, [hR + 1], vt[1], vt[2], sleep=2)
        a("s_mov_b64 exec, -1")
    ls = retry_begin()
    for k in range(8):
        a(f"buffer_load_dwordx4 {vr(hR+4*k,4)}, v{vt[0]}, {srd(rWS)}, s{sOff if k < 4 else sTmp2} offen offset:{(k%4)*1024} sc1")
    retry_end(ls, [hR + 4 * k + e for k in range(8) for e in (1, 3)], vt[1], vt[2], sleep=2)
    stamp("x_ok")
    for half in range(2):
        for e in (0, 2):
            for r4 in range(1, 4):
                a(f"v_add_f32 v{hR+4*half+e}, v{hR+4*half+e}, v{hR+4*(2*r4+half)+e}")
        a(f"v_cvt_pk_bf16_f32 v{hR+4*half}, v{hR+4*half}, v{hR+4*half+2}")
    a(f"v_lshlrev_b32 v{vt[0]}, 2, v{vL}")
    a(f"ds_write_b32 v{vt[0]}, v{hR} offset:{QB}")
    a(f"ds_write_b32 v{vt[0]}, v{hR+4} offset:{QB+256}")
    a("s_waitcnt lgkmcnt(0)")
    a(f"ds_write_b32 v{vZ}, v{vNon} offset:{F_NON}")
    a.label("L_xskip")
    sHPw, sJw, sRho = sSelLo, sSelHi, sScale
    a(f"s_mov_b32 s{sHPw}, s{sHP}")
    a(f"s_mov_b32 s{sJw}, s{sJ}")
    if opts.get("rho", 1):
        a(f"s_and_b32 s{sRho}, s2, 7")
        a(f"s_lshl_b32 s{sRho}, s{sRho}, 5")
        a(f"s_lshr_b32 s{sTmp}, s2, 3")
        a(f"s_or_b32 s{sRho}, s{sRho}, s{sTmp}")
    else:
        a(f"s_mov_b32 s{sRho}, s2")
    a(f"s_lshr_b32 s{sHP}, s{sRho}, 4")
    a(f"s_and_b32 s{sJ}, s{sRho}, 15")
    a(f"s_lshr_b32 s{sRQ}, s{sJ}, 2")
    a(f"s_and_b32 s{sCQ}, s{sJ}, 3")
    if opts.get("hstop") == 1: a("s_branch L_end")
    if opts.get("ffnwait") == 1:
        spin_lds(F_NON, 1, vNon)
    a.c("ffn phase 1: colblock hp*4+rq (72 cols), rows 144cq+36hw+rr+7i ; lane (rr=l/9, jj=l%9)")
    vFr, vFo, vFo2 = hW, hW + 1, hW + 2
    a(f"v_mul_u32_u24 v{vt[0]}, 57, v{vL}")
    a(f"v_lshrrev_b32 v{vt[0]}, 9, v{vt[0]}")
    a(f"v_mul_u32_u24 v{vt[1]}, 9, v{vt[0]}")
    a(f"v_sub_u32 v{vt[1]}, v{vL}, v{vt[1]}")
    a(f"s_mul_i32 s{sTmp}, s{sCQ}, 144")
    a(f"s_mul_i32 s{sTmp2}, s{sHW}, 36")
    a(f"s_add_u32 s{sTmp}, s{sTmp}, s{sTmp2}")
    a(f"v_add_u32 v{vFr}, s{sTmp}, v{vt[0]}")
    a(f"s_mov_b32 s{sTmp}, 9216")
    a(f"v_mul_lo_u32 v{vFo}, v{vFr}, s{sTmp}")
    a(f"v_lshl_add_u32 v{vFo}, v{vt[1]}, 4, v{vFo}")
    a(f"s_lshl_b32 s{sTmp}, s{sHP}, 2")
    a(f"s_add_u32 s{sTmp}, s{sTmp}, s{sRQ}")
    a(f"s_mul_i32 s{sTmp}, s{sTmp}, 144")
    a(f"v_add_u32 v{vFo}, s{sTmp}, v{vFo}")
    a(f"v_mov_b32 v{vt[1]}, 0x7f000000")
    a(f"v_cmp_gt_u32 vcc, 63, v{vL}")
    a.nop(2)
    a(f"v_cndmask_b32 v{vFo}, v{vt[1]}, v{vFo}, vcc")
    a(f"v_cmp_gt_u32 vcc, 9, v{vL}")
    a.nop(2)
    a(f"v_cndmask_b32 v{vFo2}, v{vt[1]}, v{vFo}, vcc")
    for i in range(6):
        a(f"s_mov_b32 s{sOff}, {i*7*9216}")
        a(f"buffer_load_dwordx4 {vr(hR+8*i,4)}, v{vFo if i < 5 else vFo2}, {srd(rWG)}, s{sOff} offen{WP2}")
        a(f"buffer_load_dwordx4 {vr(hR+8*i+4,4)}, v{vFo if i < 5 else vFo2}, {srd(rWU)}, s{sOff} offen{WP2}")
    if opts.get("hstop") == 2:
        a("s_waitcnt vmcnt(0)"); a("s_branch L_end")
    hW2 = 148
    vR3, vC18, vW2o = 12, 13, 14
    a(f"v_mul_u32_u24 v{vR3}, 57, v{vL}")
    a(f"v_lshrrev_b32 v{vR3}, 10, v{vR3}")
    a(f"v_mul_u32_u24 v{vC18}, 18, v{vR3}")
    a(f"v_sub_u32 v{vC18}, v{vL}, v{vC18}")
    a(f"s_mul_i32 s{sTmp}, s{sHW}, 3")
    a(f"v_add_u32 v{vR3}, s{sTmp}, v{vR3}")
    a(f"s_mov_b32 s{sTmp}, 1152")
    a(f"v_mul_lo_u32 v{vW2o}, v{vR3}, s{sTmp}")
    a(f"v_lshl_add_u32 v{vW2o}, v{vC18}, 4, v{vW2o}")
    a(f"s_mul_i32 s{sTmp}, s{sCQ}, 288")
    a(f"v_add_u32 v{vW2o}, s{sTmp}, v{vW2o}")
    a(f"s_lshl_b32 s{sTmp}, s{sHP}, 2")
    a(f"s_add_u32 s{sTmp}, s{sTmp}, s{sRQ}")
    a(f"s_mul_i32 s{sOff}, s{sTmp}, {64*1152}")
    a(f"s_mul_i32 s{sA1}, s{sTmp}, {72*1152}")
    def wo_loads():
        a(f"s_lshl_b32 s{sTmp}, s{sHP}, 2")
        a(f"s_add_u32 s{sTmp}, s{sTmp}, s{sRQ}")
        a(f"s_mul_i32 s{sOff}, s{sTmp}, {64*1152}")
        for i in range(6):
            a(f"v_add_u32 v{vt[1]}, {12*i}, v{vR3}")
            a(f"v_cmp_gt_u32 vcc, 64, v{vt[1]}")
            a(f"s_mov_b32 s{sEx}, -1")
            a(f"s_mov_b32 s{sEx+1}, 0x3fffff")
            a(f"s_and_b64 vcc, vcc, s[{sEx}:{sEx+1}]")
            for e in range(4):
                a(f"v_mov_b32 v{hW2+4*i+e}, 0")
            a("s_mov_b64 exec, vcc")
            lk = a.newlabel("w2s")
            a(f"s_cbranch_execz {lk}")
            a(f"buffer_load_dwordx4 {vr(hW2+4*i,4)}, v{vW2o}, {srd(rWO)}, s{sOff} offen{WP2}")
            a.label(lk)
            a("s_mov_b64 exec, -1")
            a(f"s_add_u32 s{sOff}, s{sOff}, {12*1152}")
    if not opts.get("wolate", 1): wo_loads()
    if not opts.get("wdlate", 1):
        for i in range(6):
            for e in range(4):
                a(f"v_mov_b32 v{hW2+24+4*i+e}, 0")
        a("s_mov_b32 exec_hi, 0x3fffff")
        if opts.get("fake"):
            a(f"s_mul_i32 s{sA1}, s{sWGI}, 20736")
            a(f"s_mul_i32 s{sTmp2}, s{sHW}, {6*864}")
            a(f"s_add_u32 s{sA1}, s{sA1}, s{sTmp2}")
        for i in range(6):
            a(f"buffer_load_dwordx4 {vr(hW2+24+4*i,4)}, v{vt[0] if opts.get('fake') else vW2o}, {srd(rWD)}, s{sA1} offen{WP2}")
            a(f"s_add_u32 s{sA1}, s{sA1}, {864 if opts.get('fake') else 12*1152}")
        a("s_mov_b64 exec, -1")
    vRd, vWdo = 204, 205
    def wd_loads():
        lk = a.newlabel("wd")
        a(f"s_cmp_eq_u32 s{sHW}, 0")
        a(f"s_cbranch_scc1 {lk}")
        a(f"v_subrev_u32 v{vRd}, 3, v{vR3}")
        a(f"v_subrev_u32 v{vWdo}, {3*1152}, v{vW2o}")
        a(f"s_lshl_b32 s{sTmp}, s{sHP}, 2")
        a(f"s_add_u32 s{sTmp}, s{sTmp}, s{sRQ}")
        a(f"s_mul_i32 s{sOff}, s{sTmp}, {72*1152}")
        for i in range(8):
            for e in range(4):
                a(f"v_mov_b32 v{hW2+24+4*i+e}, 0")
        a("s_mov_b32 exec_hi, 0x3fffff")
        for i in range(8):
            a(f"buffer_load_dwordx4 {vr(hW2+24+4*i,4)}, v{vWdo}, {srd(rWD)}, s{sOff} offen{WP2}")
            a(f"s_add_u32 s{sOff}, s{sOff}, {9*1152}")
        a("s_mov_b64 exec, -1")
        a.label(lk)
    a(f"v_lshlrev_b32 v{vt[1]}, 2, v{vFr}")
    for r in range(6):
        a(f"ds_read_b32 v{hX+r}, v{vt[1]} offset:{XN + r*28}")
    xr = [hX + r for r in range(6)]
    fac = [hA + i for i in range(16)]
    a("s_waitcnt vmcnt(0) lgkmcnt(0)")
    for r in range(6):
        for mt in range(2):
            for dd in range(4):
                rg = hR + 8 * r + 4 * mt + dd
                a(f"v_lshlrev_b32 v{vt[2]}, 16, v{rg}")
                a(f"v_and_b32 v{vt[3]}, 0xffff0000, v{rg}")
                if r == 0:
                    a(f"v_mul_f32 v{fac[8*mt+2*dd]}, v{vt[2]}, v{xr[r]}")
                    a(f"v_mul_f32 v{fac[8*mt+2*dd+1]}, v{vt[3]}, v{xr[r]}")
                else:
                    a(f"v_fmac_f32 v{fac[8*mt+2*dd]}, v{vt[2]}, v{xr[r]}")
                    a(f"v_fmac_f32 v{fac[8*mt+2*dd+1]}, v{vt[3]}, v{xr[r]}")
    a(f"s_lshl_b32 s{sTmp}, s{sHW}, 12")
    a(f"v_lshlrev_b32 v{vt[0]}, 6, v{vL}")
    a(f"v_add_u32 v{vt[0]}, s{sTmp}, v{vt[0]}")
    for k in range(4):
        a(f"ds_write_b128 v{vt[0]}, {vr(fac[4*k],4)} offset:{FFP + k*16}")
    lds_arrive(F_FCNT, vt[2], ret=True)
    a(f"s_mov_b32 s{sA0}, s{sTmp}")
    stamp("ffn1_done")
    if opts.get("hstop") == 3: a("s_branch L_end")
    spin_lds(F_NON, 1, vNon)
    a(f"s_mov_b32 s{sNon}, s{sTmp}")
    a(f"s_cmp_lg_u32 s{sA0}, 3")
    a("s_cbranch_scc1 L_fpskip")
    a.c("last arriver: sum 28 partials for 144 outputs, publish")
    a(f"v_lshrrev_b32 v{vt[0]}, 2, v{vL}")
    a(f"v_lshlrev_b32 v{vt[0]}, 6, v{vt[0]}")
    a(f"v_and_b32 v{vt[1]}, 3, v{vL}")
    a(f"v_lshl_add_u32 v{vt[0]}, v{vt[1]}, 3, v{vt[0]}")
    a("s_mov_b32 exec_hi, 0xf")
    for mt in range(2):
        for w in range(4):
            for rr in range(7):
                k = w * 7 + rr
                a(f"ds_read_b64 {vr(hR+2*k,2)}, v{vt[0]} offset:{FFP + (w*64 + rr*9)*64 + mt*32}")
        a("s_waitcnt lgkmcnt(0)")
        a(f"v_add_f32 v{hA+4*mt}, v{hR}, v{hR+2}")
        a(f"v_add_f32 v{hA+4*mt+2}, v{hR+1}, v{hR+3}")
        for k in range(2, 28):
            a(f"v_add_f32 v{hA+4*mt}, v{hA+4*mt}, v{hR+2*k}")
            a(f"v_add_f32 v{hA+4*mt+2}, v{hA+4*mt+2}, v{hR+2*k+1}")
        a(f"v_mov_b32 v{hA+4*mt+1}, v{vNon}")
        a(f"v_mov_b32 v{hA+4*mt+3}, v{vNon}")
    a(f"s_mul_i32 s{sOff}, s{sRho}, 1152")
    a(f"s_add_u32 s{sOff}, s{sOff}, {WS_FP}")
    a(f"v_lshlrev_b32 v{vt[0]}, 4, v{vL}")
    a(f"buffer_store_dwordx4 {vr(hA,4)}, v{vt[0]}, {srd(rWS)}, s{sOff} offen sc1")
    a(f"buffer_store_dwordx4 {vr(hA+4,4)}, v{vt[0]}, {srd(rWS)}, s{sOff} offen offset:576 sc1")
    a("s_mov_b64 exec, -1")
    a.label("L_fpskip")
    if opts.get("hstop") == 5: a("s_branch L_end")
    a(f"s_setprio {opts.get('hprio', 1)}")
    a(f"s_cmp_lg_u32 s{sW}, 4")
    a("s_cbranch_scc1 L_rsskip")
    a.c("gather 4 quarter-partials -> h[72] -> LDS INH (wave 4)")
    a(f"s_and_b32 s{sTmp}, s{sRho}, 0xfc")
    a(f"s_mul_i32 s{sA0}, s{sTmp}, 1152")
    a(f"s_add_u32 s{sA0}, s{sA0}, {WS_FP}")
    a(f"s_add_u32 s{sA1}, s{sA0}, 2304")
    a(f"v_lshlrev_b32 v{vt[0]}, 4, v{vL}")
    spin_lds(F_PROG, opts.get("g1", 4), vt[2], sleep=32)
    a("s_mov_b32 exec_hi, 0xf")
    ls = retry_begin()
    for k in range(4):
        for mt in range(2):
            a(f"buffer_load_dwordx4 {vr(hR+8*k+4*mt,4)}, v{vt[0]}, {srd(rWS)}, s{sA0 if k < 2 else sA1} offen offset:{(k%2)*1152 + mt*576} sc1")
    retry_end(ls, [hR + 4 * k + e for k in range(8) for e in (1, 3)], vt[1], vt[2], sleep=32)
    for k in range(1, 4):
        for q in (0, 2, 4, 6):
            a(f"v_add_f32 v{hR+q}, v{hR+q}, v{hR+8*k+q}")
    for q in (0, 2, 4, 6):
        bf16_round(a, hR + q, hR + q)
    for q in (0, 2):
        silu(hR + q)
        a(f"v_mul_f32 v{hR+q}, v{hR+q}, v{hR+4+q}")
        bf16_round(a, hR + q, hR + q)
    a(f"v_mov_b32 v{hR+1}, v{hR+2}")
    a(f"v_lshlrev_b32 v{vt[0]}, 3, v{vL}")
    a(f"ds_write_b64 v{vt[0]}, {vr(hR,2)} offset:{INH}")
    a("s_mov_b64 exec, -1")
    lds_arrive(F_H, vt[2])
    stamp("h_pub")
    a.label("L_rsskip")
    if opts.get("hstop") == 6: a("s_branch L_end")

    def slice_matmul(inaddr, wbase, fin, cnt_flag, wsbase, tagname, nw=4):
        nl = 6 if nw == 4 else 8
        a(f"v_lshlrev_b32 v{vt[0]}, 2, v{vR3 if nw == 4 else vRd}")
        for i in range(nl):
            a(f"ds_read_b32 v{hX+i}, v{vt[0]} offset:{inaddr + i*(48 if nw == 4 else 36)}")
        a("s_waitcnt lgkmcnt(0)")
        fa = [hA + e for e in range(8)]
        for i in range(nl):
            for dd in range(4):
                rg = wbase + 4 * i + dd
                a(f"v_lshlrev_b32 v{vt[2]}, 16, v{rg}")
                a(f"v_and_b32 v{vt[3]}, 0xffff0000, v{rg}")
                if i == 0:
                    a(f"v_mul_f32 v{fa[2*dd]}, v{vt[2]}, v{hX+i}")
                    a(f"v_mul_f32 v{fa[2*dd+1]}, v{vt[3]}, v{hX+i}")
                else:
                    a(f"v_fmac_f32 v{fa[2*dd]}, v{vt[2]}, v{hX+i}")
                    a(f"v_fmac_f32 v{fa[2*dd+1]}, v{vt[3]}, v{hX+i}")
        a(f"s_lshl_b32 s{sTmp}, s{sHW}, 11")
        a(f"v_lshlrev_b32 v{vt[0]}, 5, v{vL}")
        a(f"v_add_u32 v{vt[0]}, s{sTmp}, v{vt[0]}")
        a(f"ds_write_b128 v{vt[0]}, {vr(fa[0],4)} offset:{fin}")
        a(f"ds_write_b128 v{vt[0]}, {vr(fa[4],4)} offset:{fin+16}")
        lds_arrive(cnt_flag, vt[2], ret=True)
        lk = a.newlabel("sm")
        a(f"s_cmp_lg_u32 s{sTmp}, {nw-1}")
        a(f"s_cbranch_scc1 {lk}")
        a(f"v_lshlrev_b32 v{vt[0]}, 2, v{vL}")
        for k in range(3):
            for w in range(nw):
                for r3 in range(3):
                    a(f"ds_read_b32 v{hR+12*k+3*w+r3}, v{vt[0]} offset:{fin + (w + 4 - nw)*2048 + r3*576 + k*256}")
        a(f"s_lshl_b32 s{sTmp}, s{sHP}, 2")
        a(f"s_add_u32 s{sTmp}, s{sTmp}, s{sRQ}")
        a(f"s_lshl_b32 s{sOff}, s{sCQ}, 6")
        a(f"s_add_u32 s{sOff}, s{sOff}, s{sTmp}")
        a(f"s_mul_i32 s{sOff}, s{sOff}, 1152")
        a(f"s_add_u32 s{sOff}, s{sOff}, {wsbase}")
        a(f"v_lshlrev_b32 v{vt[0]}, 3, v{vL}")
        a("s_waitcnt lgkmcnt(0)")
        for k in range(3):
            for q in range(1, 3 * nw):
                a(f"v_add_f32 v{hR+12*k}, v{hR+12*k}, v{hR+12*k+q}")
            a(f"v_mov_b32 v{hR+12*k+1}, v{vNon}")
            if k == 2:
                a("s_mov_b64 exec, 0xffff")
            a(f"buffer_store_dwordx2 {vr(hR+12*k,2)}, v{vt[0]}, {srd(rWS)}, s{sOff} offen offset:{k*512} sc1")
        a("s_mov_b64 exec, -1")
        stamp(tagname)
        a.label(lk)

    def fin_gather(wsbase, dst, cntflag, sleep, both=False):
        a(f"s_mul_i32 s{sTmp}, s{sHW}, 3")
        a(f"v_subrev_u32 v{vt[4]}, s{sTmp}, v{vR3}")
        a(f"s_mov_b32 s{sTmp}, 1152")
        a(f"v_mul_lo_u32 v{vt[0]}, v{vt[4]}, s{sTmp}")
        a(f"v_lshl_add_u32 v{vt[0]}, v{vC18}, 4, v{vt[0]}")
        a(f"s_lshr_b32 s{sTmp}, s{sJ}, 2")
        a(f"s_lshl_b32 s{sTmp}, s{sTmp}, 6")
        a(f"s_lshl_b32 s{sTmp2}, s{sHW}, 4")
        a(f"s_add_u32 s{sTmp}, s{sTmp}, s{sTmp2}")
        a(f"s_mul_i32 s{sA0}, s{sTmp}, 1152")
        a(f"s_and_b32 s{sTmp}, s{sJ}, 3")
        a(f"s_mul_i32 s{sTmp}, s{sTmp}, 288")
        a(f"s_add_u32 s{sA0}, s{sA0}, s{sTmp}")
        a(f"s_add_u32 s{sA0}, s{sA0}, {wsbase}")
        nb = 2 if both else 1
        for bz in range(nb):
            a(f"v_mov_b32 v{hR+24*bz+20}, 0")
            a(f"v_mov_b32 v{hR+24*bz+21}, v{vNon}")
            a(f"v_mov_b32 v{hR+24*bz+22}, 0")
            a(f"v_mov_b32 v{hR+24*bz+23}, v{vNon}")
        a("s_mov_b32 exec_hi, 0x3fffff")
        ls = retry_begin()
        for bz in range(nb):
            a(f"s_add_u32 s{sOff}, s{sA0}, {bz * (WS_Y2 - WS_S2)}")
            for i in range(6):
                if i == 5:
                    a("s_mov_b64 exec, 0x3ffff")
                a(f"buffer_load_dwordx4 {vr(hR+24*bz+4*i,4)}, v{vt[0]}, {srd(rWS)}, s{sOff} offen sc1")
                a(f"s_add_u32 s{sOff}, s{sOff}, {3*1152}")
            a("s_mov_b32 exec_lo, -1")
            a("s_mov_b32 exec_hi, 0x3fffff")
        retry_end(ls, [hR + 4 * i + e for i in range(6 * nb) for e in (1, 3)], vt[1], vt[2], sleep=sleep)
        a(f"s_lshl_b32 s{sTmp}, s{sHW}, 9")
        a(f"v_lshlrev_b32 v{vt[0]}, 3, v{vL}")
        a(f"v_add_u32 v{vt[0]}, s{sTmp}, v{vt[0]}")
        for bz in range(nb):
            b_ = hR + 24 * bz
            for i in range(1, 6):
                a(f"v_add_f32 v{b_}, v{b_}, v{b_+4*i}")
                a(f"v_add_f32 v{b_+2}, v{b_+2}, v{b_+4*i+2}")
            a(f"v_mov_b32 v{b_+1}, v{b_+2}")
            a(f"ds_write_b64 v{vt[0]}, {vr(b_,2)} offset:{dst + 2048*bz}")
        a("s_mov_b64 exec, -1")
        lds_arrive(cntflag, vt[2], ret=True)

    if opts.get("wdlate", 1):
        a(f"v_lshlrev_b32 v{vt[0]}, 2, v{vL}")
        a(f"ds_write_b32 v{vt[0]}, v{vZ} offset:{INO+256}")
        spin_lds(F_H, 1, vt[2], sleep=32)
        a(f"s_mul_i32 s{sTmp}, s{sJ}, 72")
        a(f"v_lshlrev_b32 v206, 1, v{vL}")
        a(f"v_add_u32 v206, s{sTmp}, v206")
        a(f"buffer_load_ushort v207, v206, {srd(rX)}, 0 offen")
    else:
        a.c("y-part matmul")
        spin_lds(F_H, 1, vt[2], sleep=32)
        slice_matmul(INH, hW2 + 24, FIN2, F_YCNT, WS_Y2, "y_pub")
        if opts.get("hstop") == 7: a("s_branch L_end")
        a(f"v_lshlrev_b32 v{vt[0]}, 2, v{vL}")
        a(f"ds_write_b32 v{vt[0]}, v{vZ} offset:{INO+256}")
        a(f"s_cmp_lg_u32 s{sHP}, s{sJ}")
        a("s_cbranch_scc1 L_noyg")
        spin_lds(F_PROG, opts.get("g3", 8), vt[2], sleep=32)
        fin_gather(WS_Y2, G2 + 2048, F_Y2CNT, 64)
        a(f"s_cmp_lg_u32 s{sTmp}, 3")
        a("s_cbranch_scc1 L_noyg")
        a.c("precompute silu(y) and x for the 36 output columns")
        a(f"s_mul_i32 s{sTmp}, s{sJ}, 72")
        a(f"v_lshlrev_b32 v{vt[6]}, 1, v{vL}")
        a(f"v_add_u32 v{vt[6]}, s{sTmp}, v{vt[6]}")
        a("s_mov_b32 exec_hi, 0xf")
        a(f"buffer_load_ushort v{hR+13}, v{vt[6]}, {srd(rX)}, 0 offen")
        a(f"v_lshlrev_b32 v{vt[0]}, 2, v{vL}")
        for w in range(4):
            for pp in range(3):
                a(f"ds_read_b32 v{hR+3*w+pp}, v{vt[0]} offset:{G2 + 2048 + w*512 + pp*144}")
        a("s_waitcnt lgkmcnt(0)")
        for q in range(1, 12):
            a(f"v_add_f32 v{hR}, v{hR}, v{hR+q}")
        bf16_round(a, hR, hR)
        silu(hR)
        a("s_waitcnt vmcnt(0)")
        a(f"v_lshlrev_b32 v{hR+1}, 16, v{hR+13}")
        a(f"v_lshlrev_b32 v{vt[0]}, 3, v{vL}")
        a(f"ds_write_b64 v{vt[0]}, {vr(hR,2)} offset:{GX}")
        a("s_mov_b64 exec, -1")
        a.label("L_noyg")
    stamp("h_idle")
    if opts.get("hstop") == 4: a("s_branch L_end")
    if opts.get("rb"):
        a.c("rate-balance partition (wave 6)")
        NTb = 4 * (32 - NS)
        G = 16 * NTb
        a(f"s_cmp_lg_u32 s{sW}, 6")
        a("s_cbranch_scc1 L_rbskip")
        spin_lds(F_T, 1, vt[2], sleep=4)
        a(f"s_sub_u32 s{sTmp}, s{sTmp}, s{sNon}")
        a(f"v_mov_b32 v{hR}, s{sTmp}")
        a(f"v_mov_b32 v{hR+1}, v{vNon}")
        a(f"s_lshl_b32 s{sOff}, s{sHPw}, 7")
        a(f"s_add_u32 s{sOff}, s{sOff}, {WS_CNT}")
        a(f"s_lshl_b32 s{sTmp}, s{sJw}, 3")
        a(f"s_add_u32 s{sTmp}, s{sTmp}, s{sOff}")
        a("s_mov_b64 exec, 1")
        a(f"buffer_store_dwordx2 {vr(hR,2)}, v{vZ}, {srd(rWS)}, s{sTmp} offen sc1")
        a("s_mov_b64 exec, -1")
        spin_lds(F_PROG, opts.get("p2", 14), vt[2], sleep=8)
        a(f"v_lshlrev_b32 v{vt[0]}, 3, v{vL}")
        a("s_mov_b64 exec, 0xffff")
        ls = retry_begin()
        a(f"buffer_load_dwordx2 {vr(hR,2)}, v{vt[0]}, {srd(rWS)}, s{sOff} offen sc1")
        retry_end(ls, [hR + 1], vt[1], vt[2], sleep=16)
        x_, sm = hR + 2, hR + 3
        a(f"v_cvt_f32_u32 v{x_}, v{hR}")
        a(f"v_rcp_f32 v{x_}, v{x_}")
        a.nop(1)
        a(f"v_mov_b32 v{sm}, v{x_}")
        for ctrl in ("quad_perm:[1,0,3,2]", "quad_perm:[2,3,0,1]", "row_half_mirror", "row_mirror"):
            a.nop(2)
            a(f"v_add_f32_dpp v{sm}, v{sm}, v{sm} {ctrl} row_mask:0xf bank_mask:0xf")
        a(f"v_rcp_f32 v{sm}, v{sm}")
        a.nop(1)
        a(f"v_mul_f32 v{x_}, v{x_}, v{sm}")
        W = float(opts.get("wtot", 138))
        a(f"v_mul_f32 v{x_}, 0x{f32bits(16*W):08x}, v{x_}")
        a(f"v_add_f32 v{x_}, 0x{f32bits(NTb - W):08x}, v{x_}")
        a(f"v_max_f32 v{x_}, 0, v{x_}")
        for sh in (1, 2, 4, 8):
            a.nop(2)
            a(f"v_add_f32_dpp v{x_}, v{x_}, v{x_} row_shr:{sh} row_mask:0xf bank_mask:0xf bound_ctrl:0")
        a.nop(1)
        a(f"v_readlane_b32 s{sTmp}, v{x_}, 15")
        a.nop(2)
        a(f"v_mov_b32 v{sm}, s{sTmp}")
        a(f"v_rcp_f32 v{sm}, v{sm}")
        a.nop(1)
        a(f"v_mul_f32 v{x_}, v{x_}, v{sm}")
        a(f"v_mul_f32 v{x_}, 0x{f32bits(float(G)):08x}, v{x_}")
        a(f"v_add_f32 v{x_}, 0.5, v{x_}")
        a(f"v_cvt_u32_f32 v{x_}, v{x_}")
        a(f"v_min_u32 v{x_}, {G}, v{x_}")
        a("s_mov_b64 exec, -1")
        a.nop(1)
        a(f"s_mov_b32 m0, s{sJw}")
        a(f"v_readlane_b32 s{sA1}, v{x_}, m0")
        a(f"s_cmp_eq_u32 s{sJw}, 15")
        a(f"s_cselect_b32 s{sA1}, {G}, s{sA1}")
        a(f"s_sub_u32 s{sTmp}, s{sJw}, 1")
        a(f"s_max_i32 s{sTmp}, s{sTmp}, 0")
        a(f"s_mov_b32 m0, s{sTmp}")
        a(f"v_readlane_b32 s{sA0}, v{x_}, m0")
        a(f"s_cmp_eq_u32 s{sJw}, 0")
        a(f"s_cselect_b32 s{sA0}, 0, s{sA0}")
        a(f"s_add_u32 s{sA1}, s{sA1}, 1")
        a(f"v_mov_b32 v{hR}, s{sA0}")
        a(f"v_mov_b32 v{hR+1}, s{sA1}")
        a(f"ds_write_b64 v{vZ}, {vr(hR,2)} offset:{F_C}")
        a.label("L_rbskip")
    if opts.get("lq", 1) and NS < 32 and not opts.get("rb"):
        a.c("dispatcher (wave 5)")
        LA, BB = opts.get("la", 4), opts.get("bb", 2)
        NT = 4 * (32 - NS)
        a(f"s_cmp_lg_u32 s{sW}, 5")
        a("s_cbranch_scc1 L_dskip")
        spin_lds(F_PROG, 4 * ((NS - 4) // 6), vt[2], sleep=16)
        sFil, sP = sB[1], sB[2]
        sVic, sBat = sA0, sA1
        a(f"s_lshl_b32 s{sTmp}, s{sHP}, 7")
        a(f"s_add_u32 s{sTmp2}, s{sTmp}, {WS_CNT}")
        a(f"s_add_u32 s{sEx}, s{sWS}, s{sTmp2}")
        a(f"s_addc_u32 s{sEx+1}, s{sWS+1}, 0")
        a(f"s_mov_b32 s{sFil}, 0")
        a(f"s_mov_b32 s{sVic}, s{sJ}")
        a(f"s_mov_b32 s{sBat}, {BB}")
        a(f"s_mov_b32 s{sCnt}, 0x200000")
        a(f"v_lshlrev_b32 v{vt[4]}, 2, v{vL}")
        a.label("L_dloop")
        a(f"ds_read_b32 v{vt[2]}, v{vZ} offset:{F_TK}")
        a("s_waitcnt lgkmcnt(0)")
        a(f"v_readfirstlane_b32 s{sTmp}, v{vt[2]}")
        a(f"s_add_u32 s{sTmp}, s{sTmp}, {LA}")
        a(f"s_cmp_lt_u32 s{sFil}, s{sTmp}")
        a("s_cbranch_scc1 L_dclaim")
        a(f"s_sub_u32 s{sCnt}, s{sCnt}, 1")
        a(f"s_cmp_eq_u32 s{sCnt}, 0")
        a("s_cbranch_scc1 L_dend")
        a("s_sleep 2")
        a("s_branch L_dloop")
        a.label("L_dclaim")
        a(f"s_mov_b32 s{sP}, s{sBat}")
        a(f"s_lshl_b32 s{sOff}, s{sVic}, 2")
        a(f"s_atomic_add s{sP}, s[{sEx}:{sEx+1}], s{sOff} glc")
        a("s_waitcnt lgkmcnt(0)")
        a(f"s_sub_i32 s{sTmp}, {NT}, s{sP}")
        a(f"s_max_i32 s{sTmp}, s{sTmp}, 0")
        a(f"s_min_i32 s{sTmp}, s{sTmp}, s{sBat}")
        a(f"s_cmp_eq_u32 s{sTmp}, 0")
        a("s_cbranch_scc1 L_dscan")
        a(f"v_add_u32 v{vt[2]}, s{sP}, v{vL}")
        a(f"v_lshrrev_b32 v{vt[3]}, 2, v{vt[2]}")
        a(f"v_lshlrev_b32 v{vt[3]}, 3, v{vt[3]}")
        a(f"v_and_b32 v{vt[2]}, 3, v{vt[2]}")
        a(f"v_add_u32 v{vt[2]}, v{vt[2]}, v{vt[3]}")
        a(f"v_add_u32 v{vt[2]}, {NS*8}, v{vt[2]}")
        a(f"v_lshlrev_b32 v{vt[2]}, 12, v{vt[2]}")
        a(f"s_lshl_b32 s{sOff}, s{sVic}, 20")
        a(f"v_add_u32 v{vt[1]}, s{sOff}, v{vt[2]}")
        a(f"v_add_u32 v{vt[0]}, s{sFil}, v{vL}")
        a(f"v_lshlrev_b32 v{vt[0]}, 2, v{vt[0]}")
        a(f"s_lshl_b32 s{sOff}, 1, s{sTmp}")
        a(f"s_sub_u32 s{sOff}, s{sOff}, 1")
        a(f"s_mov_b32 exec_lo, s{sOff}")
        a("s_mov_b32 exec_hi, 0")
        a(f"ds_write_b32 v{vt[0]}, v{vt[1]} offset:{QQ}")
        a("s_mov_b64 exec, -1")
        a(f"s_add_u32 s{sFil}, s{sFil}, s{sTmp}")
        a(f"s_cmp_eq_u32 s{sVic}, s{sJ}")
        a("s_cbranch_scc1 L_dloop")
        a.label("L_dwait")
        a(f"ds_read_b32 v{vt[2]}, v{vZ} offset:{F_TK}")
        a("s_waitcnt lgkmcnt(0)")
        a(f"v_readfirstlane_b32 s{sTmp}, v{vt[2]}")
        a(f"s_add_u32 s{sTmp}, s{sTmp}, {opts.get('la2', LA)}")
        a(f"s_cmp_lt_u32 s{sFil}, s{sTmp}")
        a("s_cbranch_scc1 L_dscan")
        a(f"s_sub_u32 s{sCnt}, s{sCnt}, 1")
        a(f"s_cmp_eq_u32 s{sCnt}, 0")
        a("s_cbranch_scc1 L_dend")
        a("s_sleep 2")
        a("s_branch L_dwait")
        a.label("L_dscan")
        a("s_mov_b64 exec, 0xffff")
        a(f"buffer_load_dword v{vt[0]}, v{vt[4]}, {srd(rWS)}, s{sTmp2} offen sc1")
        a("s_waitcnt vmcnt(0)")
        a(f"v_sub_u32 v{vt[0]}, {NT}, v{vt[0]}")
        a(f"v_max_i32 v{vt[0]}, 0, v{vt[0]}")
        a(f"v_subrev_u32 v{vt[1]}, s{sJ}, v{vL}")
        a(f"v_and_b32 v{vt[1]}, 15, v{vt[1]}")
        a(f"v_lshl_add_u32 v{vt[0]}, v{vt[0]}, 4, v{vt[1]}")
        a(f"v_mov_b32 v{vt[1]}, v{vt[0]}")
        for ctrl in ("quad_perm:[1,0,3,2]", "quad_perm:[2,3,0,1]", "row_half_mirror", "row_mirror"):
            a.nop(2)
            a(f"v_max_u32_dpp v{vt[1]}, v{vt[1]}, v{vt[1]} {ctrl} row_mask:0xf bank_mask:0xf")
        a.nop(1)
        a(f"v_readfirstlane_b32 s{sTmp}, v{vt[1]}")
        a("s_mov_b64 exec, -1")
        a(f"s_cmp_lt_u32 s{sTmp}, {16 * opts.get('minrem', 1)}")
        a("s_cbranch_scc1 L_dend")
        a(f"s_and_b32 s{sTmp}, s{sTmp}, 15")
        a(f"s_add_u32 s{sTmp}, s{sTmp}, s{sJ}")
        a(f"s_and_b32 s{sVic}, s{sTmp}, 15")
        a(f"s_mov_b32 s{sBat}, 1")
        a("s_branch L_dclaim")
        a.label("L_dend")
        a(f"v_add_u32 v{vt[0]}, s{sFil}, v{vL}")
        a(f"v_lshlrev_b32 v{vt[0]}, 2, v{vt[0]}")
        a(f"v_mov_b32 v{vt[1]}, {OOB}")
        a("s_mov_b64 exec, 0xff")
        a(f"ds_write_b32 v{vt[0]}, v{vt[1]} offset:{QQ}")
        a("s_mov_b64 exec, -1")
        a.label("L_dskip")
    a.c("wg combine")
    if opts.get("wolate", 1) == 2:
        spin_lds(F_PROG, opts.get("g4", 17), vt[2], sleep=8)
        wo_loads()
    if opts.get("wolate", 1) == 3:
        spin_lds(F_SCNT, 1, vt[2], sleep=4)
        if opts.get("wdlate", 1): wd_loads()
        wo_loads()
    spin_lds(F_SCNT, 4, vt[2], sleep=opts.get("hsleep", 2))
    a("s_setprio 3")
    if opts.get("dbgstamp") == 2:
        a(f"s_cmp_lg_u32 s{sW}, 5")
        a("s_cbranch_scc1 L_dbs1")
        a(f"s_cmp_lg_u32 s{sJ}, 3")
        a("s_cbranch_scc1 L_dbs1")
        a(f"s_cmp_eq_u32 s{sHP}, 0")
        a("s_cbranch_scc1 L_dbs1")
        a(f"s_memrealtime s[{sT64}:{sT64+1}]")
        a("s_waitcnt lgkmcnt(0)")
        a(f"s_sub_u32 s{sTmp}, s{sT64}, s{sNon}")
        a(f"v_mov_b32 v{vt[0]}, s{sTmp}")
        a(f"s_lshl_b32 s{sTmp}, s{sHP}, 2")
        a("s_mov_b64 exec, 1")
        a(f"buffer_store_dword v{vt[0]}, v{vZ}, {srd(rDBG)}, s{sTmp} offen")
        a("s_mov_b64 exec, -1")
        a.label("L_dbs1")
    stamp("s_all")
    a(f"v_and_b32 v{vt[5]}, 255, v0")
    a(f"v_lshlrev_b32 v{vt[0]}, 2, v{vt[5]}")
    a(f"v_lshrrev_b32 v{vt[1]}, 7, v{vt[5]}")
    a(f"v_lshlrev_b32 v{vt[1]}, 2, v{vt[1]}")
    mreg = [hR + i for i in range(4)]
    lreg = [hR + 4 + i for i in range(4)]
    oreg = [hR + 8 + i for i in range(4)]
    for w in range(4):
        a(f"ds_read_b32 v{mreg[w]}, v{vt[1]} offset:{COMB + w*CSTR + 1024}")
        a(f"ds_read_b32 v{lreg[w]}, v{vt[1]} offset:{COMB + w*CSTR + 1032}")
        a(f"ds_read_b32 v{oreg[w]}, v{vt[0]} offset:{COMB + w*CSTR}")
    a("s_waitcnt lgkmcnt(0)")
    M, Lr, Or = hA + 8, hA + 10, hA + 12
    combine(4, mreg, lreg, oreg, M, Lr, Or)
    a(f"v_mov_b32 v{M+1}, v{vNon}")
    a(f"v_mov_b32 v{Lr+1}, v{vNon}")
    a(f"v_mov_b32 v{Or+1}, v{vNon}")
    a(f"s_mul_i32 s{sOff}, s{sWGI}, {PSTR}")
    a(f"v_lshlrev_b32 v{vt[0]}, 3, v{vt[5]}")
    a(f"buffer_store_dwordx2 {vr(Or,2)}, v{vt[0]}, {srd(rWS)}, s{sOff} offen sc1")
    a(f"v_lshlrev_b32 v{vt[1]}, 2, v{vt[1]}")
    a(f"s_and_b32 s{sTmp}, s{sHW}, 1")
    a(f"s_cmp_lg_u32 s{sTmp}, 0")
    a("s_cbranch_scc1 L_mlskip")
    a("s_mov_b64 exec, 1")
    a(f"buffer_store_dwordx4 {vr(M,4)}, v{vt[1]}, {srd(rWS)}, s{sOff} offen offset:2048 sc1")
    a("s_mov_b64 exec, -1")
    a.label("L_mlskip")
    if opts.get("wolate", 1) == 1: wo_loads()
    stamp("published")
    a(f"s_cmp_lg_u32 s{sW}, 4")
    a("s_cbranch_scc1 L_ypath" if opts.get("wdlate", 1) else "s_cbranch_scc1 L_l1skip")
    a.c("level-1 poll")
    a(f"v_and_b32 v{vt[0]}, 15, v{vL}")
    a(f"v_mul_u32_u24 v{vt[0]}, {PSTR}, v{vt[0]}")
    a(f"s_lshr_b32 s{sTmp}, s{sRQ}, 1")
    a(f"s_lshl_b32 s{sTmp}, s{sTmp}, 4")
    a(f"s_mul_i32 s{sA0}, s{sHP}, {16*PSTR}")
    a(f"s_add_u32 s{sA1}, s{sA0}, s{sTmp}")
    THR = opts.get("thr", 15)
    a("s_mov_b64 exec, 0xffff")
    l0, l1 = retry_begin()
    a(f"buffer_load_dwordx4 {vr(hR,4)}, v{vt[0]}, {srd(rWS)}, s{sA1} offen offset:2048 sc1")
    a("s_waitcnt vmcnt(0)")
    a(f"v_cmp_eq_u32 vcc, v{vNon}, v{hR+1}")
    a(f"s_bcnt1_i32_b64 s{sTmp}, vcc")
    a(f"s_cmp_ge_u32 s{sTmp}, {THR}")
    a(f"s_cbranch_scc1 {l1}")
    a(f"s_sub_u32 s{sCnt}, s{sCnt}, 1")
    a(f"s_cmp_eq_u32 s{sCnt}, 0")
    a(f"s_cbranch_scc1 {l1}")
    a(f"s_sleep {opts.get('sleep1', 8)}")
    a(f"s_branch {l0}")
    a.label(l1)
    a("s_mov_b64 exec, -1")
    stamp("polled")
    a(f"s_lshl_b32 s{sTmp}, s{sRQ}, 9")
    a(f"s_add_u32 s{sA0}, s{sA0}, s{sTmp}")
    a(f"v_lshlrev_b32 v{vt[3]}, 3, v{vL}")
    hG = hR + 8
    ls = retry_begin()
    a(f"buffer_load_dwordx4 {vr(hR,4)}, v{vt[0]}, {srd(rWS)}, s{sA1} offen offset:2048 sc1")
    a(f"s_mov_b32 s{sOff}, s{sA0}")
    for p in range(16):
        a(f"buffer_load_dwordx2 {vr(hG+2*p,2)}, v{vt[3]}, {srd(rWS)}, s{sOff} offen sc1")
        a(f"s_add_u32 s{sOff}, s{sOff}, {PSTR}")
    retry_end(ls, [hR + 1, hR + 3] + [hG + 2 * p + 1 for p in range(16)], vt[1], vt[2], sleep=opts.get("sleep2", 2))
    mm, ll = hR + 4, hR + 5
    a(f"v_mov_b32 v{mm}, v{hR}")
    for ctrl in ("quad_perm:[1,0,3,2]", "quad_perm:[2,3,0,1]", "row_half_mirror", "row_mirror"):
        a.nop(2)
        a(f"v_max_f32_dpp v{mm}, v{mm}, v{mm} {ctrl} row_mask:0xf bank_mask:0xf")
    a(f"v_sub_f32 v{hR}, v{hR}, v{mm}")
    a(f"v_exp_f32 v{hR}, v{hR}")
    a.nop(1)
    a(f"v_mul_f32 v{ll}, v{hR}, v{hR+2}")
    for ctrl in ("quad_perm:[1,0,3,2]", "quad_perm:[2,3,0,1]", "row_half_mirror", "row_mirror"):
        a.nop(2)
        a(f"v_add_f32_dpp v{ll}, v{ll}, v{ll} {ctrl} row_mask:0xf bank_mask:0xf")
    a.nop(1)
    a(f"v_readlane_b32 s{sA1}, v{ll}, 0")
    for p in range(16):
        a(f"v_readlane_b32 s{sTmp}, v{hR}, {p}")
        a.nop(2)
        if p == 0:
            a(f"v_mul_f32 v{Or}, s{sTmp}, v{hG}")
        else:
            a(f"v_fmac_f32 v{Or}, s{sTmp}, v{hG+2*p}")
    a(f"v_mov_b32 v{Lr}, s{sA1}")
    a(f"v_rcp_f32 v{vt[3]}, v{Lr}")
    a.nop(1)
    a(f"v_mul_f32 v{vt[4]}, v{Or}, v{vt[3]}")
    a(f"v_fma_f32 v{vt[5]}, -v{vt[4]}, v{Lr}, v{Or}")
    a(f"v_fma_f32 v{Or}, v{vt[5]}, v{vt[3]}, v{vt[4]}")
    bf16_round(a, Or, Or)
    a(f"v_lshlrev_b32 v{vt[0]}, 2, v{vL}")
    a(f"ds_write_b32 v{vt[0]}, v{Or} offset:{INO}")
    lds_arrive(F_O, vt[2])
    stamp("gathered")
    if opts.get("wdlate", 1):
        a("s_branch L_l1skip")
        a.label("L_ypath")
        a("s_waitcnt vmcnt(0)")
        slice_matmul(INH, hW2 + 24, FIN2, F_YCNT, WS_Y2, "y_pub", nw=3)
    a.label("L_l1skip")
    spin_lds(F_O, 1, vt[2], sleep=0)
    a("s_waitcnt vmcnt(0)")
    slice_matmul(INO, hW2, FIN, F_ZCNT, WS_S2, "s_pub")
    a(f"s_cmp_lg_u32 s{sHP}, s{sJ}")
    a("s_cbranch_scc1 L_end")
    if opts.get("wdlate", 1) and not opts.get("merge"):
        fin_gather(WS_Y2, G2 + 2048, F_Y2CNT, opts.get('sleep3', 1))
    fin_gather(WS_S2, G2, F_S2CNT, opts.get('sleep3', 1), both=bool(opts.get("wdlate", 1) and opts.get("merge")))
    a(f"s_cmp_lg_u32 s{sTmp}, 3")
    a("s_cbranch_scc1 L_end")
    a.c("final: last arriver sums 4 waves x 3 pp for 36 cols")
    a(f"s_mul_i32 s{sTmp}, s{sJ}, 72")
    a(f"v_lshlrev_b32 v{vt[6]}, 1, v{vL}")
    a(f"v_add_u32 v{vt[6]}, s{sTmp}, v{vt[6]}")
    a("s_mov_b32 exec_hi, 0xf")
    a(f"v_lshlrev_b32 v{vt[0]}, 2, v{vL}")
    for w in range(4):
        for pp in range(3):
            a(f"ds_read_b32 v{hR+3*w+pp}, v{vt[0]} offset:{G2 + w*512 + pp*144}")
    if opts.get("wdlate", 1):
        for w in range(4):
            for pp in range(3):
                a(f"ds_read_b32 v{hR+12+3*w+pp}, v{vt[0]} offset:{G2 + 2048 + w*512 + pp*144}")
        a("s_waitcnt lgkmcnt(0)")
        for q in range(1, 12):
            a(f"v_add_f32 v{hR+12}, v{hR+12}, v{hR+12+q}")
        bf16_round(a, hR + 12, hR + 12)
        silu(hR + 12)
        a(f"v_lshlrev_b32 v{hR+13}, 16, v207")
    else:
        a(f"v_lshlrev_b32 v{vt[0]}, 3, v{vL}")
        a(f"ds_read_b64 {vr(hR+12,2)}, v{vt[0]} offset:{GX}")
        a("s_waitcnt lgkmcnt(0)")
    for q in range(1, 12):
        a(f"v_add_f32 v{hR}, v{hR}, v{hR+q}")
    sS = hR
    bf16_round(a, sS, sS)
    a(f"v_mul_f32 v{sS}, v{sS}, v{hR+12}")
    bf16_round(a, sS, sS)
    a(f"v_add_f32 v{sS}, v{sS}, v{hR+13}")
    a(f"v_cvt_pk_bf16_f32 v{sS}, v{sS}, v{sS}")
    a(f"buffer_store_short v{sS}, v{vt[6]}, {srd(rOUT)}, 0 offen")
    if not opts.get("dbgstamp"):
        a("s_mov_b64 exec, 1")
        a(f"buffer_store_dword v{vZ}, v{vZ}, {srd(rDBG)}, 0 offen sc1")
    if opts.get("dbgstamp") == 1:
        a(f"s_memrealtime s[{sT64}:{sT64+1}]")
        a("s_waitcnt lgkmcnt(0)")
        a(f"s_sub_u32 s{sTmp}, s{sT64}, s{sNon}")
        a(f"v_mov_b32 v{vt[0]}, s{sTmp}")
        a(f"s_lshl_b32 s{sTmp}, s{sJ}, 2")
        a(f"s_add_u32 s{sTmp}, s{sTmp}, 4")
        a(f"s_cmp_ge_u32 s{sJ}, 6")
        a("s_cbranch_scc1 L_end")
        a("s_mov_b64 exec, 1")
        a(f"buffer_store_dword v{vt[0]}, v{vZ}, {srd(rDBG)}, s{sTmp} offen")
    if STAMP:
        a("s_waitcnt vmcnt(0)")
    stamp("out")
    a.label("L_end")
    stamp_flush()
    a.label("L_exit")
    a("s_endpgm")
    a.L.append('.section .rodata,"a"')
    a.L.append(".p2align 6")
    a.L.append(f".amdhsa_kernel {KNAME}")
    a.L.append("  .amdhsa_next_free_vgpr 256")
    a.L.append("  .amdhsa_next_free_sgpr 102")
    a.L.append("  .amdhsa_accum_offset 256")
    a.L.append("  .amdhsa_group_segment_fixed_size 0")
    a.L.append("  .amdhsa_kernarg_size 96")
    a.L.append("  .amdhsa_user_sgpr_count 2")
    a.L.append("  .amdhsa_user_sgpr_kernarg_segment_ptr 1")
    a.L.append("  .amdhsa_system_sgpr_workgroup_id_x 1")
    a.L.append("  .amdhsa_float_denorm_mode_32 3")
    a.L.append(".end_amdhsa_kernel")
    return "\n".join(a.L) + "\n"

if __name__ == "__main__":
    out = sys.argv[1] if len(sys.argv) > 1 else "recurrent_scan__gqa_block_cached__swiglu_ffn__decode.s"
    opts = {}
    for kv in sys.argv[2:]:
        k, v = kv.split("=")
        opts[k] = int(v) if v.lstrip("-").isdigit() else v
    txt = gen(opts)
    if opts.get("stamp"):
        txt = txt.replace("\n", "\n; stamps=" + ",".join(opts["names"]) + "\n", 1)
    open(out, "w").write(txt)
    print("wrote", out)
```

```python
import sys, struct

KNAME = "recurrent_scan__gqa_block_cached__swiglu_ffn__decode_kernel"

def f32bits(x):
    return struct.unpack("<I", struct.pack("<f", x))[0]

class Asm:
    def __init__(self):
        self.L = []
        self.uid = 0
    def __call__(self, s):
        self.L.append("    " + s)
    def label(self, s):
        self.L.append(s + ":")
    def c(self, s):
        self.L.append("    ; " + s)
    def nop(self, n):
        while n > 0:
            k = min(n, 16)
            self(f"s_nop {k-1}")
            n -= k
    def newlabel(self, p):
        self.uid += 1
        return f"L_{p}{self.uid}"

FL = 0
F_NON, F_QCNT, F_FCNT, F_H, F_YCNT, F_SCNT, F_O, F_ZCNT, F_Y2CNT, F_S2CNT, F_PROG, F_TK = [FL + 4 * i for i in range(12)]
F_C = FL + 48
F_T = FL + 56
XN = 64
QP = XN + 2560
QB = QP + 1024
FFP = QB + 512
COMB = FFP + 16384
CSTR = 1056
INO = COMB + 4 * CSTR
INH = INO + 512
FIN = INH + 512
FIN2 = FIN + 8192
G2 = FIN2 + 8192
GX = G2 + 4096
QQ = GX + 512
LDS_BYTES = QQ + 4096
LDS_BYTES = (LDS_BYTES + 1023) // 1024 * 1024
PSTR = 2176
WS_PART = 0
WS_FP = 256 * PSTR
WS_HB = WS_FP + 256 * 4608
WS_S2 = WS_HB + 4608 * 8
WS_Y2 = WS_S2 + 4 * 64 * 1152
WS_Q = WS_Y2 + 4 * 64 * 1152
WS_CNT = WS_Q + 16 * 8192
WS_BYTES = WS_CNT + 16 * 128
WS_STAMP = 4 << 20

sX, sK, sV, sWQ, sWO, sBX, sWG, sWU, sWD, sOUT, sDBG, sWS = [4 + 2 * i for i in range(12)]
rK, rV, rX, rWQ, rWG, rWU, rWO, rWD, rWS, rOUT, rDBG = [28 + 4 * i for i in range(11)]
sHP, sJ, sW, sWGI = 72, 73, 74, 75
sSelLo, sSelHi, sScale, sLog2e = 76, 77, 78, 79
sA0, sA1, sTmp, sTmp2, sOff, sCnt = 80, 81, 82, 83, 84, 85
sEx = 86
sNon = 88
sB = [89, 90, 91]
sStat, sLeft = 92, 93
sT64 = 94
sRQ, sCQ = 100, 101
OOB = 0x40000000

def srd(r): return f"s[{r}:{r+3}]"
def vr(b, n): return f"v[{b}:{b+n-1}]"

def bf16_round(a, dst, src):
    a(f"v_cvt_pk_bf16_f32 v{dst}, v{src}, v{src}")
    a(f"v_lshlrev_b32 v{dst}, 16, v{dst}")

def cross_rows(a, op, x, t):
    o = f"v_{op}_f32"
    for sw in ("v_permlane32_swap_b32", "v_permlane16_swap_b32"):
        a(f"v_mov_b32 v{t}, v{x}")
        a.nop(2)
        a(f"{sw} v{x}, v{t}")
        a.nop(1)
        a(f"{o} v{x}, v{x}, v{t}")

def wave_allreduce(a, op, x, t):
    o = f"v_{op}_f32"
    for ctrl in ("quad_perm:[1,0,3,2]", "quad_perm:[2,3,0,1]", "row_half_mirror", "row_mirror"):
        a.nop(2)
        a(f"{o}_dpp v{x}, v{x}, v{x} {ctrl} row_mask:0xf bank_mask:0xf")
    cross_rows(a, op, x, t)

def gen(opts):
    a = Asm()
    STAMP = opts.get("stamp", False)
    NS = opts.get("ns", 26)
    NPOOL = (32 - NS) * 64
    MAXPOLL = 0x10000
    P2P = opts.get("p2pat", 1)
    WP = "" if opts.get("wdef") else " nt"
    WP2 = "" if (opts.get("wdef") or opts.get("w2def")) else " nt"
    stn = [0]
    names = []
    vL, vST, vNon, vZ = 1, 255, 254, 253
    vt = [2, 3, 4, 5, 6, 7, 8, 9, 10, 11]
    def stamp(name):
        if not STAMP: return
        a(f"s_memrealtime s[{sT64}:{sT64+1}]")
        a("s_waitcnt lgkmcnt(0)")
        a(f"v_writelane_b32 v{vST}, s{sT64}, {stn[0]}")
        names.append(name)
        stn[0] += 1
    def stamp_flush():
        if not STAMP: return
        a("s_mov_b64 exec, -1")
        a(f"s_lshl_b32 s{sTmp}, s2, 3")
        a(f"s_add_u32 s{sTmp}, s{sTmp}, s{sW}")
        a(f"s_lshl_b32 s{sTmp}, s{sTmp}, 8")
        a(f"v_lshlrev_b32 v{vt[8]}, 2, v{vL}")
        a(f"buffer_store_dword v{vST}, v{vt[8]}, s[96:99], s{sTmp} offen")
    opts["names"] = names

    def spin_lds(addr, target, tmpv, ge=True, sleep=1):
        l0, l1 = a.newlabel("sp"), a.newlabel("spx")
        a(f"s_mov_b32 s{sCnt}, {int(2.4e8 / (64 * sleep + 120))}")
        a.label(l0)
        a(f"ds_read_b32 v{tmpv}, v{vZ} offset:{addr}")
        a("s_waitcnt lgkmcnt(0)")
        a(f"v_readfirstlane_b32 s{sTmp}, v{tmpv}")
        a(f"s_cmp_ge_u32 s{sTmp}, {target}")
        a(f"s_cbranch_scc1 {l1}")
        a(f"s_sub_u32 s{sCnt}, s{sCnt}, 1")
        a(f"s_cmp_eq_u32 s{sCnt}, 0")
        a(f"s_cbranch_scc1 {l1}")
        a(f"s_sleep {sleep}")
        a(f"s_branch {l0}")
        a.label(l1)
    def lds_arrive(addr, tmpv, ret=False):
        a("s_waitcnt lgkmcnt(0)")
        a(f"v_mov_b32 v{tmpv}, 1")
        a("s_mov_b64 exec, 1")
        if ret:
            a(f"ds_add_rtn_u32 v{tmpv}, v{vZ}, v{tmpv} offset:{addr}")
            a("s_waitcnt lgkmcnt(0)")
            a(f"v_readfirstlane_b32 s{sTmp}, v{tmpv}")
        else:
            a(f"ds_add_u32 v{vZ}, v{tmpv} offset:{addr}")
        a("s_mov_b64 exec, -1")
    def retry_begin():
        l0, l1 = a.newlabel("rt"), a.newlabel("rtx")
        a(f"s_mov_b32 s{sCnt}, {MAXPOLL}")
        a.label(l0)
        return l0, l1
    def retry_end(ls, tagregs, t0, t1, sleep=2):
        l0, l1 = ls
        a("s_waitcnt vmcnt(0)")
        a(f"v_xor_b32 v{t0}, v{vNon}, v{tagregs[0]}")
        for r in tagregs[1:]:
            a(f"v_xor_b32 v{t1}, v{vNon}, v{r}")
            a(f"v_or_b32 v{t0}, v{t0}, v{t1}")
        a(f"v_cmp_ne_u32 vcc, 0, v{t0}")
        a(f"s_cbranch_vccz {l1}")
        a(f"s_sub_u32 s{sCnt}, s{sCnt}, 1")
        a(f"s_cmp_eq_u32 s{sCnt}, 0")
        a(f"s_cbranch_scc1 {l1}")
        a(f"s_sleep {sleep}")
        a(f"s_branch {l0}")
        a.label(l1)
    def silu(x):
        a(f"v_mul_f32 v{vt[2]}, s{sLog2e}, v{x}")
        a(f"v_exp_f32 v{vt[2]}, -v{vt[2]}")
        a.nop(1)
        a(f"v_add_f32 v{vt[2]}, 1.0, v{vt[2]}")
        a(f"v_rcp_f32 v{vt[3]}, v{vt[2]}")
        a.nop(1)
        a(f"v_mul_f32 v{vt[4]}, v{x}, v{vt[3]}")
        a(f"v_fma_f32 v{vt[5]}, -v{vt[4]}, v{vt[2]}, v{x}")
        a(f"v_fma_f32 v{x}, v{vt[5]}, v{vt[3]}, v{vt[4]}")
        a(f"v_cmp_eq_f32 vcc, 0x7f800000, v{vt[2]}")
        a.nop(2)
        a(f"v_cndmask_b32 v{x}, v{x}, v{vt[4]}, vcc")
        bf16_round(a, x, x)
    def combine(n, mreg, lreg, oreg, M, Lr, Or):
        a(f"v_max3_f32 v{M}, v{mreg[0]}, v{mreg[1]}, v{mreg[2]}")
        k = 3
        while k < n:
            if k + 1 < n:
                a(f"v_max3_f32 v{M}, v{M}, v{mreg[k]}, v{mreg[k+1]}"); k += 2
            else:
                a(f"v_max_f32 v{M}, v{M}, v{mreg[k]}"); k += 1
        for w in range(n):
            a(f"v_sub_f32 v{mreg[w]}, v{mreg[w]}, v{M}")
        for w in range(n):
            a(f"v_exp_f32 v{mreg[w]}, v{mreg[w]}")
        a.nop(1)
        a(f"v_mul_f32 v{Lr}, v{mreg[0]}, v{lreg[0]}")
        a(f"v_mul_f32 v{Or}, v{mreg[0]}, v{oreg[0]}")
        for w in range(1, n):
            a(f"v_fmac_f32 v{Lr}, v{mreg[w]}, v{lreg[w]}")
            a(f"v_fmac_f32 v{Or}, v{mreg[w]}, v{oreg[w]}")
    def mk(r, p, off_s=None, size=None):
        if off_s is None:
            a(f"s_mov_b32 s{r}, s{p}")
            a(f"s_and_b32 s{r+1}, s{p+1}, 0xffff")
        else:
            a(f"s_add_u32 s{r}, s{p}, s{off_s}")
            a(f"s_addc_u32 s{r+1}, s{p+1}, 0")
            a(f"s_and_b32 s{r+1}, s{r+1}, 0xffff")
        a(f"s_mov_b32 s{r+2}, {size}")
        a(f"s_mov_b32 s{r+3}, 0x20000")

    a.L.append(f"; @launch grid=(256,1,1) block=({256 if opts.get('only4') else 512},1,1) lds={LDS_BYTES}")
    for ln in (
        "Fused decode step: layernorm -> q-proj -> GQA flash-decode over the KV cache -> wo, SwiGLU FFN, gate, residual.",
        "One workgroup per CU (256), 8 waves: 4 'stream' waves run K/V through MFMA with an online (true running max) softmax,",
        "4 'helper' waves do layernorm, their slice of the q / gate / up / down / wo GEMVs and all cross-workgroup hand-offs.",
        "Hand-offs go through d_ws as 8-byte {value, tag} granules (sc1 stores / sc1 loads); the tag is a per-launch word",
        "agreed on through a compare-and-swap on d_debug[0], so nothing left in d_ws by an earlier launch is ever accepted.",
        "The last 1/16 of each head's keys is split between the head's 16 workgroups by their measured progress in this launch.",
        "Every wait is bounded.  bf16 rounding points of the reference (xn, q, scores, scaled scores, p, o, s, g, u, h, y) are kept.",
    ):
        a.L.append("; " + ln)
    a.L.append('.amdgcn_target "amdgcn-amd-amdhsa--gfx950"')
    a.L.append(".text")
    a.L.append(f".globl {KNAME}")
    a.L.append(".p2align 8")
    a.L.append(f".type {KNAME},@function")
    a.label(KNAME)
    a("s_cmp_ge_u32 s2, 256")
    a("s_cbranch_scc1 L_exit")
    a("s_load_dwordx16 s[4:19], s[0:1], 0")
    a("s_load_dwordx8 s[20:27], s[0:1], 64")
    a(f"s_memrealtime s[{sT64}:{sT64+1}]")
    a(f"v_and_b32 v{vL}, 63, v0")
    a(f"v_lshrrev_b32 v{vt[0]}, 6, v0")
    a(f"s_lshr_b32 s{sHP}, s2, 4")
    a(f"s_and_b32 s{sJ}, s2, 15")
    a(f"v_readfirstlane_b32 s{sW}, v{vt[0]}")
    if opts.get("swap", 1):
        a.nop(1)
        a(f"s_xor_b32 s{sW}, s{sW}, 4")
    a(f"s_mov_b32 s{sWGI}, s2")
    a(f"s_lshr_b32 s{sRQ}, s{sJ}, 2")
    a(f"s_and_b32 s{sCQ}, s{sJ}, 3")
    a(f"s_mov_b32 s{sLog2e}, 0x{f32bits(1.4426950408889634):08x}")
    a(f"v_mov_b32 v{vZ}, 0")
    a(f"v_mov_b32 v{vST}, 0")
    a("s_waitcnt lgkmcnt(0)")
    a(f"s_or_b32 s{sNon}, s{sT64}, 1")
    mk(rWS, sWS, size=WS_BYTES)
    if STAMP:
        a(f"s_add_u32 s96, s{sWS}, {WS_STAMP}")
        a(f"s_addc_u32 s97, s{sWS+1}, 0")
        a(f"s_and_b32 s97, s97, 0xffff")
        a(f"s_mov_b32 s98, {2048*256}")
        a(f"s_mov_b32 s99, 0x20000")
    stamp("start")
    a(f"s_cmp_ge_u32 s{sW}, 4")
    a("s_cbranch_scc1 L_helper")

    vKoff, vVoff, vM, vLs, vMt = 12, 13, 14, 15, 16
    vC = [17, 18]
    vCo = 19
    vQ = 20
    vO = 36
    vD = 68
    vP = 76
    vT = 80
    KS = [88, 120]
    VS = [152, 184, 216]
    a.c("stream wave setup")
    a(f"s_mov_b32 s{sSelLo}, 0x05040100")
    a(f"s_mov_b32 s{sSelHi}, 0x07060302")
    a(f"s_mov_b32 s{sScale}, 0x{f32bits(128 ** -0.5):08x}")
    a(f"v_and_b32 v{vt[0]}, 3, v{vL}")
    a(f"v_lshlrev_b32 v{vt[0]}, 10, v{vt[0]}")
    a(f"v_bfe_u32 v{vt[1]}, v{vL}, 2, 2")
    a(f"v_lshlrev_b32 v{vt[1]}, 8, v{vt[1]}")
    a(f"v_lshrrev_b32 v{vt[2]}, 4, v{vL}")
    a(f"v_lshlrev_b32 v{vt[2]}, 4, v{vt[2]}")
    a(f"v_add3_u32 v{vKoff}, v{vt[0]}, v{vt[1]}, v{vt[2]}")
    a(f"v_lshlrev_b32 v{vVoff}, 4, v{vL}")
    a(f"s_lshl_b32 s{sTmp}, s{sHP}, 24")
    mk(rK, sK, sTmp, size=1 << 24)
    mk(rV, sV, sTmp, size=1 << 24)
    a(f"s_lshl_b32 s{sStat}, s{sJ}, 20")
    a(f"s_lshl_b32 s{sTmp}, s{sW}, 12")
    a(f"s_add_u32 s{sStat}, s{sStat}, s{sTmp}")
    sCl = [36, 37]
    sCA = 38
    a(f"s_lshl_b32 s{sTmp}, s{sHP}, 7")
    a(f"s_add_u32 s{sTmp}, s{sTmp}, {WS_CNT}")
    a(f"s_add_u32 s{sCA}, s{sWS}, s{sTmp}")
    a(f"s_addc_u32 s{sCA+1}, s{sWS+1}, 0")
    a(f"s_mov_b32 s{sCl[0]}, {1 if (NS >= 32 and opts.get('lq', 1)) else 0}")
    a(f"s_mov_b32 s{sCl[1]}, 0")
    a("s_mov_b32 s40, 40")
    def stream_body(sfx, KP, VP):
        def Kload(slot, t, i, sb):
            return f"buffer_load_dwordx4 {vr(slot+16*t+4*i,4)}, v{vKoff}, {srd(rK)}, s{sb} offen offset:{i*64}{KP}"
        def Vload(slot, t, r, sb):
            return f"buffer_load_dwordx4 {vr(slot+16*t+4*r,4)}, v{vVoff}, {srd(rV)}, s{sb} offen offset:{r*1024}{VP}"
        NOCL = 1
        for g in range(2):
            a(f"s_mov_b32 s{sB[g]}, s{sStat}")
            a(f"s_add_u32 s{sOff}, s{sStat}, {32768 if P2P else 16384}")
            for t in range(2):
                for i in range(4):
                    a(Kload(KS[g], t, i, sB[g] if t == 0 else sOff))
            if g == 0 and not opts.get("latebar") and not opts.get("nobar"): a("s_barrier")
            for t in range(2):
                for r in range(4):
                    a(Vload(VS[g], t, r, sB[g] if t == 0 else sOff))
            if g == 0 and opts.get("latebar"): a("s_barrier")
            a(f"s_add_u32 s{sStat}, s{sStat}, {65536 if P2P else 32768}")
        a(f"s_mov_b32 s{sLeft}, {NS-2}")
        if opts.get("dry", 0):
            a.c("dry run of the loop body (I-cache warm-up), exec=0")
            a(f"s_mov_b32 s41, s{sStat}"); a(f"s_mov_b32 s42, s{sLeft}")
            a(f"s_mov_b32 s43, s{sB[0]}"); a(f"s_mov_b32 s44, s{sB[1]}")
            a("s_mov_b32 s45, 1")
            a("s_mov_b64 exec, 0")
            a(f"s_branch L_loop{sfx}")
            a.label(f"L_dryend{sfx}")
            a("s_mov_b64 exec, -1")
            a(f"s_mov_b32 s{sStat}, s41"); a(f"s_mov_b32 s{sLeft}, s42")
            a(f"s_mov_b32 s{sB[0]}, s43"); a(f"s_mov_b32 s{sB[1]}, s44")
            a("s_mov_b32 s45, 0")
        if not opts.get("noq"): spin_lds(F_NON, 1, vNon)
        a(f"v_and_b32 v{vt[0]}, 1, v{vL}")
        a(f"v_lshlrev_b32 v{vt[0]}, 8, v{vt[0]}")
        a(f"v_lshrrev_b32 v{vt[1]}, 4, v{vL}")
        a(f"v_lshl_add_u32 v{vt[0]}, v{vt[1]}, 4, v{vt[0]}")
        for i in range(4):
            a(f"ds_read_b128 {vr(vQ+4*i,4)}, v{vt[0]} offset:{QB + i*64}")
        a(f"v_mov_b32 v{vM}, 0xff800000")
        a(f"v_mov_b32 v{vMt}, 0xff800000")
        a(f"v_mov_b32 v{vLs}, 0")
        for i in range(32):
            a(f"v_mov_b32 v{vO+i}, 0")
        a("s_waitcnt lgkmcnt(0)")
        stamp("q_ready") if (sfx == "" or not STAMP) else (stn.__setitem__(0, stn[0]-1), names.pop(), stamp("q_ready"))
        d = [vD + i for i in range(8)]
        a.label(f"L_loop{sfx}")
        for u in range(6):
            a.c(f"==== unrolled group {u} ====")
            ks = KS[u % 2]
            vs = VS[u % 3]
            vsn = VS[(u + 2) % 3]
            b0, b2 = sB[u % 3], sB[(u + 2) % 3]
            cs = sCl[u % 2]
            a(f"s_cmp_ge_u32 s{b0}, {OOB}")
            a("s_cbranch_scc1 L_sdone")
            a(f"s_waitcnt vmcnt({28 if NOCL else 29})")
            for i in range(4):
                cin = "0" if i == 0 else vr(vD, 4)
                a(f"v_mfma_f32_16x16x32_bf16 {vr(vD,4)}, {vr(ks+4*i,4)}, {vr(vQ+4*i,4)}, {cin}")
            if opts.get("lq", 1):
                lk, lsp, ldn = a.newlabel("dyn"), a.newlabel("dsp"), a.newlabel("ddn")
                a(f"s_mov_b32 s{b2}, s{sStat}")
                a(f"s_cmp_gt_i32 s{sLeft}, 0")
                a(f"s_cbranch_scc1 {ldn}")
                a(f"s_mov_b32 s{b2}, {OOB}")
                a(f"s_cmp_lg_u32 s{sCl[0]}, 0")
                a(f"s_cbranch_scc1 {ldn}")
                a(f"v_mov_b32 v{vC[0]}, 1")
                a("s_mov_b64 exec, 1")
                a(f"ds_add_rtn_u32 v{vC[0]}, v{vZ}, v{vC[0]} offset:{F_TK}")
                a("s_waitcnt lgkmcnt(0)")
                if opts.get("rb"):
                    NTb = (4 * (32 - NS))
                    assert NTb & (NTb - 1) == 0
                    a(f"v_readfirstlane_b32 s{sTmp}, v{vC[0]}")
                    a(f"s_mov_b32 s{sCnt}, 0x200000")
                    a.label(lsp)
                    a(f"ds_read_b64 v[18:19], v{vZ} offset:{F_C}")
                    a("s_waitcnt lgkmcnt(0)")
                    a(f"v_readfirstlane_b32 s{sA1}, v19")
                    a(f"v_readfirstlane_b32 s{sA0}, v18")
                    a(f"s_sub_u32 s{sCnt}, s{sCnt}, 1")
                    a(f"s_cmp_eq_u32 s{sCnt}, 0")
                    a(f"s_cselect_b32 s{sA1}, 1, s{sA1}")
                    a(f"s_cmp_eq_u32 s{sA1}, 0")
                    a(f"s_cbranch_scc1 {lsp}")
                    a(f"s_sub_u32 s{sA1}, s{sA1}, 1")
                    a(f"s_add_u32 s{sTmp}, s{sTmp}, s{sA0}")
                    a(f"s_cmp_ge_u32 s{sTmp}, s{sA1}")
                    a(f"s_cbranch_scc1 {lk}")
                    a(f"s_lshr_b32 s{sA0}, s{sTmp}, {NTb.bit_length()-1}")
                    a(f"s_lshl_b32 s{sA0}, s{sA0}, 20")
                    a(f"s_and_b32 s{sA1}, s{sTmp}, {NTb-1}")
                    a(f"s_and_b32 s{sOff}, s{sA1}, 3")
                    a(f"s_lshr_b32 s{sA1}, s{sA1}, 2")
                    a(f"s_lshl_b32 s{sA1}, s{sA1}, {4 if P2P else 3}")
                    a(f"s_add_u32 s{sA1}, s{sA1}, s{sOff}")
                    a(f"s_add_u32 s{sA1}, s{sA1}, {(NS-16)*16+4 if P2P else NS*8}")
                    a(f"s_lshl_b32 s{sA1}, s{sA1}, 12")
                    a(f"s_add_u32 s{b2}, s{sA0}, s{sA1}")
                else:
                    a(f"v_lshlrev_b32 v{vC[0]}, 2, v{vC[0]}")
                    a(f"s_mov_b32 s{sCnt}, 0x200000")
                    a.label(lsp)
                    a(f"ds_read_b32 v{vC[1]}, v{vC[0]} offset:{QQ}")
                    a("s_waitcnt lgkmcnt(0)")
                    a(f"v_readfirstlane_b32 s{b2}, v{vC[1]}")
                    a(f"s_cmp_lg_u32 s{b2}, -1")
                    a(f"s_cbranch_scc1 {lk}")
                    a(f"s_sub_u32 s{sCnt}, s{sCnt}, 1")
                    a(f"s_cmp_lg_u32 s{sCnt}, 0")
                    a(f"s_cbranch_scc1 {lsp}")
                    a(f"s_mov_b32 s{b2}, {OOB}")
                a.label(lk)
                a("s_mov_b64 exec, -1")
                a(f"s_cmp_ge_u32 s{b2}, {OOB}")
                a(f"s_cselect_b32 s{sCl[0]}, 1, 0")
                a.label(ldn)
                if P2P:
                    a(f"s_cmp_eq_u32 s{sLeft}, {NS-15}")
                    a(f"s_mov_b32 s{sTmp}, 65536")
                    a(f"s_cselect_b32 s{sTmp}, {(65536 - 16*65536 + 16384) & 0xffffffff}, s{sTmp}")
                    a(f"s_add_u32 s{sStat}, s{sStat}, s{sTmp}")
                else:
                    a(f"s_add_u32 s{sStat}, s{sStat}, 32768")
                a(f"s_sub_u32 s{sLeft}, s{sLeft}, 1")
                a(f"s_add_u32 s{sOff}, s{b2}, {32768 if P2P else 16384}")
            else:
                a("s_waitcnt lgkmcnt(0)")
                a(f"s_mov_b32 s{sTmp}, s{cs}")
                NT = max(4 * (32 - NS), 1)
                assert NT & (NT - 1) == 0
                if opts.get("porder", 1) == 1:
                    a(f"s_lshr_b32 s{sA0}, s{sTmp}, {NT.bit_length()-1}")
                    a(f"s_lshl_b32 s{sA0}, s{sA0}, 20")
                    a(f"s_and_b32 s{sA1}, s{sTmp}, {NT-1}")
                else:
                    a(f"s_and_b32 s{sA0}, s{sTmp}, 15")
                    a(f"s_lshl_b32 s{sA0}, s{sA0}, 20")
                    a(f"s_lshr_b32 s{sA1}, s{sTmp}, 4")
                a(f"s_and_b32 s{sOff}, s{sA1}, 3")
                a(f"s_lshr_b32 s{sA1}, s{sA1}, 2")
                a(f"s_lshl_b32 s{sA1}, s{sA1}, 3")
                a(f"s_add_u32 s{sA1}, s{sA1}, s{sOff}")
                a(f"s_add_u32 s{sA1}, s{sA1}, {NS*8}")
                a(f"s_lshl_b32 s{sA1}, s{sA1}, 12")
                a(f"s_add_u32 s{sA0}, s{sA0}, s{sA1}")
                a(f"s_cmp_lt_u32 s{sTmp}, {NPOOL}")
                a(f"s_cselect_b32 s{sA0}, s{sA0}, {OOB}")
                a(f"s_cmp_gt_i32 s{sLeft}, 0")
                a(f"s_cselect_b32 s{b2}, s{sStat}, s{sA0}")
                a(f"s_add_u32 s{sStat}, s{sStat}, 32768")
                a(f"s_sub_u32 s{sLeft}, s{sLeft}, 1")
                a(f"s_add_u32 s{sOff}, s{b2}, 16384")
                lk = a.newlabel("ncl")
                a(f"s_cmp_lt_i32 s{sLeft}, 2")
                a(f"s_cbranch_scc0 {lk}")
                a(f"s_mov_b32 s{cs}, 1")
                a(f"s_atomic_add s{cs}, s[{sCA}:{sCA+1}], 0x0 glc")
                a.label(lk)
            a(f"s_waitcnt vmcnt({24 if NOCL else 25})")
            for i in range(4):
                cin = "0" if i == 0 else vr(vD + 4, 4)
                a(f"v_mfma_f32_16x16x32_bf16 {vr(vD+4,4)}, {vr(ks+16+4*i,4)}, {vr(vQ+4*i,4)}, {cin}")
            a.nop(4)
            S = []
            tt = vt
            for k in range(4):
                S.append(f"v_cvt_pk_bf16_f32 v{tt[k]}, v{d[2*k]}, v{d[2*k+1]}")
            for k in range(4):
                S.append(f"v_lshlrev_b32 v{d[2*k]}, 16, v{tt[k]}")
                S.append(f"v_and_b32 v{d[2*k+1]}, 0xffff0000, v{tt[k]}")
            for k in range(8):
                S.append(f"v_mul_f32 v{d[k]}, s{sScale}, v{d[k]}")
            for k in range(4):
                S.append(f"v_cvt_pk_bf16_f32 v{tt[k]}, v{d[2*k]}, v{d[2*k+1]}")
            for k in range(4):
                S.append(f"v_lshlrev_b32 v{d[2*k]}, 16, v{tt[k]}")
                S.append(f"v_and_b32 v{d[2*k+1]}, 0xffff0000, v{tt[k]}")
            mx = tt[4]
            S.append(f"v_max3_f32 v{mx}, v{d[0]}, v{d[1]}, v{d[2]}")
            S.append(f"v_max3_f32 v{mx}, v{mx}, v{d[3]}, v{d[4]}")
            S.append(f"v_max3_f32 v{mx}, v{mx}, v{d[5]}, v{d[6]}")
            S.append(f"v_max3_f32 v{mx}, v{mx}, v{d[7]}, v{vM}")
            for sw in ("v_permlane32_swap_b32", "v_permlane16_swap_b32"):
                S.append(f"v_mov_b32 v{tt[5]}, v{mx}")
                S.append("s_nop 1")
                S.append(f"{sw} v{mx}, v{tt[5]}")
                S.append("s_nop 0")
                S.append(f"v_max_f32 v{mx}, v{mx}, v{tt[5]}")
            S.append(f"v_mul_f32 v{tt[5]}, s{sLog2e}, v{mx}")
            al = tt[6]
            S.append(f"v_sub_f32 v{al}, v{vMt}, v{tt[5]}")
            S.append(f"v_exp_f32 v{al}, v{al}")
            S.append(f"v_mov_b32 v{vM}, v{mx}")
            S.append(f"v_mov_b32 v{vMt}, v{tt[5]}")
            for k in range(8):
                S.append(f"v_fma_f32 v{d[k]}, v{d[k]}, s{sLog2e}, -v{vMt}")
            for k in range(8):
                S.append(f"v_exp_f32 v{d[k]}, v{d[k]}")
            S.append(f"v_readlane_b32 s{sA0}, v{al}, 0")
            S.append(f"v_readlane_b32 s{sA1}, v{al}, 1")
            S.append(f"v_mul_f32 v{vLs}, v{vLs}, v{al}")
            for k in range(4):
                S.append(f"v_cvt_pk_bf16_f32 v{vP+k}, v{d[2*k]}, v{d[2*k+1]}")
            for k in range(8):
                S.append(f"v_add_f32 v{vLs}, v{vLs}, v{d[k]}")
            for i in range(8):
                S.append(f"v_mul_f32 v{vO+4*i}, s{sA0}, v{vO+4*i}")
                S.append(f"v_mul_f32 v{vO+4*i+1}, s{sA1}, v{vO+4*i+1}")
            KL = [Kload(ks, t, i, b2 if t == 0 else sOff) for t in range(2) for i in range(4)]
            a(KL[0]); a(KL[1])
            a.nop(3)
            if opts.get("nosm"): S = S[:8]
            step = max(1, len(S) // 7)
            if opts.get("burst"): step = 1
            kq = 2
            for n, ins in enumerate(S):
                a(ins)
                if (n + 1) % step == 0 and kq < 8:
                    a(KL[kq]); kq += 1
            while kq < 8:
                a(KL[kq]); kq += 1
            a(f"s_waitcnt vmcnt({24 if NOCL else 26})")
            VL = [Vload(vsn, t, r, b2 if t == 0 else sOff) for t in range(2) for r in range(4)]
            def perms(i):
                dd, b = i >> 1, i & 1
                sel = sSelHi if b else sSelLo
                for p in range(4):
                    lo = vs + 4 * (2 * p) + dd
                    hi = vs + 4 * (2 * p + 1) + dd
                    a(f"v_perm_b32 v{vT + 4*(i%2) + p}, v{hi}, v{lo}, s{sel}")
            if not opts.get("nopv"): perms(0)
            for i in range(8):
                if opts.get("nopv"):
                    a(VL[i]); continue
                if i + 1 < 8:
                    perms(i + 1)
                else:
                    a.nop(2)
                a(f"v_mfma_f32_16x16x32_bf16 {vr(vO+4*i,4)}, {vr(vP,4)}, {vr(vT+4*(i%2),4)}, {vr(vO+4*i,4)}")
                a(VL[i])
        if opts.get("dry", 0):
            a("s_cmp_lg_u32 s45, 0")
            a(f"s_cbranch_scc1 L_dryend{sfx}")
        a(f"v_mov_b32 v{vt[9]}, 1")
        a("s_mov_b64 exec, 1")
        if opts.get("rb"):
            lt = a.newlabel("nt")
            a(f"ds_add_rtn_u32 v{vt[9]}, v{vZ}, v{vt[9]} offset:{F_PROG}")
            a(f"s_memrealtime s[{sT64}:{sT64+1}]")
            a("s_waitcnt lgkmcnt(0)")
            a(f"v_readfirstlane_b32 s{sTmp}, v{vt[9]}")
            a(f"s_cmp_lg_u32 s{sTmp}, {opts.get('p1', 12) - 1}")
            a(f"s_cbranch_scc1 {lt}")
            a(f"s_or_b32 s{sTmp}, s{sT64}, 1")
            a(f"v_mov_b32 v{vt[9]}, s{sTmp}")
            a(f"ds_write_b32 v{vZ}, v{vt[9]} offset:{F_T}")
            a.label(lt)
        else:
            a(f"ds_add_u32 v{vZ}, v{vt[9]} offset:{F_PROG}")
        a("s_mov_b64 exec, -1")
        if STAMP:
            a(f"s_memrealtime s[{sT64}:{sT64+1}]")
            a("s_waitcnt lgkmcnt(0)")
            a("s_mov_b32 m0, s40")
            a(f"v_writelane_b32 v{vST}, s{sT64}, m0")
            a("s_add_u32 s40, s40, 1")
        a(f"s_branch L_loop{sfx}")

    VH0 = opts.get("vh0", 16)
    KH0 = opts.get("kh0", 16)
    if VH0 < 16:
        a(f"s_cmp_ge_u32 s{sHP}, {VH0}")
        a("s_cbranch_scc1 L_streamB")
    stream_body("", " nt", " nt")
    if VH0 < 16:
        a.label("L_streamB")
        if KH0 < 16:
            a(f"s_cmp_ge_u32 s{sHP}, {KH0}")
            a("s_cbranch_scc1 L_streamC")
        stream_body("B", " nt", "")
        if KH0 < 16:
            a.label("L_streamC")
            stream_body("C", "", "")
    a.label("L_sdone")
    stamp("s_done")
    a.c("stream wave: write partial to LDS")
    cross_rows(a, "add", vLs, vt[0])
    a.nop(8)
    a(f"s_mul_i32 s{sTmp}, s{sW}, {CSTR}")
    a(f"v_lshlrev_b32 v{vt[0]}, 5, v{vL}")
    a(f"v_add_u32 v{vt[0]}, s{sTmp}, v{vt[0]}")
    a(f"v_add_u32 v{vt[0]}, {COMB}, v{vt[0]}")
    a(f"v_lshlrev_b32 v{vt[1]}, 2, v{vL}")
    a(f"v_add_u32 v{vt[1]}, s{sTmp}, v{vt[1]}")
    a("s_mov_b64 exec, 0xffff")
    for h in range(2):
        for i in range(0, 8, 2):
            a(f"ds_write2_b32 v{vt[0]}, v{vO+4*i+h}, v{vO+4*(i+1)+h} offset0:{h*128+i} offset1:{h*128+i+1}")
    a("s_mov_b64 exec, 3")
    a(f"ds_write_b32 v{vt[1]}, v{vMt} offset:{COMB+1024}")
    a(f"ds_write_b32 v{vt[1]}, v{vLs} offset:{COMB+1032}")
    a("s_mov_b64 exec, -1")
    lds_arrive(F_SCNT, vt[2])
    a("s_branch L_end")

    a.label("L_helper")
    a.c("helper setup")
    a("s_setprio 3")
    sHW = sB[0]
    a(f"s_sub_u32 s{sHW}, s{sW}, 4")
    a(f"s_cmp_lg_u32 s{sW}, 7")
    a("s_cbranch_scc1 L_nz")
    a(f"v_lshlrev_b32 v{vt[0]}, 2, v{vL}")
    a("s_mov_b64 exec, 0xffff")
    a(f"ds_write_b32 v{vt[0]}, v{vZ} offset:{FL}")
    a("s_mov_b64 exec, -1")
    a(f"v_lshlrev_b32 v{vt[0]}, 4, v{vL}")
    for e in range(4):
        a(f"v_mov_b32 v{16+e}, -1")
    for k in range(4):
        a(f"ds_write_b128 v{vt[0]}, v[16:19] offset:{QQ + k*1024}")
    a("s_waitcnt lgkmcnt(0)")
    a.label("L_nz")
    mk(rX, sX, size=1152)
    mk(rWQ, sWQ, size=576 * 8192)
    mk(rDBG, sDBG, size=256)
    hX = 16
    hW = 28
    hF = 48
    hA = 60
    hR = 76
    if opts.get("h0"):
        if not opts.get("nobar"): a("s_barrier")
        a("s_branch L_end")
    a(f"s_cmp_eq_u32 s{sW}, 7")
    a("s_cbranch_scc1 L_w7start")
    a(f"v_lshlrev_b32 v{vt[3]}, 2, v{vL}")
    for j in range(5):
        a(f"buffer_load_dword v{hX+j}, v{vt[3]}, {srd(rX)}, 0 offen offset:{j*256}")
    a(f"v_lshrrev_b32 v{vt[0]}, 3, v{vL}")
    a(f"s_mul_i32 s{sTmp}, s{sRQ}, 144")
    a(f"s_mul_i32 s{sTmp2}, s{sHW}, 48")
    a(f"s_add_u32 s{sTmp}, s{sTmp}, s{sTmp2}")
    a(f"v_add_u32 v{vt[1]}, s{sTmp}, v{vt[0]}")
    a(f"v_lshlrev_b32 v{vt[5]}, 2, v{vt[1]}")
    a(f"v_lshlrev_b32 v{vt[4]}, 13, v{vt[1]}")
    a(f"v_and_b32 v{vt[1]}, 7, v{vL}")
    a(f"v_lshl_add_u32 v{vt[4]}, v{vt[1]}, 4, v{vt[4]}")
    a(f"s_lshl_b32 s{sTmp}, s{sHP}, 9")
    a(f"s_lshl_b32 s{sTmp2}, s{sCQ}, 7")
    a(f"s_add_u32 s{sTmp}, s{sTmp}, s{sTmp2}")
    a(f"v_add_u32 v{vt[4]}, s{sTmp}, v{vt[4]}")
    if opts.get("fake") == 2:
        a(f"s_mul_i32 s{sTmp}, s{sWGI}, 18432")
        a(f"s_mul_i32 s{sTmp2}, s{sHW}, 6144")
        a(f"s_add_u32 s{sTmp}, s{sTmp}, s{sTmp2}")
        a(f"v_lshlrev_b32 v{vt[4]}, 4, v{vL}")
        a(f"v_add_u32 v{vt[4]}, s{sTmp}, v{vt[4]}")
    for i in range(6):
        a(f"s_mov_b32 s{sOff}, {i*1024 if opts.get('fake') == 2 else i*8*8192}")
        a(f"buffer_load_dwordx4 {vr(hR+4*i,4)}, v{vt[4]}, {srd(rWQ)}, s{sOff} offen{WP}")
    a("s_branch L_nononce")
    a.label("L_w7start")
    a(f"s_mov_b32 s{sB[1]}, s{sNon}")
    a(f"s_mov_b32 s{sB[2]}, 0")
    a(f"s_atomic_cmpswap s[{sB[1]}:{sB[2]}], s[{sDBG}:{sDBG+1}], 0x0 glc")
    a("s_mov_b64 exec, 1")
    a(f"s_lshl_b32 s{sTmp}, s{sHP}, 7")
    a(f"s_lshl_b32 s{sTmp2}, s{sJ}, 2")
    a(f"s_add_u32 s{sTmp}, s{sTmp}, s{sTmp2}")
    a(f"s_add_u32 s{sTmp}, s{sTmp}, {WS_CNT}")
    a(f"buffer_store_dword v{vZ}, v{vZ}, {srd(rWS)}, s{sTmp} offen sc1")
    a("s_mov_b64 exec, -1")
    a.label("L_nononce")
    a("s_barrier")
    if opts.get("nohelp"): a("s_branch L_end")
    mk(rWG, sWG, size=576 * 9216)
    mk(rWU, sWU, size=576 * 9216)
    mk(rWO, sWO, size=4096 * 1152)
    mk(rWD, sWD, size=4608 * 1152)
    mk(rOUT, sOUT, size=1152)
    a(f"s_cmp_eq_u32 s{sW}, 7")
    a("s_cbranch_scc1 L_w7x")
    a.c("layernorm")
    a("s_waitcnt vmcnt(6)")
    stamp("x_arrived")
    xf = [hF + i for i in range(10)]
    for j in range(5):
        a(f"v_lshlrev_b32 v{xf[2*j]}, 16, v{hX+j}")
        a(f"v_and_b32 v{xf[2*j+1]}, 0xffff0000, v{hX+j}")
    s_ = vt[0]
    a(f"v_add_f32 v{s_}, v{xf[0]}, v{xf[1]}")
    for i in range(2, 10):
        a(f"v_add_f32 v{s_}, v{s_}, v{xf[i]}")
    wave_allreduce(a, "add", s_, vt[1])
    a(f"v_mul_f32 v{s_}, 0x{f32bits(1.0/576):08x}, v{s_}")
    a(f"v_cmp_gt_u32 vcc, 32, v{vL}")
    q_ = vt[2]
    a(f"v_mov_b32 v{q_}, 0")
    for i in range(10):
        a(f"v_sub_f32 v{vt[1]}, v{xf[i]}, v{s_}")
        if i >= 8:
            a(f"v_cndmask_b32 v{vt[1]}, 0, v{vt[1]}, vcc")
        a(f"v_fmac_f32 v{q_}, v{vt[1]}, v{vt[1]}")
    wave_allreduce(a, "add", q_, vt[1])
    a(f"v_mul_f32 v{q_}, 0x{f32bits(1.0/576):08x}, v{q_}")
    bf16_round(a, s_, s_)
    bf16_round(a, q_, q_)
    a(f"v_add_f32 v{q_}, 0x{f32bits(1e-5):08x}, v{q_}")
    bf16_round(a, q_, q_)
    a(f"v_sqrt_f32 v{q_}, v{q_}")
    a.nop(1)
    bf16_round(a, q_, q_)
    rc = vt[1]
    a(f"v_rcp_f32 v{rc}, v{q_}")
    a.nop(1)
    for i in range(10):
        dd = xf[i]
        a(f"v_sub_f32 v{dd}, v{dd}, v{s_}")
        bf16_round(a, dd, dd)
        a(f"v_mul_f32 v{vt[6]}, v{dd}, v{rc}")
        a(f"v_fma_f32 v{vt[7]}, -v{vt[6]}, v{q_}, v{dd}")
        a(f"v_fma_f32 v{dd}, v{vt[7]}, v{rc}, v{vt[6]}")
        bf16_round(a, dd, dd)
        if i >= 8:
            a(f"v_cndmask_b32 v{dd}, 0, v{dd}, vcc")
    a(f"v_lshlrev_b32 v{vt[0]}, 3, v{vL}")
    for j in range(5):
        a(f"ds_write_b64 v{vt[0]}, {vr(xf[2*j],2)} offset:{XN + j*512}")
    a.c("q slice")
    for i in range(6):
        a(f"ds_read_b32 v{hX+i}, v{vt[5]} offset:{XN + i*32}")
    acc = [hA + i for i in range(8)]
    a("s_waitcnt vmcnt(0) lgkmcnt(0)")
    for i in range(6):
        for dd in range(4):
            r = hR + 4 * i + dd
            a(f"v_lshlrev_b32 v{vt[0]}, 16, v{r}")
            a(f"v_and_b32 v{vt[1]}, 0xffff0000, v{r}")
            if i == 0:
                a(f"v_mul_f32 v{acc[2*dd]}, v{vt[0]}, v{hX+i}")
                a(f"v_mul_f32 v{acc[2*dd+1]}, v{vt[1]}, v{hX+i}")
            else:
                a(f"v_fmac_f32 v{acc[2*dd]}, v{vt[0]}, v{hX+i}")
                a(f"v_fmac_f32 v{acc[2*dd+1]}, v{vt[1]}, v{hX+i}")
    a.nop(2)
    for ctrl in ("row_ror:8",):
        for e in range(8):
            a(f"v_add_f32_dpp v{acc[e]}, v{acc[e]}, v{acc[e]} {ctrl} row_mask:0xf bank_mask:0xf")
    tq = [hW + i for i in range(8)]
    for sw in ("v_permlane32_swap_b32", "v_permlane16_swap_b32"):
        for e in range(8):
            a(f"v_mov_b32 v{tq[e]}, v{acc[e]}")
        for e in range(8):
            a(f"{sw} v{acc[e]}, v{tq[e]}")
        for e in range(8):
            a(f"v_add_f32 v{acc[e]}, v{acc[e]}, v{tq[e]}")
    a(f"s_lshl_b32 s{sTmp}, s{sHW}, 8")
    a(f"v_lshlrev_b32 v{vt[0]}, 5, v{vL}")
    a(f"v_add_u32 v{vt[0]}, s{sTmp}, v{vt[0]}")
    a("s_mov_b64 exec, 0xff")
    a(f"ds_write_b128 v{vt[0]}, {vr(acc[0],4)} offset:{QP}")
    a(f"ds_write_b128 v{vt[0]}, {vr(acc[4],4)} offset:{QP+16}")
    a("s_mov_b64 exec, -1")
    lds_arrive(F_QCNT, vt[2])
    stamp("qpart_done")
    a("s_branch L_xskip")
    a.label("L_w7x")
    a.c("q exchange (wave 7)")
    spin_lds(F_QCNT, 3, vt[2], sleep=0)
    a(f"v_lshlrev_b32 v{vt[0]}, 2, v{vL}")
    for w in range(3):
        a(f"ds_read_b32 v{hW+w}, v{vt[0]} offset:{QP + w*256}")
    a("s_waitcnt vmcnt(0) lgkmcnt(0)")
    a(f"s_cmp_eq_u32 s{sB[1]}, 0")
    a(f"s_cselect_b32 s{sNon}, s{sNon}, s{sB[1]}")
    for w in range(1, 3):
        a(f"v_add_f32 v{hW}, v{hW}, v{hW+w}")
    a(f"v_mov_b32 v{hW+1}, s{sNon}")
    a(f"v_mov_b32 v{vNon}, s{sNon}")
    a(f"s_lshl_b32 s{sOff}, s{sHP}, 13")
    a(f"s_add_u32 s{sOff}, s{sOff}, {WS_Q}")
    a(f"s_lshl_b32 s{sTmp}, s{sRQ}, 11")
    a(f"s_lshl_b32 s{sTmp2}, s{sCQ}, 9")
    a(f"s_add_u32 s{sTmp}, s{sTmp}, s{sTmp2}")
    a(f"s_add_u32 s{sTmp}, s{sTmp}, s{sOff}")
    a(f"v_lshlrev_b32 v{vt[0]}, 3, v{vL}")
    a(f"buffer_store_dwordx2 {vr(hW,2)}, v{vt[0]}, {srd(rWS)}, s{sTmp} offen sc1")
    stamp("x_pub")
    a(f"v_lshlrev_b32 v{vt[0]}, 4, v{vL}")
    a(f"s_add_u32 s{sTmp2}, s{sOff}, 4096")
    if opts.get("pdelay", 8): a(f"s_sleep {opts.get('pdelay', 8)}")
    if opts.get("qpre", 1):
        a(f"v_lshlrev_b32 v{vt[3]}, 9, v{vL}")
        a("s_mov_b64 exec, 0xffff")
        ls = retry_begin()
        a(f"buffer_load_dwordx2 {vr(hR,2)}, v{vt[3]}, {srd(rWS)}, s{sOff} offen sc1")
        retry_end(ls, [hR + 1], vt[1], vt[2], sleep=2)
        a("s_mov_b64 exec, -1")
    ls = retry_begin()
    for k in range(8):
        a(f"buffer_load_dwordx4 {vr(hR+4*k,4)}, v{vt[0]}, {srd(rWS)}, s{sOff if k < 4 else sTmp2} offen offset:{(k%4)*1024} sc1")
    retry_end(ls, [hR + 4 * k + e for k in range(8) for e in (1, 3)], vt[1], vt[2], sleep=2)
    stamp("x_ok")
    for half in range(2):
        for e in (0, 2):
            for r4 in range(1, 4):
                a(f"v_add_f32 v{hR+4*half+e}, v{hR+4*half+e}, v{hR+4*(2*r4+half)+e}")
        a(f"v_cvt_pk_bf16_f32 v{hR+4*half}, v{hR+4*half}, v{hR+4*half+2}")
    a(f"v_lshlrev_b32 v{vt[0]}, 2, v{vL}")
    a(f"ds_write_b32 v{vt[0]}, v{hR} offset:{QB}")
    a(f"ds_write_b32 v{vt[0]}, v{hR+4} offset:{QB+256}")
    a("s_waitcnt lgkmcnt(0)")
    a(f"ds_write_b32 v{vZ}, v{vNon} offset:{F_NON}")
    a.label("L_xskip")
    sHPw, sJw, sRho = sSelLo, sSelHi, sScale
    a(f"s_mov_b32 s{sHPw}, s{sHP}")
    a(f"s_mov_b32 s{sJw}, s{sJ}")
    if opts.get("rho", 1):
        a(f"s_and_b32 s{sRho}, s2, 7")
        a(f"s_lshl_b32 s{sRho}, s{sRho}, 5")
        a(f"s_lshr_b32 s{sTmp}, s2, 3")
        a(f"s_or_b32 s{sRho}, s{sRho}, s{sTmp}")
    else:
        a(f"s_mov_b32 s{sRho}, s2")
    a(f"s_lshr_b32 s{sHP}, s{sRho}, 4")
    a(f"s_and_b32 s{sJ}, s{sRho}, 15")
    a(f"s_lshr_b32 s{sRQ}, s{sJ}, 2")
    a(f"s_and_b32 s{sCQ}, s{sJ}, 3")
    if opts.get("hstop") == 1: a("s_branch L_end")
    if opts.get("ffnwait") == 1:
        spin_lds(F_NON, 1, vNon)
    a.c("ffn phase 1: colblock hp*4+rq (72 cols), rows 144cq+36hw+rr+7i ; lane (rr=l/9, jj=l%9)")
    vFr, vFo, vFo2 = hW, hW + 1, hW + 2
    a(f"v_mul_u32_u24 v{vt[0]}, 57, v{vL}")
    a(f"v_lshrrev_b32 v{vt[0]}, 9, v{vt[0]}")
    a(f"v_mul_u32_u24 v{vt[1]}, 9, v{vt[0]}")
    a(f"v_sub_u32 v{vt[1]}, v{vL}, v{vt[1]}")
    a(f"s_mul_i32 s{sTmp}, s{sCQ}, 144")
    a(f"s_mul_i32 s{sTmp2}, s{sHW}, 36")
    a(f"s_add_u32 s{sTmp}, s{sTmp}, s{sTmp2}")
    a(f"v_add_u32 v{vFr}, s{sTmp}, v{vt[0]}")
    a(f"s_mov_b32 s{sTmp}, 9216")
    a(f"v_mul_lo_u32 v{vFo}, v{vFr}, s{sTmp}")
    a(f"v_lshl_add_u32 v{vFo}, v{vt[1]}, 4, v{vFo}")
    a(f"s_lshl_b32 s{sTmp}, s{sHP}, 2")
    a(f"s_add_u32 s{sTmp}, s{sTmp}, s{sRQ}")
    a(f"s_mul_i32 s{sTmp}, s{sTmp}, 144")
    a(f"v_add_u32 v{vFo}, s{sTmp}, v{vFo}")
    a(f"v_mov_b32 v{vt[1]}, 0x7f000000")
    a(f"v_cmp_gt_u32 vcc, 63, v{vL}")
    a.nop(2)
    a(f"v_cndmask_b32 v{vFo}, v{vt[1]}, v{vFo}, vcc")
    a(f"v_cmp_gt_u32 vcc, 9, v{vL}")
    a.nop(2)
    a(f"v_cndmask_b32 v{vFo2}, v{vt[1]}, v{vFo}, vcc")
    for i in range(6):
        a(f"s_mov_b32 s{sOff}, {i*7*9216}")
        a(f"buffer_load_dwordx4 {vr(hR+8*i,4)}, v{vFo if i < 5 else vFo2}, {srd(rWG)}, s{sOff} offen{WP2}")
        a(f"buffer_load_dwordx4 {vr(hR+8*i+4,4)}, v{vFo if i < 5 else vFo2}, {srd(rWU)}, s{sOff} offen{WP2}")
    if opts.get("hstop") == 2:
        a("s_waitcnt vmcnt(0)"); a("s_branch L_end")
    hW2 = 148
    vR3, vC18, vW2o = 12, 13, 14
    a(f"v_mul_u32_u24 v{vR3}, 57, v{vL}")
    a(f"v_lshrrev_b32 v{vR3}, 10, v{vR3}")
    a(f"v_mul_u32_u24 v{vC18}, 18, v{vR3}")
    a(f"v_sub_u32 v{vC18}, v{vL}, v{vC18}")
    a(f"s_mul_i32 s{sTmp}, s{sHW}, 3")
    a(f"v_add_u32 v{vR3}, s{sTmp}, v{vR3}")
    a(f"s_mov_b32 s{sTmp}, 1152")
    a(f"v_mul_lo_u32 v{vW2o}, v{vR3}, s{sTmp}")
    a(f"v_lshl_add_u32 v{vW2o}, v{vC18}, 4, v{vW2o}")
    a(f"s_mul_i32 s{sTmp}, s{sCQ}, 288")
    a(f"v_add_u32 v{vW2o}, s{sTmp}, v{vW2o}")
    a(f"s_lshl_b32 s{sTmp}, s{sHP}, 2")
    a(f"s_add_u32 s{sTmp}, s{sTmp}, s{sRQ}")
    a(f"s_mul_i32 s{sOff}, s{sTmp}, {64*1152}")
    a(f"s_mul_i32 s{sA1}, s{sTmp}, {72*1152}")
    def wo_loads():
        a(f"s_lshl_b32 s{sTmp}, s{sHP}, 2")
        a(f"s_add_u32 s{sTmp}, s{sTmp}, s{sRQ}")
        a(f"s_mul_i32 s{sOff}, s{sTmp}, {64*1152}")
        for i in range(6):
            a(f"v_add_u32 v{vt[1]}, {12*i}, v{vR3}")
            a(f"v_cmp_gt_u32 vcc, 64, v{vt[1]}")
            a(f"s_mov_b32 s{sEx}, -1")
            a(f"s_mov_b32 s{sEx+1}, 0x3fffff")
            a(f"s_and_b64 vcc, vcc, s[{sEx}:{sEx+1}]")
            for e in range(4):
                a(f"v_mov_b32 v{hW2+4*i+e}, 0")
            a("s_mov_b64 exec, vcc")
            lk = a.newlabel("w2s")
            a(f"s_cbranch_execz {lk}")
            a(f"buffer_load_dwordx4 {vr(hW2+4*i,4)}, v{vW2o}, {srd(rWO)}, s{sOff} offen{WP2}")
            a.label(lk)
            a("s_mov_b64 exec, -1")
            a(f"s_add_u32 s{sOff}, s{sOff}, {12*1152}")
    if not opts.get("wolate", 1): wo_loads()
    if not opts.get("wdlate", 1):
        for i in range(6):
            for e in range(4):
                a(f"v_mov_b32 v{hW2+24+4*i+e}, 0")
        a("s_mov_b32 exec_hi, 0x3fffff")
        if opts.get("fake"):
            a(f"s_mul_i32 s{sA1}, s{sWGI}, 20736")
            a(f"s_mul_i32 s{sTmp2}, s{sHW}, {6*864}")
            a(f"s_add_u32 s{sA1}, s{sA1}, s{sTmp2}")
        for i in range(6):
            a(f"buffer_load_dwordx4 {vr(hW2+24+4*i,4)}, v{vt[0] if opts.get('fake') else vW2o}, {srd(rWD)}, s{sA1} offen{WP2}")
            a(f"s_add_u32 s{sA1}, s{sA1}, {864 if opts.get('fake') else 12*1152}")
        a("s_mov_b64 exec, -1")
    vRd, vWdo = 204, 205
    def wd_loads():
        lk = a.newlabel("wd")
        a(f"s_cmp_eq_u32 s{sHW}, 0")
        a(f"s_cbranch_scc1 {lk}")
        a(f"v_subrev_u32 v{vRd}, 3, v{vR3}")
        a(f"v_subrev_u32 v{vWdo}, {3*1152}, v{vW2o}")
        a(f"s_lshl_b32 s{sTmp}, s{sHP}, 2")
        a(f"s_add_u32 s{sTmp}, s{sTmp}, s{sRQ}")
        a(f"s_mul_i32 s{sOff}, s{sTmp}, {72*1152}")
        for i in range(8):
            for e in range(4):
                a(f"v_mov_b32 v{hW2+24+4*i+e}, 0")
        a("s_mov_b32 exec_hi, 0x3fffff")
        for i in range(8):
            a(f"buffer_load_dwordx4 {vr(hW2+24+4*i,4)}, v{vWdo}, {srd(rWD)}, s{sOff} offen{WP2}")
            a(f"s_add_u32 s{sOff}, s{sOff}, {9*1152}")
        a("s_mov_b64 exec, -1")
        a.label(lk)
    a(f"v_lshlrev_b32 v{vt[1]}, 2, v{vFr}")
    for r in range(6):
        a(f"ds_read_b32 v{hX+r}, v{vt[1]} offset:{XN + r*28}")
    xr = [hX + r for r in range(6)]
    fac = [hA + i for i in range(16)]
    a("s_waitcnt vmcnt(0) lgkmcnt(0)")
    for r in range(6):
        for mt in range(2):
            for dd in range(4):
                rg = hR + 8 * r + 4 * mt + dd
                a(f"v_lshlrev_b32 v{vt[2]}, 16, v{rg}")
                a(f"v_and_b32 v{vt[3]}, 0xffff0000, v{rg}")
                if r == 0:
                    a(f"v_mul_f32 v{fac[8*mt+2*dd]}, v{vt[2]}, v{xr[r]}")
                    a(f"v_mul_f32 v{fac[8*mt+2*dd+1]}, v{vt[3]}, v{xr[r]}")
                else:
                    a(f"v_fmac_f32 v{fac[8*mt+2*dd]}, v{vt[2]}, v{xr[r]}")
                    a(f"v_fmac_f32 v{fac[8*mt+2*dd+1]}, v{vt[3]}, v{xr[r]}")
    a(f"s_lshl_b32 s{sTmp}, s{sHW}, 12")
    a(f"v_lshlrev_b32 v{vt[0]}, 6, v{vL}")
    a(f"v_add_u32 v{vt[0]}, s{sTmp}, v{vt[0]}")
    for k in range(4):
        a(f"ds_write_b128 v{vt[0]}, {vr(fac[4*k],4)} offset:{FFP + k*16}")
    lds_arrive(F_FCNT, vt[2], ret=True)
    a(f"s_mov_b32 s{sA0}, s{sTmp}")
    stamp("ffn1_done")
    if opts.get("hstop") == 3: a("s_branch L_end")
    spin_lds(F_NON, 1, vNon)
    a(f"s_mov_b32 s{sNon}, s{sTmp}")
    a(f"s_cmp_lg_u32 s{sA0}, 3")
    a("s_cbranch_scc1 L_fpskip")
    a.c("last arriver: sum 28 partials for 144 outputs, publish")
    a(f"v_lshrrev_b32 v{vt[0]}, 2, v{vL}")
    a(f"v_lshlrev_b32 v{vt[0]}, 6, v{vt[0]}")
    a(f"v_and_b32 v{vt[1]}, 3, v{vL}")
    a(f"v_lshl_add_u32 v{vt[0]}, v{vt[1]}, 3, v{vt[0]}")
    a("s_mov_b32 exec_hi, 0xf")
    for mt in range(2):
        for w in range(4):
            for rr in range(7):
                k = w * 7 + rr
                a(f"ds_read_b64 {vr(hR+2*k,2)}, v{vt[0]} offset:{FFP + (w*64 + rr*9)*64 + mt*32}")
        a("s_waitcnt lgkmcnt(0)")
        a(f"v_add_f32 v{hA+4*mt}, v{hR}, v{hR+2}")
        a(f"v_add_f32 v{hA+4*mt+2}, v{hR+1}, v{hR+3}")
        for k in range(2, 28):
            a(f"v_add_f32 v{hA+4*mt}, v{hA+4*mt}, v{hR+2*k}")
            a(f"v_add_f32 v{hA+4*mt+2}, v{hA+4*mt+2}, v{hR+2*k+1}")
        a(f"v_mov_b32 v{hA+4*mt+1}, v{vNon}")
        a(f"v_mov_b32 v{hA+4*mt+3}, v{vNon}")
    a(f"s_mul_i32 s{sOff}, s{sRho}, 1152")
    a(f"s_add_u32 s{sOff}, s{sOff}, {WS_FP}")
    a(f"v_lshlrev_b32 v{vt[0]}, 4, v{vL}")
    a(f"buffer_store_dwordx4 {vr(hA,4)}, v{vt[0]}, {srd(rWS)}, s{sOff} offen sc1")
    a(f"buffer_store_dwordx4 {vr(hA+4,4)}, v{vt[0]}, {srd(rWS)}, s{sOff} offen offset:576 sc1")
    a("s_mov_b64 exec, -1")
    a.label("L_fpskip")
    if opts.get("hstop") == 5: a("s_branch L_end")
    a(f"s_setprio {opts.get('hprio', 1)}")
    a(f"s_cmp_lg_u32 s{sW}, 4")
    a("s_cbranch_scc1 L_rsskip")
    a.c("gather 4 quarter-partials -> h[72] -> LDS INH (wave 4)")
    a(f"s_and_b32 s{sTmp}, s{sRho}, 0xfc")
    a(f"s_mul_i32 s{sA0}, s{sTmp}, 1152")
    a(f"s_add_u32 s{sA0}, s{sA0}, {WS_FP}")
    a(f"s_add_u32 s{sA1}, s{sA0}, 2304")
    a(f"v_lshlrev_b32 v{vt[0]}, 4, v{vL}")
    spin_lds(F_PROG, opts.get("g1", 4), vt[2], sleep=32)
    a("s_mov_b32 exec_hi, 0xf")
    ls = retry_begin()
    for k in range(4):
        for mt in range(2):
            a(f"buffer_load_dwordx4 {vr(hR+8*k+4*mt,4)}, v{vt[0]}, {srd(rWS)}, s{sA0 if k < 2 else sA1} offen offset:{(k%2)*1152 + mt*576} sc1")
    retry_end(ls, [hR + 4 * k + e for k in range(8) for e in (1, 3)], vt[1], vt[2], sleep=32)
    for k in range(1, 4):
        for q in (0, 2, 4, 6):
            a(f"v_add_f32 v{hR+q}, v{hR+q}, v{hR+8*k+q}")
    for q in (0, 2, 4, 6):
        bf16_round(a, hR + q, hR + q)
    for q in (0, 2):
        silu(hR + q)
        a(f"v_mul_f32 v{hR+q}, v{hR+q}, v{hR+4+q}")
        bf16_round(a, hR + q, hR + q)
    a(f"v_mov_b32 v{hR+1}, v{hR+2}")
    a(f"v_lshlrev_b32 v{vt[0]}, 3, v{vL}")
    a(f"ds_write_b64 v{vt[0]}, {vr(hR,2)} offset:{INH}")
    a("s_mov_b64 exec, -1")
    lds_arrive(F_H, vt[2])
    stamp("h_pub")
    a.label("L_rsskip")
    if opts.get("hstop") == 6: a("s_branch L_end")

    def slice_matmul(inaddr, wbase, fin, cnt_flag, wsbase, tagname, nw=4):
        nl = 6 if nw == 4 else 8
        a(f"v_lshlrev_b32 v{vt[0]}, 2, v{vR3 if nw == 4 else vRd}")
        for i in range(nl):
            a(f"ds_read_b32 v{hX+i}, v{vt[0]} offset:{inaddr + i*(48 if nw == 4 else 36)}")
        a("s_waitcnt lgkmcnt(0)")
        fa = [hA + e for e in range(8)]
        for i in range(nl):
            for dd in range(4):
                rg = wbase + 4 * i + dd
                a(f"v_lshlrev_b32 v{vt[2]}, 16, v{rg}")
                a(f"v_and_b32 v{vt[3]}, 0xffff0000, v{rg}")
                if i == 0:
                    a(f"v_mul_f32 v{fa[2*dd]}, v{vt[2]}, v{hX+i}")
                    a(f"v_mul_f32 v{fa[2*dd+1]}, v{vt[3]}, v{hX+i}")
                else:
                    a(f"v_fmac_f32 v{fa[2*dd]}, v{vt[2]}, v{hX+i}")
                    a(f"v_fmac_f32 v{fa[2*dd+1]}, v{vt[3]}, v{hX+i}")
        a(f"s_lshl_b32 s{sTmp}, s{sHW}, 11")
        a(f"v_lshlrev_b32 v{vt[0]}, 5, v{vL}")
        a(f"v_add_u32 v{vt[0]}, s{sTmp}, v{vt[0]}")
        a(f"ds_write_b128 v{vt[0]}, {vr(fa[0],4)} offset:{fin}")
        a(f"ds_write_b128 v{vt[0]}, {vr(fa[4],4)} offset:{fin+16}")
        lds_arrive(cnt_flag, vt[2], ret=True)
        lk = a.newlabel("sm")
        a(f"s_cmp_lg_u32 s{sTmp}, {nw-1}")
        a(f"s_cbranch_scc1 {lk}")
        a(f"v_lshlrev_b32 v{vt[0]}, 2, v{vL}")
        for k in range(3):
            for w in range(nw):
                for r3 in range(3):
                    a(f"ds_read_b32 v{hR+12*k+3*w+r3}, v{vt[0]} offset:{fin + (w + 4 - nw)*2048 + r3*576 + k*256}")
        a(f"s_lshl_b32 s{sTmp}, s{sHP}, 2")
        a(f"s_add_u32 s{sTmp}, s{sTmp}, s{sRQ}")
        a(f"s_lshl_b32 s{sOff}, s{sCQ}, 6")
        a(f"s_add_u32 s{sOff}, s{sOff}, s{sTmp}")
        a(f"s_mul_i32 s{sOff}, s{sOff}, 1152")
        a(f"s_add_u32 s{sOff}, s{sOff}, {wsbase}")
        a(f"v_lshlrev_b32 v{vt[0]}, 3, v{vL}")
        a("s_waitcnt lgkmcnt(0)")
        for k in range(3):
            for q in range(1, 3 * nw):
                a(f"v_add_f32 v{hR+12*k}, v{hR+12*k}, v{hR+12*k+q}")
            a(f"v_mov_b32 v{hR+12*k+1}, v{vNon}")
            if k == 2:
                a("s_mov_b64 exec, 0xffff")
            a(f"buffer_store_dwordx2 {vr(hR+12*k,2)}, v{vt[0]}, {srd(rWS)}, s{sOff} offen offset:{k*512} sc1")
        a("s_mov_b64 exec, -1")
        stamp(tagname)
        a.label(lk)

    def fin_gather(wsbase, dst, cntflag, sleep, both=False):
        a(f"s_mul_i32 s{sTmp}, s{sHW}, 3")
        a(f"v_subrev_u32 v{vt[4]}, s{sTmp}, v{vR3}")
        a(f"s_mov_b32 s{sTmp}, 1152")
        a(f"v_mul_lo_u32 v{vt[0]}, v{vt[4]}, s{sTmp}")
        a(f"v_lshl_add_u32 v{vt[0]}, v{vC18}, 4, v{vt[0]}")
        a(f"s_lshr_b32 s{sTmp}, s{sJ}, 2")
        a(f"s_lshl_b32 s{sTmp}, s{sTmp}, 6")
        a(f"s_lshl_b32 s{sTmp2}, s{sHW}, 4")
        a(f"s_add_u32 s{sTmp}, s{sTmp}, s{sTmp2}")
        a(f"s_mul_i32 s{sA0}, s{sTmp}, 1152")
        a(f"s_and_b32 s{sTmp}, s{sJ}, 3")
        a(f"s_mul_i32 s{sTmp}, s{sTmp}, 288")
        a(f"s_add_u32 s{sA0}, s{sA0}, s{sTmp}")
        a(f"s_add_u32 s{sA0}, s{sA0}, {wsbase}")
        nb = 2 if both else 1
        for bz in range(nb):
            a(f"v_mov_b32 v{hR+24*bz+20}, 0")
            a(f"v_mov_b32 v{hR+24*bz+21}, v{vNon}")
            a(f"v_mov_b32 v{hR+24*bz+22}, 0")
            a(f"v_mov_b32 v{hR+24*bz+23}, v{vNon}")
        a("s_mov_b32 exec_hi, 0x3fffff")
        ls = retry_begin()
        for bz in range(nb):
            a(f"s_add_u32 s{sOff}, s{sA0}, {bz * (WS_Y2 - WS_S2)}")
            for i in range(6):
                if i == 5:
                    a("s_mov_b64 exec, 0x3ffff")
                a(f"buffer_load_dwordx4 {vr(hR+24*bz+4*i,4)}, v{vt[0]}, {srd(rWS)}, s{sOff} offen sc1")
                a(f"s_add_u32 s{sOff}, s{sOff}, {3*1152}")
            a("s_mov_b32 exec_lo, -1")
            a("s_mov_b32 exec_hi, 0x3fffff")
        retry_end(ls, [hR + 4 * i + e for i in range(6 * nb) for e in (1, 3)], vt[1], vt[2], sleep=sleep)
        a(f"s_lshl_b32 s{sTmp}, s{sHW}, 9")
        a(f"v_lshlrev_b32 v{vt[0]}, 3, v{vL}")
        a(f"v_add_u32 v{vt[0]}, s{sTmp}, v{vt[0]}")
        for bz in range(nb):
            b_ = hR + 24 * bz
            for i in range(1, 6):
                a(f"v_add_f32 v{b_}, v{b_}, v{b_+4*i}")
                a(f"v_add_f32 v{b_+2}, v{b_+2}, v{b_+4*i+2}")
            a(f"v_mov_b32 v{b_+1}, v{b_+2}")
            a(f"ds_write_b64 v{vt[0]}, {vr(b_,2)} offset:{dst + 2048*bz}")
        a("s_mov_b64 exec, -1")
        lds_arrive(cntflag, vt[2], ret=True)

    if opts.get("wdlate", 1):
        a(f"v_lshlrev_b32 v{vt[0]}, 2, v{vL}")
        a(f"ds_write_b32 v{vt[0]}, v{vZ} offset:{INO+256}")
        spin_lds(F_H, 1, vt[2], sleep=32)
        a(f"s_mul_i32 s{sTmp}, s{sJ}, 72")
        a(f"v_lshlrev_b32 v206, 1, v{vL}")
        a(f"v_add_u32 v206, s{sTmp}, v206")
        a(f"buffer_load_ushort v207, v206, {srd(rX)}, 0 offen")
    else:
        a.c("y-part matmul")
        spin_lds(F_H, 1, vt[2], sleep=32)
        slice_matmul(INH, hW2 + 24, FIN2, F_YCNT, WS_Y2, "y_pub")
        if opts.get("hstop") == 7: a("s_branch L_end")
        a(f"v_lshlrev_b32 v{vt[0]}, 2, v{vL}")
        a(f"ds_write_b32 v{vt[0]}, v{vZ} offset:{INO+256}")
        a(f"s_cmp_lg_u32 s{sHP}, s{sJ}")
        a("s_cbranch_scc1 L_noyg")
        spin_lds(F_PROG, opts.get("g3", 8), vt[2], sleep=32)
        fin_gather(WS_Y2, G2 + 2048, F_Y2CNT, 64)
        a(f"s_cmp_lg_u32 s{sTmp}, 3")
        a("s_cbranch_scc1 L_noyg")
        a.c("precompute silu(y) and x for the 36 output columns")
        a(f"s_mul_i32 s{sTmp}, s{sJ}, 72")
        a(f"v_lshlrev_b32 v{vt[6]}, 1, v{vL}")
        a(f"v_add_u32 v{vt[6]}, s{sTmp}, v{vt[6]}")
        a("s_mov_b32 exec_hi, 0xf")
        a(f"buffer_load_ushort v{hR+13}, v{vt[6]}, {srd(rX)}, 0 offen")
        a(f"v_lshlrev_b32 v{vt[0]}, 2, v{vL}")
        for w in range(4):
            for pp in range(3):
                a(f"ds_read_b32 v{hR+3*w+pp}, v{vt[0]} offset:{G2 + 2048 + w*512 + pp*144}")
        a("s_waitcnt lgkmcnt(0)")
        for q in range(1, 12):
            a(f"v_add_f32 v{hR}, v{hR}, v{hR+q}")
        bf16_round(a, hR, hR)
        silu(hR)
        a("s_waitcnt vmcnt(0)")
        a(f"v_lshlrev_b32 v{hR+1}, 16, v{hR+13}")
        a(f"v_lshlrev_b32 v{vt[0]}, 3, v{vL}")
        a(f"ds_write_b64 v{vt[0]}, {vr(hR,2)} offset:{GX}")
        a("s_mov_b64 exec, -1")
        a.label("L_noyg")
    stamp("h_idle")
    if opts.get("hstop") == 4: a("s_branch L_end")
    if opts.get("rb"):
        a.c("rate-balance partition (wave 6)")
        NTb = 4 * (32 - NS)
        G = 16 * NTb
        a(f"s_cmp_lg_u32 s{sW}, 6")
        a("s_cbranch_scc1 L_rbskip")
        spin_lds(F_T, 1, vt[2], sleep=4)
        a(f"s_sub_u32 s{sTmp}, s{sTmp}, s{sNon}")
        a(f"v_mov_b32 v{hR}, s{sTmp}")
        a(f"v_mov_b32 v{hR+1}, v{vNon}")
        a(f"s_lshl_b32 s{sOff}, s{sHPw}, 7")
        a(f"s_add_u32 s{sOff}, s{sOff}, {WS_CNT}")
        a(f"s_lshl_b32 s{sTmp}, s{sJw}, 3")
        a(f"s_add_u32 s{sTmp}, s{sTmp}, s{sOff}")
        a("s_mov_b64 exec, 1")
        a(f"buffer_store_dwordx2 {vr(hR,2)}, v{vZ}, {srd(rWS)}, s{sTmp} offen sc1")
        a("s_mov_b64 exec, -1")
        spin_lds(F_PROG, opts.get("p2", 14), vt[2], sleep=8)
        a(f"v_lshlrev_b32 v{vt[0]}, 3, v{vL}")
        a("s_mov_b64 exec, 0xffff")
        ls = retry_begin()
        a(f"buffer_load_dwordx2 {vr(hR,2)}, v{vt[0]}, {srd(rWS)}, s{sOff} offen sc1")
        retry_end(ls, [hR + 1], vt[1], vt[2], sleep=16)
        x_, sm = hR + 2, hR + 3
        a(f"v_cvt_f32_u32 v{x_}, v{hR}")
        a(f"v_rcp_f32 v{x_}, v{x_}")
        a.nop(1)
        a(f"v_mov_b32 v{sm}, v{x_}")
        for ctrl in ("quad_perm:[1,0,3,2]", "quad_perm:[2,3,0,1]", "row_half_mirror", "row_mirror"):
            a.nop(2)
            a(f"v_add_f32_dpp v{sm}, v{sm}, v{sm} {ctrl} row_mask:0xf bank_mask:0xf")
        a(f"v_rcp_f32 v{sm}, v{sm}")
        a.nop(1)
        a(f"v_mul_f32 v{x_}, v{x_}, v{sm}")
        W = float(opts.get("wtot", 138))
        a(f"v_mul_f32 v{x_}, 0x{f32bits(16*W):08x}, v{x_}")
        a(f"v_add_f32 v{x_}, 0x{f32bits(NTb - W):08x}, v{x_}")
        a(f"v_max_f32 v{x_}, 0, v{x_}")
        for sh in (1, 2, 4, 8):
            a.nop(2)
            a(f"v_add_f32_dpp v{x_}, v{x_}, v{x_} row_shr:{sh} row_mask:0xf bank_mask:0xf bound_ctrl:0")
        a.nop(1)
        a(f"v_readlane_b32 s{sTmp}, v{x_}, 15")
        a.nop(2)
        a(f"v_mov_b32 v{sm}, s{sTmp}")
        a(f"v_rcp_f32 v{sm}, v{sm}")
        a.nop(1)
        a(f"v_mul_f32 v{x_}, v{x_}, v{sm}")
        a(f"v_mul_f32 v{x_}, 0x{f32bits(float(G)):08x}, v{x_}")
        a(f"v_add_f32 v{x_}, 0.5, v{x_}")
        a(f"v_cvt_u32_f32 v{x_}, v{x_}")
        a(f"v_min_u32 v{x_}, {G}, v{x_}")
        a("s_mov_b64 exec, -1")
        a.nop(1)
        a(f"s_mov_b32 m0, s{sJw}")
        a(f"v_readlane_b32 s{sA1}, v{x_}, m0")
        a(f"s_cmp_eq_u32 s{sJw}, 15")
        a(f"s_cselect_b32 s{sA1}, {G}, s{sA1}")
        a(f"s_sub_u32 s{sTmp}, s{sJw}, 1")
        a(f"s_max_i32 s{sTmp}, s{sTmp}, 0")
        a(f"s_mov_b32 m0, s{sTmp}")
        a(f"v_readlane_b32 s{sA0}, v{x_}, m0")
        a(f"s_cmp_eq_u32 s{sJw}, 0")
        a(f"s_cselect_b32 s{sA0}, 0, s{sA0}")
        a(f"s_add_u32 s{sA1}, s{sA1}, 1")
        a(f"v_mov_b32 v{hR}, s{sA0}")
        a(f"v_mov_b32 v{hR+1}, s{sA1}")
        a(f"ds_write_b64 v{vZ}, {vr(hR,2)} offset:{F_C}")
        a.label("L_rbskip")
    if opts.get("lq", 1) and NS < 32 and not opts.get("rb"):
        a.c("dispatcher (wave 5)")
        LA, BB = opts.get("la", 4), opts.get("bb", 2)
        NT = 4 * (32 - NS)
        a(f"s_cmp_lg_u32 s{sW}, 5")
        a("s_cbranch_scc1 L_dskip")
        spin_lds(F_PROG, 4 * ((NS - 4) // 6), vt[2], sleep=16)
        sFil, sP = sB[1], sB[2]
        sVic, sBat = sA0, sA1
        a(f"s_lshl_b32 s{sTmp}, s{sHP}, 7")
        a(f"s_add_u32 s{sTmp2}, s{sTmp}, {WS_CNT}")
        a(f"s_add_u32 s{sEx}, s{sWS}, s{sTmp2}")
        a(f"s_addc_u32 s{sEx+1}, s{sWS+1}, 0")
        a(f"s_mov_b32 s{sFil}, 0")
        a(f"s_mov_b32 s{sVic}, s{sJ}")
        a(f"s_mov_b32 s{sBat}, {BB}")
        a(f"s_mov_b32 s{sCnt}, 0x200000")
        a(f"v_lshlrev_b32 v{vt[4]}, 2, v{vL}")
        a.label("L_dloop")
        a(f"ds_read_b32 v{vt[2]}, v{vZ} offset:{F_TK}")
        a("s_waitcnt lgkmcnt(0)")
        a(f"v_readfirstlane_b32 s{sTmp}, v{vt[2]}")
        a(f"s_add_u32 s{sTmp}, s{sTmp}, {LA}")
        a(f"s_cmp_lt_u32 s{sFil}, s{sTmp}")
        a("s_cbranch_scc1 L_dclaim")
        a(f"s_sub_u32 s{sCnt}, s{sCnt}, 1")
        a(f"s_cmp_eq_u32 s{sCnt}, 0")
        a("s_cbranch_scc1 L_dend")
        a("s_sleep 2")
        a("s_branch L_dloop")
        a.label("L_dclaim")
        a(f"s_mov_b32 s{sP}, s{sBat}")
        a(f"s_lshl_b32 s{sOff}, s{sVic}, 2")
        a(f"s_atomic_add s{sP}, s[{sEx}:{sEx+1}], s{sOff} glc")
        a("s_waitcnt lgkmcnt(0)")
        a(f"s_sub_i32 s{sTmp}, {NT}, s{sP}")
        a(f"s_max_i32 s{sTmp}, s{sTmp}, 0")
        a(f"s_min_i32 s{sTmp}, s{sTmp}, s{sBat}")
        a(f"s_cmp_eq_u32 s{sTmp}, 0")
        a("s_cbranch_scc1 L_dscan")
        a(f"v_add_u32 v{vt[2]}, s{sP}, v{vL}")
        a(f"v_lshrrev_b32 v{vt[3]}, 2, v{vt[2]}")
        a(f"v_lshlrev_b32 v{vt[3]}, 3, v{vt[3]}")
        a(f"v_and_b32 v{vt[2]}, 3, v{vt[2]}")
        a(f"v_add_u32 v{vt[2]}, v{vt[2]}, v{vt[3]}")
        a(f"v_add_u32 v{vt[2]}, {NS*8}, v{vt[2]}")
        a(f"v_lshlrev_b32 v{vt[2]}, 12, v{vt[2]}")
        a(f"s_lshl_b32 s{sOff}, s{sVic}, 20")
        a(f"v_add_u32 v{vt[1]}, s{sOff}, v{vt[2]}")
        a(f"v_add_u32 v{vt[0]}, s{sFil}, v{vL}")
        a(f"v_lshlrev_b32 v{vt[0]}, 2, v{vt[0]}")
        a(f"s_lshl_b32 s{sOff}, 1, s{sTmp}")
        a(f"s_sub_u32 s{sOff}, s{sOff}, 1")
        a(f"s_mov_b32 exec_lo, s{sOff}")
        a("s_mov_b32 exec_hi, 0")
        a(f"ds_write_b32 v{vt[0]}, v{vt[1]} offset:{QQ}")
        a("s_mov_b64 exec, -1")
        a(f"s_add_u32 s{sFil}, s{sFil}, s{sTmp}")
        a(f"s_cmp_eq_u32 s{sVic}, s{sJ}")
        a("s_cbranch_scc1 L_dloop")
        a.label("L_dwait")
        a(f"ds_read_b32 v{vt[2]}, v{vZ} offset:{F_TK}")
        a("s_waitcnt lgkmcnt(0)")
        a(f"v_readfirstlane_b32 s{sTmp}, v{vt[2]}")
        a(f"s_add_u32 s{sTmp}, s{sTmp}, {opts.get('la2', LA)}")
        a(f"s_cmp_lt_u32 s{sFil}, s{sTmp}")
        a("s_cbranch_scc1 L_dscan")
        a(f"s_sub_u32 s{sCnt}, s{sCnt}, 1")
        a(f"s_cmp_eq_u32 s{sCnt}, 0")
        a("s_cbranch_scc1 L_dend")
        a("s_sleep 2")
        a("s_branch L_dwait")
        a.label("L_dscan")
        a("s_mov_b64 exec, 0xffff")
        a(f"buffer_load_dword v{vt[0]}, v{vt[4]}, {srd(rWS)}, s{sTmp2} offen sc1")
        a("s_waitcnt vmcnt(0)")
        a(f"v_sub_u32 v{vt[0]}, {NT}, v{vt[0]}")
        a(f"v_max_i32 v{vt[0]}, 0, v{vt[0]}")
        a(f"v_subrev_u32 v{vt[1]}, s{sJ}, v{vL}")
        a(f"v_and_b32 v{vt[1]}, 15, v{vt[1]}")
        a(f"v_lshl_add_u32 v{vt[0]}, v{vt[0]}, 4, v{vt[1]}")
        a(f"v_mov_b32 v{vt[1]}, v{vt[0]}")
        for ctrl in ("quad_perm:[1,0,3,2]", "quad_perm:[2,3,0,1]", "row_half_mirror", "row_mirror"):
            a.nop(2)
            a(f"v_max_u32_dpp v{vt[1]}, v{vt[1]}, v{vt[1]} {ctrl} row_mask:0xf bank_mask:0xf")
        a.nop(1)
        a(f"v_readfirstlane_b32 s{sTmp}, v{vt[1]}")
        a("s_mov_b64 exec, -1")
        a(f"s_cmp_lt_u32 s{sTmp}, {16 * opts.get('minrem', 1)}")
        a("s_cbranch_scc1 L_dend")
        a(f"s_and_b32 s{sTmp}, s{sTmp}, 15")
        a(f"s_add_u32 s{sTmp}, s{sTmp}, s{sJ}")
        a(f"s_and_b32 s{sVic}, s{sTmp}, 15")
        a(f"s_mov_b32 s{sBat}, 1")
        a("s_branch L_dclaim")
        a.label("L_dend")
        a(f"v_add_u32 v{vt[0]}, s{sFil}, v{vL}")
        a(f"v_lshlrev_b32 v{vt[0]}, 2, v{vt[0]}")
        a(f"v_mov_b32 v{vt[1]}, {OOB}")
        a("s_mov_b64 exec, 0xff")
        a(f"ds_write_b32 v{vt[0]}, v{vt[1]} offset:{QQ}")
        a("s_mov_b64 exec, -1")
        a.label("L_dskip")
    a.c("wg combine")
    if opts.get("wolate", 1) == 2:
        spin_lds(F_PROG, opts.get("g4", 17), vt[2], sleep=8)
        wo_loads()
    if opts.get("wolate", 1) == 3:
        spin_lds(F_SCNT, 1, vt[2], sleep=4)
        if opts.get("wdlate", 1): wd_loads()
        wo_loads()
    spin_lds(F_SCNT, 4, vt[2], sleep=opts.get("hsleep", 2))
    a("s_setprio 3")
    if opts.get("dbgstamp") == 2:
        a(f"s_cmp_lg_u32 s{sW}, 5")
        a("s_cbranch_scc1 L_dbs1")
        a(f"s_cmp_lg_u32 s{sJ}, 3")
        a("s_cbranch_scc1 L_dbs1")
        a(f"s_cmp_eq_u32 s{sHP}, 0")
        a("s_cbranch_scc1 L_dbs1")
        a(f"s_memrealtime s[{sT64}:{sT64+1}]")
        a("s_waitcnt lgkmcnt(0)")
        a(f"s_sub_u32 s{sTmp}, s{sT64}, s{sNon}")
        a(f"v_mov_b32 v{vt[0]}, s{sTmp}")
        a(f"s_lshl_b32 s{sTmp}, s{sHP}, 2")
        a("s_mov_b64 exec, 1")
        a(f"buffer_store_dword v{vt[0]}, v{vZ}, {srd(rDBG)}, s{sTmp} offen")
        a("s_mov_b64 exec, -1")
        a.label("L_dbs1")
    stamp("s_all")
    a(f"v_and_b32 v{vt[5]}, 255, v0")
    a(f"v_lshlrev_b32 v{vt[0]}, 2, v{vt[5]}")
    a(f"v_lshrrev_b32 v{vt[1]}, 7, v{vt[5]}")
    a(f"v_lshlrev_b32 v{vt[1]}, 2, v{vt[1]}")
    mreg = [hR + i for i in range(4)]
    lreg = [hR + 4 + i for i in range(4)]
    oreg = [hR + 8 + i for i in range(4)]
    for w in range(4):
        a(f"ds_read_b32 v{mreg[w]}, v{vt[1]} offset:{COMB + w*CSTR + 1024}")
        a(f"ds_read_b32 v{lreg[w]}, v{vt[1]} offset:{COMB + w*CSTR + 1032}")
        a(f"ds_read_b32 v{oreg[w]}, v{vt[0]} offset:{COMB + w*CSTR}")
    a("s_waitcnt lgkmcnt(0)")
    M, Lr, Or = hA + 8, hA + 10, hA + 12
    combine(4, mreg, lreg, oreg, M, Lr, Or)
    a(f"v_mov_b32 v{M+1}, v{vNon}")
    a(f"v_mov_b32 v{Lr+1}, v{vNon}")
    a(f"v_mov_b32 v{Or+1}, v{vNon}")
    a(f"s_mul_i32 s{sOff}, s{sWGI}, {PSTR}")
    a(f"v_lshlrev_b32 v{vt[0]}, 3, v{vt[5]}")
    a(f"buffer_store_dwordx2 {vr(Or,2)}, v{vt[0]}, {srd(rWS)}, s{sOff} offen sc1")
    a(f"v_lshlrev_b32 v{vt[1]}, 2, v{vt[1]}")
    a(f"s_and_b32 s{sTmp}, s{sHW}, 1")
    a(f"s_cmp_lg_u32 s{sTmp}, 0")
    a("s_cbranch_scc1 L_mlskip")
    a("s_mov_b64 exec, 1")
    a(f"buffer_store_dwordx4 {vr(M,4)}, v{vt[1]}, {srd(rWS)}, s{sOff} offen offset:2048 sc1")
    a("s_mov_b64 exec, -1")
    a.label("L_mlskip")
    if opts.get("wolate", 1) == 1: wo_loads()
    stamp("published")
    a(f"s_cmp_lg_u32 s{sW}, 4")
    a("s_cbranch_scc1 L_ypath" if opts.get("wdlate", 1) else "s_cbranch_scc1 L_l1skip")
    a.c("level-1 poll")
    a(f"v_and_b32 v{vt[0]}, 15, v{vL}")
    a(f"v_mul_u32_u24 v{vt[0]}, {PSTR}, v{vt[0]}")
    a(f"s_lshr_b32 s{sTmp}, s{sRQ}, 1")
    a(f"s_lshl_b32 s{sTmp}, s{sTmp}, 4")
    a(f"s_mul_i32 s{sA0}, s{sHP}, {16*PSTR}")
    a(f"s_add_u32 s{sA1}, s{sA0}, s{sTmp}")
    THR = opts.get("thr", 15)
    a("s_mov_b64 exec, 0xffff")
    l0, l1 = retry_begin()
    a(f"buffer_load_dwordx4 {vr(hR,4)}, v{vt[0]}, {srd(rWS)}, s{sA1} offen offset:2048 sc1")
    a("s_waitcnt vmcnt(0)")
    a(f"v_cmp_eq_u32 vcc, v{vNon}, v{hR+1}")
    a(f"s_bcnt1_i32_b64 s{sTmp}, vcc")
    a(f"s_cmp_ge_u32 s{sTmp}, {THR}")
    a(f"s_cbranch_scc1 {l1}")
    a(f"s_sub_u32 s{sCnt}, s{sCnt}, 1")
    a(f"s_cmp_eq_u32 s{sCnt}, 0")
    a(f"s_cbranch_scc1 {l1}")
    a(f"s_sleep {opts.get('sleep1', 8)}")
    a(f"s_branch {l0}")
    a.label(l1)
    a("s_mov_b64 exec, -1")
    stamp("polled")
    a(f"s_lshl_b32 s{sTmp}, s{sRQ}, 9")
    a(f"s_add_u32 s{sA0}, s{sA0}, s{sTmp}")
    a(f"v_lshlrev_b32 v{vt[3]}, 3, v{vL}")
    hG = hR + 8
    ls = retry_begin()
    a(f"buffer_load_dwordx4 {vr(hR,4)}, v{vt[0]}, {srd(rWS)}, s{sA1} offen offset:2048 sc1")
    a(f"s_mov_b32 s{sOff}, s{sA0}")
    for p in range(16):
        a(f"buffer_load_dwordx2 {vr(hG+2*p,2)}, v{vt[3]}, {srd(rWS)}, s{sOff} offen sc1")
        a(f"s_add_u32 s{sOff}, s{sOff}, {PSTR}")
    retry_end(ls, [hR + 1, hR + 3] + [hG + 2 * p + 1 for p in range(16)], vt[1], vt[2], sleep=opts.get("sleep2", 2))
    mm, ll = hR + 4, hR + 5
    a(f"v_mov_b32 v{mm}, v{hR}")
    for ctrl in ("quad_perm:[1,0,3,2]", "quad_perm:[2,3,0,1]", "row_half_mirror", "row_mirror"):
        a.nop(2)
        a(f"v_max_f32_dpp v{mm}, v{mm}, v{mm} {ctrl} row_mask:0xf bank_mask:0xf")
    a(f"v_sub_f32 v{hR}, v{hR}, v{mm}")
    a(f"v_exp_f32 v{hR}, v{hR}")
    a.nop(1)
    a(f"v_mul_f32 v{ll}, v{hR}, v{hR+2}")
    for ctrl in ("quad_perm:[1,0,3,2]", "quad_perm:[2,3,0,1]", "row_half_mirror", "row_mirror"):
        a.nop(2)
        a(f"v_add_f32_dpp v{ll}, v{ll}, v{ll} {ctrl} row_mask:0xf bank_mask:0xf")
    a.nop(1)
    a(f"v_readlane_b32 s{sA1}, v{ll}, 0")
    for p in range(16):
        a(f"v_readlane_b32 s{sTmp}, v{hR}, {p}")
        a.nop(2)
        if p == 0:
            a(f"v_mul_f32 v{Or}, s{sTmp}, v{hG}")
        else:
            a(f"v_fmac_f32 v{Or}, s{sTmp}, v{hG+2*p}")
    a(f"v_mov_b32 v{Lr}, s{sA1}")
    a(f"v_rcp_f32 v{vt[3]}, v{Lr}")
    a.nop(1)
    a(f"v_mul_f32 v{vt[4]}, v{Or}, v{vt[3]}")
    a(f"v_fma_f32 v{vt[5]}, -v{vt[4]}, v{Lr}, v{Or}")
    a(f"v_fma_f32 v{Or}, v{vt[5]}, v{vt[3]}, v{vt[4]}")
    bf16_round(a, Or, Or)
    a(f"v_lshlrev_b32 v{vt[0]}, 2, v{vL}")
    a(f"ds_write_b32 v{vt[0]}, v{Or} offset:{INO}")
    lds_arrive(F_O, vt[2])
    stamp("gathered")
    if opts.get("wdlate", 1):
        a("s_branch L_l1skip")
        a.label("L_ypath")
        a("s_waitcnt vmcnt(0)")
        slice_matmul(INH, hW2 + 24, FIN2, F_YCNT, WS_Y2, "y_pub", nw=3)
    a.label("L_l1skip")
    spin_lds(F_O, 1, vt[2], sleep=0)
    a("s_waitcnt vmcnt(0)")
    slice_matmul(INO, hW2, FIN, F_ZCNT, WS_S2, "s_pub")
    a(f"s_cmp_lg_u32 s{sHP}, s{sJ}")
    a("s_cbranch_scc1 L_end")
    if opts.get("wdlate", 1) and not opts.get("merge"):
        fin_gather(WS_Y2, G2 + 2048, F_Y2CNT, opts.get('sleep3', 1))
    fin_gather(WS_S2, G2, F_S2CNT, opts.get('sleep3', 1), both=bool(opts.get("wdlate", 1) and opts.get("merge")))
    a(f"s_cmp_lg_u32 s{sTmp}, 3")
    a("s_cbranch_scc1 L_end")
    a.c("final: last arriver sums 4 waves x 3 pp for 36 cols")
    a(f"s_mul_i32 s{sTmp}, s{sJ}, 72")
    a(f"v_lshlrev_b32 v{vt[6]}, 1, v{vL}")
    a(f"v_add_u32 v{vt[6]}, s{sTmp}, v{vt[6]}")
    a("s_mov_b32 exec_hi, 0xf")
    a(f"v_lshlrev_b32 v{vt[0]}, 2, v{vL}")
    for w in range(4):
        for pp in range(3):
            a(f"ds_read_b32 v{hR+3*w+pp}, v{vt[0]} offset:{G2 + w*512 + pp*144}")
    if opts.get("wdlate", 1):
        for w in range(4):
            for pp in range(3):
                a(f"ds_read_b32 v{hR+12+3*w+pp}, v{vt[0]} offset:{G2 + 2048 + w*512 + pp*144}")
        a("s_waitcnt lgkmcnt(0)")
        for q in range(1, 12):
            a(f"v_add_f32 v{hR+12}, v{hR+12}, v{hR+12+q}")
        bf16_round(a, hR + 12, hR + 12)
        silu(hR + 12)
        a(f"v_lshlrev_b32 v{hR+13}, 16, v207")
    else:
        a(f"v_lshlrev_b32 v{vt[0]}, 3, v{vL}")
        a(f"ds_read_b64 {vr(hR+12,2)}, v{vt[0]} offset:{GX}")
        a("s_waitcnt lgkmcnt(0)")
    for q in range(1, 12):
        a(f"v_add_f32 v{hR}, v{hR}, v{hR+q}")
    sS = hR
    bf16_round(a, sS, sS)
    a(f"v_mul_f32 v{sS}, v{sS}, v{hR+12}")
    bf16_round(a, sS, sS)
    a(f"v_add_f32 v{sS}, v{sS}, v{hR+13}")
    a(f"v_cvt_pk_bf16_f32 v{sS}, v{sS}, v{sS}")
    a(f"buffer_store_short v{sS}, v{vt[6]}, {srd(rOUT)}, 0 offen")
    if not opts.get("dbgstamp"):
        a("s_mov_b64 exec, 1")
        a(f"buffer_store_dword v{vZ}, v{vZ}, {srd(rDBG)}, 0 offen sc1")
    if opts.get("dbgstamp") == 1:
        a(f"s_memrealtime s[{sT64}:{sT64+1}]")
        a("s_waitcnt lgkmcnt(0)")
        a(f"s_sub_u32 s{sTmp}, s{sT64}, s{sNon}")
        a(f"v_mov_b32 v{vt[0]}, s{sTmp}")
        a(f"s_lshl_b32 s{sTmp}, s{sJ}, 2")
        a(f"s_add_u32 s{sTmp}, s{sTmp}, 4")
        a(f"s_cmp_ge_u32 s{sJ}, 6")
        a("s_cbranch_scc1 L_end")
        a("s_mov_b64 exec, 1")
        a(f"buffer_store_dword v{vt[0]}, v{vZ}, {srd(rDBG)}, s{sTmp} offen")
    if STAMP:
        a("s_waitcnt vmcnt(0)")
    stamp("out")
    a.label("L_end")
    stamp_flush()
    a.label("L_exit")
    a("s_endpgm")
    a.L.append('.section .rodata,"a"')
    a.L.append(".p2align 6")
    a.L.append(f".amdhsa_kernel {KNAME}")
    a.L.append("  .amdhsa_next_free_vgpr 256")
    a.L.append("  .amdhsa_next_free_sgpr 102")
    a.L.append("  .amdhsa_accum_offset 256")
    a.L.append("  .amdhsa_group_segment_fixed_size 0")
    a.L.append("  .amdhsa_kernarg_size 96")
    a.L.append("  .amdhsa_user_sgpr_count 2")
    a.L.append("  .amdhsa_user_sgpr_kernarg_segment_ptr 1")
    a.L.append("  .amdhsa_system_sgpr_workgroup_id_x 1")
    a.L.append("  .amdhsa_float_denorm_mode_32 3")
    a.L.append(".end_amdhsa_kernel")
    return "\n".join(a.L) + "\n"

if __name__ == "__main__":
    out = sys.argv[1] if len(sys.argv) > 1 else "recurrent_scan__gqa_block_cached__swiglu_ffn__decode.s"
    opts = {}
    for kv in sys.argv[2:]:
        k, v = kv.split("=")
        opts[k] = int(v) if v.lstrip("-").isdigit() else v
    txt = gen(opts)
    if opts.get("stamp"):
        txt = txt.replace("\n", "\n; stamps=" + ",".join(opts["names"]) + "\n", 1)
    open(out, "w").write(txt)
    print("wrote", out)
```
